```python
import torch

def _softmax(x, axis=-1):
    return torch.softmax(x, dim=axis)
def _gelu(x):
    return torch.nn.functional.gelu(x, approximate="tanh")
def _silu(x):
    return torch.nn.functional.silu(x)
def _sigmoid(x):
    return torch.sigmoid(x)
def _layernorm(x, axis=-1, eps=1e-5):
    m = x.mean(dim=axis, keepdim=True)
    v = x.var(dim=axis, keepdim=True, unbiased=False)
    return (x - m) / torch.sqrt(v + eps)
def _scatter_add(tgt, idx, src, axis=0):
    return tgt.clone().index_add_(axis, idx, src)
def _segment_sum(src, seg, n):
    out = torch.zeros((n,) + src.shape[1:], dtype=src.dtype)
    return out.index_add_(0, seg, src)
def _pad(x, pw):
    flat = tuple(v for pair in reversed(pw) for v in pair)
    return torch.nn.functional.pad(x, flat)

kernel_name = 'recurrent_scan__gqa_block_cached__dense_activation_gelu__prompt'

def setup_inputs():

    _w = (lambda a: (lambda t: t.to(torch.bfloat16) if t.is_floating_point() else t)(torch.as_tensor(a)))
    def _A_setup():
        B, Sq, D = 1, 2048, 512
        Hq, Hkv, Sk, Dh = 32, 8, 2048, 128
        assert Hq % Hkv == 0, (Hq, Hkv)
        return {
            "x": _w((lambda *s: torch.randn(*s, dtype=torch.bfloat16) * 0.1)(B, Sq, D)),
            "k_cache": _w((lambda *s: torch.randn(*s, dtype=torch.bfloat16) * 0.8)(B, Hkv, Sk, Dh)),
            "v_cache": _w((lambda *s: torch.randn(*s, dtype=torch.bfloat16) * 3.2)(B, Hkv, Sk, Dh)),
            "wq": _w((lambda *s: torch.randn(*s, dtype=torch.bfloat16) * 0.8)(D, Hq * Dh) * (D ** -0.5)),
            "wo": _w((lambda *s: torch.randn(*s, dtype=torch.bfloat16) * 3.2)(Hq * Dh, D) * ((Hq * Dh) ** -0.5)),
        }
    _A_in = _A_setup()

    def _B_setup():
        B, S, D, F = 1, 2048, 512, 1792
        return {
            "x": _w((lambda *s: torch.randn(*s, dtype=torch.bfloat16) * 0.1)(B, S, D)),
            "w1": _w((lambda *s: torch.randn(*s, dtype=torch.bfloat16) * 3.2)(D, F) * (D ** -0.5)),
            "b1": _w((lambda *s: torch.randn(*s, dtype=torch.bfloat16) * 3.2)(F) * 0.01),
            "w2": _w((lambda *s: torch.randn(*s, dtype=torch.bfloat16) * 3.2)(F, D) * (F ** -0.5)),
            "b2": _w((lambda *s: torch.randn(*s, dtype=torch.bfloat16) * 3.2)(D) * 0.01),
        }
    _B_in = _B_setup()

    return {
        "A_x": _A_in["x"],
        "A_k_cache": _A_in["k_cache"],
        "A_v_cache": _A_in["v_cache"],
        "A_wq": _A_in["wq"],
        "A_wo": _A_in["wo"],
        "B_x": _B_in["x"],
        "B_w1": _B_in["w1"],
        "B_b1": _B_in["b1"],
        "B_w2": _B_in["w2"],
        "B_b2": _B_in["b2"],
    }

def reference(A_x, A_k_cache, A_v_cache, A_wq, A_wo, B_x, B_w1, B_b1, B_w2, B_b2):
    def _A_ref(x, k_cache, v_cache, wq, wo):
        B, Sq, D = x.shape
        Hq, Dh = 32, 128
        Hkv = k_cache.shape[1]
        rep = Hq // Hkv
        q = (lambda x, *d: x.permute(*d))((x @ wq).reshape(B, Sq, Hq, Dh), 0, 2, 1, 3)
        k = (lambda x, n, axis: torch.repeat_interleave(x, n, dim=axis))(k_cache, rep, axis=1)
        v = (lambda x, n, axis: torch.repeat_interleave(x, n, dim=axis))(v_cache, rep, axis=1)
        scores = torch.einsum("bhqd,bhkd->bhqk", q, k) * (Dh ** -0.5)
        p = _softmax(scores, axis=-1)
        o = torch.einsum("bhqk,bhkd->bhqd", p, v)
        return (lambda x, *d: x.permute(*d))(o, 0, 2, 1, 3).reshape(B, Sq, Hq * Dh) @ wo

    def _B_ref(x, w1, b1, w2, b2):
        h = torch.einsum("bsd,df->bsf", x, w1) + b1
        h = _gelu(h)
        return torch.einsum("bsf,fd->bsd", h, w2) + b2

    x = A_x
    xn = _layernorm(x, axis=-1)
    s = _A_ref(xn, A_k_cache, A_v_cache, A_wq, A_wo)
    g = _silu(_B_ref(xn, B_w1, B_b1, B_w2, B_b2))
    return x + s * g
```

```python
import re

REG_RE = re.compile(r'(?<![\w.])(-?)(?:abs\()?([vas])(?:(\d+)|\[(\d+):(\d+)\])\)?(?![\w])')
TRANS = ('v_exp_f32', 'v_rcp_f32', 'v_rsq_f32', 'v_sqrt_f32', 'v_log_f32')

def regs_of(op):
    op = op.strip()
    out = []
    for m in REG_RE.finditer(op):
        f = m.group(2)
        if m.group(3) is not None:
            out.append(f + m.group(3))
        else:
            out += [f + str(i) for i in range(int(m.group(4)), int(m.group(5)) + 1)]
    for sp in ('m0', 'vcc', 'exec'):
        if re.search(r'(?<![\w])' + sp + r'(?![\w])', op):
            out.append(sp)
    return out

def split_ops(s):
    out, depth, cur = [], 0, ''
    for ch in s:
        if ch in '[(': depth += 1
        if ch in '])': depth -= 1
        if ch == ',' and depth == 0:
            out.append(cur); cur = ''
        else:
            cur += ch
    if cur.strip(): out.append(cur)
    return [o.strip() for o in out]

class Ins:
    __slots__ = ('text', 'kind', 'rd', 'wr', 'tag', 'vm', 'lgkm', 'vmN', 'lgkmN', 'srcC', 'srcAB', 'res_r', 'res_w', 'wide', 'data', 'cmt')
    def __init__(self, text, tag=None, res_r=None, res_w=None, cmt=None):
        self.text = text; self.tag = tag; self.vm = None; self.lgkm = None; self.vmN = None; self.lgkmN = None
        self.srcC = []; self.srcAB = []; self.res_r = res_r; self.res_w = res_w; self.wide = False; self.data = []; self.cmt = cmt
        t = text.strip()
        if t.endswith(':') or t.startswith('.') or t.startswith(';'):
            self.kind = 'label'; self.rd = set(); self.wr = set(); return
        sp = t.split(None, 1)
        mn = sp[0]; ops = split_ops(sp[1]) if len(sp) > 1 else []
        R = [regs_of(o) for o in ops]
        allr = lambda lo: set(r for x in R[lo:] for r in x)
        rd, wr = set(), set()
        if mn.startswith('v_mfma'):
            k = 'mfma'; wr = set(R[0]); rd = allr(1); self.srcC = R[3]; self.srcAB = R[1] + R[2]
        elif mn.startswith('v_smfmac'):
            k = 'mfma'; wr = set(R[0]); rd = allr(0); self.srcC = R[0]; self.srcAB = R[1] + R[2] + R[3]
        elif mn.startswith('v_permlane'):
            k = 'perm'; wr = allr(0); rd = allr(0)
        elif mn.startswith('v_readfirstlane') or mn.startswith('v_readlane'):
            k = 'rdlane'; wr = set(R[0]); rd = allr(1)
        elif mn.startswith('v_nop'):
            k = 'valu'
        elif mn.startswith('v_'):
            k = 'trans' if mn.replace('_e32', '').replace('_e64', '') in TRANS else 'valu'
            wr = set(R[0]); rd = allr(1)
            if mn.startswith('v_fmac') or mn.startswith('v_dot2c') or mn.startswith('v_pk_fmac'): rd |= wr
            if re.match(r'v_(add|sub|subrev)_co_u32|v_addc_co', mn): wr |= set(R[1]); rd = allr(2)
        elif mn.startswith('ds_read') or mn.startswith('ds_bpermute') or mn.startswith('ds_swizzle'):
            k = 'dsr'; wr = set(R[0]); rd = allr(1)
        elif mn.startswith('ds_write'):
            k = 'dsw'; rd = allr(0); self.data = R[1]; self.wide = len(R[1]) >= 3
        elif mn.startswith('buffer_load') and re.search(r'\blds\b', t):
            k = 'dma'; rd = allr(0) | {'m0'}
        elif mn.startswith('buffer_load') or mn.startswith('global_load'):
            k = 'vld'; wr = set(R[0]); rd = allr(1)
        elif mn.startswith('buffer_store') or mn.startswith('buffer_atomic'):
            k = 'vst'; rd = allr(0); self.data = R[0]; self.wide = len(R[0]) >= 3
            if mn.startswith('buffer_atomic') and re.search(r'\bsc0\b', t): k = 'vld'; wr = set(R[0])
        elif mn.startswith('global_store') or mn.startswith('global_atomic'):
            k = 'vst'; rd = allr(0); self.data = R[1]; self.wide = len(R[1]) >= 3
        elif mn.startswith('buffer_inv') or mn.startswith('buffer_wbl2'):
            k = 'vst'
        elif mn.startswith('s_load') or mn.startswith('s_memtime') or mn.startswith('s_memrealtime'):
            k = 'smem'; wr = set(R[0]); rd = allr(1)
        elif mn == 's_waitcnt':
            k = 'wait'
            m = re.search(r'vmcnt\((\d+)\)', t); self.vmN = int(m.group(1)) if m else None
            m = re.search(r'lgkmcnt\((\d+)\)', t); self.lgkmN = int(m.group(1)) if m else None
        elif mn == 's_barrier': k = 'barrier'
        elif mn == 's_nop': k = 'nop'
        elif mn.startswith('s_cbranch') or mn in ('s_branch', 's_endpgm', 's_setprio', 's_sleep'):
            k = 'ctl'
        elif mn.startswith('s_cmp') or mn.startswith('s_bitcmp'):
            k = 'salu'; rd = allr(0)
        elif mn.startswith('s_'):
            k = 'salu'; wr = set(R[0]); rd = allr(1)
            if 'saveexec' in mn: wr |= {'exec'}; rd |= {'exec'}
            if mn.startswith('s_addk') or mn.startswith('s_mulk'): rd |= wr
        else:
            raise ValueError("unknown instr " + text)
        self.kind = k; self.rd = rd; self.wr = wr
    def cost(self):
        if self.kind in ('trans', 'dma', 'vld', 'vst'): return 2
        if self.kind == 'label': return 0
        if self.kind == 'nop': return int(self.text.split()[1]) + 1
        return 1
    def is_valu(self): return self.kind in ('valu', 'trans', 'perm', 'rdlane')
    def is_mem(self): return self.kind in ('dsr', 'dsw', 'dma', 'vld', 'vst')
    def emit(self):
        if self.kind == 'wait' and (self.vm is not None or self.lgkm is not None):
            p = []
            if self.vmN is not None: p.append(f"vmcnt({min(self.vmN, 63)})")
            if self.lgkmN is not None: p.append(f"lgkmcnt({min(self.lgkmN, 15)})")
            assert p, "unresolved wait"
            t = "s_waitcnt " + " ".join(p)
        else:
            t = self.text
        if self.kind == 'label': return t
        return "    " + t + (f"  ; {self.cmt}" if self.cmt else "")

def I(text, **kw): return Ins(text, **kw)

def W(vm=None, lgkm=None):
    w = Ins("s_waitcnt vmcnt(0)")
    w.vm = list(vm) if vm is not None else None; w.lgkm = list(lgkm) if lgkm is not None else None
    w.vmN = None; w.lgkmN = None
    return w

def resolve_waits(trace):
    vmq, lq = [], []
    for ins in trace:
        if ins.kind in ('dma', 'vld', 'vst'): vmq.append(ins.tag)
        elif ins.kind in ('dsr', 'dsw'): lq.append(ins.tag)
        elif ins.kind == 'wait':
            for tg, q, attr in ((ins.vm, vmq, 'vmN'), (ins.lgkm, lq, 'lgkmN')):
                if tg is None: continue
                n = None
                for i in range(len(q) - 1, -1, -1):
                    if q[i] in tg:
                        n = len(q) - 1 - i; break
                assert n is not None, f"wait target {tg} never issued"
                cur = getattr(ins, attr)
                setattr(ins, attr, n if cur is None else min(cur, n))

def check(trace, verbose=True):
    errs = []
    tr = [x for x in trace if x.kind != 'label']
    pos = []; p = 0
    for x in tr:
        pos.append(p)
        p += (int(x.text.split()[1]) + 1) if x.kind == 'nop' else 1
    def err(i, j, msg): errs.append(f"{msg}: [{j}] {tr[j].text}  ->  [{i}] {tr[i].text}")
    for i, x in enumerate(tr):
        j = i - 1
        while j >= 0:
            y = tr[j]
            d = pos[i] - pos[j] - 1
            if y.kind == 'nop': j -= 1; continue
            if d >= 9: break
            if y.is_valu():
                w = y.wr
                if x.kind == 'mfma' and d < 2 and (w & x.rd): err(i, j, "VALU->MFMA<2")
                if x.kind == 'perm' and d < 2 and (w & x.rd): err(i, j, "VALU->permlane<2")
                if x.kind == 'rdlane' and d < 1 and (w & x.rd): err(i, j, "VALU->readlane<1")
                if y.kind == 'trans' and x.kind in ('valu', 'perm', 'rdlane') and d < 1 and (w & x.rd): err(i, j, "trans->VALU<1")
                sw = set(r for r in w if r[0] == 's' or r == 'vcc')
                if sw:
                    if x.is_valu() and d < 2 and (sw & x.rd): err(i, j, "VALU sgpr->VALU<2")
                    if x.kind in ('dma', 'vld', 'vst') and d < 5 and (sw & x.rd): err(i, j, "VALU sgpr->VMEM<5")
                if 'dpp' in x.text or 'row_' in x.text:
                    if d < 2 and (w & x.rd): err(i, j, "VALU->DPP<2")
            if y.kind == 'mfma':
                D = y.wr
                if x.kind == 'mfma':
                    if d < 8 and (D & set(x.srcAB)): err(i, j, "MFMA D->MFMA AB<8")
                    c = set(x.srcC)
                    if (D & c) and c != D and d < 6: err(i, j, "MFMA D->MFMA C partial<6")
                elif x.is_valu() or x.is_mem():
                    if d < 8 and (D & (x.rd | x.wr)): err(i, j, "MFMA D->VALU/mem<8")
                    if x.is_valu() and d < 3 and (set(y.srcC) & x.wr): err(i, j, "MFMA C WAR<3")
            if y.kind == 'salu' and 'm0' in y.wr and x.kind == 'dma' and d < 1: err(i, j, "M0->DMA<1")
            if y.kind in ('vst', 'dsw') and y.wide and d < 2 and (set(y.data) & x.wr): err(i, j, "store data WAR<2")
            j -= 1
    vmq, lq, sm = [], [], []
    res = {}
    def R(n): return res.setdefault(n, dict(w=[], wb=False, r=[], rb=False))
    for i, x in enumerate(tr):
        touched = x.rd | x.wr
        for q, nm in ((vmq, 'vm'), (lq, 'lgkm'), (sm, 'smem')):
            for y in q:
                if y.wr & touched:
                    if nm != 'smem' and not (y.wr & x.rd) and ((nm == 'lgkm' and x.kind == 'dsr') or (nm == 'vm' and x.kind == 'vld')): continue
                    errs.append(f"use before {nm} wait: {y.text} -> [{i}] {x.text}")
        if x.res_r:
            for (n, shared) in x.res_r:
                r = R(n)
                for y in r['w']:
                    if (y in vmq) or (shared and y in lq): errs.append(f"LDS RAW {n}: write not waited: {y.text} -> [{i}] {x.text}")
                if shared and r['wb']: errs.append(f"LDS RAW {n}: no barrier after write -> [{i}] {x.text}")
                r['r'].append(x); r['rb'] = True
        if x.res_w:
            for (n, shared) in x.res_w:
                r = R(n)
                for y in r['r']:
                    if y in lq and (x.kind == 'dma' or shared): errs.append(f"LDS WAR {n}: read not waited: {y.text} -> [{i}] {x.text}")
                if shared and r['rb']: errs.append(f"LDS WAR {n}: no barrier after read -> [{i}] {x.text}")
                r['w'].append(x); r['wb'] = True
        if x.kind in ('dma', 'vld', 'vst'): vmq.append(x)
        elif x.kind in ('dsr', 'dsw'): lq.append(x)
        elif x.kind == 'smem': sm.append(x)
        elif x.kind == 'wait':
            if x.vmN is not None:
                n = min(x.vmN, 63)
                vmq[:] = vmq[len(vmq) - n:] if n else []
            if x.lgkmN is not None:
                n = min(x.lgkmN, 15)
                if n == 0: sm[:] = []
                elif sm: errs.append(f"counted lgkm wait with smem outstanding [{i}]")
                lq[:] = lq[len(lq) - n:] if n else []
        elif x.kind == 'barrier':
            for n, r in res.items():
                r['w'] = [y for y in r['w'] if y in vmq or y in lq]
                r['r'] = [y for y in r['r'] if y in lq]
                r['wb'] = bool(r['w']); r['rb'] = bool(r['r'])
        if len(lq) > 15 and x.kind in ('dsr', 'dsw'):
            pass
    if verbose:
        for e in errs[:40]: print("CHECK:", e)
        if len(errs) > 40: print("... total", len(errs))
    return errs

class Gaps:
    def __init__(self, mfmas, cap=2):
        self.m = list(mfmas); n = len(self.m)
        self.pre = [[] for _ in range(n)]; self.post = [[] for _ in range(n)]
        self.cap = [cap] * n
        self.head = []
    def __len__(self): return len(self.m)
    def used(self, i): return sum(x.cost() for x in self.pre[i]) + sum(x.cost() for x in self.post[i])
    def free(self, i): return self.cap[i] - self.used(i)
    def pin(self, i, ins, post=None):
        if post is None: post = ins.is_valu()
        (self.post if post else self.pre)[i].append(ins)
        return (i, post)
    def place(self, ins, lo, hi=None, after=None, force=True):
        n = len(self.m)
        if hi is None: hi = n - 1
        hi = min(hi, n - 1)
        def ok_order(i):
            if after is None or i > after[0]: return ins.is_valu()
            if i < after[0]: return None
            if after[1]:
                if ins.is_mem(): return None
                return True
            return ins.is_valu()
        for i in range(lo, hi + 1):
            p = ok_order(i)
            if p is None: continue
            if self.free(i) >= ins.cost(): return self.pin(i, ins, p)
        assert force, "no room for " + ins.text
        best = None
        for i in range(lo, hi + 1):
            p = ok_order(i)
            if p is None: continue
            if best is None or self.free(i) > self.free(best[0]): best = (i, p)
        if best is None:
            return self.pin(hi, ins, True)
        return self.pin(best[0], ins, best[1])
    def stream(self, items, lo, hi, spread=False):
        its = [(x, lo) if isinstance(x, Ins) else x for x in items]
        need = sum(x.cost() for x, _ in its)
        hi = min(hi, len(self.m) - 1)
        while True:
            snap = ([list(g) for g in self.pre], [list(g) for g in self.post])
            h = None; okay = True
            tot = sum(max(0, self.free(i)) for i in range(lo, hi + 1))
            acc = 0; cum = []
            for i in range(lo, hi + 1):
                cum.append(acc); acc += max(0, self.free(i))
            done = 0
            for x, e in its:
                st = max(lo, e)
                if spread and tot > need:
                    target = done * tot / need
                    k = st - lo
                    while k + 1 < len(cum) and cum[k + 1] <= target: k += 1
                    st = max(st, lo + k)
                try:
                    h = self.place(x, st, hi, after=h, force=False)
                except AssertionError:
                    okay = False; break
                done += x.cost()
            if okay: return h
            self.pre, self.post = snap
            if spread and tot > need:
                spread = False; continue
            mn = min(self.cap[lo:hi + 1])
            cand = [i for i in range(lo, hi + 1) if self.cap[i] == mn]
            k = max(1, len(cand) // 8)
            step = len(cand) / k
            for t in range(k): self.cap[cand[int(t * step + step / 2)]] += 1
    def flat(self):
        out = list(self.head)
        for i, m in enumerate(self.m):
            out.append(m); out += self.pre[i]; out += self.post[i]
        return out
    def cycles(self):
        return sum(max(16, 8 + 4 * self.used(i)) for i in range(len(self.m)))
```

```python
import sys, struct, math
from asmlib import *

NAME = "recurrent_scan__gqa_block_cached__dense_activation_gelu__prompt"
OPT = dict(dump=None, stamps=False)
for a in sys.argv[1:]:
    k, _, v = a.partition('=')
    OPT[k] = v if v else True

def f2u(x): return struct.unpack('<I', struct.pack('<f', x))[0]
def hx(x): return f"0x{x & 0xffffffff:x}"
def vr(b, n=4): return f"v[{b}:{b+n-1}]" if n > 1 else f"v{b}"
def ar(b, n=4): return f"a[{b}:{b+n-1}]" if n > 1 else f"a{b}"
def sr(b, n=4): return f"s[{b}:{b+n-1}]" if n > 1 else f"s{b}"

S_W = 3
SRD_X, SRD_K, SRD_V, SRD_WQ, SRD_WO, SRD_W1, SRD_W2, SRD_WS, SRD_OUT, SRD_B1, SRD_B2, SRD_DBG = range(4, 52, 4)
S_G, S_R = 52, 53
S_SM1, S_SMQ, S_SM2 = 54, 57, 60
S_RING = 63
S_KO = 64
S_VO = 66
S_CNT, S_PASS = 68, 69
S_QS, S_GB = 70, 71
S_YO = 72
S_T = 76
S_STAMP = 96

V_KA, V_VA, V_DV, V_SPI, V_L16 = 0, 4, 12, 14, 15
V_NEGM, V_S, V_SPA = 16, 32, 44
V_T = 48
V_Q, V_P = 64, 128
V_WA = 4
V_AF = 16
V_W1, V_WQ, V_W2, V_GA = 48, 49, 50, 51
V_ACCA, V_ACCB = 128, 192
V_B1 = 64
def XN(ks, qb): return ((15 - ks) * 4 + qb) * 4
A_O, A_L, A_KF, A_VF = 0, 128, 144, 176

LDS_V, LDS_X = 65536, 131072
WS_S, WS_Y, WS_DUMP = 0, 16 << 20, 64 << 20

mf = lambda d, a, b, c: I(f"v_mfma_f32_16x16x32_bf16 {d}, {a}, {b}, {c}")

segs = {}
def stamp(i):
    if not OPT['stamps']: return []
    return [I(f"s_memtime s[{S_STAMP}:{S_STAMP+1}]"), I("s_waitcnt lgkmcnt(0)"),
            I(f"v_mov_b32 v63, s{S_STAMP}"), I(f"v_mov_b32 v62, s98"),
            I(f"buffer_store_dword v63, v62, {sr(SRD_WS)}, 0 offen offset:{i*4}", tag='stamp')]

def dump_regs(groups):
    L = [I("s_waitcnt vmcnt(0) lgkmcnt(0)"), I("s_nop 7"), I("s_nop 7")]
    L += [I(f"s_lshl_b32 s{S_T}, s2, 2"), I(f"s_add_u32 s{S_T}, s{S_T}, s{S_W}"),
          I(f"s_mul_i32 s{S_T}, s{S_T}, {len(groups)*1024}"), I(f"s_add_u32 s{S_T}, s{S_T}, {hx(WS_DUMP)}")]
    for g in groups:
        L.append(I(f"buffer_store_dwordx4 {g}, v{V_L16}, {sr(SRD_WS)}, s{S_T} offen"))
        L.append(I("s_nop 3"))
        L.append(I(f"s_add_u32 s{S_T}, s{S_T}, 1024"))
    L += [I("s_waitcnt vmcnt(0)"), I("s_endpgm")]
    return L

def srd(L, base, p, nbytes):
    L += [I(f"s_mov_b32 s{base}, s{p}"), I(f"s_mov_b32 s{base+1}, s{p+1}"),
          I(f"s_mov_b32 s{base+2}, {hx(nbytes)}"), I(f"s_mov_b32 s{base+3}, 0x20000")]

def dma_w(srdb, vreg, sm, i, tag, res):
    so = "0" if (i & 3) == 0 else f"s{sm + (i & 3) - 1}"
    off = f" offset:{(i & 3) * 1024}" if i & 3 else ""
    return I(f"buffer_load_dwordx4 v{vreg}, {sr(srdb)}, {so} offen{off} lds", tag=tag, res_w=res)

STAGES = []
for kq in range(4): STAGES.append(dict(m='w1', srd=SRD_W1, v=V_W1, sm=S_SM1, stride=3584, nks=4, ks0=4*kq, acc=V_ACCA, first=kq == 0, last=kq == 3, adj=0))
for hq in range(2):
    for kq in range(4): STAGES.append(dict(m='wq', hq=hq, srd=SRD_WQ, v=V_WQ, sm=S_SMQ, stride=8192, nks=4, ks0=4*kq, acc=V_ACCB, first=kq == 0, last=kq == 3,
                                           adj=(-512*8192 + 128) if kq == 3 else 0))
for hc in range(2):
    for kq in range(2): STAGES.append(dict(m='w2', hc=hc, srd=SRD_W2, v=V_W2, sm=S_SM2, stride=1024, nks=4 - kq, ks0=4*kq, acc=V_ACCA if hc == 0 else V_ACCB, first=kq == 0, last=kq == 1,
                                           adj=(-224*1024 + 512) if kq == 1 else 0))

def stage_dma(s):
    st = STAGES[s]; L = []
    for j in range(st['nks']):
        L.append(I(f"s_add_u32 m0, s{S_RING}, {hx((s & 1) * 65536 + j * 4096)}"))
        for i in range(4):
            L.append(dma_w(st['srd'], st['v'], st['sm'], i, f"st{s}", [(f"slot{s&1}", False)]))
        step = 32 * st['stride'] + (st['adj'] if j == st['nks'] - 1 else 0)
        L.append(I(f"v_add_u32 v{st['v']}, {hx(step)}, v{st['v']}"))
    return L

def with_m0_pad(L):
    out = []
    for i, x in enumerate(L):
        out.append(x)
        if 'm0' in x.wr and i + 1 < len(L) and L[i+1].kind == 'dma': out.append(I("s_nop 0"))
    return out

def phase0():
    L = []
    A = lambda t, **k: L.append(I(t, **k))
    A("s_cmp_ge_u32 s2, 256"); A("s_cbranch_scc1 L_END")
    A("s_load_dwordx16 s[64:79], s[0:1], 0")
    A("s_load_dwordx8 s[80:87], s[0:1], 64")
    A("s_load_dwordx2 s[88:89], s[0:1], 96")
    t0, t1, t2, t3, ln, n16, g4 = 56, 57, 58, 59, 60, 61, 62
    A(f"v_lshrrev_b32 v{t0}, 6, v0")
    A(f"v_and_b32 v{ln}, 63, v0")
    A(f"v_readfirstlane_b32 s{S_W}, v{t0}")
    A(f"v_and_b32 v{n16}, 15, v{ln}")
    A(f"v_lshrrev_b32 v{g4}, 4, v{ln}")
    A(f"v_lshlrev_b32 v{V_L16}, 4, v{ln}")
    A(f"s_and_b32 s{S_G}, s2, 7"); A(f"s_lshr_b32 s{S_R}, s2, 3")
    A(f"s_lshl_b32 s90, s{S_R}, 16"); A(f"s_lshl_b32 s91, s{S_W}, 14"); A(f"s_add_u32 s90, s90, s91")
    A(f"s_mov_b32 s{S_RING}, s91")
    A(f"v_lshlrev_b32 v{t0}, 10, v{n16}")
    A(f"v_lshl_add_u32 v{t0}, v{g4}, 4, v{t0}")
    A("s_waitcnt lgkmcnt(0)")
    srd(L, SRD_X, 64, 2048*512*2)
    for ks in range(16):
        A(f"buffer_load_dwordx4 {vr(64+4*ks)}, v{t0}, {sr(SRD_X)}, s90 offen offset:{ks*64}", tag='x')
    srd(L, SRD_W1, 76, 512*1792*2)
    srd(L, SRD_B1, 78, 1792*2)
    A(f"v_and_b32 v{t1}, 7, v{ln}"); A(f"v_lshlrev_b32 v{t2}, 1, v{g4}"); A(f"v_xor_b32 v{t1}, v{t1}, v{t2}")
    A(f"v_lshlrev_b32 v{t1}, 4, v{t1}")
    A(f"v_lshrrev_b32 v{t2}, 5, v{ln}"); A(f"v_bfe_u32 v{t3}, v{ln}, 3, 2"); A(f"v_lshl_add_u32 v{t2}, v{t2}, 3, v{t3}")
    A(f"s_mul_i32 s92, s{S_G}, 448"); A("s_and_b32 s92, s92, 0xffffff80"); A(f"s_lshl_b32 s93, s{S_W}, 7"); A("s_add_u32 s92, s92, s93")
    A(f"v_mul_u32_u24 v{V_W1}, 3584, v{t2}"); A(f"v_add3_u32 v{V_W1}, v{V_W1}, v{t1}, s92")
    for i in range(1, 4):
        A(f"s_mov_b32 s{S_SM1+i-1}, {hx((16*(i&1) + 4*(i>>1))*3584 - 1024*i)}")
    L += with_m0_pad(stage_dma(0))
    A(f"v_lshlrev_b32 v{t3}, 3, v{g4}")
    for ct in range(4):
        A(f"buffer_load_dwordx2 {vr(40+2*ct,2)}, v{t3}, {sr(SRD_B1)}, s92 offen offset:{32*ct}", tag='b1')
    A(f"s_lshl_b32 s94, s{S_G}, 19")
    A("s_add_u32 s66, s66, s94"); A("s_addc_u32 s67, s67, 0")
    A("s_add_u32 s68, s68, s94"); A("s_addc_u32 s69, s69, 0")
    srd(L, SRD_K, 66, 524288); srd(L, SRD_V, 68, 524288)
    srd(L, SRD_WQ, 70, 512*4096*2); srd(L, SRD_WO, 72, 4096*512*2)
    srd(L, SRD_W2, 80, 1792*512*2); srd(L, SRD_B2, 82, 1024); srd(L, SRD_OUT, 84, 2048*512*2)
    srd(L, SRD_DBG, 86, 256); srd(L, SRD_WS, 88, 1 << 28)
    if OPT['stamps']:
        A("s_lshl_b32 s98, s2, 2"); A(f"s_add_u32 s98, s98, s{S_W}"); A("s_lshl_b32 s98, s98, 7"); A(f"s_add_u32 s98, s98, {hx(WS_DUMP)}")
    A(f"s_lshl_b32 s92, s{S_G}, 10"); A(f"s_lshl_b32 s93, s{S_W}, 8"); A("s_add_u32 s92, s92, s93")
    A(f"v_lshlrev_b32 v{V_WQ}, 13, v{t2}"); A(f"v_add3_u32 v{V_WQ}, v{V_WQ}, v{t1}, s92")
    for i in range(1, 4):
        A(f"s_mov_b32 s{S_SMQ+i-1}, {hx((16*(i&1) + 4*(i>>1))*8192 - 1024*i)}")
        A(f"s_mov_b32 s{S_SM2+i-1}, {hx(8192*i - 1024*i)}")
    A(f"s_mul_i32 s92, s{S_G}, {224*1024}"); A(f"s_lshl_b32 s93, s{S_W}, 7"); A("s_add_u32 s92, s92, s93")
    A(f"v_lshrrev_b32 v{t2}, 3, v{ln}"); A(f"v_lshlrev_b32 v{V_W2}, 10, v{t2}"); A(f"v_add3_u32 v{V_W2}, v{V_W2}, v{t1}, s92")
    A(f"v_lshrrev_b32 v{t1}, 2, v{ln}")
    A(f"v_lshlrev_b32 v{t1}, 7, v{t1}")
    A(f"v_and_b32 v{t2}, 3, v{ln}"); A(f"v_lshl_add_u32 v{t1}, v{t2}, 3, v{t1}")
    A(f"v_add_u32 v{t1}, s{S_RING}, v{t1}")
    A(f"v_bfe_u32 v{t2}, v{ln}, 3, 2")
    for ct in range(4):
        A(f"v_xor_b32 v{t3}, {ct}, v{t2}")
        A(f"v_lshl_add_u32 v{V_WA+ct}, v{t3}, 5, v{t1}")
        A(f"v_add_u32 v{V_WA+4+ct}, 0x10000, v{V_WA+ct}")
    A(f"v_and_b32 v{t1}, 7, v{ln}"); A(f"v_lshlrev_b32 v{t1}, 1, v{t1}"); A(f"v_xor_b32 v{t1}, v{t1}, v{g4}")
    A(f"v_lshlrev_b32 v{t2}, 8, v{n16}")
    for kk in range(4):
        A(f"v_xor_b32 v{t3}, {4*kk}, v{t1}")
        A(f"v_lshl_add_u32 v{V_KA+kk}, v{t3}, 4, v{t2}")
    A(f"v_lshlrev_b32 v{t1}, 1, v{g4}"); A(f"v_xor_b32 v{t1}, v{t1}, v{n16}"); A(f"v_lshlrev_b32 v{t2}, 8, v{g4}")
    A(f"v_lshl_add_u32 v{V_DV}, v{t1}, 4, v{t2}")
    A(f"v_xor_b32 v{V_DV+1}, 0x80, v{V_DV}")
    A(f"s_mov_b32 s{S_QS}, {hx(f2u(128**-0.5 * math.log2(math.e)))}")
    ga = -2*0.7978845608028654*math.log2(math.e)
    A(f"s_mov_b32 s{S_GB}, {hx(f2u(ga*0.044715))}")
    A(f"v_mov_b32 v{V_GA}, {hx(f2u(ga))}")
    A(f"s_lshl_b32 s92, s{S_R}, 3"); A(f"s_add_u32 s92, s92, s{S_W}"); A("s_lshl_b32 s92, s92, 3"); A(f"s_add_u32 s92, s92, s{S_G}")
    A("s_lshl_b32 s92, s92, 13"); A(f"s_add_u32 s{S_YO}, s92, {hx(WS_Y)}")
    A(f"s_add_u32 s{S_YO+1}, s{S_YO}, 4096"); A(f"s_add_u32 s{S_YO+2}, s{S_YO}, {4*8*8192}"); A(f"s_add_u32 s{S_YO+3}, s{S_YO+1}, {4*8*8192}")
    A(f"s_mov_b32 s{S_PASS}, 0")
    L += stamp(0)
    L.append(W(vm=['x']))
    L += stamp(1)
    F = 128
    for i in range(64):
        A(f"v_lshlrev_b32 v{F+2*i}, 16, v{64+i}")
        A(f"v_and_b32 v{F+2*i+1}, 0xffff0000, v{64+i}")
    sa, qa = 16, 24
    for i in range(64):
        k = i & 3
        x = vr(F+2*i, 2)
        if i < 4:
            A(f"v_pk_mul_f32 {vr(qa+2*k,2)}, {x}, {x}")
        else:
            src = vr(F+2*k, 2) if i < 8 else vr(sa+2*k, 2)
            A(f"v_pk_add_f32 {vr(sa+2*k,2)}, {src}, {x}")
            A(f"v_pk_fma_f32 {vr(qa+2*k,2)}, {x}, {x}, {vr(qa+2*k,2)}")
    for b in (sa, qa):
        A(f"v_pk_add_f32 {vr(b,2)}, {vr(b,2)}, {vr(b+2,2)}"); A(f"v_pk_add_f32 {vr(b+4,2)}, {vr(b+4,2)}, {vr(b+6,2)}")
    for b in (sa, qa): A(f"v_pk_add_f32 {vr(b,2)}, {vr(b,2)}, {vr(b+4,2)}")
    for b in (sa, qa): A(f"v_add_f32 v{b}, v{b}, v{b+1}")
    for sw in ("v_permlane32_swap_b32", "v_permlane16_swap_b32"):
        for b in (sa, qa): A(f"v_mov_b32 v{b+1}, v{b}")
        A("s_nop 1")
        for b in (sa, qa): A(f"{sw} v{b}, v{b+1}")
        for b in (sa, qa): A(f"v_add_f32 v{b}, v{b}, v{b+1}")
    A(f"v_mul_f32 v{sa}, {hx(f2u(1/512))}, v{sa}")
    A(f"v_mul_f32 v{qa}, {hx(f2u(1/512))}, v{qa}")
    A(f"v_fma_f32 v{qa}, -v{sa}, v{sa}, v{qa}")
    A(f"v_max_f32 v{qa}, 0, v{qa}")
    A(f"v_cvt_pk_bf16_f32 v{sa+1}, v{sa}, v{qa}")
    A(f"v_lshlrev_b32 v{sa}, 16, v{sa+1}")
    A(f"v_and_b32 v{qa}, 0xffff0000, v{sa+1}")
    A(f"v_add_f32 v{qa}, {hx(f2u(1e-5))}, v{qa}")
    A(f"v_cvt_pk_bf16_f32 v{qa}, v{qa}, v{qa}"); A(f"v_and_b32 v{qa}, 0xffff0000, v{qa}")
    A(f"v_sqrt_f32 v{qa}, v{qa}"); A("s_nop 0")
    A(f"v_cvt_pk_bf16_f32 v{qa}, v{qa}, v{qa}"); A(f"v_and_b32 v{qa}, 0xffff0000, v{qa}")
    A(f"v_rcp_f32 v{qa}, v{qa}"); A("s_nop 0")
    A(f"v_mul_f32 v{sa}, v{sa}, v{qa}")
    A(f"v_sub_f32 v{sa}, 0, v{sa}")
    A(f"v_mov_b32 v{qa+1}, v{qa}"); A(f"v_mov_b32 v{sa+1}, v{sa}")
    xa = 32
    A(f"v_add_u32 v{xa}, s{S_RING}, v{V_L16}"); A(f"v_add_u32 v{xa}, 0x10000, v{xa}")
    A(f"v_add_u32 v{xa+1}, 0x10000, v{V_L16}")
    for ks in range(16):
        for i in range(4*ks, 4*ks+4):
            A(f"v_pk_fma_f32 {vr(F+2*i,2)}, {vr(F+2*i,2)}, {vr(qa,2)}, {vr(sa,2)}")
        for i in range(4*ks, 4*ks+4):
            A(f"v_cvt_pk_bf16_f32 v{64+i}, v{F+2*i}, v{F+2*i+1}")
        A(f"ds_write_b128 v{xa}, {vr(64+4*ks)} offset:{ks*1024}", tag='xw', res_w=[('slot1', True)])
    L.append(W(lgkm=['xw'])); A("s_barrier")
    L += stamp(2)
    for ks in range(16):
        for qb in range(4):
            A(f"ds_read_b128 {ar(XN(ks,qb))}, v{xa+1} offset:{qb*16384 + ks*1024}", tag='xr', res_r=[('slot1', True)])
    L.append(W(vm=['b1']))
    for ct in range(4):
        for h in range(2):
            A(f"v_lshlrev_b32 v{V_B1+4*ct+2*h}, 16, v{40+2*ct+h}")
            A(f"v_and_b32 v{V_B1+4*ct+2*h+1}, 0xffff0000, v{40+2*ct+h}")
    L.append(W(lgkm=['xr'])); A("s_barrier")
    L += stamp(3)
    return L

def af_reads(s, ct):
    st = STAGES[s]; L = []
    for j in range(st['nks']):
        for e in range(2):
            L.append(I(f"ds_read_b64_tr_b16 {vr(V_AF + 16*(ct&1) + 4*j + 2*e, 2)}, v{V_WA + 4*(s&1) + ct} offset:{j*4096 + e*2048}",
                       tag=f"af{s}_{ct}", res_r=[(f"slot{s&1}", False)]))
    return L

def kv_dma(which, half, buf, tag):
    base = (0 if which == 'K' else LDS_V) + buf*8192 + half*4096
    so = (S_KO if which == 'K' else S_VO) + half
    L = [I(f"s_add_u32 m0, s{S_RING}, {hx(base)}")]
    for i in range(4):
        off = f" offset:{i*1024}" if i else ""
        L.append(I(f"buffer_load_dwordx4 v{V_DV + (i&1)}, {sr(SRD_K if which == 'K' else SRD_V)}, s{so} offen{off} lds",
                   tag=tag, res_w=[(f"{which}{buf}", True)]))
    return L

def phase1():
    m = []; per = {}
    for s, st in enumerate(STAGES):
        for ct in range(4):
            lo = len(m)
            for qb in range(4):
                d = vr(st['acc'] + 16*ct + 4*qb)
                for j in range(st['nks']):
                    c = d
                    if st['first'] and j == 0: c = vr(V_B1 + 4*ct) if st['m'] == 'w1' else "0"
                    m.append(mf(d, vr(V_AF + 16*(ct&1) + 4*j), ar(XN(st['ks0'] + j, qb)), c))
            per[(s, ct)] = (lo, len(m) - 1)
    G = Gaps(m)
    NS = len(STAGES)
    d1 = stage_dma(1)
    G.head += with_m0_pad(d1[:6])
    G.head += [W(vm=['st0'])] + af_reads(0, 0) + [W(lgkm=['af0_0'])]
    vd = 52
    G.head = [I(f"v_bfe_u32 v{vd}, v{V_L16}, 4, 1"), I(f"v_bfe_u32 v55, v{V_L16}, 5, 1"),
              I(f"v_sub_u32 v{vd}, v{vd}, v55"), I(f"v_lshlrev_b32 v{vd}, 3, v{vd}")] + G.head
    for s in range(NS):
        for ct in range(4):
            ns, nct = (s, ct + 1) if ct < 3 else (s + 1, 0)
            if ns >= NS: continue
            lo, hi = per[(s, ct)]
            G.pin(hi, W(lgkm=[f"af{ns}_{nct}"]))
            rd = af_reads(ns, nct)
            if nct == 0:
                st0 = lo + (5 if STAGES[s]['nks'] == 4 else 2)
                h = G.pin(st0, W(vm=[f"st{ns}"]))
                for x in rd: h = G.place(x, st0, hi - 1, after=h)
            else:
                h = None
                for x in rd: h = G.place(x, lo, hi - 1, after=h)
    for (sb, op) in ((4, 'v_add_u32'), (12, 'v_sub_u32')):
        for s in (sb, sb + 1):
            for ct in range(4):
                lo = per[(s - 2, 3)][0] if True else 0
                hi = per[(s - 1, 2)][1]
                r = V_WA + 4*(s & 1) + ct
                G.place(I(f"{op} v{r}, v{r}, v{vd}"), lo, hi)
    G.stream(d1[6:], 0, per[(0, 1)][1])
    for s in range(NS):
        lo = per[(s, 3)][0]
        if s + 2 < NS:
            G.stream(stage_dma(s + 2), lo, per[(s + 1, 1)][1])
        elif s + 2 == NS:
            pre = [I(f"s_lshl_b32 s{S_KO}, s{S_W}, 13"), I(f"s_add_u32 s{S_KO+1}, s{S_KO}, 4096"),
                   I(f"s_mov_b32 s{S_VO}, s{S_KO}"), I(f"s_mov_b32 s{S_VO+1}, s{S_KO+1}")]
            k0 = kv_dma('K', 0, 0, 'kv') + kv_dma('K', 1, 0, 'kv')
            for x in k0:
                if x.res_w: x.res_w = x.res_w + [('slot0', False)]
            G.stream(pre + k0, lo, per[(s + 1, 1)][1])
    for hq in range(2):
        s = 7 + 4*hq
        for p in range(2):
            kk = 2*hq + p
            for half in range(2):
                ct = 2*p + half
                items = []
                lo0 = per[(s, ct)][0]
                for qb in range(4):
                    e = lo0 + 4*qb + 3 + 5
                    a = V_ACCB + 16*ct + 4*qb; q = V_Q + 16*qb + 4*kk
                    for r in range(4): items.append((I(f"v_mul_f32 v{a+r}, s{S_QS}, v{a+r}"), e))
                    items.append((I(f"v_cvt_pk_bf16_f32 v{q+2*half}, v{a}, v{a+1}"), e))
                    items.append((I(f"v_cvt_pk_bf16_f32 v{q+2*half+1}, v{a+2}, v{a+3}"), e))
                hi = per[(s + 1, ct)][0] - 1 if hq == 0 else per[(s + 2, 3)][1]
                hn = G.stream(items, lo0 + 8, hi)
                hnd = hn if half == 0 else max(hnd, hn)
            sw = []
            for qb in range(4):
                q = V_Q + 16*qb + 4*kk
                sw += [I(f"v_permlane32_swap_b32 v{q}, v{q+2}"), I(f"v_permlane32_swap_b32 v{q+1}, v{q+3}")]
            G.stream(sw, hnd[0] + 2, hnd[0] + 40)
    ha, hr = 53, 54
    G.head = [I(f"s_lshl_b32 s{S_T}, s{S_W}, 13"), I(f"s_add_u32 s{S_T}, s{S_T}, {hx(LDS_X)}"), I(f"v_add_u32 v{ha}, s{S_T}, v{V_L16}"),
              I(f"s_and_b32 s{S_T}, s{S_G}, 1"), I(f"s_lshl_b32 s{S_T}, s{S_T}, 12"), I(f"s_add_u32 s{S_T}, s{S_T}, {hx(LDS_X)}"),
              I(f"v_add_u32 v{hr}, s{S_T}, v{V_L16}")] + G.head
    items = []
    T = 56
    if OPT['stamps']: pass
    for p in range(2):
        for qb in range(4):
            for half in range(2):
                ct = 2*p + half
                e = per[(3, ct)][0] + 4*qb + 3 + 5
                a = V_ACCA + 16*ct + 4*qb
                seq = []
                seq += [f"v_mul_f32 v{T+r}, v{a+r}, v{a+r}" for r in range(4)]
                seq += [f"v_fma_f32 v{T+r}, v{T+r}, s{S_GB}, v{V_GA}" for r in range(4)]
                seq += [f"v_mul_f32 v{T+r}, v{T+r}, v{a+r}" for r in range(4)]
                seq += [f"v_exp_f32 v{T+r}, v{T+r}" for r in range(4)]
                seq += [f"v_add_f32 v{T+r}, 1.0, v{T+r}" for r in range(4)]
                seq += [f"v_rcp_f32 v{T+r}, v{T+r}" for r in range(4)]
                seq += [f"v_mul_f32 v{T+r}, v{T+r}, v{a+r}" for r in range(4)]
                a0 = V_ACCA + 16*(2*p) + 4*qb
                seq += [f"v_cvt_pk_bf16_f32 v{a0+2*half}, v{T}, v{T+1}", f"v_cvt_pk_bf16_f32 v{a0+2*half+1}, v{T+2}, v{T+3}"]
                items += [(I(x), e) for x in seq]
            items.append((I(f"ds_write_b128 v{ha}, {vr(V_ACCA + 32*p + 4*qb)} offset:{p*4096 + qb*1024}", tag='hw', res_w=[('hx', True)]), e))
    hbar = per[(11, 1)][0]
    G.stream(items, per[(3, 0)][0] + 8, hbar - 3)
    G.pin(hbar - 1, W(lgkm=['hw'])); G.pin(hbar - 1, I("s_barrier"))
    hrd = [I(f"ds_read_b128 {ar(XN(u,qb))}, v{hr} offset:{u*4096 + qb*1024}", tag='hr', res_r=[('hx', True)]) for u in range(7) for qb in range(4)]
    G.stream(hrd, hbar, per[(11, 3)][1] - 6)
    G.pin(per[(11, 3)][1], W(lgkm=['hr']))
    tail = []
    for hc in range(2):
        s = 13 + 2*hc
        acc = STAGES[s]['acc']
        for ct in range(4):
            items = []
            e = per[(s, ct)][1] + 6
            a = acc + 16*ct
            for half in range(2):
                for k in range(4):
                    items.append(I(f"v_cvt_pk_bf16_f32 v{a+4*half+k}, v{a+8*half+2*k}, v{a+8*half+2*k+1}"))
            for half in range(2):
                items.append(I(f"buffer_store_dwordx4 {vr(a+4*half)}, v{V_L16}, {sr(SRD_WS)}, s{S_YO + 2*hc + (ct>>1)} offen offset:{(ct&1)*2048 + half*1024}", tag='yst'))
            if e + 8 < len(G):
                G.stream(items, e, min(len(G) - 1, e + 30))
            else:
                tail += items
    out = with_m0_pad(G.flat()) + [I("s_nop 7")] + tail
    print(f"; phase1: {len(G)} mfma, est cycles {G.cycles()}", file=sys.stderr)
    return out

def P(buf, qb, ks): return V_P + 64*buf + 16*qb + 4*ks
def k_reads(kt, buf, res=True):
    return [I(f"ds_read_b128 {ar(A_KF + 16*(kt&1) + 4*kk)}, v{V_KA+kk} offset:{(kt>>1)*16384 + (kt&1)*4096 + buf*8192}",
              tag='fr', res_r=[(f"K{buf}", True)] if res else None) for kk in range(4)]
def v_reads(dt, buf):
    return [I(f"ds_read_b64_tr_b16 {ar(A_VF + 16*(dt&1) + 4*ks + 2*e, 2)}, v{V_VA+dt} offset:{ks*16384 + buf*8192 + e*4096}",
              tag='fr', res_r=[(f"V{buf}", True)]) for ks in range(4) for e in range(2)]

def attn_setup():
    L = []; A = lambda t, **k: L.append(I(t, **k))
    t1, t2, t3 = 56, 57, 58
    A(f"v_lshrrev_b32 v{t1}, 6, v{V_L16}")
    A(f"v_and_b32 v{t2}, 7, v{t1}")
    A(f"v_lshlrev_b32 v{t1}, 8, v{t1}")
    A(f"v_bfe_u32 v{t3}, v{V_L16}, 4, 2"); A(f"v_lshl_add_u32 v{t1}, v{t3}, 3, v{t1}")
    A(f"v_add_u32 v{t1}, 0x10000, v{t1}")
    for dt in range(8):
        A(f"v_xor_b32 v{V_VA+dt}, {dt}, v{t2}")
        A(f"v_lshl_add_u32 v{V_VA+dt}, v{V_VA+dt}, 5, v{t1}")
    A(f"v_cmp_gt_u32 vcc, 2, v{t3}")
    A(f"v_mov_b32 v{t1}, 0x3f803f80"); A(f"v_mov_b32 v{t2}, 0xeeeeeeee")
    A(f"v_cndmask_b32 v{V_SPA}, 0, v{t1}, vcc")
    A(f"v_cmp_eq_u32 vcc, 1, v{t3}")
    A(f"v_mov_b32 v{t1}, 0x44444444")
    for i in range(1, 4): A(f"v_mov_b32 v{V_SPA+i}, v{V_SPA}")
    A(f"v_cndmask_b32 v{V_SPI}, v{t1}, v{t2}, vcc")
    return L

def rowmax_finish():
    L = []; A = lambda t, **k: L.append(I(t, **k))
    for sw in ("v_permlane32_swap_b32", "v_permlane16_swap_b32"):
        for qb in range(4): A(f"v_mov_b32 v{V_NEGM+4*qb+1}, v{V_NEGM+4*qb}")
        A("s_nop 1")
        for qb in range(4): A(f"{sw} v{V_NEGM+4*qb}, v{V_NEGM+4*qb+1}")
        for qb in range(4): A(f"v_max_f32 v{V_NEGM+4*qb}, v{V_NEGM+4*qb}, v{V_NEGM+4*qb+1}")
    for qb in range(4): A(f"v_sub_f32 v{V_NEGM+4*qb}, 0, v{V_NEGM+4*qb}")
    for qb in range(4):
        for r in range(1, 4): A(f"v_mov_b32 v{V_NEGM+4*qb+r}, v{V_NEGM+4*qb}")
    return L

def attn_first_max():
    L = []; A = lambda t, **k: L.append(I(t, **k))
    L.append(W(vm=['kv'])); A("s_barrier")
    L += k_reads(0, 0); L.append(W(lgkm=['fr']))
    for qb in range(4):
        d = vr(V_NEGM + 4*qb)
        for kk in range(4): L.append(mf(d, ar(A_KF + 4*kk), vr(V_Q + 16*qb + 4*kk), d if kk else "0"))
    A("s_nop 7")
    for qb in range(4):
        b = V_NEGM + 4*qb
        A(f"v_max3_f32 v{b}, v{b}, v{b+1}, v{b+2}"); A(f"v_max_f32 v{b}, v{b}, v{b+3}")
    L += rowmax_finish()
    return L

NSB = 3
def softmax_items(n, pbuf):
    kt, qb = n >> 2, n & 3
    s = V_S + 4*(n % 2)
    p = P(pbuf, qb, kt >> 1) + 2*(kt & 1)
    ex = [I(f"v_exp_f32 v{s+r}, v{s+r}") for r in range(4)]
    cv = [I(f"v_cvt_pk_bf16_f32 v{p}, v{s}, v{s+1}"), I(f"v_cvt_pk_bf16_f32 v{p+1}, v{s+2}, v{s+3}")]
    return ex, cv

def smf(pbuf, qb, h):
    return I(f"v_smfmac_f32_16x16x64_bf16 {ar(A_L + 4*qb)}, {vr(V_SPA)}, {vr(P(pbuf, qb, 2*h), 8)}, v{V_SPI}")

def attn_iter(par, first_pv=False):
    m = []; blk = []; sg = []
    for i in range(8):
        for qb in range(4):
            n = 4*i + qb
            blk.append(len(m))
            d = vr(V_S + 4*(n % 2))
            for kk in range(4):
                m.append(mf(d, ar(A_KF + 16*(i&1) + 4*kk), vr(V_Q + 16*qb + 4*kk), d if kk else vr(V_NEGM + 4*qb)))
            o = ar(A_O + 16*i + 4*qb)
            for ks in range(4):
                m.append(mf(o, ar(A_VF + 16*(i&1) + 4*ks), vr(P(par ^ 1, qb, ks)), "0" if (first_pv and ks == 0) else o))
        sg.append(len(m))
        m.append(smf(par ^ 1, i >> 1, i & 1))
    G = Gaps(m)
    for n in range(32):
        b = blk[n]
        ex, cv = softmax_items((n - 1) % 32, par if n else par ^ 1)
        for r in range(4): G.pin(b + 2*r, ex[r])
        G.pin(b + 3, cv[0]); G.pin(b + 7, cv[1])
    for i in range(8):
        if i < 7: rd = k_reads(i + 1, par) + v_reads(i + 1, par ^ 1)
        else: rd = k_reads(0, par ^ 1) + v_reads(0, par)
        k = 0
        for qb in range(3):
            b = blk[4*i + qb]
            for gp in (3, 5, 5, 7):
                G.pin(b + gp, rd[k]); k += 1
        if i == 6:
            G.pin(sg[i], W(vm=['kv'], lgkm=['fr'])); G.pin(sg[i], I("s_barrier"))
        else:
            G.pin(sg[i], W(lgkm=['fr']))
    groups = [kv_dma('K', 0, par ^ 1, 'kv'), kv_dma('K', 1, par ^ 1, 'kv'), kv_dma('V', 0, par, 'kv'), kv_dma('V', 1, par, 'kv')]
    for i in range(4):
        for qb in range(4): G.pin(blk[4*i + qb] + 1, groups[i][1 + qb])
        if i < 3: G.pin(blk[4*i + 3] + 5, groups[i + 1][0])
    nxt = kv_dma('K', 0, par, 'kv')[0]
    G.pin(blk[4*5] + 1, nxt)
    for k in range(4): G.pin(blk[4*4 + k] + 1, I(f"s_add_u32 s{S_KO+k}, s{S_KO+k}, 0x8000"))
    return G

def attn_iter0():
    m = []; blk = []
    for i in range(8):
        for qb in range(4):
            n = 4*i + qb
            blk.append(len(m))
            d = vr(V_S + 4*(n % 3) if n < 30 else V_S + 4*(n % 2))
            for kk in range(4):
                m.append(mf(d, ar(A_KF + 16*(i&1) + 4*kk), vr(V_Q + 16*qb + 4*kk), d if kk else vr(V_NEGM + 4*qb)))
    G = Gaps(m)
    G.head += [I(f"v_accvgpr_write_b32 a{A_L + k}, 0") for k in range(16)]
    G.head += [I(f"s_add_u32 s{S_KO}, s{S_KO}, 0x8000"), I(f"s_add_u32 s{S_KO+1}, s{S_KO+1}, 0x8000")]
    tail = []
    for n in range(31):
        kt, qb = n >> 2, n & 3
        s = V_S + 4*(n % 3) if n < 30 else V_S + 4*(n % 2)
        p = P(0, qb, kt >> 1) + 2*(kt & 1)
        ex = [I(f"v_exp_f32 v{s+r}, v{s+r}") for r in range(4)]
        cv = [I(f"v_cvt_pk_bf16_f32 v{p}, v{s}, v{s+1}"), I(f"v_cvt_pk_bf16_f32 v{p+1}, v{s+2}, v{s+3}")]
        if n + 2 < 32:
            b = blk[n + 2]
            G.pin(b - 1, ex[0]); G.pin(b, ex[1]); G.pin(b + 1, ex[2]); G.pin(b + 1, cv[0]); G.pin(b + 2, ex[3]); G.pin(b + 3, cv[1])
        else:
            tail += ex + cv
    for i in range(8):
        rd = k_reads(i + 1, 0) if i < 7 else k_reads(0, 1) + v_reads(0, 0)
        lo = blk[4*i]
        for k, x in enumerate(rd): G.pin(lo + (k if i == 7 else 2*k), x)
        if i == 6:
            G.pin(blk[4*i + 3] + 3, W(vm=['kv'], lgkm=['fr'])); G.pin(blk[4*i + 3] + 3, I("s_barrier"))
        elif i < 7:
            G.pin(blk[4*i + 3] + 3, W(lgkm=['fr']))
    groups = kv_dma('K', 0, 1, 'kv') + kv_dma('K', 1, 1, 'kv') + kv_dma('V', 0, 0, 'kv') + kv_dma('V', 1, 0, 'kv')
    for k, x in enumerate(groups): G.pin(1 + 2*k, x)
    G.pin(blk[20], kv_dma('K', 0, 0, 'kv')[0])
    for k in range(4): G.pin(blk[16 + k], I(f"s_add_u32 s{S_KO+k}, s{S_KO+k}, 0x8000"))
    out = G.flat() + [I("s_nop 3")] + tail + [W(lgkm=['fr'])]
    print(f"; iter0 est cycles {G.cycles()}", file=sys.stderr)
    return out

V_OA = 0
V_WO, V_WOB = 48, 49
V_RL = 52
V_XW = 50
S_WO = 76
def oslot(p):
    k = p % 5
    return [(2, 0, 8192, 'hx'), (1, 0, 16384, 'V0'), (1, 8192, 16384, 'V1'), (0, 0, 16384, 'K0'), (0, 8192, 16384, 'K1')][k]

def wo_dma(p):
    ci, half = p >> 1, p & 1
    win, base, ps, res = oslot(p)
    L = []
    L.append(I(f"s_add_u32 s{S_WO}, s{S_G}, {1 + ci}")); L.append(I(f"s_and_b32 s{S_WO}, s{S_WO}, 7")); L.append(I(f"s_lshl_b32 s{S_WO}, s{S_WO}, 7"))
    if half: L.append(I(f"s_add_u32 s{S_WO}, s{S_WO}, {hx(256*1024)}"))
    L.append(I(f"v_add_u32 v{V_WO}, s{S_WO}, v{V_WOB}"))
    for h in range(2):
        L.append(I(f"s_add_u32 m0, s{S_RING if ps == 16384 else S_WO+1}, {hx(win*65536 + base + h*4096)}"))
        if h: L.append(I(f"v_add_u32 v{V_WO}, {hx(32*1024)}, v{V_WO}"))
        for i in range(4): L.append(dma_w(SRD_WO, V_WO, S_SM2, i, f"wo{p}", [(res, True)]))
    return L

def attn_last():
    m = []; blk = []; sg = {}
    for i in range(8):
        for qb in range(4):
            blk.append(len(m))
            o = ar(A_O + 16*i + 4*qb)
            for ks in range(4): m.append(mf(o, ar(A_VF + 16*(i&1) + 4*ks), vr(P(1, qb, ks)), o))
            if i == 0:
                for h in range(2):
                    sg[(qb, h)] = len(m); m.append(smf(1, qb, h))
    G = Gaps(m)
    ex, cv = softmax_items(31, 1)
    for r in range(4): G.pin(r, ex[r])
    G.pin(4, cv[0]); G.pin(4, cv[1])
    for i in range(7):
        rd = v_reads(i + 1, 1)
        lo = blk[4*i] + (5 if i == 0 else 0)
        h = None
        for x in rd: h = G.place(x, lo, blk[4*i + 4] - 4, after=h)
        G.pin(blk[4*i + 4] - 1, W(lgkm=['fr']))
    t1, t2 = 56, 57
    su = [f"v_add_u32 v{V_XW}, s{S_RING}, v{V_L16}", f"v_lshrrev_b32 v{t1}, 4, v{V_L16}",
          f"v_and_b32 v{t2}, 7, v{t1}", f"v_bfe_u32 v{V_WOB}, v{t1}, 4, 2", f"v_lshlrev_b32 v{V_WOB}, 1, v{V_WOB}", f"v_xor_b32 v{t2}, v{t2}, v{V_WOB}",
          f"v_lshrrev_b32 v{V_WOB}, 3, v{t1}", f"v_lshlrev_b32 v{V_WOB}, 10, v{V_WOB}", f"v_lshl_add_u32 v{V_WOB}, v{t2}, 4, v{V_WOB}",
          f"s_lshl_b32 s{S_WO}, s{S_G}, 19", f"s_lshl_b32 s{S_WO+1}, s{S_W}, 16", f"s_add_u32 s{S_WO}, s{S_WO}, s{S_WO+1}",
          f"v_add_u32 v{V_WOB}, s{S_WO}, v{V_WOB}", f"s_lshl_b32 s{S_WO+1}, s{S_W}, 13"]
    G.stream([I(x) for x in su] + wo_dma(0) + wo_dma(1), 5, blk[12])
    items = []
    e0 = sg[(3, 1)] + 5
    for qb in range(4):
        items += [I(f"v_accvgpr_read_b32 v{V_RL+qb}, a{A_L+4*qb}"), I(f"v_accvgpr_read_b32 v{58}, a{A_L+4*qb+1}"),
                  I(f"v_add_f32 v{V_RL+qb}, v{V_RL+qb}, v{58}")]
    items += [I(f"v_add_f32 v58, v{V_RL}, v{V_RL+1}"), I(f"v_add_f32 v59, v{V_RL+2}, v{V_RL+3}"), I(f"v_add_f32 v58, v58, v59"),
              I(f"v_cmp_ngt_f32 vcc, {hx(f2u(2.0**30))}, v58")]
    items += [I(f"v_rcp_f32 v{V_RL+qb}, v{V_RL+qb}") for qb in range(4)]
    items = [(x, e0) for x in items]
    T = 60
    for i in range(8):
        for qb in range(4):
            e = blk[4*i + qb] + 3 + 6
            st = P(0, qb, i >> 1) + 2*(i & 1)
            o = A_O + 16*i + 4*qb
            seq = [I(f"v_accvgpr_read_b32 v{T+r}, a{o+r}") for r in range(4)]
            seq += [I(f"v_mul_f32 v{T+r}, v{T+r}, v{V_RL+qb}") for r in range(4)]
            seq += [I(f"v_cvt_pk_bf16_f32 v{st}, v{T}, v{T+1}"), I(f"v_cvt_pk_bf16_f32 v{st+1}, v{T+2}, v{T+3}")]
            if i & 1:
                seq.append(I(f"ds_write_b128 v{V_XW}, {vr(P(0, qb, i >> 1))} offset:{((i>>1)*4 + qb)*1024}", tag='ow', res_w=[('K1', True), ('OX', True)]))
            items += [(x, e) for x in seq]
    n_in = [it for it in items if it[1] < len(G) - 1]
    tail = [it[0] for it in items if it[1] >= len(G) - 1]
    G.stream(n_in, e0, len(G) - 1)
    out = with_m0_pad(G.flat()) + [I("s_nop 7")] + tail
    print(f"; last est cycles {G.cycles()}", file=sys.stderr)
    L = out; A = lambda t, **k: L.append(I(t, **k))
    A("s_cbranch_vccz L_NOMARK")
    A("v_mov_b32 v56, -1")
    A(f"ds_write_b32 v{V_XW}, v56", tag='ow')
    A("L_NOMARK:")
    A(f"v_lshrrev_b32 v56, 6, v{V_L16}"); A("v_lshlrev_b32 v56, 7, v56")
    A(f"v_bfe_u32 v57, v{V_L16}, 4, 2"); A("v_lshl_add_u32 v56, v57, 3, v56")
    A(f"v_lshlrev_b32 v58, 14, v57")
    A(f"v_bfe_u32 v57, v{V_L16}, 7, 2"); A(f"v_xor_b32 v57, s{S_W}, v57")
    A(f"v_lshl_add_u32 v59, v57, 5, v56")
    A("s_waitcnt vmcnt(0) lgkmcnt(0)"); A("s_barrier")
    A("ds_read_b32 v56, v58", tag='mk')
    A(f"s_cmp_lg_u32 s{S_PASS}, 0")
    A("s_cbranch_scc1 L_OPROJ")
    L.append(W(lgkm=['mk']))
    A("v_cmp_eq_u32 vcc, -1, v56"); A("s_nop 4")
    A("s_cbranch_vccnz L_FALLBACK")
    A("L_OPROJ:")
    A("s_waitcnt lgkmcnt(0)")
    A(f"v_mov_b32 v{V_OA}, v59"); A(f"v_add_u32 v{V_OA+1}, 0x10000, v59"); A(f"v_add_u32 v{V_OA+2}, 0x20000, v59")
    return L

def OF(ks, qb): return (ks*4 + qb)*4
V_OAF = 64
V_OACC = 128
S_SO = 78
def oaf_reads(p):
    win, base, ps, res = oslot(p)
    return [I(f"ds_read_b64_tr_b16 {vr(V_OAF + 32*(p&1) + 4*j + 2*e, 2)}, v{V_OA+win} offset:{base + (j>>1)*ps + (j&1)*4096 + e*2048}",
              tag=f"oaf{p}", res_r=[(res, True)]) for j in range(8) for e in range(2)]
def of_read(ks, qb):
    return I(f"ds_read_b128 {ar(OF(ks,qb))}, v{V_L16} offset:{(ks>>2)*16384 + ((ks&3)*4 + qb)*1024}", tag=f"of{ks>>3}_{qb}", res_r=[('OX', True), ('K0', True), ('K1', True)])

def oproj():
    m = []; per = []
    for p in range(16):
        lo = len(m)
        for qb in range(4):
            d = vr(V_OACC + 16*((p >> 1) & 1) + 4*qb)
            for j in range(8):
                m.append(mf(d, vr(V_OAF + 32*(p&1) + 4*j), ar(OF(8*(p&1) + j, qb)), "0" if (j == 0 and not p & 1) else d))
        per.append((lo, len(m) - 1))
    G = Gaps(m)
    G.head += with_m0_pad(wo_dma(2))
    G.head += oaf_reads(0) + [of_read(ks, 0) for ks in range(8)] + [of_read(ks, 1) for ks in range(8)] + [W(lgkm=['of0_0'])]
    rest = [of_read(ks, qb) for qb in (2, 3) for ks in range(8)] + oaf_reads(1) + [of_read(ks, qb) for qb in range(4) for ks in range(8, 16)]
    G.pin(7, W(lgkm=['of0_1'])); G.pin(15, W(lgkm=['of0_2'])); G.pin(23, W(lgkm=['of0_3']))
    G.stream(rest, 0, 29)
    for p in range(15):
        lo, hi = per[p]
        bar = (p + 1 <= 3) or ((p + 1) & 1)
        if p + 1 == 15: bar = False
        lg = [f"oaf{p+1}"] + ([f"of1_{qb}" for qb in range(4)] if p == 0 else [])
        if bar:
            need = [f"wo{p+2}"] if p + 1 < 3 else [f"wo{q}" for q in (p + 2, p + 3) if q < 16]
            G.pin(hi, W(vm=need, lgkm=lg)); G.pin(hi, I("s_barrier"))
        else:
            G.pin(hi, W(lgkm=lg))
        if p >= 1:
            h = None
            for k, x in enumerate(oaf_reads(p + 1)): h = G.place(x, lo + 10, hi - 4, after=h)
    G.stream(wo_dma(3) + wo_dma(4) + wo_dma(5) + wo_dma(6), per[1][0], per[2][1])
    for p in range(3, 15, 2):
        d = []
        for q in (p + 4, p + 5):
            if q < 16: d += wo_dma(q)
        if d: G.stream(d, per[p][0], per[p + 1][1] - 8)
    tail = []
    for ci in range(8):
        a = V_OACC + 16*(ci & 1)
        items = [I(f"s_add_u32 s{S_SO}, s{S_G}, {1 + ci}"), I(f"s_and_b32 s{S_SO}, s{S_SO}, 7"), I(f"s_lshl_b32 s{S_SO}, s{S_SO}, 16"), I(f"s_add_u32 s{S_SO}, s{S_SO}, s{S_SO+1}")]
        st = 160 + 8*(ci & 1)
        for k in range(8): items.append(I(f"v_cvt_pk_bf16_f32 v{st+k}, v{a+2*k}, v{a+2*k+1}"))
        for half in range(2):
            items.append(I(f"buffer_store_dwordx4 {vr(st+4*half)}, v{V_L16}, {sr(SRD_WS)}, s{S_SO} offen offset:{half*1024}", tag='sst'))
        if ci < 7: G.stream(items, per[2*ci + 1][1] + 6, per[2*ci + 3][1])
        else: tail += items
    G.head = [I(f"s_lshl_b32 s{S_SO+1}, s{S_R}, 6"), I(f"s_add_u32 s{S_SO+1}, s{S_SO+1}, s{S_G}"), I(f"s_lshl_b32 s{S_SO+1}, s{S_SO+1}, 2"),
              I(f"s_add_u32 s{S_SO+1}, s{S_SO+1}, s{S_W}"), I(f"s_lshl_b32 s{S_SO+1}, s{S_SO+1}, 11")] + G.head
    print(f"; oproj est cycles {G.cycles()}", file=sys.stderr)
    return with_m0_pad(G.flat()) + [I("s_nop 7")] + tail

def fallback():
    L = []; A = lambda t, **k: L.append(I(t, **k))
    A("L_FALLBACK:")
    A(f"s_mov_b32 s{S_PASS}, 1")
    A(f"s_lshl_b32 s{S_KO}, s{S_W}, 13"); A(f"s_add_u32 s{S_KO+1}, s{S_KO}, 4096")
    for qb in range(4): A(f"v_mov_b32 v{V_NEGM+4*qb}, 0xff800000")
    A(f"s_mov_b32 s{S_CNT}, 17")
    A("L_FB_LOOP:")
    A("s_waitcnt vmcnt(0) lgkmcnt(0)"); A("s_barrier")
    A(f"s_cmp_lg_u32 s{S_CNT}, 1"); A("s_cbranch_scc1 L_FB_NR")
    A(f"s_lshl_b32 s{S_KO}, s{S_W}, 13"); A(f"s_add_u32 s{S_KO+1}, s{S_KO}, 4096")
    A("L_FB_NR:")
    L += with_m0_pad(kv_dma('K', 0, 0, 'kv') + kv_dma('K', 1, 0, 'kv'))
    A("s_waitcnt vmcnt(0)"); A("s_barrier")
    for kt in range(8):
        L += k_reads(kt, 0); A("s_waitcnt lgkmcnt(0)")
        for qb in range(4):
            d = vr(V_P + 4*qb)
            for kk in range(4): L.append(mf(d, ar(A_KF + 16*(kt&1) + 4*kk), vr(V_Q + 16*qb + 4*kk), d if kk else "0"))
        A("s_nop 7")
        for qb in range(4):
            b = V_NEGM + 4*qb; d = V_P + 4*qb
            A(f"v_max3_f32 v{b}, v{b}, v{d}, v{d+1}"); A(f"v_max3_f32 v{b}, v{b}, v{d+2}, v{d+3}")
    A(f"s_add_u32 s{S_KO}, s{S_KO}, 0x8000"); A(f"s_add_u32 s{S_KO+1}, s{S_KO+1}, 0x8000")
    A(f"s_sub_u32 s{S_CNT}, s{S_CNT}, 1"); A(f"s_cmp_lg_u32 s{S_CNT}, 0"); A("s_cbranch_scc1 L_FB_LOOP")
    L += rowmax_finish()
    A(f"s_lshl_b32 s{S_KO}, s{S_W}, 13"); A(f"s_add_u32 s{S_KO+1}, s{S_KO}, 4096")
    A(f"s_mov_b32 s{S_VO}, s{S_KO}"); A(f"s_mov_b32 s{S_VO+1}, s{S_KO+1}")
    L += k_reads(0, 0); A("s_waitcnt lgkmcnt(0)")
    A("s_branch L_ITER0")
    return L

def reduce_kernel():
    L = []; A = lambda t, **k: L.append(I(t, **k))
    A("s_cmp_ge_u32 s2, 256"); A("s_cbranch_scc1 L_END2")
    A("s_load_dwordx2 s[64:65], s[0:1], 0"); A("s_load_dwordx4 s[68:71], s[0:1], 72"); A("s_load_dwordx2 s[66:67], s[0:1], 96")
    A("v_lshrrev_b32 v1, 6, v0"); A("v_and_b32 v2, 63, v0"); A("v_readfirstlane_b32 s3, v1")
    A("v_lshlrev_b32 v3, 4, v2")
    A("s_lshl_b32 s52, s2, 16"); A("s_lshl_b32 s53, s3, 11"); A("s_add_u32 s52, s52, s53")
    A("s_waitcnt lgkmcnt(0)")
    srd(L, SRD_X, 64, 2048*512*2); srd(L, SRD_WS, 66, 1 << 28); srd(L, SRD_B2, 68, 1024); srd(L, SRD_OUT, 70, 2048*512*2)
    for part in range(2):
        for src in range(8):
            A(f"s_add_u32 s54, s52, {hx(part*WS_Y + src*8192)}")
            for half in range(2):
                A(f"buffer_load_dwordx4 {vr(64 + 64*part + 8*src + 4*half)}, v3, {sr(SRD_WS)}, s54 offen offset:{half*1024}", tag=f"p{part}")
    A("s_lshr_b32 s55, s2, 3"); A("s_lshl_b32 s55, s55, 16"); A("s_and_b32 s56, s2, 7"); A("s_lshl_b32 s56, s56, 7"); A("s_lshl_b32 s57, s3, 5"); A("s_add_u32 s56, s56, s57")
    A("v_lshrrev_b32 v4, 4, v2"); A("v_lshlrev_b32 v4, 3, v4"); A("v_and_b32 v5, 15, v2"); A("v_lshl_add_u32 v5, v5, 10, v4")
    A("s_add_u32 s55, s55, s56")
    A(f"buffer_load_dwordx2 v[6:7], v4, {sr(SRD_B2)}, s56 offen", tag='b2')
    for qb in range(4):
        A(f"s_add_u32 s{58+qb}, s55, {qb*16384}")
        A(f"buffer_load_dwordx2 {vr(8+2*qb,2)}, v5, {sr(SRD_X)}, s{58+qb} offen", tag='b2')
    A("s_waitcnt vmcnt(0)")
    for part in range(2):
        acc = 16 + 16*part
        for src in range(8):
            for k in range(8):
                r = 64 + 64*part + 8*src + k
                if src == 0:
                    A(f"v_lshlrev_b32 v{acc+2*k}, 16, v{r}"); A(f"v_and_b32 v{acc+2*k+1}, 0xffff0000, v{r}")
                else:
                    A(f"v_lshlrev_b32 v48, 16, v{r}"); A(f"v_and_b32 v49, 0xffff0000, v{r}")
                    A(f"v_pk_add_f32 {vr(acc+2*k,2)}, {vr(acc+2*k,2)}, v[48:49]")
    for h in range(2):
        A(f"v_lshlrev_b32 v{52+2*h}, 16, v{6+h}"); A(f"v_and_b32 v{53+2*h}, 0xffff0000, v{6+h}")
    for qb in range(4):
        for r in range(4):
            y = 32 + 4*qb + r; s = 16 + 4*qb + r
            A(f"v_add_f32 v{y}, v{y}, v{52+r}")
            A(f"v_mul_f32 v48, {hx(f2u(-math.log2(math.e)))}, v{y}")
            A("v_exp_f32 v48, v48"); A("s_nop 0"); A("v_add_f32 v48, 1.0, v48"); A("v_rcp_f32 v48, v48"); A("s_nop 0")
            A(f"v_mul_f32 v{y}, v{y}, v48")
            xr = 8 + 2*qb + (r >> 1)
            A(f"v_lshlrev_b32 v48, 16, v{xr}" if not r & 1 else f"v_and_b32 v48, 0xffff0000, v{xr}")
            A(f"v_fma_f32 v{s}, v{s}, v{y}, v48")
        A(f"v_cvt_pk_bf16_f32 v{56+2*qb}, v{16+4*qb}, v{17+4*qb}"); A(f"v_cvt_pk_bf16_f32 v{57+2*qb}, v{18+4*qb}, v{19+4*qb}")
        A(f"buffer_store_dwordx2 {vr(56+2*qb,2)}, v5, {sr(SRD_OUT)}, s{58+qb} offen")
    A("L_END2:"); A("s_endpgm")
    return L

def build():
    d = OPT['dump']
    p0 = phase0(); p1 = phase1()
    su = stamp(4) + attn_setup() + attn_first_max() + stamp(5)
    it0 = [I("L_ITER0:")] + attn_iter0() + stamp(6)
    g1 = attn_iter(1, first_pv=True); ge, go = attn_iter(0), attn_iter(1)
    print(f"; attn iter est cycles {ge.cycles()}", file=sys.stderr)
    it1 = g1.flat() + [I(f"s_mov_b32 s{S_CNT}, 7")]
    go.pin(len(go) - 4, I(f"s_sub_u32 s{S_CNT}, s{S_CNT}, 1")); go.pin(len(go) - 4, I(f"s_cmp_lg_u32 s{S_CNT}, 0"))
    loop = [I(".p2align 6"), I("L_LOOP:")] + ge.flat() + go.flat() + [I("s_cbranch_scc1 L_LOOP")]
    last = stamp(7) + attn_last() + stamp(8); op = oproj() + stamp(9); fb = fallback()
    end = [I("L_END:"), I("s_endpgm")]
    if d == 'xn': body = p0 + dump_regs([ar(4*i) for i in range(64)]) + end; trace = body
    elif d == 'q': body = p0 + p1 + dump_regs([vr(V_Q + 4*i) for i in range(16)] + [ar(144 + 4*i) for i in range(28)]) + end; trace = body
    else:
        mid = []
        if d == 'o': mid = dump_regs([vr(V_P + 4*i) for i in range(16)] + [vr(V_RL), vr(V_NEGM), vr(V_NEGM+4), vr(V_NEGM+8), vr(V_NEGM+12)])
        body = p0 + p1 + su + it0 + it1 + loop + last + mid + op + end + fb
        trace = p0 + p1 + su + it0 + it1 + loop*3 + last + mid + op
        k = [i for i, x in enumerate(last) if x.text == "s_cbranch_vccnz L_FALLBACK"][0]
        trace2 = p0 + p1 + su + it0 + it1 + loop*2 + last[:k+1] + fb + it0 + it1 + loop + last + op
        resolve_waits(trace2)
    resolve_waits(trace)
    e = check(trace, verbose=False)
    if d is None or d == 'o': e += check(trace2, verbose=False)
    rk = reduce_kernel(); resolve_waits(rk); e += check(rk, verbose=False)
    seen = set()
    for x in e:
        if x not in seen: print("CHECK:", x, file=sys.stderr); seen.add(x)
    return body, rk

def kdesc(name, vg, acc):
    return f""".amdhsa_kernel {name}
  .amdhsa_next_free_vgpr {vg}
  .amdhsa_next_free_sgpr 102
  .amdhsa_accum_offset {acc}
  .amdhsa_group_segment_fixed_size 0
  .amdhsa_kernarg_size 104
  .amdhsa_user_sgpr_count 2
  .amdhsa_user_sgpr_kernarg_segment_ptr 1
  .amdhsa_system_sgpr_workgroup_id_x 1
  .amdhsa_float_denorm_mode_32 3
.end_amdhsa_kernel"""

body, rk = build()
K1, K2 = NAME + "_kernel", "reduce_kernel"
out = [f"; @launch kernel={K1} grid=(256,1,1) block=(256,1,1) lds=163840",
       f"; @launch kernel={K2} grid=(256,1,1) block=(256,1,1) lds=0",
       '.amdgcn_target "amdgcn-amd-amdhsa--gfx950"', ".text"]
for nm, b in ((K1, body), (K2, rk)):
    out += [f".globl {nm}", ".p2align 8", f".type {nm},@function", f"{nm}:"] + [x.emit() for x in b]
out += ['.section .rodata,"a"', ".p2align 6", kdesc(K1, 512, 256), ".p2align 6", kdesc(K2, 192, 192)]
print("\n".join(out))
```

```python
import re

REG_RE = re.compile(r'(?<![\w.])(-?)(?:abs\()?([vas])(?:(\d+)|\[(\d+):(\d+)\])\)?(?![\w])')
TRANS = ('v_exp_f32', 'v_rcp_f32', 'v_rsq_f32', 'v_sqrt_f32', 'v_log_f32')

def regs_of(op):
    op = op.strip()
    out = []
    for m in REG_RE.finditer(op):
        f = m.group(2)
        if m.group(3) is not None:
            out.append(f + m.group(3))
        else:
            out += [f + str(i) for i in range(int(m.group(4)), int(m.group(5)) + 1)]
    for sp in ('m0', 'vcc', 'exec'):
        if re.search(r'(?<![\w])' + sp + r'(?![\w])', op):
            out.append(sp)
    return out

def split_ops(s):
    out, depth, cur = [], 0, ''
    for ch in s:
        if ch in '[(': depth += 1
        if ch in '])': depth -= 1
        if ch == ',' and depth == 0:
            out.append(cur); cur = ''
        else:
            cur += ch
    if cur.strip(): out.append(cur)
    return [o.strip() for o in out]

class Ins:
    __slots__ = ('text', 'kind', 'rd', 'wr', 'tag', 'vm', 'lgkm', 'vmN', 'lgkmN', 'srcC', 'srcAB', 'res_r', 'res_w', 'wide', 'data', 'cmt')
    def __init__(self, text, tag=None, res_r=None, res_w=None, cmt=None):
        self.text = text; self.tag = tag; self.vm = None; self.lgkm = None; self.vmN = None; self.lgkmN = None
        self.srcC = []; self.srcAB = []; self.res_r = res_r; self.res_w = res_w; self.wide = False; self.data = []; self.cmt = cmt
        t = text.strip()
        if t.endswith(':') or t.startswith('.') or t.startswith(';'):
            self.kind = 'label'; self.rd = set(); self.wr = set(); return
        sp = t.split(None, 1)
        mn = sp[0]; ops = split_ops(sp[1]) if len(sp) > 1 else []
        R = [regs_of(o) for o in ops]
        allr = lambda lo: set(r for x in R[lo:] for r in x)
        rd, wr = set(), set()
        if mn.startswith('v_mfma'):
            k = 'mfma'; wr = set(R[0]); rd = allr(1); self.srcC = R[3]; self.srcAB = R[1] + R[2]
        elif mn.startswith('v_smfmac'):
            k = 'mfma'; wr = set(R[0]); rd = allr(0); self.srcC = R[0]; self.srcAB = R[1] + R[2] + R[3]
        elif mn.startswith('v_permlane'):
            k = 'perm'; wr = allr(0); rd = allr(0)
        elif mn.startswith('v_readfirstlane') or mn.startswith('v_readlane'):
            k = 'rdlane'; wr = set(R[0]); rd = allr(1)
        elif mn.startswith('v_nop'):
            k = 'valu'
        elif mn.startswith('v_'):
            k = 'trans' if mn.replace('_e32', '').replace('_e64', '') in TRANS else 'valu'
            wr = set(R[0]); rd = allr(1)
            if mn.startswith('v_fmac') or mn.startswith('v_dot2c') or mn.startswith('v_pk_fmac'): rd |= wr
            if re.match(r'v_(add|sub|subrev)_co_u32|v_addc_co', mn): wr |= set(R[1]); rd = allr(2)
        elif mn.startswith('ds_read') or mn.startswith('ds_bpermute') or mn.startswith('ds_swizzle'):
            k = 'dsr'; wr = set(R[0]); rd = allr(1)
        elif mn.startswith('ds_write'):
            k = 'dsw'; rd = allr(0); self.data = R[1]; self.wide = len(R[1]) >= 3
        elif mn.startswith('buffer_load') and re.search(r'\blds\b', t):
            k = 'dma'; rd = allr(0) | {'m0'}
        elif mn.startswith('buffer_load') or mn.startswith('global_load'):
            k = 'vld'; wr = set(R[0]); rd = allr(1)
        elif mn.startswith('buffer_store') or mn.startswith('buffer_atomic'):
            k = 'vst'; rd = allr(0); self.data = R[0]; self.wide = len(R[0]) >= 3
            if mn.startswith('buffer_atomic') and re.search(r'\bsc0\b', t): k = 'vld'; wr = set(R[0])
        elif mn.startswith('global_store') or mn.startswith('global_atomic'):
            k = 'vst'; rd = allr(0); self.data = R[1]; self.wide = len(R[1]) >= 3
        elif mn.startswith('buffer_inv') or mn.startswith('buffer_wbl2'):
            k = 'vst'
        elif mn.startswith('s_load') or mn.startswith('s_memtime') or mn.startswith('s_memrealtime'):
            k = 'smem'; wr = set(R[0]); rd = allr(1)
        elif mn == 's_waitcnt':
            k = 'wait'
            m = re.search(r'vmcnt\((\d+)\)', t); self.vmN = int(m.group(1)) if m else None
            m = re.search(r'lgkmcnt\((\d+)\)', t); self.lgkmN = int(m.group(1)) if m else None
        elif mn == 's_barrier': k = 'barrier'
        elif mn == 's_nop': k = 'nop'
        elif mn.startswith('s_cbranch') or mn in ('s_branch', 's_endpgm', 's_setprio', 's_sleep'):
            k = 'ctl'
        elif mn.startswith('s_cmp') or mn.startswith('s_bitcmp'):
            k = 'salu'; rd = allr(0)
        elif mn.startswith('s_'):
            k = 'salu'; wr = set(R[0]); rd = allr(1)
            if 'saveexec' in mn: wr |= {'exec'}; rd |= {'exec'}
            if mn.startswith('s_addk') or mn.startswith('s_mulk'): rd |= wr
        else:
            raise ValueError("unknown instr " + text)
        self.kind = k; self.rd = rd; self.wr = wr
    def cost(self):
        if self.kind == 'dsw': return {1: 2, 2: 3}.get(len(self.data), 5)
        if self.kind == 'vst': return 5 if self.wide else 3
        if self.kind in ('trans', 'dma', 'vld', 'perm'): return 2
        if self.kind == 'label': return 0
        if self.kind == 'nop': return int(self.text.split()[1]) + 1
        return 1
    def is_valu(self): return self.kind in ('valu', 'trans', 'perm', 'rdlane')
    def is_scalar(self): return self.kind in ('salu', 'wait', 'barrier', 'ctl') or (self.kind == 'nop' and self.cost() == 1)
    def is_b128r(self): return self.kind == 'dsr' and len(self.wr) == 4
    def is_mem(self): return self.kind in ('dsr', 'dsw', 'dma', 'vld', 'vst')
    def emit(self):
        if self.kind == 'wait' and (self.vm is not None or self.lgkm is not None):
            p = []
            if self.vmN is not None: p.append(f"vmcnt({min(self.vmN, 63)})")
            if self.lgkmN is not None: p.append(f"lgkmcnt({min(self.lgkmN, 15)})")
            assert p, "unresolved wait"
            t = "s_waitcnt " + " ".join(p)
        else:
            t = self.text
        if self.kind == 'label': return t
        return "    " + t + (f"  ; {self.cmt}" if self.cmt else "")

def I(text, **kw): return Ins(text, **kw)

def W(vm=None, lgkm=None):
    w = Ins("s_waitcnt vmcnt(0)")
    w.vm = list(vm) if vm is not None else None; w.lgkm = list(lgkm) if lgkm is not None else None
    w.vmN = None; w.lgkmN = None
    return w

def resolve_waits(trace):
    vmq, lq = [], []
    for ins in trace:
        if ins.kind in ('dma', 'vld', 'vst'): vmq.append(ins.tag)
        elif ins.kind in ('dsr', 'dsw'): lq.append(ins.tag)
        elif ins.kind == 'wait':
            for tg, q, attr in ((ins.vm, vmq, 'vmN'), (ins.lgkm, lq, 'lgkmN')):
                if tg is None: continue
                n = None
                for i in range(len(q) - 1, -1, -1):
                    if q[i] in tg:
                        n = len(q) - 1 - i; break
                assert n is not None, f"wait target {tg} never issued"
                cur = getattr(ins, attr)
                setattr(ins, attr, n if cur is None else min(cur, n))

def check(trace, verbose=True):
    errs = []
    tr = [x for x in trace if x.kind != 'label']
    pos = []; p = 0
    for x in tr:
        pos.append(p)
        p += (int(x.text.split()[1]) + 1) if x.kind == 'nop' else 1
    def err(i, j, msg): errs.append(f"{msg}: [{j}] {tr[j].text}  ->  [{i}] {tr[i].text}")
    for i, x in enumerate(tr):
        j = i - 1
        while j >= 0:
            y = tr[j]
            d = pos[i] - pos[j] - 1
            if y.kind == 'nop': j -= 1; continue
            if d >= 9: break
            if y.is_valu():
                w = y.wr
                if x.kind == 'mfma' and d < 2 and (w & x.rd): err(i, j, "VALU->MFMA<2")
                if x.kind == 'perm' and d < 2 and (w & x.rd): err(i, j, "VALU->permlane<2")
                if x.kind == 'rdlane' and d < 1 and (w & x.rd): err(i, j, "VALU->readlane<1")
                if y.kind == 'trans' and x.kind in ('valu', 'perm', 'rdlane') and d < 1 and (w & x.rd): err(i, j, "trans->VALU<1")
                sw = set(r for r in w if r[0] == 's' or r == 'vcc')
                if sw:
                    if x.is_valu() and d < 2 and (sw & x.rd): err(i, j, "VALU sgpr->VALU<2")
                    if x.kind in ('dma', 'vld', 'vst') and d < 5 and (sw & x.rd): err(i, j, "VALU sgpr->VMEM<5")
                if 'dpp' in x.text or 'row_' in x.text:
                    if d < 2 and (w & x.rd): err(i, j, "VALU->DPP<2")
            if y.kind == 'mfma':
                D = y.wr
                if x.kind == 'mfma':
                    if d < 8 and (D & set(x.srcAB)): err(i, j, "MFMA D->MFMA AB<8")
                    c = set(x.srcC)
                    if (D & c) and c != D and d < 6: err(i, j, "MFMA D->MFMA C partial<6")
                elif x.is_valu() or x.is_mem():
                    if d < 8 and (D & (x.rd | x.wr)): err(i, j, "MFMA D->VALU/mem<8")
                    if x.is_valu() and d < 3 and (set(y.srcC) & x.wr): err(i, j, "MFMA C WAR<3")
            if y.kind == 'salu' and 'm0' in y.wr and x.kind == 'dma' and d < 1: err(i, j, "M0->DMA<1")
            if y.kind in ('vst', 'dsw') and y.wide and d < 2 and (set(y.data) & x.wr): err(i, j, "store data WAR<2")
            j -= 1
    for i, x in enumerate(tr):
        if x.text.startswith('s_cbranch_scc'):
            j = i - 1
            while j >= 0:
                y = tr[j]
                if y.kind == 'salu' and not re.match(r's_(mov|mul_i32|cselect|getpc|movk|getreg)', y.text):
                    if not y.text.startswith('s_cmp'): err(i, j, "SCC clobbered before branch")
                    break
                j -= 1
    vmq, lq, sm = [], [], []
    res = {}
    def R(n): return res.setdefault(n, dict(w=[], wb=False, r=[], rb=False))
    for i, x in enumerate(tr):
        touched = x.rd | x.wr
        for q, nm in ((vmq, 'vm'), (lq, 'lgkm'), (sm, 'smem')):
            for y in q:
                if y.wr & touched:
                    if nm != 'smem' and not (y.wr & x.rd) and ((nm == 'lgkm' and x.kind == 'dsr') or (nm == 'vm' and x.kind == 'vld')): continue
                    errs.append(f"use before {nm} wait: {y.text} -> [{i}] {x.text}")
        if x.res_r:
            for (n, shared) in x.res_r:
                r = R(n)
                for y in r['w']:
                    if (y in vmq) or (shared and y in lq): errs.append(f"LDS RAW {n}: write not waited: {y.text} -> [{i}] {x.text}")
                if shared and r['wb']: errs.append(f"LDS RAW {n}: no barrier after write -> [{i}] {x.text}")
                r['r'].append(x); r['rb'] = True
        if x.res_w:
            for (n, shared) in x.res_w:
                r = R(n)
                for y in r['r']:
                    if y in lq and (x.kind == 'dma' or shared): errs.append(f"LDS WAR {n}: read not waited: {y.text} -> [{i}] {x.text}")
                if shared and r['rb']: errs.append(f"LDS WAR {n}: no barrier after read -> [{i}] {x.text}")
                r['w'].append(x); r['wb'] = True
        if x.kind in ('dma', 'vld', 'vst'): vmq.append(x)
        elif x.kind in ('dsr', 'dsw'): lq.append(x)
        elif x.kind == 'smem': sm.append(x)
        elif x.kind == 'wait':
            if x.vmN is not None:
                n = min(x.vmN, 63)
                vmq[:] = vmq[len(vmq) - n:] if n else []
            if x.lgkmN is not None:
                n = min(x.lgkmN, 15)
                if n == 0: sm[:] = []
                elif sm: errs.append(f"counted lgkm wait with smem outstanding [{i}]")
                lq[:] = lq[len(lq) - n:] if n else []
        elif x.kind == 'barrier':
            for n, r in res.items():
                r['w'] = [y for y in r['w'] if y in vmq or y in lq]
                r['r'] = [y for y in r['r'] if y in lq]
                r['wb'] = bool(r['w']); r['rb'] = bool(r['r'])
        if len(lq) > 15 and x.kind in ('dsr', 'dsw'):
            pass
    if verbose:
        for e in errs[:40]: print("CHECK:", e)
        if len(errs) > 40: print("... total", len(errs))
    return errs

class Gaps:
    def __init__(self, mfmas, cap=2):
        self.m = list(mfmas); n = len(self.m)
        self.g = [[[], [], []] for _ in range(n)]
        self.cap = [cap] * n
        self.head = []
    def __len__(self): return len(self.m)
    @staticmethod
    def seq_cost(seq):
        seq = [x for x in seq if x.kind != 'label']
        c = sum(x.cost() for x in seq)
        if seq and seq[0].is_scalar() and not (len(seq) > 1 and seq[1].kind in ('dma', 'vld', 'vst')): c -= 1
        return c
    def seq(self, i): return self.g[i][0] + self.g[i][1] + self.g[i][2]
    def used(self, i): return self.seq_cost(self.seq(i))
    def free(self, i): return self.cap[i] - self.used(i)
    def lane_of(self, ins): return 2 if ins.is_valu() else (0 if (ins.is_scalar() or ins.kind == 'label') else 1)
    def pin(self, i, ins, post=None, lane=None):
        if lane is None: lane = 2 if post else self.lane_of(ins)
        self.g[i][lane].append(ins)
        return (i, lane)
    def cost_with(self, i, ins, lane):
        t = [list(x) for x in self.g[i]]; t[lane].append(ins)
        return self.seq_cost(t[0] + t[1] + t[2])
    def place(self, ins, lo, hi=None, after=None, force=True):
        n = len(self.m)
        if hi is None: hi = n - 1
        hi = min(hi, n - 1)
        def lane_at(i):
            l = self.lane_of(ins)
            if after is None or i > after[0]: return l
            if i < after[0]: return None
            if after[1] > l:
                if ins.is_mem() and after[1] == 2: return None
                return after[1]
            return l
        def fits(i, l):
            if ins.is_b128r() and any(x.is_b128r() for x in self.g[i][1]): return False
            c = self.cost_with(i, ins, l)
            if c <= self.cap[i]: return True
            return ins.cost() > self.cap[i] and self.used(i) == 0
        if ins.is_scalar():
            for i in range(lo, min(hi, max(lo, after[0] if after else lo) + 3) + 1):
                l = lane_at(i)
                if l is not None and self.cost_with(i, ins, l) == self.used(i): return self.pin(i, ins, lane=l)
        for i in range(lo, hi + 1):
            l = lane_at(i)
            if l is not None and fits(i, l): return self.pin(i, ins, lane=l)
        assert force, "no room for " + ins.text
        best = None
        for i in range(lo, hi + 1):
            l = lane_at(i)
            if l is None: continue
            if best is None or self.free(i) > self.free(best[0]): best = (i, l)
        if best is None:
            return self.pin(hi, ins, lane=2)
        return self.pin(best[0], ins, lane=best[1])
    def stream(self, items, lo, hi, spread=False):
        its = [(x, lo) if isinstance(x, Ins) else x for x in items]
        need = sum(x.cost() for x, _ in its)
        hi = min(hi, len(self.m) - 1)
        tries = 0
        while True:
            tries += 1
            assert tries < 3000, "stream cannot be placed: " + its[0][0].text
            snap = {i: [list(l) for l in self.g[i]] for i in range(lo, hi + 1)}
            h = None; okay = True
            done = 0
            for k, (x, e) in enumerate(its):
                st = max(lo, e)
                if spread: st = max(st, lo + (k * (hi - lo - 1)) // len(its))
                try:
                    h = self.place(x, st, hi, after=h, force=False)
                except AssertionError:
                    okay = False; break
            if okay: return h
            for i in snap: self.g[i] = snap[i]
            mn = min(self.cap[lo:hi + 1])
            cand = [i for i in range(lo, hi + 1) if self.cap[i] == mn]
            k = max(1, len(cand) // 16)
            step = len(cand) / k
            off = (tries * 0.381966) % 1.0
            for t in range(k): self.cap[cand[min(len(cand) - 1, int((t + off) * step))]] += 1
    def flat(self, pad=True):
        out = list(self.head)
        for i, m in enumerate(self.m):
            out.append(m)
            sq = self.seq(i)
            real = [x for x in sq if x.kind != 'label']
            if pad and len(real) >= 2 and real[0].kind == 'dsr' and real[1].kind == 'dsr':
                prev = [x for x in self.seq(i - 1) if x.kind != 'label'] if i else []
                if not (prev and all(x.is_valu() for x in prev) and self.used(i - 1) >= 2): out.append(Ins("s_nop 0"))
            out += sq
        return out
    def cyc(self, lo, hi): return sum(max(16, 8 + 4 * self.used(i)) for i in range(lo, hi + 1))
    def cycles(self): return self.cyc(0, len(self.m) - 1)
```

```python
import sys, struct, math
from asmlib import *

NAME = "recurrent_scan__gqa_block_cached__dense_activation_gelu__prompt"
OPT = dict(dump=None, stamps=False, G='2', early='1', pfs='128')
for a in sys.argv[1:]:
    k, _, v = a.partition('=')
    OPT[k] = v if v else True

NT = lambda k: ' nt' if k in OPT.get('nt', '') else ''
GG = int(OPT['G']); LG = GG.bit_length() - 1
def f2u(x): return struct.unpack('<I', struct.pack('<f', x))[0]
def hx(x): return f"0x{x & 0xffffffff:x}"
def vr(b, n=4): return f"v[{b}:{b+n-1}]" if n > 1 else f"v{b}"
def ar(b, n=4): return f"a[{b}:{b+n-1}]" if n > 1 else f"a{b}"
def sr(b, n=4): return f"s[{b}:{b+n-1}]" if n > 1 else f"s{b}"

S_W = 3
SRD_X, SRD_K, SRD_V, SRD_WQ, SRD_WO, SRD_W1, SRD_W2, SRD_WS, SRD_OUT, SRD_B1, SRD_B2, SRD_DBG = range(4, 52, 4)
S_G, S_R = 52, 53
S_SM1, S_SMQ, S_SM2 = 54, 57, 60
S_RING = 63
S_KO = 64
S_VO = 66
S_CNT, S_PASS = 68, 69
S_QS, S_GB = 70, 71
S_YO = 72
S_T = 76
S_PF = 99
SRD_WS2 = 80
S_CB, S_CB2, S_SPIN = 84, 85, 86
S_STAMP = 96

V_KA, V_VA, V_DV, V_SPI, V_L16 = 0, 4, 12, 14, 15
V_NEGM, V_S, V_SPA = 16, 32, 44
V_T = 48
V_Q, V_P = 64, 128
V_WA = 4
V_AF = 16
V_W1, V_WQ, V_W2, V_GA = 48, 49, 50, 51
V_ACCA, V_ACCB = 128, 192
V_B1 = 64
def XN(ks, qb): return ((15 - ks) * 4 + qb) * 4
A_O, A_L, A_KF, A_VF = 0, 128, 144, 176
A_SPA, A_FILL, A_XT, A_PF, A_WOB, A_Y7 = 208, 212, 216, 224, 225, 228
V_YB, V_YS, V_YT, V_PFO, V_CNT = 40, 44, 60, 61, 62
S_CA, S_YI, S_YL, S_FO, S_XO = 87, 88, 89, 90, 91

LDS_V, LDS_X = 65536, 131072
WS_S, WS_Y, WS_DUMP = 0, 16 << 20, 64 << 20

mf = lambda d, a, b, c: I(f"v_mfma_f32_16x16x32_bf16 {d}, {a}, {b}, {c}")

segs = {}
def stamp(i, last=False):
    if not OPT['stamps']: return []
    L = [I(f"s_memtime s[{S_STAMP}:{S_STAMP+1}]"), I(f"s_memrealtime s[100:101]"), I("s_waitcnt lgkmcnt(0)"),
         I(f"v_writelane_b32 v63, s{S_STAMP}, {i}"), I(f"v_writelane_b32 v63, s100, {16+i}")]
    if last:
        L += [I("s_lshl_b32 s98, s2, 2"), I(f"s_add_u32 s98, s98, s{S_W}"), I("s_lshl_b32 s98, s98, 8"), I(f"s_add_u32 s98, s98, {hx(WS_DUMP)}"),
              I(f"v_lshrrev_b32 v62, 2, v{V_L16}"), I(f"buffer_store_dword v63, v62, {sr(SRD_WS)}, s98 offen", tag='stamp')]
    return L

def ministamp(G, gap, lane):
    if not OPT.get('mini'): return
    for x in (I(f"s_memtime s[{S_STAMP}:{S_STAMP+1}]"), I("s_waitcnt lgkmcnt(0)"), I(f"v_writelane_b32 v63, s{S_STAMP}, {lane}")): G.pin(gap, x, post=True)

def dump_regs(groups):
    L = [I("s_waitcnt vmcnt(0) lgkmcnt(0)"), I("s_nop 7"), I("s_nop 7")]
    L += [I(f"s_lshl_b32 s{S_T}, s2, 2"), I(f"s_add_u32 s{S_T}, s{S_T}, s{S_W}"),
          I(f"s_mul_i32 s{S_T}, s{S_T}, {len(groups)*1024}"), I(f"s_add_u32 s{S_T}, s{S_T}, {hx(WS_DUMP)}")]
    for g in groups:
        L.append(I(f"buffer_store_dwordx4 {g}, v{V_L16}, {sr(SRD_WS)}, s{S_T} offen"))
        L.append(I("s_nop 3"))
        L.append(I(f"s_add_u32 s{S_T}, s{S_T}, 1024"))
    L += [I("s_waitcnt vmcnt(0)"), I("s_endpgm")]
    return L

def srd(L, base, p, nbytes):
    L += [I(f"s_mov_b32 s{base}, s{p}"), I(f"s_mov_b32 s{base+1}, s{p+1}"),
          I(f"s_mov_b32 s{base+2}, {hx(nbytes)}"), I(f"s_mov_b32 s{base+3}, 0x20000")]

def dma_w(srdb, vreg, sm, i, tag, res):
    so = "0" if (i & 3) == 0 else f"s{sm + (i & 3) - 1}"
    off = f" offset:{(i & 3) * 1024}" if i & 3 else ""
    return I(f"buffer_load_dwordx4 v{vreg}, {sr(srdb)}, {so} offen{off} lds", tag=tag, res_w=res)

STAGES = []
for kq in range(8): STAGES.append(dict(m='w1', srd=SRD_W1, v=V_W1, sm=S_SM1, stride=3584, nks=2, ks0=2*kq, acc=V_ACCA, first=kq == 0, adj=0))
for hq in range(2):
    for kq in range(8): STAGES.append(dict(m='wq', srd=SRD_WQ, v=V_WQ, sm=S_SMQ, stride=8192, nks=2, ks0=2*kq, acc=V_ACCB, first=kq == 0,
                                           adj=(-512*8192 + 128) if kq == 7 else 0))
for hc in range(2):
    for kq in range(4): STAGES.append(dict(m='w2', srd=SRD_W2, v=V_W2, sm=S_SM2, stride=1024, nks=2 if kq < 3 else 1, ks0=2*kq, acc=V_ACCA if hc == 0 else V_ACCB,
                                           first=kq == 0, adj=(-224*1024 + 512) if kq == 3 else 0))
SLOTRES = ['K0', 'K1', 'V0', 'V1']
def stage_dma(s):
    st = STAGES[s]; L = []
    for j in range(st['nks']):
        L.append(I(f"s_add_u32 m0, s{S_RING}, {hx((s & 1) * 8192 + ((s >> 1) & 1) * 65536 + j * 4096)}"))
        for i in range(4):
            L.append(dma_w(st['srd'], st['v'], st['sm'], i, f"st{s}", [(f"slot{s&3}", False)]))
        step = 32 * st['stride'] + (st['adj'] if j == st['nks'] - 1 else 0)
        L.append(I(f"v_add_u32 v{st['v']}, {hx(step)}, v{st['v']}"))
    return L

def with_m0_pad(L):
    out = []
    for i, x in enumerate(L):
        out.append(x)
        if 'm0' in x.wr and i + 1 < len(L) and L[i+1].kind == 'dma': out.append(I("s_nop 0"))
    return out

def interleave(main, extra, start=0, end=None):
    end = len(main) if end is None else end
    out = list(main[:start]); n = end - start; k = 0
    for i in range(n):
        out.append(main[start + i])
        while k < len(extra) and (k + 1) * n <= (i + 1) * len(extra) + 0:
            out.append(extra[k]); k += 1
    return out + extra[k:] + list(main[end:])

def touch(L, srdb, vtmp, sreg, ln, rowlines, rowstride, nrows, sbase_code):
    A = lambda t, **k: L.append(I(t, **k))
    step = int(OPT['pfs'])
    per_row = rowlines * 128 // step
    rows_share = -(-nrows * GG // 128)
    total = per_row * rows_share
    lg = per_row.bit_length() - 1
    A(f"s_mul_i32 s{sreg}, s94, {rows_share * rowstride}")
    for t in sbase_code: A(t)
    if sbase_code: A(f"s_add_u32 s{sreg}, s{sreg}, s93")
    A(f"v_lshrrev_b32 v{vtmp}, {lg}, v{ln}")
    if total < 64: A(f"v_min_u32 v{vtmp}, {rows_share - 1}, v{vtmp}")
    A(f"v_mul_u32_u24 v{vtmp}, {rowstride}, v{vtmp}")
    A(f"v_and_b32 v32, {per_row - 1}, v{ln}")
    A(f"v_lshl_add_u32 v{vtmp}, v32, {step.bit_length() - 1}, v{vtmp}")
    out = []
    for k in range(max(1, -(-total // 64))):
        if k: out.append(I(f"v_add_u32 v{vtmp}, {(64 // per_row) * rowstride}, v{vtmp}"))
        out.append(I(f"buffer_load_dword v60, v{vtmp}, {sr(srdb)}, s{sreg} offen{NT({SRD_W1: '1', SRD_WQ: 'q', SRD_W2: '2', SRD_K: 'v'}[srdb])}", tag='pf'))
    return out

def lin_touch(srdb, sreg):
    step = int(OPT['pfs']); n = max(1, 4096 * GG // (64 * step))
    L = []
    for k in range(n):
        if k: L.append(I(f"s_add_u32 s{S_T+3}, s{sreg}, {k * 64 * step}"))
        L.append(I(f"buffer_load_dword v60, v61, {sr(srdb)}, s{S_T+3 if k else sreg} offen", tag='pf'))
    return L

LATE = {}
V_XA = 53
def phase0():
    L = []
    A = lambda t, **k: L.append(I(t, **k))
    A("s_cmp_ge_u32 s2, 256"); A("s_cbranch_scc1 L_END")
    L += stamp(0)
    A("s_load_dwordx16 s[64:79], s[0:1], 0")
    A("s_load_dwordx8 s[80:87], s[0:1], 64")
    A("s_load_dwordx2 s[88:89], s[0:1], 96")
    if not OPT.get('nocodepf'):
        A("s_getpc_b64 s[90:91]")
        A("v_lshlrev_b32 v58, 6, v0")
        A("global_load_dword v60, v58, s[90:91]" + NT('c'), tag='pf')
    t0, t1, t2, t3, ln, n16, g4 = 33, 34, 35, 36, 37, 38, 39
    A(f"v_lshrrev_b32 v{t0}, 6, v0")
    A(f"v_and_b32 v{ln}, 63, v0")
    A(f"v_readfirstlane_b32 s{S_W}, v{t0}")
    A(f"s_lshr_b32 s94, s2, 3")
    A(f"s_and_b32 s{S_G}, s2, {7 & ~(GG-1)}"); A(f"s_and_b32 s93, s94, {GG-1}"); A(f"s_or_b32 s{S_G}, s{S_G}, s93")
    A(f"s_and_b32 s{S_R}, s2, {GG-1}"); A(f"s_mul_i32 s{S_R}, s{S_R}, {32//GG}"); A(f"s_lshr_b32 s94, s94, {LG}"); A(f"s_add_u32 s{S_R}, s{S_R}, s94")
    A(f"s_lshl_b32 s94, s94, 2"); A(f"s_add_u32 s94, s94, s{S_W}")
    A(f"s_lshl_b32 s92, s{S_R}, 16"); A(f"s_lshl_b32 s{S_RING}, s{S_W}, 14"); A(f"s_add_u32 s92, s92, s{S_RING}")
    A(f"v_lshrrev_b32 v{t0}, 2, v{ln}"); A(f"v_lshlrev_b32 v{t0}, 10, v{t0}")
    A(f"v_and_b32 v{t1}, 3, v{ln}"); A(f"v_lshl_add_u32 v{t0}, v{t1}, 4, v{t0}")
    A(f"s_and_b32 s95, s{S_G}, {1 if (GG > 1 and not OPT.get('norot')) else 0}"); A("s_lshl_b32 s93, s95, 9"); A(f"v_xor_b32 v{t0}, s93, v{t0}")
    A(f"v_and_b32 v{n16}, 15, v{ln}")
    A(f"v_lshrrev_b32 v{g4}, 4, v{ln}")
    A(f"v_lshlrev_b32 v{V_L16}, 4, v{ln}")
    A("s_waitcnt lgkmcnt(0)")
    if OPT.get('fine'): L += stamp(11)
    srd(L, SRD_X, 64, 2048*512*2)
    for ks in range(16):
        A(f"buffer_load_dwordx4 {vr(64+4*ks)}, v{t0}, {sr(SRD_X)}, s92 offen offset:{(ks&7)*64}{NT('x')}", tag=f'x{ks}')
        if ks == 7: A(f"v_xor_b32 v{t0}, 0x200, v{t0}")
    if OPT.get('fine'): L += stamp(12)
    srd(L, SRD_W1, 76, 512*1792*2); srd(L, SRD_WQ, 70, 512*4096*2); srd(L, SRD_B1, 78, 1792*2)
    A(f"v_and_b32 v{t1}, 7, v{ln}"); A(f"v_lshlrev_b32 v{t2}, 1, v{g4}"); A(f"v_xor_b32 v{t1}, v{t1}, v{t2}")
    A(f"v_lshlrev_b32 v{t1}, 4, v{t1}")
    A(f"v_lshrrev_b32 v{t2}, 5, v{ln}"); A(f"v_bfe_u32 v{t3}, v{ln}, 3, 2"); A(f"v_lshl_add_u32 v{t2}, v{t2}, 3, v{t3}")
    A(f"s_mul_i32 s92, s{S_G}, 448"); A("s_and_b32 s92, s92, 0xffffff80"); A(f"s_lshl_b32 s93, s{S_W}, 7"); A("s_add_u32 s92, s92, s93")
    A(f"v_mul_u32_u24 v{V_W1}, 3584, v{t2}"); A(f"v_add3_u32 v{V_W1}, v{V_W1}, v{t1}, s92")
    for i in range(1, 4):
        A(f"s_mov_b32 s{S_SM1+i-1}, {hx((16*(i&1) + 4*(i>>1))*3584 - 1024*i)}")
    vb1 = 57 if OPT.get("s2") else 14
    A(f"v_lshlrev_b32 v{vb1}, 3, v{g4}"); A("s_mov_b32 s95, s92")
    b1l = [I(f"buffer_load_dwordx2 {vr(40+2*ct,2)}, v{vb1}, {sr(SRD_B1)}, s95 offen offset:{32*ct}", tag='b1') for ct in range(4)]
    A(f"s_lshl_b32 s93, s{S_G}, 19")
    A("s_add_u32 s66, s66, s93"); A("s_addc_u32 s67, s67, 0")
    A("s_add_u32 s68, s68, s93"); A("s_addc_u32 s69, s69, 0")
    srd(L, SRD_K, 66, 524288); srd(L, SRD_V, 68, 524288); srd(L, SRD_WO, 72, 4096*512*2)
    srd(L, SRD_W2, 80, 1792*512*2); srd(L, SRD_B2, 82, 1024); srd(L, SRD_OUT, 84, 2048*512*2)
    srd(L, SRD_DBG, 86, 256); srd(L, SRD_WS, 88, 1 << 28); srd(L, SRD_WS2, 88, 1 << 28)
    A(f"s_mul_i32 s{S_PF}, s94, {4096*GG}"); A(f"v_and_b32 v{V_PFO}, {8*GG - 1}, v{ln}"); A(f"v_lshlrev_b32 v{V_PFO}, 7, v{V_PFO}")
    A(f"s_lshl_b32 s93, s{S_G}, 19"); A(f"s_add_u32 s{S_PF}, s{S_PF}, s93")
    tw1, twq, tw2, tkv, tcode = [], [], [], [], []
    if not OPT.get('nopf'):
        tw1 = touch(L, SRD_W1, 59 if OPT.get('s2') else 55, 76, ln, 4, 3584, 512, [f"s_mul_i32 s93, s{S_G}, 448", "s_and_b32 s93, s93, 0xffffff80"])
        R0 = int(OPT.get('r0', 512))
        twq = touch(L, SRD_WQ, 56, 77, ln, 8, 8192, R0, [f"s_lshl_b32 s93, s{S_G}, 10"])
        if R0 < 512: LATE['wq'] = touch(L, SRD_WQ, 62, 87, ln, 8, 8192, 512 - R0, [f"s_lshl_b32 s93, s{S_G}, 10", f"s_add_u32 s93, s93, {R0*8192}"])
        tw2 = touch(L, SRD_W2, 14 if OPT.get('s2') else 57, 78, ln, 8, 1024, 224, [f"s_mul_i32 s93, s{S_G}, {224*1024}"])
        tk = touch(L, SRD_K, 55 if OPT.get('s2') else 59, 79, ln, 2, 256, int(OPT.get('kvrows', 384)), [])
        tkv = tk + [I(x.text.replace(sr(SRD_K), sr(SRD_V)), tag='pf') for x in tk if x.kind == 'vld'][-1:]
        if not OPT.get('nocodepf'):
            A("s_getpc_b64 s[90:91]"); A("L_PC2:")
            A(f"s_lshr_b32 s93, s2, 3"); A(f"s_lshl_b32 s93, s93, 2"); A(f"s_add_u32 s93, s93, s{S_W}")
            A(f"s_lshl_b32 s93, s93, 9"); A(f"v_lshlrev_b32 v58, 3, v{ln}"); A("v_add_u32 v58, s93, v58")
            A("v_min_u32 v58, CODE_LEFT, v58")
            tcode = [I("global_load_dword v60, v58, s[90:91]" + NT('c'), tag='pf')]
    A(f"s_lshl_b32 s92, s{S_G}, 10"); A(f"s_lshl_b32 s93, s{S_W}, 8"); A("s_add_u32 s92, s92, s93")
    A(f"v_lshlrev_b32 v{V_WQ}, 13, v{t2}"); A(f"v_add3_u32 v{V_WQ}, v{V_WQ}, v{t1}, s92")
    for i in range(1, 4):
        A(f"s_mov_b32 s{S_SMQ+i-1}, {hx((16*(i&1) + 4*(i>>1))*8192 - 1024*i)}")
        A(f"s_mov_b32 s{S_SM2+i-1}, {hx(8192*i - 1024*i)}")
    A(f"s_mul_i32 s92, s{S_G}, {224*1024}"); A(f"s_lshl_b32 s93, s{S_W}, 7"); A("s_add_u32 s92, s92, s93")
    A(f"v_lshrrev_b32 v{t2}, 3, v{ln}"); A(f"v_lshlrev_b32 v{V_W2}, 10, v{t2}"); A(f"v_add3_u32 v{V_W2}, v{V_W2}, v{t1}, s92")
    A(f"v_lshrrev_b32 v{t1}, 2, v{ln}")
    A(f"v_lshlrev_b32 v{t1}, 7, v{t1}")
    A(f"v_and_b32 v{t2}, 3, v{ln}"); A(f"v_lshl_add_u32 v{t1}, v{t2}, 3, v{t1}")
    A(f"v_add_u32 v{t1}, s{S_RING}, v{t1}")
    A(f"v_bfe_u32 v{t2}, v{ln}, 3, 2")
    for ct in range(4):
        A(f"v_xor_b32 v{t3}, {ct}, v{t2}")
        A(f"v_lshl_add_u32 v{V_WA+ct}, v{t3}, 5, v{t1}")
        A(f"v_add_u32 v{V_WA+4+ct}, 0x10000, v{V_WA+ct}")
    A(f"v_and_b32 v{t1}, 7, v{ln}"); A(f"v_lshlrev_b32 v{t1}, 1, v{t1}"); A(f"v_xor_b32 v{t1}, v{t1}, v{g4}")
    A(f"v_lshlrev_b32 v{t2}, 8, v{n16}")
    for kk in range(4):
        A(f"v_xor_b32 v{t3}, {4*kk}, v{t1}")
        A(f"v_lshl_add_u32 v{V_KA+kk}, v{t3}, 4, v{t2}")
    A(f"v_lshlrev_b32 v{t1}, 1, v{g4}"); A(f"v_xor_b32 v{t1}, v{t1}, v{n16}"); A(f"v_lshlrev_b32 v{t2}, 8, v{g4}")
    A(f"v_lshl_add_u32 v{V_DV}, v{t1}, 4, v{t2}")
    A(f"v_xor_b32 v{V_DV+1}, 0x80, v{V_DV}")
    A(f"v_add_u32 v{V_XA+1}, {hx(LDS_X)}, v{V_DV}"); A(f"v_add_u32 v{V_XA}, {hx(65536 + 8192)}, v{V_DV}")
    A(f"v_and_b32 v{t1}, 3, v{ln}"); A(f"v_lshrrev_b32 v{t2}, 2, v{ln}"); A(f"v_lshlrev_b32 v{t3}, 1, v{t1}"); A(f"v_xor_b32 v{t2}, v{t2}, v{t3}")
    A(f"v_lshlrev_b32 v{t1}, 8, v{t1}"); A(f"v_lshl_add_u32 v{t1}, v{t2}, 4, v{t1}")
    A(f"s_lshl_b32 s92, s{S_W}, 13"); A(f"s_add_u32 s92, s92, {hx(LDS_X)}")
    A(f"s_add_u32 s93, s{S_RING}, {hx(65536 + 8192)}")
    A(f"s_and_b32 s85, s{S_G}, {1 if (GG > 1 and not OPT.get('norot')) else 0}")
    A("s_cselect_b32 s85, s92, s93"); A("s_cselect_b32 s86, s93, s92")
    A(f"v_add_u32 v{t2}, s85, v{t1}"); A(f"v_add_u32 v{t3}, s86, v{t1}")
    A(f"v_and_b32 v52, 1, v{ln}"); A(f"v_bfe_u32 v{t1}, v{ln}, 1, 1"); A(f"v_sub_u32 v52, v52, v{t1}"); A("v_lshlrev_b32 v52, 3, v52")
    A(f"s_mov_b32 s{S_QS}, {hx(f2u(128**-0.5 * math.log2(math.e)))}")
    ga = -2*0.7978845608028654*math.log2(math.e)
    A(f"s_mov_b32 s{S_GB}, {hx(f2u(ga*0.044715))}")
    A(f"v_mov_b32 v{V_GA}, {hx(f2u(ga))}")
    A(f"s_lshl_b32 s92, s{S_R}, 3"); A(f"s_add_u32 s92, s92, s{S_W}"); A("s_lshl_b32 s92, s92, 3"); A(f"s_add_u32 s92, s92, s{S_G}")
    A("s_lshl_b32 s92, s92, 13"); A(f"s_add_u32 s{S_YO}, s92, {hx(WS_Y)}")
    A(f"s_add_u32 s{S_YO+1}, s{S_YO}, 4096"); A(f"s_add_u32 s{S_YO+2}, s{S_YO}, {4*8*8192}"); A(f"s_add_u32 s{S_YO+3}, s{S_YO+1}, {4*8*8192}")
    A(f"s_lshl_b32 s92, s{S_R}, 3"); A(f"s_add_u32 s92, s92, s{S_G}"); A("s_lshl_b32 s92, s92, 16"); A(f"s_lshl_b32 s93, s{S_W}, 11"); A(f"s_add_u32 s{S_CB}, s92, s93")
    A(f"s_mov_b32 s{S_PASS}, 0")
    A(f"s_lshl_b32 s{S_KO}, s{S_W}, 13"); A(f"s_add_u32 s{S_KO+1}, s{S_KO}, 4096")
    A(f"s_mov_b32 s{S_VO}, s{S_KO}"); A(f"s_mov_b32 s{S_VO+1}, s{S_KO+1}")
    L += stamp(1)
    F = 128
    sa, qa = 16, 24
    if OPT.get('s2'): LATE['w2'] = tw2 + tkv; tw2 = []; tkv = []
    D = [stage_dma(s) for s in range(3)]
    vq = tw1 + tcode + b1l + D[0] + D[1]
    def pop_vm(n):
        out = []
        while vq and n > 0:
            x = vq.pop(0); out.append(x)
            if x.kind in ('dma', 'vld'): n -= 1
        return with_m0_pad(out)
    for ks in range(16):
        if ks % 2 == 0:
            L.append(W(vm=[f'x{ks+1}'])); L += pop_vm(int(OPT.get('pv', 3)))
        for i in range(4*ks, 4*ks + 4):
            A(f"v_lshlrev_b32 v{F+2*i}, 16, v{64+i}")
            A(f"v_and_b32 v{F+2*i+1}, 0xffff0000, v{64+i}")
        for i in range(4*ks, 4*ks + 4):
            k = i & 3
            x = vr(F+2*i, 2)
            if i < 4:
                A(f"v_pk_mul_f32 {vr(qa+2*k,2)}, {x}, {x}")
            else:
                src = vr(F+2*k, 2) if i < 8 else vr(sa+2*k, 2)
                A(f"v_pk_add_f32 {vr(sa+2*k,2)}, {src}, {x}")
                A(f"v_pk_fma_f32 {vr(qa+2*k,2)}, {x}, {x}, {vr(qa+2*k,2)}")
    L += stamp(2)
    M = []; A = lambda t, **k: M.append(I(t, **k))
    for b in (sa, qa):
        A(f"v_pk_add_f32 {vr(b,2)}, {vr(b,2)}, {vr(b+2,2)}"); A(f"v_pk_add_f32 {vr(b+4,2)}, {vr(b+4,2)}, {vr(b+6,2)}")
    for b in (sa, qa): A(f"v_pk_add_f32 {vr(b,2)}, {vr(b,2)}, {vr(b+4,2)}")
    for b in (sa, qa): A(f"v_add_f32 v{b}, v{b}, v{b+1}")
    for qp in ("[1,0,3,2]", "[2,3,0,1]"):
        A("s_nop 1")
        for b in (sa, qa): A(f"v_add_f32_dpp v{b}, v{b}, v{b} quad_perm:{qp} row_mask:0xf bank_mask:0xf")
    A(f"v_mul_f32 v{sa}, {hx(f2u(1/512))}, v{sa}")
    A(f"v_mul_f32 v{qa}, {hx(f2u(1/512))}, v{qa}")
    A(f"v_fma_f32 v{qa}, -v{sa}, v{sa}, v{qa}")
    A(f"v_max_f32 v{qa}, 0, v{qa}")
    A(f"v_cvt_pk_bf16_f32 v{sa+1}, v{sa}, v{qa}")
    A(f"v_lshlrev_b32 v{sa}, 16, v{sa+1}")
    A(f"v_and_b32 v{qa}, 0xffff0000, v{sa+1}")
    A(f"v_add_f32 v{qa}, {hx(f2u(1e-5))}, v{qa}")
    A(f"v_cvt_pk_bf16_f32 v{qa}, v{qa}, v{qa}"); A(f"v_and_b32 v{qa}, 0xffff0000, v{qa}")
    A(f"v_sqrt_f32 v{qa}, v{qa}"); A("s_nop 0")
    A(f"v_cvt_pk_bf16_f32 v{qa}, v{qa}, v{qa}"); A(f"v_and_b32 v{qa}, 0xffff0000, v{qa}")
    A(f"v_rcp_f32 v{qa}, v{qa}"); A("s_nop 0")
    A(f"v_mul_f32 v{sa}, v{sa}, v{qa}")
    A(f"v_sub_f32 v{sa}, 0, v{sa}")
    A(f"v_mov_b32 v{qa+1}, v{qa}"); A(f"v_mov_b32 v{sa+1}, v{sa}")
    def norm(ks):
        for i in range(4*ks, 4*ks+4):
            A(f"v_pk_fma_f32 {vr(F+2*i,2)}, {vr(F+2*i,2)}, {vr(qa,2)}, {vr(sa,2)}")
        for i in range(4*ks, 4*ks+4):
            A(f"v_cvt_pk_bf16_f32 v{64+i}, v{F+2*i}, v{F+2*i+1}")
    for ks in range(16):
        norm(ks)
        A(f"ds_write_b128 v{t2 if ks < 8 else t3}, {vr(64+4*ks)} offset:{(ks&7)*1024}", tag='xw', res_w=[('slot3', True), ('hx', True)])
    M.append(W(vm=['b1']))
    for ct in range(4):
        for h in range(2):
            A(f"v_lshlrev_b32 v{V_B1+4*ct+2*h}, 16, v{40+2*ct+h}")
            A(f"v_and_b32 v{V_B1+4*ct+2*h+1}, 0xffff0000, v{40+2*ct+h}")
    M.append(W(lgkm=['xw'])); A("s_barrier")
    rd = [xn_read(ks, qb) for ks in range(2) for qb in range(4)]
    L += pop_vm(99) + twq + tw2 + tkv + M + rd
    if not OPT.get('d2late'): L += with_m0_pad(D[2])
    L += stamp(3)
    return L

def xn_read(ks, qb):
    if ks < 8: return I(f"ds_read_b128 {ar(XN(ks,qb))}, v{V_XA} offset:{qb*16384 + ks*1024}", tag=f'xr{ks>>1}', res_r=[('slot3', True)])
    return I(f"ds_read_b128 {ar(XN(ks,qb))}, v{V_XA+1} offset:{qb*8192 + (ks&7)*1024}", tag=f'xr{ks>>1}', res_r=[('hx', True)])

def af_reads(s, p):
    st = STAGES[s]; L = []
    for c in range(2):
        for j in range(st['nks']):
            for e in range(2):
                L.append(I(f"ds_read_b64_tr_b16 {vr(V_AF + 16*p + 8*c + 4*j + 2*e, 2)}, v{V_WA + 4*((s>>1)&1) + 2*p + c} offset:{(s&1)*8192 + j*4096 + e*2048}",
                           tag=f"af{s}_{p}", res_r=[(f"slot{s&3}", False)]))
    return L

def kv_dma(which, half, buf, tag):
    base = (0 if which == 'K' else LDS_V) + buf*8192 + half*4096
    so = (S_KO if which == 'K' else S_VO) + half
    L = [I(f"s_add_u32 m0, s{S_RING}, {hx(base)}")]
    for i in range(4):
        off = f" offset:{i*1024}" if i else ""
        L.append(I(f"buffer_load_dwordx4 v{V_DV + (i&1)}, {sr(SRD_K if which == 'K' else SRD_V)}, s{so} offen{off}{NT('k')} lds",
                   tag=tag, res_w=[(f"{which}{buf}", True)]))
    return L

def even(G, items, lo, hi):
    nd = sum(1 for x in items if x.kind in ('dma', 'vld', 'vst'))
    k = 0; its = []
    for x in items:
        e = lo + (k * (hi - lo + 1)) // max(nd, 1)
        if x.kind in ('dma', 'vld', 'vst'): k += 1
        else: e = max(lo, e - 3)
        its.append((x, min(e, hi)))
    return G.stream(its, lo, hi)

def phase1():
    m = []; per = {}; done = {}
    for s, st in enumerate(STAGES):
        for p in range(2):
            lo = len(m)
            for c in range(2):
                ct = 2*p + c
                for qb in range(4):
                    d = vr(st['acc'] + 16*ct + 4*qb)
                    for j in range(st['nks']):
                        cc = d
                        if st['first'] and j == 0: cc = vr(V_B1 + 4*ct) if st['m'] == 'w1' else "0"
                        m.append(mf(d, vr(V_AF + 16*p + 8*c + 4*j), ar(XN(st['ks0'] + j, qb)), cc))
                    done[(s, ct, qb)] = len(m) - 1
            per[(s, p)] = (lo, len(m) - 1)
    G = Gaps(m)
    NS = len(STAGES)
    G.head += [W(vm=['st0'])] + af_reads(0, 0) + [W(lgkm=['af0_0'])]
    for s in range(NS):
        for p in range(2):
            ns, npp = (s, 1) if p == 0 else (s + 1, 0)
            if ns >= NS: continue
            lo, hi = per[(s, p)]
            lg = [f"af{ns}_{npp}"]
            if npp == 0 and ns < 8: lg.append(f"xr{ns}")
            if (ns, npp) == (24, 0): lg.append('hr')
            vm = [f"st{s+1}"] if (p == 0 and s + 1 < NS) else None
            G.pin(hi, W(vm=vm, lgkm=lg))
            rd = af_reads(ns, npp)
            h = None
            for k, x in enumerate(rd): h = G.place(x, lo + (k // 2) * 2 + 1 if (len(rd) == 8 and s != int(OPT.get('hs', 21))) else lo, hi - 1, after=h)
    xr = [xn_read(ks, qb) for ks in range(2, 8) for qb in range(4)]
    b1 = per[(0, 1)][1]
    G.stream(xr, 0, b1 - 5)
    G.pin(b1, W(lgkm=['xr3'])); G.pin(b1, I("s_barrier"))
    G.stream([xn_read(ks, qb) for ks in range(8, 16) for qb in range(4)], b1 + 1, per[(3, 1)][1] - 8, spread=True)
    G.pin(per[(6, 1)][1], I("s_barrier"))
    hs = int(OPT.get('hs', 21))
    hwpos = [per[(hs, p)][0] + k for p in range(2) for k in (5, 8, 11, 14)]
    hbar = per[(hs + 1, 0)][0] + 5
    pause = (hwpos[0] - int(OPT.get('pz', 16)), hwpos[-1] + 2) if OPT.get('pz') != '0' else (0, -1)
    slow = int(OPT.get('pzs', 7))
    pos = -99; h = None
    for t in range(2 if OPT.get('d2late') else 3, NS + 3):
        s = t - 4
        rel = per[(s, 1)][0] if s >= 0 else (b1 + 1 if t == 3 else 0)
        if t < NS:
            d = stage_dma(t)
            if t == 3:
                for x in d:
                    if x.res_w: x.res_w = [('slot3', True)]
        else:
            which, buf = [('K', 0), ('K', 1), ('V', 0)][t - NS]
            d = kv_dma(which, 0, buf, 'k0' if t == NS else 'kv') + kv_dma(which, 1, buf, 'k0' if t == NS else 'kv')
            for x in d:
                if x.res_w: x.res_w = x.res_w + [(f'slot{s&3}', False)]
            so = S_KO if which == 'K' else S_VO
            d += [I("s_nop 0"), I(f"s_add_u32 s{so}, s{so}, 0x8000"), I(f"s_add_u32 s{so+1}, s{so+1}, 0x8000")]
        k = 0
        for x in d:
            if x.kind == 'dma':
                nominal = rel + 4*k
                pos = max(nominal, pos + int(OPT.get('catch', 3)))
                if pause[0] <= pos <= pause[1]: pos = min(pause[1] + 1, max(pos, last + slow))
                while pos in hwpos or pos - 1 in hwpos: pos += 1
                pos = min(pos, len(G) - 1)
                h = G.place(x, pos, min(pos + 3, len(G) - 1), after=h); pos = last = h[0]; k += 1
            else:
                h = G.place(x, max(rel - 3, h[0] if h else 0), len(G) - 1, after=h)
    LASTDMA = h[0]
    if 'wq' in LATE: G.stream(LATE['wq'], per[(int(OPT.get('s1', 4)), 0)][0], per[(int(OPT.get('s1', 4)), 1)][1])
    if 'w2' in LATE: G.stream(LATE['w2'], per[(int(OPT['s2']), 0)][0], per[(int(OPT['s2']), 1)][1])
    for (sb, op) in ((8, 'v_add_u32'), (24, 'v_sub_u32')):
        for win in range(2):
            for ct in range(4):
                r = V_WA + 4*win + ct
                G.place(I(f"{op} v{r}, v{r}, v52"), per[(sb - 3 + 2*win, 1)][0], per[(sb - 1 + 2*win, 0)][1])
    ha, hr = V_XA, V_XA + 1
    G.stream([I(f"s_lshl_b32 s{S_T}, s{S_W}, 13"), I(f"s_add_u32 s{S_T}, s{S_T}, {hx(LDS_X)}"), I(f"v_add_u32 v{ha}, s{S_T}, v{V_L16}"),
              I(f"s_and_b32 s{S_T}, s{S_G}, 1"), I(f"s_lshl_b32 s{S_T}, s{S_T}, 12"), I(f"s_add_u32 s{S_T}, s{S_T}, {hx(LDS_X)}"),
              I(f"v_add_u32 v{hr}, s{S_T}, v{V_L16}")], per[(5, 0)][0], per[(6, 1)][1])
    for hq in range(2):
        s = 15 + 8*hq
        for p in range(2):
            kk = 2*hq + p
            items = []
            for half in range(2):
                ct = 2*p + half
                for qb in range(4):
                    e = done[(s, ct, qb)] + 6
                    a = V_ACCB + 16*ct + 4*qb; q = V_Q + 16*qb + 4*kk
                    for r in range(4): items.append((I(f"v_mul_f32 v{a+r}, s{S_QS}, v{a+r}"), e))
                    items.append((I(f"v_cvt_pk_bf16_f32 v{q+2*half}, v{a}, v{a+1}"), e))
                    items.append((I(f"v_cvt_pk_bf16_f32 v{q+2*half+1}, v{a+2}, v{a+3}"), e))
            if hq == 0:
                hnd = None
                for k in range(8):
                    its = items[6*k:6*k + 6]; e = its[0][1]
                    hn = G.stream(its, e, e - 6 + 30)
                    hnd = hn if hnd is None else max(hnd, hn)
            else:
                hnd = G.stream(items, items[0][1], per[(27, 1)][1])
            sw = []
            for qb in range(4):
                q = V_Q + 16*qb + 4*kk
                sw += [I(f"v_permlane32_swap_b32 v{q}, v{q+2}"), I(f"v_permlane32_swap_b32 v{q+1}, v{q+3}")]
            G.stream(sw, hnd[0] + 2, hnd[0] + 60)
    G.pin(hbar, W(lgkm=['hw'])); G.pin(hbar, I("s_barrier"))
    hrd = [I(f"ds_read_b128 {ar(XN(u,qb))}, v{hr} offset:{u*4096 + qb*1024}", tag='hr', res_r=[('hx', True)]) for u in range(7) for qb in range(4)]
    G.stream(hrd, hbar + 1, per[(23, 1)][1] - 6)
    items = []
    T = 56
    for p in range(2):
        for qb in range(4):
            for half in range(2):
                ct = 2*p + half
                e = done[(7, ct, qb)] + 6
                a = V_ACCA + 16*ct + 4*qb
                seq = []
                seq += [f"v_mul_f32 v{T+r}, v{a+r}, v{a+r}" for r in range(4)]
                seq += [f"v_fma_f32 v{T+r}, v{T+r}, s{S_GB}, v{V_GA}" for r in range(4)]
                seq += [f"v_mul_f32 v{T+r}, v{T+r}, v{a+r}" for r in range(4)]
                seq += [f"v_exp_f32 v{T+r}, v{T+r}" for r in range(4)]
                seq += [f"v_add_f32 v{T+r}, 1.0, v{T+r}" for r in range(4)]
                seq += [f"v_rcp_f32 v{T+r}, v{T+r}" for r in range(4)]
                seq += [f"v_mul_f32 v{T+r}, v{T+r}, v{a+r}" for r in range(4)]
                a0 = V_ACCA + 16*(2*p) + 4*qb
                seq += [f"v_cvt_pk_bf16_f32 v{a0+2*half}, v{T}, v{T+1}", f"v_cvt_pk_bf16_f32 v{a0+2*half+1}, v{T+2}, v{T+3}"]
                items += [(I(x), e) for x in seq]
            G.pin(hwpos[4*p + qb], I(f"ds_write_b128 v{ha}, {vr(V_ACCA + 32*p + 4*qb)} offset:{p*4096 + qb*1024}", tag='hw', res_w=[('hx', True)]))
    n1 = len(items) * 7 // 8
    h = G.stream(items[:n1], items[0][1], hwpos[0] - 1 - int(OPT.get('gl', 0)))
    G.stream(items[n1:], h[0] + 1, hwpos[7] - 1)
    tail = []; st0 = []; global YST1
    YST1 = []
    for hc in range(2):
        s = 27 + 4*hc
        acc = STAGES[s]['acc']
        for ct in range(4):
            items = []
            e = done[(s, ct, 3)] + 6
            a = acc + 16*ct
            for half in range(2):
                for k in range(4):
                    items.append(I(f"v_cvt_pk_bf16_f32 v{a+4*half+k}, v{a+8*half+2*k}, v{a+8*half+2*k+1}"))
            for half in range(2):
                (st0 if hc == 0 else YST1).append(I(f"buffer_store_dwordx4 {vr(a+4*half)}, v{V_L16}, {sr(SRD_WS2)}, s{S_YO + 2*hc + (ct>>1)} offen offset:{(ct&1)*2048 + half*1024} sc1", tag='yst'))
            if hc == 0: G.stream(items, e, e + 60)
            else: tail += items
    tail = interleave(tail, st0)
    for k in range(16): ministamp(G, per[(2*k + 1, 1)][1], 32 + k)
    out = with_m0_pad(G.flat()) + [I("s_nop 3")] + tail
    print(f"; phase1: {len(G)} mfma, est cycles {G.cycles()} pairs {[G.cyc(per[(2*k,0)][0], per[(2*k+1,1)][1]) for k in range(16)]}", file=sys.stderr)
    return out

def P(buf, qb, ks): return V_P + 64*buf + 16*qb + 4*ks
def k_reads(kt, buf, res=True):
    return [I(f"ds_read_b128 {ar(A_KF + 16*(kt&1) + 4*kk)}, v{V_KA+kk} offset:{(kt>>1)*16384 + (kt&1)*4096 + buf*8192}",
              tag='fr', res_r=[(f"K{buf}", True)] if res else None) for kk in range(4)]
def v_reads(dt, buf):
    return [I(f"ds_read_b64_tr_b16 {ar(A_VF + 16*(dt&1) + 4*ks + 2*e, 2)}, v{V_VA+dt} offset:{ks*16384 + buf*8192 + e*4096}",
              tag='fr', res_r=[(f"V{buf}", True)]) for ks in range(4) for e in range(2)]

def attn_setup():
    L = []; A = lambda t, **k: L.append(I(t, **k))
    t1, t2, t3 = 56, 57, 58
    A(f"v_lshrrev_b32 v{t1}, 6, v{V_L16}")
    A(f"v_and_b32 v{t2}, 7, v{t1}")
    A(f"v_lshlrev_b32 v{t1}, 8, v{t1}")
    A(f"v_bfe_u32 v{t3}, v{V_L16}, 4, 2"); A(f"v_lshl_add_u32 v{t1}, v{t3}, 3, v{t1}")
    A(f"v_add_u32 v{t1}, 0x10000, v{t1}")
    for dt in range(8):
        A(f"v_xor_b32 v{V_VA+dt}, {dt}, v{t2}")
        A(f"v_lshl_add_u32 v{V_VA+dt}, v{V_VA+dt}, 5, v{t1}")
    A(f"v_cmp_gt_u32 vcc, 2, v{t3}")
    A(f"v_mov_b32 v{t1}, 0x3f803f80"); A(f"v_mov_b32 v{t2}, 0xeeeeeeee")
    A(f"v_cndmask_b32 v59, 0, v{t1}, vcc")
    A(f"v_cmp_eq_u32 vcc, 1, v{t3}")
    A(f"v_mov_b32 v{t1}, 0x44444444")
    for i in range(4): A(f"v_accvgpr_write_b32 a{A_SPA+i}, v59")
    A(f"v_cndmask_b32 v{V_SPI}, v{t1}, v{t2}, vcc")
    for i in range(4): A(f"v_accvgpr_write_b32 a{A_FILL+i}, -1")
    return L

def rowmax_finish():
    L = []; A = lambda t, **k: L.append(I(t, **k))
    for sw in ("v_permlane32_swap_b32", "v_permlane16_swap_b32"):
        for qb in range(4): A(f"v_mov_b32 v{V_NEGM+4*qb+1}, v{V_NEGM+4*qb}")
        A("s_nop 1")
        for qb in range(4): A(f"{sw} v{V_NEGM+4*qb}, v{V_NEGM+4*qb+1}")
        for qb in range(4): A(f"v_max_f32 v{V_NEGM+4*qb}, v{V_NEGM+4*qb}, v{V_NEGM+4*qb+1}")
    for qb in range(4): A(f"v_sub_f32 v{V_NEGM+4*qb}, 0, v{V_NEGM+4*qb}")
    for qb in range(4):
        for r in range(1, 4): A(f"v_mov_b32 v{V_NEGM+4*qb+r}, v{V_NEGM+4*qb}")
    return L

def attn_first_max():
    L = []; A = lambda t, **k: L.append(I(t, **k))
    L.append(W(vm=['k0'])); A("s_barrier")
    L += k_reads(0, 0); L.append(W(lgkm=['fr']))
    for qb in range(4):
        d = vr(V_NEGM + 4*qb)
        for kk in range(4): L.append(mf(d, ar(A_KF + 4*kk), vr(V_Q + 16*qb + 4*kk), d if kk else "0"))
    A("s_nop 7")
    for qb in range(4):
        b = V_NEGM + 4*qb
        A(f"v_max3_f32 v{b}, v{b}, v{b+1}, v{b+2}"); A(f"v_max_f32 v{b}, v{b}, v{b+3}")
    L += rowmax_finish()
    return L

NSB = 3
def softmax_items(n, pbuf):
    kt, qb = n >> 2, n & 3
    s = V_S + 4*(n % 2)
    p = P(pbuf, qb, kt >> 1) + 2*(kt & 1)
    ex = [I(f"v_exp_f32 v{s+r}, v{s+r}") for r in range(4)]
    cv = [I(f"v_cvt_pk_bf16_f32 v{p}, v{s}, v{s+1}"), I(f"v_cvt_pk_bf16_f32 v{p+1}, v{s+2}, v{s+3}")]
    return ex, cv

def smf(pbuf, qb, h):
    return I(f"v_smfmac_f32_16x16x64_bf16 {ar(A_L + 4*qb)}, {ar(A_SPA)}, {vr(P(pbuf, qb, 2*h), 8)}, v{V_SPI}")

def attn_iter(par, first_pv=False, vmtags=('kv',)):
    m = []; blk = []; sg = []
    for i in range(8):
        for qb in range(4):
            n = 4*i + qb
            blk.append(len(m))
            d = vr(V_S + 4*(n % 2))
            for kk in range(4):
                m.append(mf(d, ar(A_KF + 16*(i&1) + 4*kk), vr(V_Q + 16*qb + 4*kk), d if kk else vr(V_NEGM + 4*qb)))
            o = ar(A_O + 16*i + 4*qb)
            for ks in range(4):
                m.append(mf(o, ar(A_VF + 16*(i&1) + 4*ks), vr(P(par ^ 1, qb, ks)), "0" if (first_pv and ks == 0) else o))
        sg.append(len(m))
        m.append(smf(par ^ 1, i >> 1, i & 1))
    G = Gaps(m)
    for n in range(32):
        b = blk[n]
        ex, cv = softmax_items((n - 1) % 32, par if n else par ^ 1)
        for r in range(4): G.pin(b + 2*r, ex[r])
        G.pin(b + 3, cv[0]); G.pin(b + 7, cv[1])
    for i in range(8):
        if i < 7: rd = k_reads(i + 1, par) + v_reads(i + 1, par ^ 1)
        else: rd = k_reads(0, par ^ 1) + v_reads(0, par)
        k = 0
        for qb in range(3):
            b = blk[4*i + qb]
            for gp in (3, 5, 5, 7):
                G.pin(b + gp, rd[k]); k += 1
        if i == 6:
            G.pin(sg[i], W(vm=list(vmtags), lgkm=['fr'])); G.pin(sg[i], I("s_barrier"))
        else:
            G.pin(sg[i], W(lgkm=['fr']))
    groups = [kv_dma('K', 0, par ^ 1, 'kv'), kv_dma('K', 1, par ^ 1, 'kv'), kv_dma('V', 0, par, 'kv'), kv_dma('V', 1, par, 'kv')]
    for i in range(4):
        for qb in range(4): G.pin(blk[4*i + qb] + 1, groups[i][1 + qb])
        if i < 3: G.pin(blk[4*i + 3] + 5, groups[i + 1][0])
    nxt = kv_dma('K', 0, par, 'kv')[0]
    G.pin(blk[4*7 + 3] + 3, nxt)
    for k in range(4): G.pin(blk[4*7 + (k >> 1)] + 1, I(f"s_add_u32 s{S_KO+k}, s{S_KO+k}, 0x8000"))
    G.blk = blk; G.sg = sg
    return G

STUBS = []
def y_load(half, dst=None):
    dst = V_YB if dst is None else dst
    return I(f"buffer_load_dwordx4 {vr(dst)}, v{V_L16}, {sr(SRD_WS)}, s{S_YL} offen offset:{half*1024} sc1", tag=f'yl{dst}')
def y_add(half, src=None):
    src = V_YB if src is None else src
    L = []
    for k in range(4):
        a = V_YS + 8*half + 2*k
        L += [I(f"v_lshlrev_b32 v{V_YT}, 16, v{src+k}"), I(f"v_and_b32 v{src+k}, 0xffff0000, v{src+k}"),
              I(f"v_add_f32 v{a}, v{a}, v{V_YT}"), I(f"v_add_f32 v{a+1}, v{a+1}, v{src+k}")]
    return L
def y_next():
    return [I(f"s_add_u32 s{S_YI}, s{S_YI}, 8192"), I(f"s_and_b32 s{S_YI}, s{S_YI}, 0xffff"), I(f"s_add_u32 s{S_YL}, s{S_YI}, s{S_CB2}")]
def cnt_load(): return I(f"buffer_load_dword v{V_CNT}, off, {sr(SRD_DBG)}, s{S_CA} sc1", tag='cnt')
def cnt_check(G, gap, need, name, read=True):
    if read: G.pin(gap, I(f"v_readfirstlane_b32 s{S_T+2}, v{V_CNT}"))
    G.pin(gap + 1, I(f"s_cmp_lt_u32 s{S_T+2}, {need}"))
    for x in (I(f"s_cbranch_scc1 L_W{name}"), I(f"L_B{name}:")): G.pin(gap + 2, x)
    STUBS.extend([I(f"L_W{name}:"), I(f"s_mov_b32 s{S_SPIN}, 0x40000"), I(f"L_W{name}_l:"), cnt_load(), I(f"s_sub_u32 s{S_SPIN}, s{S_SPIN}, 1"),
                  I("s_waitcnt vmcnt(0)"), I(f"v_readfirstlane_b32 s{S_T+2}, v{V_CNT}"), I("s_nop 3"),
                  I(f"s_cmp_ge_u32 s{S_T+2}, {need}"), I(f"s_cbranch_scc1 L_B{name}"),
                  I(f"s_cmp_gt_i32 s{S_SPIN}, 0"), I(f"s_cbranch_scc1 L_W{name}_l"), I(f"s_branch L_B{name}")])
def arrive(va, vd):
    return [I(f"v_add_u32 v{va}, s{S_RING}, v{V_L16}"), I(f"v_or_b32 v{va}, s{S_PASS}, v{va}"), I(f"v_min_u32 v{va}, 1, v{va}"), I(f"v_lshlrev_b32 v{va}, 12, v{va}"),
            I(f"v_mov_b32 v{vd}, 1")], I(f"buffer_atomic_add v{vd}, v{va}, {sr(SRD_DBG)}, s{S_CA} offen sc1", tag='atom')

def xo_voff(dst, t):
    return [I(f"v_bfe_u32 v{dst}, v{V_L16}, 4, 5"), I(f"v_lshlrev_b32 v{dst}, 10, v{dst}"),
            I(f"v_lshrrev_b32 v{t}, 9, v{V_L16}"), I(f"v_lshl_add_u32 v{dst}, v{t}, 4, v{dst}")]

def it1_extras(G):
    blk = G.blk
    t0, t1, t2 = V_YS + 8, V_YS + 9, V_YS + 10
    su = [I(x) for x in (f"s_lshl_b32 s{S_CA}, s{S_R}, 3", f"s_mov_b32 s{S_FO}, s{S_CB}", f"s_add_u32 s{S_CB2}, s{S_CB}, {hx(WS_Y)}",
          f"s_lshl_b32 s{S_YI}, s{S_G}, 13", f"s_add_u32 s{S_YL}, s{S_YI}, s{S_CB2}",
          f"s_lshl_b32 s{S_T}, s{S_G}, 7", f"s_lshl_b32 s{S_T+1}, s{S_W}, 5", f"s_add_u32 s{S_T}, s{S_T}, s{S_T+1}",
          f"v_lshrrev_b32 v{t0}, 8, v{V_L16}", f"v_lshlrev_b32 v{t0}, 3, v{t0}")]
    su.append(I(f"buffer_load_dwordx2 {vr(V_YB,2)}, v{t0}, {sr(SRD_B2)}, s{S_T} offen", tag='b2'))
    su += [I(f"s_lshl_b32 s{S_XO}, s{S_R}, 16"), I(f"s_add_u32 s{S_XO}, s{S_XO}, s{S_T}"), I(f"s_add_u32 s{S_XO+1}, s{S_XO}, 32768")]
    su += xo_voff(t1, t2)
    for h in range(2): su.append(I(f"buffer_load_dwordx4 {ar(A_XT+4*h)}, v{t1}, {sr(SRD_X)}, s{S_XO+h} offen", tag='xt'))
    su += [I(x) for x in (f"v_bfe_u32 v{t0}, v{V_L16}, 4, 3", f"v_lshrrev_b32 v{t2}, 8, v{V_L16}", f"v_lshlrev_b32 v{t2}, 1, v{t2}", f"v_xor_b32 v{t0}, v{t0}, v{t2}",
           f"v_lshrrev_b32 v{t2}, 7, v{V_L16}", f"v_lshlrev_b32 v{t2}, 10, v{t2}", f"v_lshl_add_u32 v{t2}, v{t0}, 4, v{t2}",
           f"s_lshl_b32 s{S_T}, s{S_G}, 19", f"s_lshl_b32 s{S_T+1}, s{S_W}, 17", f"s_add_u32 s{S_T}, s{S_T}, s{S_T+1}",
           f"v_add_u32 v{t2}, s{S_T}, v{t2}", f"v_accvgpr_write_b32 a{A_WOB}, v{t2}", f"s_lshl_b32 s{S_WO+1}, s{S_W}, 13")]
    G.stream(su, blk[0], blk[16] - 1)
    h = G.stream(wo_dma(0, vwo=t0, vwob=t2), blk[16], blk[24])
    ini = [W(vm=['b2'])]
    for q in range(4):
        for k in range(2):
            ini += [I(f"v_lshlrev_b32 v{V_YS+4*q+2*k}, 16, v{V_YB+k}"), I(f"v_and_b32 v{V_YS+4*q+2*k+1}, 0xffff0000, v{V_YB+k}")]
    pre, atom = arrive(V_YT, V_CNT)
    G.stream(ini + pre, h[0] + 1, blk[30])
    G.pin(blk[30] + 1, atom)
    G.pin(blk[31] + 1, y_load(0))
    G.stream([I(f"s_and_b32 s{S_T+2}, s{S_CB}, 0xffff0000"), I(f"s_add_u32 s{S_T+2}, s{S_T+2}, {7*8192}"), I(f"s_min_u32 s{SRD_WS2+2}, s{SRD_WS2+2}, s{S_T+2}")], blk[8], blk[16])
    fl = fills() + [I(f"s_add_u32 s{S_FO}, s{S_FO}, 8192")] + fills() + [I(f"s_add_u32 s{S_FO}, s{S_FO}, 8192")]
    for x, gp in zip(fl, (blk[25] + 1, blk[26] + 1, blk[26] + 6, blk[27] + 1, blk[27] + 5, blk[29] + 2)): G.pin(gp, x)

def fills():
    return [I(f"buffer_store_dwordx4 {ar(A_FILL)}, v{V_L16}, {sr(SRD_WS2)}, s{S_FO} offen offset:{k*1024} sc1", tag='fill') for k in range(2)]

def loop_extras(ge, go):
    for G, half in ((ge, 0), (go, 1)):
        blk = G.blk
        it = [W(vm=[f'yl{V_YB}'] + (['cnt'] if half else []))] + y_add(half)
        if half == 0:
            G.stream(it, blk[16], blk[22])
            G.pin(blk[22] + 1, y_load(1))
            for k, x in enumerate(fills()): G.pin(blk[24 + k] + 1, x)
            G.pin(blk[30] + 1, cnt_load())
            G.pin(blk[31] + 2, I(f"s_add_u32 s{S_FO}, s{S_FO}, 8192"))
        else:
            cnt_check(G, blk[21] + 1, 8, 'A')
            G.stream(it, blk[16], blk[22])
            G.stream(y_next(), blk[16], blk[21])
            G.pin(blk[22] + 1, y_load(0))
            if not OPT.get('nopf'):
                G.pin(blk[23] + 1, I(f"buffer_load_dword a{A_PF}, v{V_PFO}, {sr(SRD_WO)}, s{S_PF} offen{NT('o')}", tag='pf'))
                G.pin(blk[26] + 2, I(f"s_add_u32 s{S_PF}, s{S_PF}, {1024*GG}"))
            G.pin(blk[30] + 1, I(f"s_cmp_eq_u32 s{S_CNT}, 3"))
            for x in (I("s_cbranch_scc1 L_ARR"), I("L_ARRB:")): G.pin(blk[30] + 2, x)
            pre, atom = arrive(V_YT, V_CNT)
            global ARR
            ARR = [I("L_ARR:")] + pre + [I(f"s_add_u32 s{S_T+3}, s{S_YI}, 16384"), I(f"s_and_b32 s{S_T+3}, s{S_T+3}, 0xffff"), I(f"s_add_u32 s{S_T+3}, s{S_T+3}, s{S_CB2}"), atom,
                   I(f"buffer_load_dwordx4 {ar(A_Y7)}, v{V_L16}, {sr(SRD_WS)}, s{S_T+3} offen offset:1024 sc1", tag='y7'), I("s_branch L_ARRB")]
            STUBS.extend(ARR)

def attn_iter0():
    m = []; blk = []
    for i in range(8):
        for qb in range(4):
            n = 4*i + qb
            blk.append(len(m))
            d = vr(V_S + 4*(n % 3) if n < 30 else V_S + 4*(n % 2))
            for kk in range(4):
                m.append(mf(d, ar(A_KF + 16*(i&1) + 4*kk), vr(V_Q + 16*qb + 4*kk), d if kk else vr(V_NEGM + 4*qb)))
    G = Gaps(m)
    G.head += [I(f"v_accvgpr_write_b32 a{A_L + k}, 0") for k in range(16)]
    tail = []
    for n in range(31):
        kt, qb = n >> 2, n & 3
        s = V_S + 4*(n % 3) if n < 30 else V_S + 4*(n % 2)
        p = P(0, qb, kt >> 1) + 2*(kt & 1)
        ex = [I(f"v_exp_f32 v{s+r}, v{s+r}") for r in range(4)]
        cv = [I(f"v_cvt_pk_bf16_f32 v{p}, v{s}, v{s+1}"), I(f"v_cvt_pk_bf16_f32 v{p+1}, v{s+2}, v{s+3}")]
        if n + 2 < 32:
            b = blk[n + 2]
            G.pin(b - 1, ex[0]); G.pin(b, ex[1]); G.pin(b + 1, ex[2]); G.pin(b + 1, cv[0]); G.pin(b + 2, ex[3]); G.pin(b + 3, cv[1])
        else:
            tail += ex + cv
    for i in range(8):
        rd = k_reads(i + 1, 0) if i < 7 else k_reads(0, 1) + v_reads(0, 0)
        lo = blk[4*i]
        for k, x in enumerate(rd): G.pin(lo + (k if i == 7 else 2*k), x)
        if i == 6:
            G.pin(blk[4*i + 3] + 3, W(vm=['kv'], lgkm=['fr'])); G.pin(blk[4*i + 3] + 3, I("s_barrier"))
        elif i < 7:
            G.pin(blk[4*i + 3] + 3, W(lgkm=['fr']))
    G.pin(3, kv_dma('K', 0, 0, 'kv')[0]); G.pin(5, I("s_nop 0"))
    for k, x in enumerate(YST1): G.pin(9 + 8*k, x)
    out = G.flat() + [I("s_nop 3")] + tail + [W(lgkm=['fr'])]
    print(f"; iter0 est cycles {G.cycles()}", file=sys.stderr)
    return out

V_RL, V_NT, V_XW, V_WO, V_WOB, V_OA = 16, 20, 28, 29, 30, 32
V_STG = 128
def V_R(p): return [160, 64, 96][p] if p < 3 else (160 if p & 1 else 64)
V_OACC = 192
def V_SP(st): return 96 + 8*st if st < 4 else 224 + 8*(st - 4)
V_XT, V_MX, V_XR = 248, 4, 27
S_WO, S_SO = 76, 93
PER = [(0, 0), (1, 0), (0, 1), (1, 1)] + [(c, h) for c in range(2, 8) for h in range(2)]
SLOTS = dict(A=(2, 0, 8192, 'hx'), B=(1, 0, 16384, 'V0'), C=(1, 8192, 16384, 'V1'), D=(0, 0, 16384, 'K0'), E=(0, 8192, 16384, 'K1'))
def oslot(p): return SLOTS["ADBADBECADBECADB"[p]]

def wo_dma(p, vwo=None, vwob=None):
    vwo = V_WO if vwo is None else vwo; vwob = V_WOB if vwob is None else vwob
    ci, half = PER[p]
    win, base, ps, res = oslot(p)
    L = [I(f"s_add_u32 s{S_WO}, s{S_G}, {1 + ci}"), I(f"s_and_b32 s{S_WO}, s{S_WO}, 7"), I(f"s_lshl_b32 s{S_WO}, s{S_WO}, 7")]
    if half: L.append(I(f"s_add_u32 s{S_WO}, s{S_WO}, {hx(64*1024)}"))
    L.append(I(f"v_add_u32 v{vwo}, s{S_WO}, v{vwob}"))
    for h in range(2):
        L.append(I(f"s_add_u32 m0, s{S_RING if ps == 16384 else S_WO+1}, {hx(win*65536 + base + h*4096)}"))
        if h: L.append(I(f"v_add_u32 v{vwo}, {hx(32*1024)}, v{vwo}"))
        for i in range(4): L.append(dma_w(SRD_WO, vwo, S_SM2, i, f"wo{p}", [(res, True)]))
    return L

OFREG = [list(range(0, 64, 4)) + list(range(128, 176, 4)) + list(range(240, 256, 4)),
         list(range(64, 128, 4)) + list(range(176, 240, 4))]
def OF(half, j, qb): return OFREG[half][8*qb + j]
def oaf_reads(p):
    win, base, ps, res = oslot(p)
    return [I(f"ds_read_b64_tr_b16 {vr(V_R(p) + 4*j + 2*e, 2)}, v{V_OA+win} offset:{base + (j>>1)*ps + (j&1)*4096 + e*2048}",
              tag=f"oaf{p}", res_r=[(res, True)]) for j in range(8) for e in range(2)]
def of_reads(half, qb):
    return [I(f"ds_read_b128 {ar(OF(half, j, qb))}, v{V_XR if half else V_L16} offset:{(j>>1)*16384 + 8192 + (j&1)*4096 + qb*1024}",
              tag=f"of{half}_{qb}", res_r=[('V1' if half else 'K1', True)]) for j in range(8)]
def sp_load(st):
    L = [I(f"s_add_u32 s{S_CB2}, s{S_CB}, {st*8192}")]
    for half in range(2):
        L.append(I(f"buffer_load_dwordx4 {vr(V_SP(st) + 4*half)}, v{V_L16}, {sr(SRD_WS)}, s{S_CB2} offen offset:{half*1024} sc1", tag=f"sp{st}"))
    return L
def sp_max(st):
    b = V_SP(st); m = V_MX + st
    return [I(f"v_max3_u32 v{m}, v{b}, v{b+1}, v{b+2}"), I(f"v_max3_u32 v{m}, v{m}, v{b+3}, v{b+4}"),
            I(f"v_max3_u32 v{m}, v{m}, v{b+5}, v{b+6}"), I(f"v_max_u32 v{m}, v{m}, v{b+7}")]

def finale():
    m = []; blk = []; sg = {}; per = []
    for i in range(8):
        for qb in range(4):
            blk.append(len(m))
            o = ar(A_O + 16*i + 4*qb)
            for ks in range(4): m.append(mf(o, ar(A_VF + 16*(i&1) + 4*ks), vr(P(1, qb, ks)), o))
            if i == 0:
                for h in range(2):
                    sg[(qb, h)] = len(m); m.append(smf(1, qb, h))
    blk.append(len(m))
    for p, (ci, half) in enumerate(PER):
        lo = len(m)
        for qb in range(4):
            d = vr(V_OACC + 16*(ci & 1) + 4*qb)
            for j in range(8):
                m.append(mf(d, vr(V_R(p) + 4*j), ar(OF(half, j, qb)), "0" if (j == 0 and half == 0) else d))
        per.append((lo, len(m) - 1))
    G = Gaps(m)
    cnt_check(G, per[2][1] - 6, 16, 'B', read=False)
    X0 = blk[4*int(OPT.get('x0', 4))] - 1
    X1 = blk[28] - 1
    X2 = per[1][0] + int(OPT.get('x2', 17))
    p0, p2 = per[0][0], per[2][0]
    ex, cv = softmax_items(31, 1)
    for r in range(4): G.pin(r, ex[r])
    G.pin(4, cv[0]); G.pin(4, cv[1])
    for i in range(7):
        rd = v_reads(i + 1, 1)
        lo = blk[4*i] + (5 if i == 0 else 0)
        h = None
        for x in rd: h = G.place(x, lo, blk[4*i + 4] - 4, after=h)
        if blk[4*i + 4] - 1 not in (X0, X1): G.pin(blk[4*i + 4] - 1, W(lgkm=['fr']))
    G.pin(0, I(f"v_accvgpr_read_b32 v{V_WOB}, a{A_WOB}"))
    d1 = wo_dma(1)
    for x in d1:
        if x.res_w: x.res_w = [('K0x', True)]
    e0 = sg[(3, 1)] + 5
    even(G, d1 + wo_dma(2), 1, X0 - 24)
    su = [I(f"v_add_u32 v{V_XW}, s{S_RING}, v{V_L16}")]
    su += [I(x) for x in (f"v_lshrrev_b32 v26, 6, v{V_L16}", "v_lshlrev_b32 v26, 7, v26", f"v_bfe_u32 v27, v{V_L16}, 4, 2", "v_lshl_add_u32 v26, v27, 3, v26",
           "v_lshlrev_b32 v31, 14, v27", f"v_bfe_u32 v27, v{V_L16}, 7, 2", f"v_xor_b32 v27, s{S_W}, v27", f"v_lshl_add_u32 v{V_OA}, v27, 5, v26",
           f"v_add_u32 v{V_OA+1}, 0x10000, v{V_OA}", f"v_add_u32 v{V_OA+2}, 0x20000, v{V_OA}", f"v_add_u32 v{V_XR}, 0x10000, v{V_L16}",
           f"s_lshl_b32 s{S_SO+1}, s{S_R}, 8", f"s_add_u32 s{S_SO+1}, s{S_SO+1}, s{S_W}", f"s_lshl_b32 s{S_SO+1}, s{S_SO+1}, 11")]
    h = G.stream(su, 5, e0)
    G.stream(oaf_reads(0), e0 + 1, X0 - 6, spread=True)
    items = []
    for qb in range(4):
        items += [I(f"v_accvgpr_read_b32 v{V_RL+qb}, a{A_L+4*qb}"), I(f"v_accvgpr_read_b32 v{V_NT}, a{A_L+4*qb+1}"),
                  I(f"v_add_f32 v{V_RL+qb}, v{V_RL+qb}, v{V_NT}")]
    items += [I(f"v_add_f32 v{V_NT}, v{V_RL}, v{V_RL+1}"), I(f"v_add_f32 v{V_NT+1}, v{V_RL+2}, v{V_RL+3}"), I(f"v_add_f32 v{V_NT}, v{V_NT}, v{V_NT+1}"),
              I(f"v_cmp_ngt_f32 vcc, {hx(f2u(2.0**30))}, v{V_NT}")]
    items += [I(f"v_rcp_f32 v{V_RL+qb}, v{V_RL+qb}") for qb in range(4)]
    items = [(x, e0) for x in items]
    def norm(i, qbs=range(4)):
        out = []
        for qb in qbs:
            e = blk[4*i + qb] + 3 + 6
            st = V_STG + 16*((i >> 1) & 1) + 4*qb
            o = A_O + 16*i + 4*qb; T = V_NT
            seq = [I(f"v_accvgpr_read_b32 v{T+r}, a{o+r}") for r in range(4)]
            seq += [I(f"v_mul_f32 v{T+r}, v{T+r}, v{V_RL+qb}") for r in range(4)]
            seq += [I(f"v_cvt_pk_bf16_f32 v{st+2*(i&1)}, v{T}, v{T+1}"), I(f"v_cvt_pk_bf16_f32 v{st+2*(i&1)+1}, v{T+2}, v{T+3}")]
            if i & 1:
                hf = i >> 2
                seq.append(I(f"ds_write_b128 v{V_XW}, {vr(st)} offset:{8192 + ((i>>1)&1)*4096 + qb*1024}", tag=f'ow{hf}', res_w=[('V1' if hf else 'K1', True)]))
            out += [(x, e) for x in seq]
        return out
    nq = int(OPT.get('nq', 3))
    for qb in range(nq): items += norm(0, [qb]) + norm(1, [qb])
    G.stream(items, e0, X0 - 3)
    for x in (I("s_cbranch_vccnz L_MARK"), I("L_MARKED:")): G.pin(X0 - 1, x)
    STUBS.extend([I("L_MARK:"), I(f"v_mov_b32 v{V_NT}, -1"), I(f"ds_write_b32 v{V_XW}, v{V_NT} offset:8192"), I("s_waitcnt lgkmcnt(0)"), I("s_branch L_MARKED")])
    G.pin(X0, W(vm=['wo2'], lgkm=['fr', 'ow0', 'oaf0'])); G.pin(X0, I("s_barrier"))
    G.pin(X0, I("ds_read_b32 v35, v31 offset:8192", tag='mk'))
    FB = X0 + 6
    G.pin(FB - 2, W(lgkm=['mk'])); G.pin(FB - 2, I(f"v_cmp_eq_u32 vcc, -1, v35"))
    for x in (I("s_cbranch_vccnz L_FALLBACK0"), I("L_NOFB:")): G.pin(FB, x)
    STUBS.extend([I("L_FALLBACK0:"), I(f"s_cmp_lg_u32 s{S_PASS}, 0"), I("s_cbranch_scc1 L_NOFB"), I("s_branch L_FALLBACK")])
    even(G, wo_dma(3), X0 + 1, X1 - 4)
    o1 = oaf_reads(1)
    for x in o1: x.res_r = x.res_r + [('K0x', True)]
    G.stream(o1 + oaf_reads(2), FB + 1, X1 - 4, spread=True)
    items = []
    for qb in range(nq, 4): items += norm(0, [qb]) + norm(1, [qb])
    for qb in range(4): items += norm(2, [qb]) + norm(3, [qb])
    items.append((I(f"v_add_u32 v{V_XW}, 0x10000, v{V_XW}"), X0))
    G.stream(items, X0 + 1, X1 - 2)
    G.pin(X1, W(lgkm=['fr', 'ow0', 'oaf2'])); G.pin(X1, I("s_barrier"))
    for qb in range(4): G.pin(p0 + 8*qb - 1, W(lgkm=[f'of0_{qb}']))
    for k, x in enumerate(of_reads(0, 0) + of_reads(0, 1) + of_reads(0, 2) + of_reads(0, 3)): G.pin(X1 + 1 + k, x)
    even(G, wo_dma(4) + wo_dma(5), X1 + 1, X2 - 1)
    items = []
    for u in range(2, 4):
        for qb in range(4): items += norm(2*u, [qb]) + norm(2*u + 1, [qb])
    items += [(I(f"v_accvgpr_read_b32 v{V_XT+k}, a{A_XT+k}"), p0) for k in range(8)]
    items += [(I(f"v_accvgpr_read_b32 v{36+k}, a{A_Y7+k}"), p0) for k in range(4)]
    G.pin(X2, W(vm=['wo3'], lgkm=['ow1', 'of0_3'])); G.pin(X2, I("s_barrier"))
    for qb in range(4): G.pin(p2 + 8*qb - 1, W(lgkm=[f'of1_{qb}']))
    for k, x in enumerate(of_reads(1, 0) + of_reads(1, 1) + of_reads(1, 2) + of_reads(1, 3)): G.pin(X2 + 1 + k, x)
    for p in range(2, 15):
        lo, hi = per[p]
        q = p + 1
        lg = [f"oaf{q}"] + (['of1_3'] if p == 2 else [])
        if q < 15:
            G.pin(hi, W(vm=[f"wo{q+1}"], lgkm=lg)); G.pin(hi, I("s_barrier"))
        else:
            G.pin(hi, W(lgkm=lg))
        h = None
        for k, x in enumerate(oaf_reads(q)): h = G.place(x, lo + (18 + k // 2 if p == 2 else 1 + 3*(k // 2)), hi - 4, after=h)
    even(G, wo_dma(6), X2 + 1, p2 + 20)
    pace = int(OPT.get('pace', 35))
    for k in range(9): even(G, wo_dma(7 + k), per[3][0] + pace*k, per[3][0] + pace*(k + 1) - 1)
    G.stream(items, X1 + 1, X2 - 2)
    for ci in range(7):
        pl = PER.index((ci, 1))
        a = V_OACC + 16*(ci & 1)
        e0 = per[pl][0] + 20
        items = [(I(x), e0) for x in (f"s_add_u32 s{S_SO}, s{S_G}, {1 + ci}", f"s_and_b32 s{S_SO}, s{S_SO}, 7", f"s_lshl_b32 s{S_SO}, s{S_SO}, 16",
                 f"s_add_u32 s{S_SO}, s{S_SO}, s{S_SO+1}", f"s_add_u32 s{S_SO+1}, s{S_SO+1}, 8192")]
        st = V_STG + 8*(ci & 1)
        for half in range(2):
            e = per[pl][0] + 16*half + 15 + 6
            for k in range(4*half, 4*half + 4): items.append((I(f"v_cvt_pk_bf16_f32 v{st+k}, v{a+2*k}, v{a+2*k+1}"), e))
            for k in range(4*half, 4*half + 4): items.append((I(f"v_min_u32 v{st+k}, -2, v{st+k}"), e))
            items.append((I(f"buffer_store_dwordx4 {vr(st+4*half)}, v{V_L16}, {sr(SRD_WS)}, s{S_SO} offen offset:{half*1024} sc1", tag='sst'), max(e, per[2][1] + 1)))
        G.stream(items, e0, per[pl + 1][0] + 18)
    it = y_add(0) + y_add(1, 36)
    for q0 in range(0, 16, 4):
        T = V_NT
        it += [I(f"v_mul_f32 v{T+r}, {hx(f2u(-math.log2(math.e)))}, v{V_YS+q0+r}") for r in range(4)]
        it += [I(f"v_exp_f32 v{T+r}, v{T+r}") for r in range(4)]
        it += [I(f"v_add_f32 v{T+r}, 1.0, v{T+r}") for r in range(4)]
        it += [I(f"v_rcp_f32 v{T+r}, v{T+r}") for r in range(4)]
        it += [I(f"v_mul_f32 v{V_YS+q0+r}, v{V_YS+q0+r}, v{T+r}") for r in range(4)]
    V_XF = 144
    for h in range(2): it += [I(f"v_permlane16_swap_b32 v{V_XT+4*h}, v{V_XT+4*h+2}"), I(f"v_permlane16_swap_b32 v{V_XT+4*h+1}, v{V_XT+4*h+3}")]
    for k in range(8): it += [I(f"v_lshlrev_b32 v{V_XF+2*k}, 16, v{V_XT+k}"), I(f"v_and_b32 v{V_XF+2*k+1}, 0xffff0000, v{V_XT+k}")]
    it += xo_voff(3, 2)
    ld = []
    for st in range(5): ld += sp_load(st)
    even(G, ld, per[13][0], per[14][1])
    G.stream(sp_load(5), per[15][0] + 8, per[15][1])
    G.stream(it, per[4][0], per[15][1])
    if OPT['stamps']:
        for x in stamp(9): G.pin(p0 - 1, x, post=True)
    for k in range(16): ministamp(G, per[k][1], 48 + k)
    print(f"; finale est cycles {G.cycles()} (pv part {G.cyc(0, p0-1)}, periods {[G.cyc(a, b) for a, b in per]})", file=sys.stderr)
    L = with_m0_pad(G.flat()); A = lambda t, **k: L.append(I(t, **k))
    L += sp_load(6)
    L += stamp(10)
    A(f"s_mov_b32 s{S_SPIN}, 0x40000")
    acc = V_OACC + 16; U = 64
    for st in range(7):
        L.append(W(vm=[f"sp{st}"]))
        A(f"L_CHK{st}:")
        L += sp_max(st)
        A(f"v_cmp_eq_u32 vcc, -1, v{V_MX+st}")
        for k in range(4):
            r = V_SP(st) + k
            A(f"v_lshlrev_b32 v{U+2*k}, 16, v{r}"); A(f"v_and_b32 v{U+1+2*k}, 0xffff0000, v{r}")
        A(f"s_cbranch_vccnz L_RETRY{st}")
        A(f"L_GO{st}:")
        for k in range(4, 8):
            r = V_SP(st) + k
            A(f"v_lshlrev_b32 v{U+2*k}, 16, v{r}"); A(f"v_and_b32 v{U+1+2*k}, 0xffff0000, v{r}")
        for k in range(8): A(f"v_pk_add_f32 {vr(acc+2*k,2)}, {vr(acc+2*k,2)}, {vr(U+2*k,2)}")
        STUBS.extend([I(f"L_RETRY{st}:"), I(f"s_sub_u32 s{S_SPIN}, s{S_SPIN}, 1"), I(f"s_cmp_le_i32 s{S_SPIN}, 0"), I(f"s_cbranch_scc1 L_GO{st}")])
        for q in range(st, 7): STUBS.extend(sp_load(q))
        STUBS.extend([I("s_waitcnt vmcnt(0)"), I(f"s_branch L_CHK{st}")])
    for k in range(8): A(f"v_pk_fma_f32 {vr(acc+2*k,2)}, {vr(acc+2*k,2)}, {vr(V_YS+2*k,2)}, {vr(V_XF+2*k,2)}")
    for k in range(8): A(f"v_cvt_pk_bf16_f32 v{U+k}, v{acc+2*k}, v{acc+2*k+1}")
    for h in range(2):
        A(f"v_permlane16_swap_b32 v{U+4*h}, v{U+4*h+2}"); A(f"v_permlane16_swap_b32 v{U+4*h+1}, v{U+4*h+3}")
    for h in range(2): A(f"buffer_store_dwordx4 {vr(U+4*h)}, v3, {sr(SRD_OUT)}, s{S_XO+h} offen", tag='out')
    return L

def fallback():
    L = []; A = lambda t, **k: L.append(I(t, **k))
    A("L_FALLBACK:")
    A("s_waitcnt vmcnt(0) lgkmcnt(0)"); A("s_nop 7")
    A(f"s_mov_b32 s{S_PASS}, 1")
    A(f"s_mov_b32 s{SRD_WS2+2}, 0")
    A(f"s_lshl_b32 s{S_KO}, s{S_W}, 13"); A(f"s_add_u32 s{S_KO+1}, s{S_KO}, 4096")
    for qb in range(4): A(f"v_mov_b32 v{V_NEGM+4*qb}, 0xff800000")
    A(f"s_mov_b32 s{S_CNT}, 17")
    A("L_FB_LOOP:")
    A("s_waitcnt vmcnt(0) lgkmcnt(0)"); A("s_barrier")
    A(f"s_cmp_lg_u32 s{S_CNT}, 1"); A("s_cbranch_scc1 L_FB_NR")
    A(f"s_lshl_b32 s{S_KO}, s{S_W}, 13"); A(f"s_add_u32 s{S_KO+1}, s{S_KO}, 4096")
    A("L_FB_NR:")
    L += with_m0_pad(kv_dma('K', 0, 0, 'kv') + kv_dma('K', 1, 0, 'kv'))
    A("s_waitcnt vmcnt(0)"); A("s_barrier")
    for kt in range(8):
        L += k_reads(kt, 0); A("s_waitcnt lgkmcnt(0)")
        for qb in range(4):
            d = vr(V_P + 4*qb)
            for kk in range(4): L.append(mf(d, ar(A_KF + 16*(kt&1) + 4*kk), vr(V_Q + 16*qb + 4*kk), d if kk else "0"))
        A("s_nop 7")
        for qb in range(4):
            b = V_NEGM + 4*qb; d = V_P + 4*qb
            A(f"v_max3_f32 v{b}, v{b}, v{d}, v{d+1}"); A(f"v_max3_f32 v{b}, v{b}, v{d+2}, v{d+3}")
    A(f"s_add_u32 s{S_KO}, s{S_KO}, 0x8000"); A(f"s_add_u32 s{S_KO+1}, s{S_KO+1}, 0x8000")
    A(f"s_sub_u32 s{S_CNT}, s{S_CNT}, 1"); A(f"s_cmp_lg_u32 s{S_CNT}, 0"); A("s_cbranch_scc1 L_FB_LOOP")
    L += rowmax_finish()
    A(f"s_lshl_b32 s{S_VO}, s{S_W}, 13"); A(f"s_add_u32 s{S_VO+1}, s{S_VO}, 4096")
    L += with_m0_pad(kv_dma('K', 0, 1, 'kv') + kv_dma('K', 1, 1, 'kv') + kv_dma('V', 0, 0, 'kv') + kv_dma('V', 1, 0, 'kv'))
    L += k_reads(0, 0); A("s_waitcnt lgkmcnt(0)")
    for k in range(4): A(f"s_add_u32 s{S_KO+k}, s{S_KO+k}, 0x8000")
    A("s_branch L_ITER0")
    return L

def build():
    d = OPT['dump']
    p0 = phase0(); p1 = phase1()
    su = stamp(4) + attn_setup() + attn_first_max() + stamp(5)
    it0 = [I("L_ITER0:")] + attn_iter0() + stamp(6)
    g1 = attn_iter(1, first_pv=True, vmtags=('kv', 'yst')); ge, go = attn_iter(0), attn_iter(1, vmtags=('kv', 'fill'))
    go.pin(len(go) - 4, I(f"s_sub_u32 s{S_CNT}, s{S_CNT}, 1")); go.pin(len(go) - 4, I(f"s_cmp_lg_u32 s{S_CNT}, 0"))
    it1_extras(g1); loop_extras(ge, go)
    print(f"; attn iter est cycles {ge.cycles()} {go.cycles()} (it1 {g1.cycles()})", file=sys.stderr)
    it1 = with_m0_pad(g1.flat()) + [I(f"s_mov_b32 s{S_CNT}, 7")] + stamp(7)
    loop = [I(".p2align 6"), I("L_LOOP:")] + ge.flat() + go.flat() + [I("s_cbranch_scc1 L_LOOP")]
    last = stamp(8) + finale()
    if OPT['stamps']: last += [I(f"v_writelane_b32 v63, s{S_SPIN}, 15")]
    last += stamp(11 if not OPT.get('fine') else 14, True)
    op = []
    fb = fallback()
    end = [I("L_END:"), I("s_endpgm")]
    if d == 'q': body = p0 + p1 + dump_regs([vr(V_Q + 4*i) for i in range(16)] + [ar(144 + 4*i) for i in range(28)]) + end; trace = body
    else:
        body = p0 + p1 + su + it0 + it1 + loop + last + end + STUBS + fb
        ka = [i for i, x in enumerate(loop) if x.text == "L_ARRB:"][0]
        trace = p0 + p1 + su + it0 + it1 + loop + loop[:ka] + ARR + loop[ka:] + loop*2 + last
        k = [i for i, x in enumerate(last) if x.text == "s_cbranch_vccnz L_FALLBACK0"][0]
        trace2 = p0 + p1 + su + it0 + it1 + loop*2 + last[:k+1] + fb + it0 + it1 + loop + last
        resolve_waits(trace2)
    resolve_waits(trace)
    e = check(trace, verbose=False)
    if d is None: e += check(trace2, verbose=False)
    seen = set()
    for x in e:
        if x not in seen: print("CHECK:", x, file=sys.stderr); seen.add(x)
    def in_gemm(x): return id(x) in gset
    gset = set(id(x) for x in p1 + op + last)
    if OPT.get('nosst'): body = [x for x in body if x.tag not in ('sst', 'fill')]
    if OPT.get('noy'): body = [x for x in body if x.tag not in ('y0', 'y1')]
    if OPT.get('nodma'): body = [x for x in body if not (in_gemm(x) and x.kind == 'dma')]
    if OPT.get('novalu'): body = [x for x in body if not (in_gemm(x) and x.kind in ('valu', 'trans', 'perm') and any(k in x.text for k in ('f32', 'accvgpr', 'permlane')))]
    if OPT.get('nomfma'): body = [x for x in body if not (in_gemm(x) and x.kind == 'mfma')]
    if OPT.get('nods'): body = [x for x in body if not (in_gemm(x) and x.kind == 'dsr' and 'b32' not in x.text)]
    return body

def kdesc(name, vg, acc):
    return f""".amdhsa_kernel {name}
  .amdhsa_next_free_vgpr {vg}
  .amdhsa_next_free_sgpr 102
  .amdhsa_accum_offset {acc}
  .amdhsa_group_segment_fixed_size 0
  .amdhsa_kernarg_size 104
  .amdhsa_user_sgpr_count 2
  .amdhsa_user_sgpr_kernarg_segment_ptr 1
  .amdhsa_system_sgpr_workgroup_id_x 1
  .amdhsa_float_denorm_mode_32 3
.end_amdhsa_kernel"""

body = build()
K1 = NAME + "_kernel"
out = [f"; @launch grid=(256,1,1) block=(256,1,1) lds=163840",
       '.amdgcn_target "amdgcn-amd-amdhsa--gfx950"', ".text"]
out += [f".globl {K1}", ".p2align 8", f".type {K1},@function", f"{K1}:"] + [x.emit() for x in body]
out += ['.section .rodata,"a"', ".p2align 6", kdesc(K1, 512, 256)]
print("\n".join(out).replace("CODE_LEFT", "L_END-L_PC2"))
```

```python
import sys, struct, math
from asmlib import *

NAME = "recurrent_scan__gqa_block_cached__dense_activation_gelu__prompt"
OPT = dict(dump=None, stamps=False, G='2', early='1', pfs='128')
for a in sys.argv[1:]:
    k, _, v = a.partition('=')
    OPT[k] = v if v else True

NT = lambda k: ' nt' if k in OPT.get('nt', '') else ''
GG = int(OPT['G']); LG = GG.bit_length() - 1
def f2u(x): return struct.unpack('<I', struct.pack('<f', x))[0]
def hx(x): return f"0x{x & 0xffffffff:x}"
def vr(b, n=4): return f"v[{b}:{b+n-1}]" if n > 1 else f"v{b}"
def ar(b, n=4): return f"a[{b}:{b+n-1}]" if n > 1 else f"a{b}"
def sr(b, n=4): return f"s[{b}:{b+n-1}]" if n > 1 else f"s{b}"

S_W = 3
SRD_X, SRD_K, SRD_V, SRD_WQ, SRD_WO, SRD_W1, SRD_W2, SRD_WS, SRD_OUT, SRD_B1, SRD_B2, SRD_DBG = range(4, 52, 4)
S_G, S_R = 52, 53
S_SM1, S_SMQ, S_SM2 = 54, 57, 60
S_RING = 63
S_KO = 64
S_VO = 66
S_CNT, S_PASS = 68, 69
S_QS, S_GB = 70, 71
S_YO = 72
S_T = 76
S_PF = 99
SRD_WS2 = 80
S_CB, S_CB2, S_SPIN = 84, 85, 86
S_STAMP = 96

V_KA, V_VA, V_DV, V_SPI, V_L16 = 0, 4, 12, 14, 15
V_NEGM, V_S, V_SPA = 16, 32, 44
V_T = 48
V_Q, V_P = 64, 128
V_WA = 4
V_AF = 16
V_W1, V_WQ, V_W2, V_GA = 48, 49, 50, 51
V_ACCA, V_ACCB = 128, 192
V_B1 = 64
def XN(ks, qb): return ((15 - ks) * 4 + qb) * 4
A_O, A_L, A_KF, A_VF = 0, 128, 144, 176
A_SPA, A_FILL, A_XT, A_PF, A_WOB, A_Y7 = 208, 212, 216, 224, 225, 228
V_YB, V_YS, V_YT, V_PFO, V_CNT = 40, 44, 60, 61, 62
S_CA, S_YI, S_YL, S_FO, S_XO = 87, 88, 89, 90, 91

LDS_V, LDS_X = 65536, 131072
WS_S, WS_Y, WS_DUMP = 0, 16 << 20, 64 << 20

mf = lambda d, a, b, c: I(f"v_mfma_f32_16x16x32_bf16 {d}, {a}, {b}, {c}")

segs = {}
def stamp(i, last=False):
    if not OPT['stamps']: return []
    L = [I(f"s_memtime s[{S_STAMP}:{S_STAMP+1}]"), I(f"s_memrealtime s[100:101]"), I("s_waitcnt lgkmcnt(0)"),
         I(f"v_writelane_b32 v63, s{S_STAMP}, {i}"), I(f"v_writelane_b32 v63, s100, {16+i}")]
    if last:
        L += [I("s_lshl_b32 s98, s2, 2"), I(f"s_add_u32 s98, s98, s{S_W}"), I("s_lshl_b32 s98, s98, 8"), I(f"s_add_u32 s98, s98, {hx(WS_DUMP)}"),
              I(f"v_lshrrev_b32 v62, 2, v{V_L16}"), I(f"buffer_store_dword v63, v62, {sr(SRD_WS)}, s98 offen", tag='stamp')]
    return L

def ministamp(G, gap, lane):
    if not OPT.get('mini'): return
    for x in (I(f"s_memtime s[{S_STAMP}:{S_STAMP+1}]"), I("s_waitcnt lgkmcnt(0)"), I(f"v_writelane_b32 v63, s{S_STAMP}, {lane}")): G.pin(gap, x, post=True)

def dump_regs(groups):
    L = [I("s_waitcnt vmcnt(0) lgkmcnt(0)"), I("s_nop 7"), I("s_nop 7")]
    L += [I(f"s_lshl_b32 s{S_T}, s2, 2"), I(f"s_add_u32 s{S_T}, s{S_T}, s{S_W}"),
          I(f"s_mul_i32 s{S_T}, s{S_T}, {len(groups)*1024}"), I(f"s_add_u32 s{S_T}, s{S_T}, {hx(WS_DUMP)}")]
    for g in groups:
        L.append(I(f"buffer_store_dwordx4 {g}, v{V_L16}, {sr(SRD_WS)}, s{S_T} offen"))
        L.append(I("s_nop 3"))
        L.append(I(f"s_add_u32 s{S_T}, s{S_T}, 1024"))
    L += [I("s_waitcnt vmcnt(0)"), I("s_endpgm")]
    return L

def srd(L, base, p, nbytes):
    L += [I(f"s_mov_b32 s{base}, s{p}"), I(f"s_mov_b32 s{base+1}, s{p+1}"),
          I(f"s_mov_b32 s{base+2}, {hx(nbytes)}"), I(f"s_mov_b32 s{base+3}, 0x20000")]

def dma_w(srdb, vreg, sm, i, tag, res):
    so = "0" if (i & 3) == 0 else f"s{sm + (i & 3) - 1}"
    off = f" offset:{(i & 3) * 1024}" if i & 3 else ""
    return I(f"buffer_load_dwordx4 v{vreg}, {sr(srdb)}, {so} offen{off} lds", tag=tag, res_w=res)

STAGES = []
for kq in range(8): STAGES.append(dict(m='w1', srd=SRD_W1, v=V_W1, sm=S_SM1, stride=3584, nks=2, ks0=2*kq, acc=V_ACCA, first=kq == 0, adj=0))
for hq in range(2):
    for kq in range(8): STAGES.append(dict(m='wq', srd=SRD_WQ, v=V_WQ, sm=S_SMQ, stride=8192, nks=2, ks0=2*kq, acc=V_ACCB, first=kq == 0,
                                           adj=(-512*8192 + 128) if kq == 7 else 0))
for hc in range(2):
    for kq in range(4): STAGES.append(dict(m='w2', srd=SRD_W2, v=V_W2, sm=S_SM2, stride=1024, nks=2 if kq < 3 else 1, ks0=2*kq, acc=V_ACCA if hc == 0 else V_ACCB,
                                           first=kq == 0, adj=(-224*1024 + 512) if kq == 3 else 0))
SLOTRES = ['K0', 'K1', 'V0', 'V1']
def stage_dma(s):
    st = STAGES[s]; L = []
    for j in range(st['nks']):
        L.append(I(f"s_add_u32 m0, s{S_RING}, {hx((s & 1) * 8192 + ((s >> 1) & 1) * 65536 + j * 4096)}"))
        for i in range(4):
            L.append(dma_w(st['srd'], st['v'], st['sm'], i, f"st{s}", [(f"slot{s&3}", False)]))
        step = 32 * st['stride'] + (st['adj'] if j == st['nks'] - 1 else 0)
        L.append(I(f"v_add_u32 v{st['v']}, {hx(step)}, v{st['v']}"))
    return L

def with_m0_pad(L):
    out = []
    for i, x in enumerate(L):
        out.append(x)
        if 'm0' in x.wr and i + 1 < len(L) and L[i+1].kind == 'dma': out.append(I("s_nop 0"))
    return out

def interleave(main, extra, start=0, end=None):
    end = len(main) if end is None else end
    out = list(main[:start]); n = end - start; k = 0
    for i in range(n):
        out.append(main[start + i])
        while k < len(extra) and (k + 1) * n <= (i + 1) * len(extra) + 0:
            out.append(extra[k]); k += 1
    return out + extra[k:] + list(main[end:])

def touch(L, srdb, vtmp, sreg, ln, rowlines, rowstride, nrows, sbase_code):
    A = lambda t, **k: L.append(I(t, **k))
    step = int(OPT['pfs'])
    per_row = rowlines * 128 // step
    rows_share = -(-nrows * GG // 128)
    total = per_row * rows_share
    lg = per_row.bit_length() - 1
    A(f"s_mul_i32 s{sreg}, s94, {rows_share * rowstride}")
    for t in sbase_code: A(t)
    if sbase_code: A(f"s_add_u32 s{sreg}, s{sreg}, s93")
    A(f"v_lshrrev_b32 v{vtmp}, {lg}, v{ln}")
    if total < 64: A(f"v_min_u32 v{vtmp}, {rows_share - 1}, v{vtmp}")
    A(f"v_mul_u32_u24 v{vtmp}, {rowstride}, v{vtmp}")
    A(f"v_and_b32 v32, {per_row - 1}, v{ln}")
    A(f"v_lshl_add_u32 v{vtmp}, v32, {step.bit_length() - 1}, v{vtmp}")
    out = []
    for k in range(max(1, -(-total // 64))):
        if k: out.append(I(f"v_add_u32 v{vtmp}, {(64 // per_row) * rowstride}, v{vtmp}"))
        out.append(I(f"buffer_load_dword v60, v{vtmp}, {sr(srdb)}, s{sreg} offen{NT({SRD_W1: '1', SRD_WQ: 'q', SRD_W2: '2', SRD_K: 'v'}[srdb])}", tag='pf'))
    return out

def lin_touch(srdb, sreg):
    step = int(OPT['pfs']); n = max(1, 4096 * GG // (64 * step))
    L = []
    for k in range(n):
        if k: L.append(I(f"s_add_u32 s{S_T+3}, s{sreg}, {k * 64 * step}"))
        L.append(I(f"buffer_load_dword v60, v61, {sr(srdb)}, s{S_T+3 if k else sreg} offen", tag='pf'))
    return L

LATE = {}
V_XA = 53
def phase0():
    L = []
    A = lambda t, **k: L.append(I(t, **k))
    A("s_cmp_ge_u32 s2, 256"); A("s_cbranch_scc1 L_END")
    L += stamp(0)
    A("s_load_dwordx16 s[64:79], s[0:1], 0")
    A("s_load_dwordx8 s[80:87], s[0:1], 64")
    A("s_load_dwordx2 s[88:89], s[0:1], 96")
    if not OPT.get('nocodepf'):
        A("s_getpc_b64 s[90:91]")
        A("v_lshlrev_b32 v58, 6, v0")
        A("global_load_dword v60, v58, s[90:91]" + NT('c'), tag='pf')
    t0, t1, t2, t3, ln, n16, g4 = 33, 34, 35, 36, 37, 38, 39
    SL = []
    if OPT.get('sld'):
        SL = [I("s_getpc_b64 s[100:101]")] + [I(f"s_load_dword s98, s[100:101], {hx(4096*k)}") for k in range(1, 15)]
    A(f"v_lshrrev_b32 v{t0}, 6, v0")
    A(f"v_and_b32 v{ln}, 63, v0")
    A(f"v_readfirstlane_b32 s{S_W}, v{t0}")
    A(f"s_lshr_b32 s94, s2, 3")
    A(f"s_and_b32 s{S_G}, s2, {7 & ~(GG-1)}"); A(f"s_and_b32 s93, s94, {GG-1}"); A(f"s_or_b32 s{S_G}, s{S_G}, s93")
    A(f"s_and_b32 s{S_R}, s2, {GG-1}"); A(f"s_mul_i32 s{S_R}, s{S_R}, {32//GG}"); A(f"s_lshr_b32 s94, s94, {LG}"); A(f"s_add_u32 s{S_R}, s{S_R}, s94")
    A(f"s_lshl_b32 s94, s94, 2"); A(f"s_add_u32 s94, s94, s{S_W}")
    A(f"s_lshl_b32 s92, s{S_R}, 16"); A(f"s_lshl_b32 s{S_RING}, s{S_W}, 14"); A(f"s_add_u32 s92, s92, s{S_RING}")
    A(f"v_lshrrev_b32 v{t0}, 2, v{ln}"); A(f"v_lshlrev_b32 v{t0}, 10, v{t0}")
    A(f"v_and_b32 v{t1}, 3, v{ln}"); A(f"v_lshl_add_u32 v{t0}, v{t1}, 4, v{t0}")
    A(f"s_and_b32 s95, s{S_G}, {1 if (GG > 1 and not OPT.get('norot')) else 0}"); A("s_lshl_b32 s93, s95, 9"); A(f"v_xor_b32 v{t0}, s93, v{t0}")
    A(f"v_and_b32 v{n16}, 15, v{ln}")
    A(f"v_lshrrev_b32 v{g4}, 4, v{ln}")
    A(f"v_lshlrev_b32 v{V_L16}, 4, v{ln}")
    A("s_waitcnt lgkmcnt(0)")
    if OPT.get('fine'): L += stamp(11)
    srd(L, SRD_X, 64, 2048*512*2)
    for ks in range(16):
        A(f"buffer_load_dwordx4 {vr(64+4*ks)}, v{t0}, {sr(SRD_X)}, s92 offen offset:{(ks&7)*64}{NT('x')}", tag=f'x{ks}')
        if ks == 7: A(f"v_xor_b32 v{t0}, 0x200, v{t0}")
    if OPT.get('fine'): L += stamp(12)
    L += SL
    srd(L, SRD_W1, 76, 512*1792*2); srd(L, SRD_WQ, 70, 512*4096*2); srd(L, SRD_B1, 78, 1792*2)
    A(f"v_and_b32 v{t1}, 7, v{ln}"); A(f"v_lshlrev_b32 v{t2}, 1, v{g4}"); A(f"v_xor_b32 v{t1}, v{t1}, v{t2}")
    A(f"v_lshlrev_b32 v{t1}, 4, v{t1}")
    A(f"v_lshrrev_b32 v{t2}, 5, v{ln}"); A(f"v_bfe_u32 v{t3}, v{ln}, 3, 2"); A(f"v_lshl_add_u32 v{t2}, v{t2}, 3, v{t3}")
    A(f"s_mul_i32 s92, s{S_G}, 448"); A("s_and_b32 s92, s92, 0xffffff80"); A(f"s_lshl_b32 s93, s{S_W}, 7"); A("s_add_u32 s92, s92, s93")
    A(f"v_mul_u32_u24 v{V_W1}, 3584, v{t2}"); A(f"v_add3_u32 v{V_W1}, v{V_W1}, v{t1}, s92")
    for i in range(1, 4):
        A(f"s_mov_b32 s{S_SM1+i-1}, {hx((16*(i&1) + 4*(i>>1))*3584 - 1024*i)}")
    vb1 = 57 if OPT.get("s2") else 14
    A(f"v_lshlrev_b32 v{vb1}, 3, v{g4}"); A("s_mov_b32 s95, s92")
    b1l = [I(f"buffer_load_dwordx2 {vr(40+2*ct,2)}, v{vb1}, {sr(SRD_B1)}, s95 offen offset:{32*ct}", tag='b1') for ct in range(4)]
    A(f"s_lshl_b32 s93, s{S_G}, 19")
    A("s_add_u32 s66, s66, s93"); A("s_addc_u32 s67, s67, 0")
    A("s_add_u32 s68, s68, s93"); A("s_addc_u32 s69, s69, 0")
    srd(L, SRD_K, 66, 524288); srd(L, SRD_V, 68, 524288); srd(L, SRD_WO, 72, 4096*512*2)
    srd(L, SRD_W2, 80, 1792*512*2); srd(L, SRD_B2, 82, 1024); srd(L, SRD_OUT, 84, 2048*512*2)
    srd(L, SRD_DBG, 86, 256); srd(L, SRD_WS, 88, 1 << 28); srd(L, SRD_WS2, 88, 1 << 28)
    A(f"s_mul_i32 s{S_PF}, s94, {4096*GG}"); A(f"v_and_b32 v{V_PFO}, {8*GG - 1}, v{ln}"); A(f"v_lshlrev_b32 v{V_PFO}, 7, v{V_PFO}")
    A(f"s_lshl_b32 s93, s{S_G}, 19"); A(f"s_add_u32 s{S_PF}, s{S_PF}, s93")
    tw1, twq, tw2, tkv, tcode = [], [], [], [], []
    if not OPT.get('nopf'):
        tw1 = touch(L, SRD_W1, 59 if OPT.get('s2') else 55, 76, ln, 4, 3584, 512, [f"s_mul_i32 s93, s{S_G}, 448", "s_and_b32 s93, s93, 0xffffff80"])
        R0 = int(OPT.get('r0', 512))
        twq = touch(L, SRD_WQ, 56, 77, ln, 8, 8192, R0, [f"s_lshl_b32 s93, s{S_G}, 10"])
        if R0 < 512: LATE['wq'] = touch(L, SRD_WQ, 62, 87, ln, 8, 8192, 512 - R0, [f"s_lshl_b32 s93, s{S_G}, 10", f"s_add_u32 s93, s93, {R0*8192}"])
        tw2 = touch(L, SRD_W2, 14 if OPT.get('s2') else 57, 78, ln, 8, 1024, 224, [f"s_mul_i32 s93, s{S_G}, {224*1024}"])
        tk = touch(L, SRD_K, 55 if OPT.get('s2') else 59, 79, ln, 2, 256, int(OPT.get('kvrows', 384)), [])
        tkv = tk + [I(x.text.replace(sr(SRD_K), sr(SRD_V)), tag='pf') for x in tk if x.kind == 'vld'][-1:]
        if not OPT.get('nocodepf'):
            A("s_getpc_b64 s[90:91]"); A("L_PC2:")
            A(f"s_lshr_b32 s93, s2, 3"); A(f"s_lshl_b32 s93, s93, 2"); A(f"s_add_u32 s93, s93, s{S_W}")
            A(f"s_lshl_b32 s93, s93, 9"); A(f"v_lshlrev_b32 v58, 3, v{ln}"); A("v_add_u32 v58, s93, v58")
            A("v_min_u32 v58, CODE_LEFT, v58")
            tcode = [I("global_load_dword v60, v58, s[90:91]" + NT('c'), tag='pf')]
    A(f"s_lshl_b32 s92, s{S_G}, 10"); A(f"s_lshl_b32 s93, s{S_W}, 8"); A("s_add_u32 s92, s92, s93")
    A(f"v_lshlrev_b32 v{V_WQ}, 13, v{t2}"); A(f"v_add3_u32 v{V_WQ}, v{V_WQ}, v{t1}, s92")
    for i in range(1, 4):
        A(f"s_mov_b32 s{S_SMQ+i-1}, {hx((16*(i&1) + 4*(i>>1))*8192 - 1024*i)}")
        A(f"s_mov_b32 s{S_SM2+i-1}, {hx(8192*i - 1024*i)}")
    A(f"s_mul_i32 s92, s{S_G}, {224*1024}"); A(f"s_lshl_b32 s93, s{S_W}, 7"); A("s_add_u32 s92, s92, s93")
    A(f"v_lshrrev_b32 v{t2}, 3, v{ln}"); A(f"v_lshlrev_b32 v{V_W2}, 10, v{t2}"); A(f"v_add3_u32 v{V_W2}, v{V_W2}, v{t1}, s92")
    A(f"v_lshrrev_b32 v{t1}, 2, v{ln}")
    A(f"v_lshlrev_b32 v{t1}, 7, v{t1}")
    A(f"v_and_b32 v{t2}, 3, v{ln}"); A(f"v_lshl_add_u32 v{t1}, v{t2}, 3, v{t1}")
    A(f"v_add_u32 v{t1}, s{S_RING}, v{t1}")
    A(f"v_bfe_u32 v{t2}, v{ln}, 3, 2")
    for ct in range(4):
        A(f"v_xor_b32 v{t3}, {ct}, v{t2}")
        A(f"v_lshl_add_u32 v{V_WA+ct}, v{t3}, 5, v{t1}")
        A(f"v_add_u32 v{V_WA+4+ct}, 0x10000, v{V_WA+ct}")
    A(f"v_and_b32 v{t1}, 7, v{ln}"); A(f"v_lshlrev_b32 v{t1}, 1, v{t1}"); A(f"v_xor_b32 v{t1}, v{t1}, v{g4}")
    A(f"v_lshlrev_b32 v{t2}, 8, v{n16}")
    for kk in range(4):
        A(f"v_xor_b32 v{t3}, {4*kk}, v{t1}")
        A(f"v_lshl_add_u32 v{V_KA+kk}, v{t3}, 4, v{t2}")
    A(f"v_lshlrev_b32 v{t1}, 1, v{g4}"); A(f"v_xor_b32 v{t1}, v{t1}, v{n16}"); A(f"v_lshlrev_b32 v{t2}, 8, v{g4}")
    A(f"v_lshl_add_u32 v{V_DV}, v{t1}, 4, v{t2}")
    A(f"v_xor_b32 v{V_DV+1}, 0x80, v{V_DV}")
    A(f"v_add_u32 v{V_XA+1}, {hx(LDS_X)}, v{V_DV}"); A(f"v_add_u32 v{V_XA}, {hx(65536 + 8192)}, v{V_DV}")
    A(f"v_and_b32 v{t1}, 3, v{ln}"); A(f"v_lshrrev_b32 v{t2}, 2, v{ln}"); A(f"v_lshlrev_b32 v{t3}, 1, v{t1}"); A(f"v_xor_b32 v{t2}, v{t2}, v{t3}")
    A(f"v_lshlrev_b32 v{t1}, 8, v{t1}"); A(f"v_lshl_add_u32 v{t1}, v{t2}, 4, v{t1}")
    A(f"s_lshl_b32 s92, s{S_W}, 13"); A(f"s_add_u32 s92, s92, {hx(LDS_X)}")
    A(f"s_add_u32 s93, s{S_RING}, {hx(65536 + 8192)}")
    A(f"s_and_b32 s85, s{S_G}, {1 if (GG > 1 and not OPT.get('norot')) else 0}")
    A("s_cselect_b32 s85, s92, s93"); A("s_cselect_b32 s86, s93, s92")
    A(f"v_add_u32 v{t2}, s85, v{t1}"); A(f"v_add_u32 v{t3}, s86, v{t1}")
    A(f"v_and_b32 v52, 1, v{ln}"); A(f"v_bfe_u32 v{t1}, v{ln}, 1, 1"); A(f"v_sub_u32 v52, v52, v{t1}"); A("v_lshlrev_b32 v52, 3, v52")
    A(f"s_mov_b32 s{S_QS}, {hx(f2u(128**-0.5 * math.log2(math.e)))}")
    ga = -2*0.7978845608028654*math.log2(math.e)
    A(f"s_mov_b32 s{S_GB}, {hx(f2u(ga*0.044715))}")
    A(f"v_mov_b32 v{V_GA}, {hx(f2u(ga))}")
    A(f"s_lshl_b32 s92, s{S_R}, 3"); A(f"s_add_u32 s92, s92, s{S_W}"); A("s_lshl_b32 s92, s92, 3"); A(f"s_add_u32 s92, s92, s{S_G}")
    A("s_lshl_b32 s92, s92, 13"); A(f"s_add_u32 s{S_YO}, s92, {hx(WS_Y)}")
    A(f"s_add_u32 s{S_YO+1}, s{S_YO}, 4096"); A(f"s_add_u32 s{S_YO+2}, s{S_YO}, {4*8*8192}"); A(f"s_add_u32 s{S_YO+3}, s{S_YO+1}, {4*8*8192}")
    A(f"s_lshl_b32 s92, s{S_R}, 3"); A(f"s_add_u32 s92, s92, s{S_G}"); A("s_lshl_b32 s92, s92, 16"); A(f"s_lshl_b32 s93, s{S_W}, 11"); A(f"s_add_u32 s{S_CB}, s92, s93")
    A(f"s_mov_b32 s{S_PASS}, 0")
    A(f"s_lshl_b32 s{S_KO}, s{S_W}, 13"); A(f"s_add_u32 s{S_KO+1}, s{S_KO}, 4096")
    A(f"s_mov_b32 s{S_VO}, s{S_KO}"); A(f"s_mov_b32 s{S_VO+1}, s{S_KO+1}")
    L += stamp(1)
    F = 128
    sa, qa = 16, 24
    if OPT.get('s2'): LATE['w2'] = tw2 + tkv; tw2 = []; tkv = []
    D = [stage_dma(s) for s in range(3)]
    vq = tw1 + tcode + b1l + D[0] + D[1]
    def pop_vm(n):
        out = []
        while vq and n > 0:
            x = vq.pop(0); out.append(x)
            if x.kind in ('dma', 'vld'): n -= 1
        return with_m0_pad(out)
    for ks in range(16):
        if ks % 2 == 0:
            L.append(W(vm=[f'x{ks+1}'])); L += pop_vm(int(OPT.get('pv', 3)))
        for i in range(4*ks, 4*ks + 4):
            A(f"v_lshlrev_b32 v{F+2*i}, 16, v{64+i}")
            A(f"v_and_b32 v{F+2*i+1}, 0xffff0000, v{64+i}")
        for i in range(4*ks, 4*ks + 4):
            k = i & 3
            x = vr(F+2*i, 2)
            if i < 4:
                A(f"v_pk_mul_f32 {vr(qa+2*k,2)}, {x}, {x}")
            else:
                src = vr(F+2*k, 2) if i < 8 else vr(sa+2*k, 2)
                A(f"v_pk_add_f32 {vr(sa+2*k,2)}, {src}, {x}")
                A(f"v_pk_fma_f32 {vr(qa+2*k,2)}, {x}, {x}, {vr(qa+2*k,2)}")
    if SL: A("s_waitcnt lgkmcnt(0)")
    L += stamp(2)
    M = []; A = lambda t, **k: M.append(I(t, **k))
    for b in (sa, qa):
        A(f"v_pk_add_f32 {vr(b,2)}, {vr(b,2)}, {vr(b+2,2)}"); A(f"v_pk_add_f32 {vr(b+4,2)}, {vr(b+4,2)}, {vr(b+6,2)}")
    for b in (sa, qa): A(f"v_pk_add_f32 {vr(b,2)}, {vr(b,2)}, {vr(b+4,2)}")
    for b in (sa, qa): A(f"v_add_f32 v{b}, v{b}, v{b+1}")
    for qp in ("[1,0,3,2]", "[2,3,0,1]"):
        A("s_nop 1")
        for b in (sa, qa): A(f"v_add_f32_dpp v{b}, v{b}, v{b} quad_perm:{qp} row_mask:0xf bank_mask:0xf")
    A(f"v_mul_f32 v{sa}, {hx(f2u(1/512))}, v{sa}")
    A(f"v_mul_f32 v{qa}, {hx(f2u(1/512))}, v{qa}")
    A(f"v_fma_f32 v{qa}, -v{sa}, v{sa}, v{qa}")
    A(f"v_max_f32 v{qa}, 0, v{qa}")
    A(f"v_cvt_pk_bf16_f32 v{sa+1}, v{sa}, v{qa}")
    A(f"v_lshlrev_b32 v{sa}, 16, v{sa+1}")
    A(f"v_and_b32 v{qa}, 0xffff0000, v{sa+1}")
    A(f"v_add_f32 v{qa}, {hx(f2u(1e-5))}, v{qa}")
    A(f"v_cvt_pk_bf16_f32 v{qa}, v{qa}, v{qa}"); A(f"v_and_b32 v{qa}, 0xffff0000, v{qa}")
    A(f"v_sqrt_f32 v{qa}, v{qa}"); A("s_nop 0")
    A(f"v_cvt_pk_bf16_f32 v{qa}, v{qa}, v{qa}"); A(f"v_and_b32 v{qa}, 0xffff0000, v{qa}")
    A(f"v_rcp_f32 v{qa}, v{qa}"); A("s_nop 0")
    A(f"v_mul_f32 v{sa}, v{sa}, v{qa}")
    A(f"v_sub_f32 v{sa}, 0, v{sa}")
    A(f"v_mov_b32 v{qa+1}, v{qa}"); A(f"v_mov_b32 v{sa+1}, v{sa}")
    def norm(ks):
        for i in range(4*ks, 4*ks+4):
            A(f"v_pk_fma_f32 {vr(F+2*i,2)}, {vr(F+2*i,2)}, {vr(qa,2)}, {vr(sa,2)}")
        for i in range(4*ks, 4*ks+4):
            A(f"v_cvt_pk_bf16_f32 v{64+i}, v{F+2*i}, v{F+2*i+1}")
    for ks in range(16):
        norm(ks)
        A(f"ds_write_b128 v{t2 if ks < 8 else t3}, {vr(64+4*ks)} offset:{(ks&7)*1024}", tag='xw', res_w=[('slot3', True), ('hx', True)])
    M.append(W(vm=['b1']))
    for ct in range(4):
        for h in range(2):
            A(f"v_lshlrev_b32 v{V_B1+4*ct+2*h}, 16, v{40+2*ct+h}")
            A(f"v_and_b32 v{V_B1+4*ct+2*h+1}, 0xffff0000, v{40+2*ct+h}")
    M.append(W(lgkm=['xw'])); A("s_barrier")
    rd = [xn_read(ks, qb) for ks in range(2) for qb in range(4)]
    L += pop_vm(99) + twq + tw2 + tkv + M + rd
    if not OPT.get('d2late'): L += with_m0_pad(D[2])
    L += stamp(3)
    return L

def xn_read(ks, qb):
    if ks < 8: return I(f"ds_read_b128 {ar(XN(ks,qb))}, v{V_XA} offset:{qb*16384 + ks*1024}", tag=f'xr{ks>>1}', res_r=[('slot3', True)])
    return I(f"ds_read_b128 {ar(XN(ks,qb))}, v{V_XA+1} offset:{qb*8192 + (ks&7)*1024}", tag=f'xr{ks>>1}', res_r=[('hx', True)])

def af_reads(s, p):
    st = STAGES[s]; L = []
    for c in range(2):
        for j in range(st['nks']):
            for e in range(2):
                L.append(I(f"ds_read_b64_tr_b16 {vr(V_AF + 16*p + 8*c + 4*j + 2*e, 2)}, v{V_WA + 4*((s>>1)&1) + 2*p + c} offset:{(s&1)*8192 + j*4096 + e*2048}",
                           tag=f"af{s}_{p}", res_r=[(f"slot{s&3}", False)]))
    return L

def kv_dma(which, half, buf, tag):
    base = (0 if which == 'K' else LDS_V) + buf*8192 + half*4096
    so = (S_KO if which == 'K' else S_VO) + half
    L = [I(f"s_add_u32 m0, s{S_RING}, {hx(base)}")]
    for i in range(4):
        off = f" offset:{i*1024}" if i else ""
        L.append(I(f"buffer_load_dwordx4 v{V_DV + (i&1)}, {sr(SRD_K if which == 'K' else SRD_V)}, s{so} offen{off}{NT('k')} lds",
                   tag=tag, res_w=[(f"{which}{buf}", True)]))
    return L

def even(G, items, lo, hi):
    nd = sum(1 for x in items if x.kind in ('dma', 'vld', 'vst'))
    k = 0; its = []
    for x in items:
        e = lo + (k * (hi - lo + 1)) // max(nd, 1)
        if x.kind in ('dma', 'vld', 'vst'): k += 1
        else: e = max(lo, e - 3)
        its.append((x, min(e, hi)))
    return G.stream(its, lo, hi)

def phase1():
    m = []; per = {}; done = {}
    for s, st in enumerate(STAGES):
        for p in range(2):
            lo = len(m)
            for c in range(2):
                ct = 2*p + c
                for qb in range(4):
                    d = vr(st['acc'] + 16*ct + 4*qb)
                    for j in range(st['nks']):
                        cc = d
                        if st['first'] and j == 0: cc = vr(V_B1 + 4*ct) if st['m'] == 'w1' else "0"
                        m.append(mf(d, vr(V_AF + 16*p + 8*c + 4*j), ar(XN(st['ks0'] + j, qb)), cc))
                    done[(s, ct, qb)] = len(m) - 1
            per[(s, p)] = (lo, len(m) - 1)
    G = Gaps(m)
    NS = len(STAGES)
    G.head += [W(vm=['st0'])] + af_reads(0, 0) + [W(lgkm=['af0_0'])]
    for s in range(NS):
        for p in range(2):
            ns, npp = (s, 1) if p == 0 else (s + 1, 0)
            if ns >= NS: continue
            lo, hi = per[(s, p)]
            lg = [f"af{ns}_{npp}"]
            if npp == 0 and ns < 8: lg.append(f"xr{ns}")
            if (ns, npp) == (24, 0): lg.append('hr')
            vm = [f"st{s+1}"] if (p == 0 and s + 1 < NS) else None
            G.pin(hi, W(vm=vm, lgkm=lg))
            rd = af_reads(ns, npp)
            h = None
            for k, x in enumerate(rd): h = G.place(x, lo + (k // 2) * 2 + 1 if (len(rd) == 8 and s != int(OPT.get('hs', 21))) else lo, hi - 1, after=h)
    xr = [xn_read(ks, qb) for ks in range(2, 8) for qb in range(4)]
    b1 = per[(0, 1)][1]
    G.stream(xr, 0, b1 - 5)
    G.pin(b1, W(lgkm=['xr3'])); G.pin(b1, I("s_barrier"))
    G.stream([xn_read(ks, qb) for ks in range(8, 16) for qb in range(4)], b1 + 1, per[(3, 1)][1] - 8, spread=True)
    G.pin(per[(6, 1)][1], I("s_barrier"))
    hs = int(OPT.get('hs', 21))
    hwpos = [per[(hs, p)][0] + k for p in range(2) for k in (5, 8, 11, 14)]
    hbar = per[(hs + 1, 0)][0] + 5
    pause = (hwpos[0] - int(OPT.get('pz', 16)), hwpos[-1] + 2) if OPT.get('pz') != '0' else (0, -1)
    slow = int(OPT.get('pzs', 7))
    pos = -99; h = None
    for t in range(2 if OPT.get('d2late') else 3, NS + 3):
        s = t - 4
        rel = per[(s, 1)][0] if s >= 0 else (b1 + 1 if t == 3 else 0)
        if t < NS:
            d = stage_dma(t)
            if t == 3:
                for x in d:
                    if x.res_w: x.res_w = [('slot3', True)]
        else:
            which, buf = [('K', 0), ('K', 1), ('V', 0)][t - NS]
            d = kv_dma(which, 0, buf, 'k0' if t == NS else 'kv') + kv_dma(which, 1, buf, 'k0' if t == NS else 'kv')
            for x in d:
                if x.res_w: x.res_w = x.res_w + [(f'slot{s&3}', False)]
            so = S_KO if which == 'K' else S_VO
            d += [I("s_nop 0"), I(f"s_add_u32 s{so}, s{so}, 0x8000"), I(f"s_add_u32 s{so+1}, s{so+1}, 0x8000")]
        k = 0
        for x in d:
            if x.kind == 'dma':
                nominal = rel + 4*k
                pos = max(nominal, pos + int(OPT.get('catch', 3)))
                if pause[0] <= pos <= pause[1]: pos = min(pause[1] + 1, max(pos, last + slow))
                while pos in hwpos or pos - 1 in hwpos: pos += 1
                pos = min(pos, len(G) - 1)
                h = G.place(x, pos, min(pos + 3, len(G) - 1), after=h); pos = last = h[0]; k += 1
            else:
                h = G.place(x, max(rel - 3, h[0] if h else 0), len(G) - 1, after=h)
    LASTDMA = h[0]
    if 'wq' in LATE: G.stream(LATE['wq'], per[(int(OPT.get('s1', 4)), 0)][0], per[(int(OPT.get('s1', 4)), 1)][1])
    if 'w2' in LATE: G.stream(LATE['w2'], per[(int(OPT['s2']), 0)][0], per[(int(OPT['s2']), 1)][1])
    for (sb, op) in ((8, 'v_add_u32'), (24, 'v_sub_u32')):
        for win in range(2):
            for ct in range(4):
                r = V_WA + 4*win + ct
                G.place(I(f"{op} v{r}, v{r}, v52"), per[(sb - 3 + 2*win, 1)][0], per[(sb - 1 + 2*win, 0)][1])
    ha, hr = V_XA, V_XA + 1
    G.stream([I(f"s_lshl_b32 s{S_T}, s{S_W}, 13"), I(f"s_add_u32 s{S_T}, s{S_T}, {hx(LDS_X)}"), I(f"v_add_u32 v{ha}, s{S_T}, v{V_L16}"),
              I(f"s_and_b32 s{S_T}, s{S_G}, 1"), I(f"s_lshl_b32 s{S_T}, s{S_T}, 12"), I(f"s_add_u32 s{S_T}, s{S_T}, {hx(LDS_X)}"),
              I(f"v_add_u32 v{hr}, s{S_T}, v{V_L16}")], per[(5, 0)][0], per[(6, 1)][1])
    for hq in range(2):
        s = 15 + 8*hq
        for p in range(2):
            kk = 2*hq + p
            items = []
            for half in range(2):
                ct = 2*p + half
                for qb in range(4):
                    e = done[(s, ct, qb)] + 6
                    a = V_ACCB + 16*ct + 4*qb; q = V_Q + 16*qb + 4*kk
                    for r in range(4): items.append((I(f"v_mul_f32 v{a+r}, s{S_QS}, v{a+r}"), e))
                    items.append((I(f"v_cvt_pk_bf16_f32 v{q+2*half}, v{a}, v{a+1}"), e))
                    items.append((I(f"v_cvt_pk_bf16_f32 v{q+2*half+1}, v{a+2}, v{a+3}"), e))
            if hq == 0:
                hnd = None
                for k in range(8):
                    its = items[6*k:6*k + 6]; e = its[0][1]
                    hn = G.stream(its, e, e - 6 + 30)
                    hnd = hn if hnd is None else max(hnd, hn)
            else:
                hnd = G.stream(items, items[0][1], per[(27, 1)][1])
            sw = []
            for qb in range(4):
                q = V_Q + 16*qb + 4*kk
                sw += [I(f"v_permlane32_swap_b32 v{q}, v{q+2}"), I(f"v_permlane32_swap_b32 v{q+1}, v{q+3}")]
            G.stream(sw, hnd[0] + 2, hnd[0] + 60)
    G.pin(hbar, W(lgkm=['hw'])); G.pin(hbar, I("s_barrier"))
    hrd = [I(f"ds_read_b128 {ar(XN(u,qb))}, v{hr} offset:{u*4096 + qb*1024}", tag='hr', res_r=[('hx', True)]) for u in range(7) for qb in range(4)]
    G.stream(hrd, hbar + 1, per[(23, 1)][1] - 6)
    items = []
    T = 56
    for p in range(2):
        for qb in range(4):
            for half in range(2):
                ct = 2*p + half
                e = done[(7, ct, qb)] + 6
                a = V_ACCA + 16*ct + 4*qb
                seq = []
                seq += [f"v_mul_f32 v{T+r}, v{a+r}, v{a+r}" for r in range(4)]
                seq += [f"v_fma_f32 v{T+r}, v{T+r}, s{S_GB}, v{V_GA}" for r in range(4)]
                seq += [f"v_mul_f32 v{T+r}, v{T+r}, v{a+r}" for r in range(4)]
                seq += [f"v_exp_f32 v{T+r}, v{T+r}" for r in range(4)]
                seq += [f"v_add_f32 v{T+r}, 1.0, v{T+r}" for r in range(4)]
                seq += [f"v_rcp_f32 v{T+r}, v{T+r}" for r in range(4)]
                seq += [f"v_mul_f32 v{T+r}, v{T+r}, v{a+r}" for r in range(4)]
                a0 = V_ACCA + 16*(2*p) + 4*qb
                seq += [f"v_cvt_pk_bf16_f32 v{a0+2*half}, v{T}, v{T+1}", f"v_cvt_pk_bf16_f32 v{a0+2*half+1}, v{T+2}, v{T+3}"]
                items += [(I(x), e) for x in seq]
            G.pin(hwpos[4*p + qb], I(f"ds_write_b128 v{ha}, {vr(V_ACCA + 32*p + 4*qb)} offset:{p*4096 + qb*1024}", tag='hw', res_w=[('hx', True)]))
    n1 = len(items) * 7 // 8
    h = G.stream(items[:n1], items[0][1], hwpos[0] - 1 - int(OPT.get('gl', 0)))
    G.stream(items[n1:], h[0] + 1, hwpos[7] - 1)
    tail = []; st0 = []; global YST1
    YST1 = []
    for hc in range(2):
        s = 27 + 4*hc
        acc = STAGES[s]['acc']
        for ct in range(4):
            items = []
            e = done[(s, ct, 3)] + 6
            a = acc + 16*ct
            for half in range(2):
                for k in range(4):
                    items.append(I(f"v_cvt_pk_bf16_f32 v{a+4*half+k}, v{a+8*half+2*k}, v{a+8*half+2*k+1}"))
            for half in range(2):
                (st0 if hc == 0 else YST1).append(I(f"buffer_store_dwordx4 {vr(a+4*half)}, v{V_L16}, {sr(SRD_WS2)}, s{S_YO + 2*hc + (ct>>1)} offen offset:{(ct&1)*2048 + half*1024} sc1", tag='yst'))
            if hc == 0: G.stream(items, e, e + 60)
            else: tail += items
    tail = interleave(tail, st0)
    for k in range(16): ministamp(G, per[(2*k + 1, 1)][1], 32 + k)
    out = with_m0_pad(G.flat()) + [I("s_nop 3")] + tail
    print(f"; phase1: {len(G)} mfma, est cycles {G.cycles()} pairs {[G.cyc(per[(2*k,0)][0], per[(2*k+1,1)][1]) for k in range(16)]}", file=sys.stderr)
    return out

def P(buf, qb, ks): return V_P + 64*buf + 16*qb + 4*ks
def k_reads(kt, buf, res=True):
    return [I(f"ds_read_b128 {ar(A_KF + 16*(kt&1) + 4*kk)}, v{V_KA+kk} offset:{(kt>>1)*16384 + (kt&1)*4096 + buf*8192}",
              tag='fr', res_r=[(f"K{buf}", True)] if res else None) for kk in range(4)]
def v_reads(dt, buf):
    return [I(f"ds_read_b64_tr_b16 {ar(A_VF + 16*(dt&1) + 4*ks + 2*e, 2)}, v{V_VA+dt} offset:{ks*16384 + buf*8192 + e*4096}",
              tag='fr', res_r=[(f"V{buf}", True)]) for ks in range(4) for e in range(2)]

def attn_setup():
    L = []; A = lambda t, **k: L.append(I(t, **k))
    t1, t2, t3 = 56, 57, 58
    A(f"v_lshrrev_b32 v{t1}, 6, v{V_L16}")
    A(f"v_and_b32 v{t2}, 7, v{t1}")
    A(f"v_lshlrev_b32 v{t1}, 8, v{t1}")
    A(f"v_bfe_u32 v{t3}, v{V_L16}, 4, 2"); A(f"v_lshl_add_u32 v{t1}, v{t3}, 3, v{t1}")
    A(f"v_add_u32 v{t1}, 0x10000, v{t1}")
    for dt in range(8):
        A(f"v_xor_b32 v{V_VA+dt}, {dt}, v{t2}")
        A(f"v_lshl_add_u32 v{V_VA+dt}, v{V_VA+dt}, 5, v{t1}")
    A(f"v_cmp_gt_u32 vcc, 2, v{t3}")
    A(f"v_mov_b32 v{t1}, 0x3f803f80"); A(f"v_mov_b32 v{t2}, 0xeeeeeeee")
    A(f"v_cndmask_b32 v59, 0, v{t1}, vcc")
    A(f"v_cmp_eq_u32 vcc, 1, v{t3}")
    A(f"v_mov_b32 v{t1}, 0x44444444")
    for i in range(4): A(f"v_accvgpr_write_b32 a{A_SPA+i}, v59")
    A(f"v_cndmask_b32 v{V_SPI}, v{t1}, v{t2}, vcc")
    for i in range(4): A(f"v_accvgpr_write_b32 a{A_FILL+i}, -1")
    return L

def rowmax_finish():
    L = []; A = lambda t, **k: L.append(I(t, **k))
    for sw in ("v_permlane32_swap_b32", "v_permlane16_swap_b32"):
        for qb in range(4): A(f"v_mov_b32 v{V_NEGM+4*qb+1}, v{V_NEGM+4*qb}")
        A("s_nop 1")
        for qb in range(4): A(f"{sw} v{V_NEGM+4*qb}, v{V_NEGM+4*qb+1}")
        for qb in range(4): A(f"v_max_f32 v{V_NEGM+4*qb}, v{V_NEGM+4*qb}, v{V_NEGM+4*qb+1}")
    for qb in range(4): A(f"v_sub_f32 v{V_NEGM+4*qb}, 0, v{V_NEGM+4*qb}")
    for qb in range(4):
        for r in range(1, 4): A(f"v_mov_b32 v{V_NEGM+4*qb+r}, v{V_NEGM+4*qb}")
    return L

def attn_first_max():
    L = []; A = lambda t, **k: L.append(I(t, **k))
    L.append(W(vm=['k0'])); A("s_barrier")
    L += k_reads(0, 0); L.append(W(lgkm=['fr']))
    for qb in range(4):
        d = vr(V_NEGM + 4*qb)
        for kk in range(4): L.append(mf(d, ar(A_KF + 4*kk), vr(V_Q + 16*qb + 4*kk), d if kk else "0"))
    A("s_nop 7")
    for qb in range(4):
        b = V_NEGM + 4*qb
        A(f"v_max3_f32 v{b}, v{b}, v{b+1}, v{b+2}"); A(f"v_max_f32 v{b}, v{b}, v{b+3}")
    L += rowmax_finish()
    return L

NSB = 3
def softmax_items(n, pbuf):
    kt, qb = n >> 2, n & 3
    s = V_S + 4*(n % 2)
    p = P(pbuf, qb, kt >> 1) + 2*(kt & 1)
    ex = [I(f"v_exp_f32 v{s+r}, v{s+r}") for r in range(4)]
    cv = [I(f"v_cvt_pk_bf16_f32 v{p}, v{s}, v{s+1}"), I(f"v_cvt_pk_bf16_f32 v{p+1}, v{s+2}, v{s+3}")]
    return ex, cv

def smf(pbuf, qb, h):
    return I(f"v_smfmac_f32_16x16x64_bf16 {ar(A_L + 4*qb)}, {ar(A_SPA)}, {vr(P(pbuf, qb, 2*h), 8)}, v{V_SPI}")

def attn_iter(par, first_pv=False, vmtags=('kv',)):
    m = []; blk = []; sg = []
    for i in range(8):
        for qb in range(4):
            n = 4*i + qb
            blk.append(len(m))
            d = vr(V_S + 4*(n % 2))
            for kk in range(4):
                m.append(mf(d, ar(A_KF + 16*(i&1) + 4*kk), vr(V_Q + 16*qb + 4*kk), d if kk else vr(V_NEGM + 4*qb)))
            o = ar(A_O + 16*i + 4*qb)
            for ks in range(4):
                m.append(mf(o, ar(A_VF + 16*(i&1) + 4*ks), vr(P(par ^ 1, qb, ks)), "0" if (first_pv and ks == 0) else o))
        sg.append(len(m))
        m.append(smf(par ^ 1, i >> 1, i & 1))
    G = Gaps(m)
    for n in range(32):
        b = blk[n]
        ex, cv = softmax_items((n - 1) % 32, par if n else par ^ 1)
        for r in range(4): G.pin(b + 2*r, ex[r])
        G.pin(b + 3, cv[0]); G.pin(b + 7, cv[1])
    for i in range(8):
        if i < 7: rd = k_reads(i + 1, par) + v_reads(i + 1, par ^ 1)
        else: rd = k_reads(0, par ^ 1) + v_reads(0, par)
        k = 0
        for qb in range(3):
            b = blk[4*i + qb]
            for gp in (3, 5, 5, 7):
                G.pin(b + gp, rd[k]); k += 1
        if i == 6:
            G.pin(sg[i], W(vm=list(vmtags), lgkm=['fr'])); G.pin(sg[i], I("s_barrier"))
        else:
            G.pin(sg[i], W(lgkm=['fr']))
    groups = [kv_dma('K', 0, par ^ 1, 'kv'), kv_dma('K', 1, par ^ 1, 'kv'), kv_dma('V', 0, par, 'kv'), kv_dma('V', 1, par, 'kv')]
    for i in range(4):
        for qb in range(4): G.pin(blk[4*i + qb] + 1, groups[i][1 + qb])
        if i < 3: G.pin(blk[4*i + 3] + 5, groups[i + 1][0])
    nxt = kv_dma('K', 0, par, 'kv')[0]
    G.pin(blk[4*7 + 3] + 3, nxt)
    for k in range(4): G.pin(blk[4*7 + (k >> 1)] + 1, I(f"s_add_u32 s{S_KO+k}, s{S_KO+k}, 0x8000"))
    G.blk = blk; G.sg = sg
    return G

STUBS = []
def y_load(half, dst=None):
    dst = V_YB if dst is None else dst
    return I(f"buffer_load_dwordx4 {vr(dst)}, v{V_L16}, {sr(SRD_WS)}, s{S_YL} offen offset:{half*1024} sc1", tag=f'yl{dst}')
def y_add(half, src=None):
    src = V_YB if src is None else src
    L = []
    for k in range(4):
        a = V_YS + 8*half + 2*k
        L += [I(f"v_lshlrev_b32 v{V_YT}, 16, v{src+k}"), I(f"v_and_b32 v{src+k}, 0xffff0000, v{src+k}"),
              I(f"v_add_f32 v{a}, v{a}, v{V_YT}"), I(f"v_add_f32 v{a+1}, v{a+1}, v{src+k}")]
    return L
def y_next():
    return [I(f"s_add_u32 s{S_YI}, s{S_YI}, 8192"), I(f"s_and_b32 s{S_YI}, s{S_YI}, 0xffff"), I(f"s_add_u32 s{S_YL}, s{S_YI}, s{S_CB2}")]
def cnt_load(): return I(f"buffer_load_dword v{V_CNT}, off, {sr(SRD_DBG)}, s{S_CA} sc1", tag='cnt')
def cnt_check(G, gap, need, name, read=True):
    if read: G.pin(gap, I(f"v_readfirstlane_b32 s{S_T+2}, v{V_CNT}"))
    G.pin(gap + 1, I(f"s_cmp_lt_u32 s{S_T+2}, {need}"))
    for x in (I(f"s_cbranch_scc1 L_W{name}"), I(f"L_B{name}:")): G.pin(gap + 2, x)
    STUBS.extend([I(f"L_W{name}:"), I(f"s_mov_b32 s{S_SPIN}, 0x40000"), I(f"L_W{name}_l:"), cnt_load(), I(f"s_sub_u32 s{S_SPIN}, s{S_SPIN}, 1"),
                  I("s_waitcnt vmcnt(0)"), I(f"v_readfirstlane_b32 s{S_T+2}, v{V_CNT}"), I("s_nop 3"),
                  I(f"s_cmp_ge_u32 s{S_T+2}, {need}"), I(f"s_cbranch_scc1 L_B{name}"),
                  I(f"s_cmp_gt_i32 s{S_SPIN}, 0"), I(f"s_cbranch_scc1 L_W{name}_l"), I(f"s_branch L_B{name}")])
def arrive(va, vd):
    return [I(f"v_add_u32 v{va}, s{S_RING}, v{V_L16}"), I(f"v_or_b32 v{va}, s{S_PASS}, v{va}"), I(f"v_min_u32 v{va}, 1, v{va}"), I(f"v_lshlrev_b32 v{va}, 12, v{va}"),
            I(f"v_mov_b32 v{vd}, 1")], I(f"buffer_atomic_add v{vd}, v{va}, {sr(SRD_DBG)}, s{S_CA} offen sc1", tag='atom')

def xo_voff(dst, t):
    return [I(f"v_bfe_u32 v{dst}, v{V_L16}, 4, 5"), I(f"v_lshlrev_b32 v{dst}, 10, v{dst}"),
            I(f"v_lshrrev_b32 v{t}, 9, v{V_L16}"), I(f"v_lshl_add_u32 v{dst}, v{t}, 4, v{dst}")]

def it1_extras(G):
    blk = G.blk
    t0, t1, t2 = V_YS + 8, V_YS + 9, V_YS + 10
    su = [I(x) for x in (f"s_lshl_b32 s{S_CA}, s{S_R}, 3", f"s_mov_b32 s{S_FO}, s{S_CB}", f"s_add_u32 s{S_CB2}, s{S_CB}, {hx(WS_Y)}",
          f"s_lshl_b32 s{S_YI}, s{S_G}, 13", f"s_add_u32 s{S_YL}, s{S_YI}, s{S_CB2}",
          f"s_lshl_b32 s{S_T}, s{S_G}, 7", f"s_lshl_b32 s{S_T+1}, s{S_W}, 5", f"s_add_u32 s{S_T}, s{S_T}, s{S_T+1}",
          f"v_lshrrev_b32 v{t0}, 8, v{V_L16}", f"v_lshlrev_b32 v{t0}, 3, v{t0}")]
    su.append(I(f"buffer_load_dwordx2 {vr(V_YB,2)}, v{t0}, {sr(SRD_B2)}, s{S_T} offen", tag='b2'))
    su += [I(f"s_lshl_b32 s{S_XO}, s{S_R}, 16"), I(f"s_add_u32 s{S_XO}, s{S_XO}, s{S_T}"), I(f"s_add_u32 s{S_XO+1}, s{S_XO}, 32768")]
    su += xo_voff(t1, t2)
    for h in range(2): su.append(I(f"buffer_load_dwordx4 {ar(A_XT+4*h)}, v{t1}, {sr(SRD_X)}, s{S_XO+h} offen", tag='xt'))
    su += [I(x) for x in (f"v_bfe_u32 v{t0}, v{V_L16}, 4, 3", f"v_lshrrev_b32 v{t2}, 8, v{V_L16}", f"v_lshlrev_b32 v{t2}, 1, v{t2}", f"v_xor_b32 v{t0}, v{t0}, v{t2}",
           f"v_lshrrev_b32 v{t2}, 7, v{V_L16}", f"v_lshlrev_b32 v{t2}, 10, v{t2}", f"v_lshl_add_u32 v{t2}, v{t0}, 4, v{t2}",
           f"s_lshl_b32 s{S_T}, s{S_G}, 19", f"s_lshl_b32 s{S_T+1}, s{S_W}, 17", f"s_add_u32 s{S_T}, s{S_T}, s{S_T+1}",
           f"v_add_u32 v{t2}, s{S_T}, v{t2}", f"v_accvgpr_write_b32 a{A_WOB}, v{t2}", f"s_lshl_b32 s{S_WO+1}, s{S_W}, 13")]
    G.stream(su, blk[0], blk[16] - 1)
    h = G.stream(wo_dma(0, vwo=t0, vwob=t2), blk[16], blk[24])
    ini = [W(vm=['b2'])]
    for q in range(4):
        for k in range(2):
            ini += [I(f"v_lshlrev_b32 v{V_YS+4*q+2*k}, 16, v{V_YB+k}"), I(f"v_and_b32 v{V_YS+4*q+2*k+1}, 0xffff0000, v{V_YB+k}")]
    pre, atom = arrive(V_YT, V_CNT)
    G.stream(ini + pre, h[0] + 1, blk[30])
    G.pin(blk[30] + 1, atom)
    G.pin(blk[31] + 1, y_load(0))
    G.stream([I(f"s_and_b32 s{S_T+2}, s{S_CB}, 0xffff0000"), I(f"s_add_u32 s{S_T+2}, s{S_T+2}, {7*8192}"), I(f"s_min_u32 s{SRD_WS2+2}, s{SRD_WS2+2}, s{S_T+2}")], blk[8], blk[16])
    fl = fills() + [I(f"s_add_u32 s{S_FO}, s{S_FO}, 8192")] + fills() + [I(f"s_add_u32 s{S_FO}, s{S_FO}, 8192")]
    for x, gp in zip(fl, (blk[25] + 1, blk[26] + 1, blk[26] + 6, blk[27] + 1, blk[27] + 5, blk[29] + 2)): G.pin(gp, x)

def fills():
    return [I(f"buffer_store_dwordx4 {ar(A_FILL)}, v{V_L16}, {sr(SRD_WS2)}, s{S_FO} offen offset:{k*1024} sc1", tag='fill') for k in range(2)]

def loop_extras(ge, go):
    for G, half in ((ge, 0), (go, 1)):
        blk = G.blk
        it = [W(vm=[f'yl{V_YB}'] + (['cnt'] if half else []))] + y_add(half)
        if half == 0:
            G.stream(it, blk[16], blk[22])
            G.pin(blk[22] + 1, y_load(1))
            for k, x in enumerate(fills()): G.pin(blk[24 + k] + 1, x)
            G.pin(blk[30] + 1, cnt_load())
            G.pin(blk[31] + 2, I(f"s_add_u32 s{S_FO}, s{S_FO}, 8192"))
        else:
            cnt_check(G, blk[21] + 1, 8, 'A')
            G.stream(it, blk[16], blk[22])
            G.stream(y_next(), blk[16], blk[21])
            G.pin(blk[22] + 1, y_load(0))
            if not OPT.get('nopf'):
                G.pin(blk[23] + 1, I(f"buffer_load_dword a{A_PF}, v{V_PFO}, {sr(SRD_WO)}, s{S_PF} offen{NT('o')}", tag='pf'))
                G.pin(blk[26] + 2, I(f"s_add_u32 s{S_PF}, s{S_PF}, {1024*GG}"))
            G.pin(blk[30] + 1, I(f"s_cmp_eq_u32 s{S_CNT}, 3"))
            for x in (I("s_cbranch_scc1 L_ARR"), I("L_ARRB:")): G.pin(blk[30] + 2, x)
            pre, atom = arrive(V_YT, V_CNT)
            global ARR
            ARR = [I("L_ARR:")] + pre + [I(f"s_add_u32 s{S_T+3}, s{S_YI}, 16384"), I(f"s_and_b32 s{S_T+3}, s{S_T+3}, 0xffff"), I(f"s_add_u32 s{S_T+3}, s{S_T+3}, s{S_CB2}"), atom,
                   I(f"buffer_load_dwordx4 {ar(A_Y7)}, v{V_L16}, {sr(SRD_WS)}, s{S_T+3} offen offset:1024 sc1", tag='y7')]
            if not OPT.get('nocode2'):
                ARR += [I("s_getpc_b64 s[94:95]"), I("L_PC3:"), I("s_sub_u32 s94, s94, L_PC3-L_FIN"), I("s_subb_u32 s95, s95, 0"),
                        I(f"s_lshr_b32 s93, s2, 3"), I(f"s_lshl_b32 s93, s93, 2"), I(f"s_add_u32 s93, s93, s{S_W}"), I("s_lshl_b32 s93, s93, 7"),
                        I("s_min_u32 s93, s93, L_END-L_FIN"), I(f"v_mov_b32 v{V_YT}, s93"),
                        I(f"global_load_dword a{A_PF}, v{V_YT}, s[94:95]", tag='pf')]
            ARR += [I("s_branch L_ARRB")]
            STUBS.extend(ARR)

def attn_iter0():
    m = []; blk = []
    for i in range(8):
        for qb in range(4):
            n = 4*i + qb
            blk.append(len(m))
            d = vr(V_S + 4*(n % 3) if n < 30 else V_S + 4*(n % 2))
            for kk in range(4):
                m.append(mf(d, ar(A_KF + 16*(i&1) + 4*kk), vr(V_Q + 16*qb + 4*kk), d if kk else vr(V_NEGM + 4*qb)))
    G = Gaps(m)
    G.head += [I(f"v_accvgpr_write_b32 a{A_L + k}, 0") for k in range(16)]
    tail = []
    for n in range(31):
        kt, qb = n >> 2, n & 3
        s = V_S + 4*(n % 3) if n < 30 else V_S + 4*(n % 2)
        p = P(0, qb, kt >> 1) + 2*(kt & 1)
        ex = [I(f"v_exp_f32 v{s+r}, v{s+r}") for r in range(4)]
        cv = [I(f"v_cvt_pk_bf16_f32 v{p}, v{s}, v{s+1}"), I(f"v_cvt_pk_bf16_f32 v{p+1}, v{s+2}, v{s+3}")]
        if n + 2 < 32:
            b = blk[n + 2]
            G.pin(b - 1, ex[0]); G.pin(b, ex[1]); G.pin(b + 1, ex[2]); G.pin(b + 1, cv[0]); G.pin(b + 2, ex[3]); G.pin(b + 3, cv[1])
        else:
            tail += ex + cv
    for i in range(8):
        rd = k_reads(i + 1, 0) if i < 7 else k_reads(0, 1) + v_reads(0, 0)
        lo = blk[4*i]
        for k, x in enumerate(rd): G.pin(lo + (k if i == 7 else 2*k), x)
        if i == 6:
            G.pin(blk[4*i + 3] + 3, W(vm=['kv'], lgkm=['fr'])); G.pin(blk[4*i + 3] + 3, I("s_barrier"))
        elif i < 7:
            G.pin(blk[4*i + 3] + 3, W(lgkm=['fr']))
    G.pin(3, kv_dma('K', 0, 0, 'kv')[0]); G.pin(5, I("s_nop 0"))
    for k, x in enumerate(YST1): G.pin(9 + 8*k, x)
    out = G.flat() + [I("s_nop 3")] + tail + [W(lgkm=['fr'])]
    print(f"; iter0 est cycles {G.cycles()}", file=sys.stderr)
    return out

V_RL, V_NT, V_XW, V_WO, V_WOB, V_OA = 16, 20, 28, 29, 30, 32
V_STG = 128
def V_R(p): return [160, 64, 96, 224][p] if p < 4 else (64 if p & 1 else 160)
V_OACC = 192
def V_SP(st): return 96 + 8*st if st < 4 else 224 + 8*(st - 4)
V_XT, V_MX, V_XR = 4, 24, 27
S_WO, S_SO = 76, 93
PER = [(0, 0), (1, 0), (0, 1), (1, 1)] + [(c, h) for c in range(2, 8) for h in range(2)]
SLOTS = dict(A=(2, 0, 8192, 'hx'), B=(1, 0, 16384, 'V0'), C=(1, 8192, 16384, 'V1'), D=(0, 0, 16384, 'K0'), E=(0, 8192, 16384, 'K1'))
def oslot(p): return SLOTS["ADBADBAECDBAECDB"[p]]

def wo_dma(p, vwo=None, vwob=None):
    vwo = V_WO if vwo is None else vwo; vwob = V_WOB if vwob is None else vwob
    ci, half = PER[p]
    win, base, ps, res = oslot(p)
    L = [I(f"s_add_u32 s{S_WO}, s{S_G}, {1 + ci}"), I(f"s_and_b32 s{S_WO}, s{S_WO}, 7"), I(f"s_lshl_b32 s{S_WO}, s{S_WO}, 7")]
    if half: L.append(I(f"s_add_u32 s{S_WO}, s{S_WO}, {hx(64*1024)}"))
    L.append(I(f"v_add_u32 v{vwo}, s{S_WO}, v{vwob}"))
    for h in range(2):
        L.append(I(f"s_add_u32 m0, s{S_RING if ps == 16384 else S_WO+1}, {hx(win*65536 + base + h*4096)}"))
        if h: L.append(I(f"v_add_u32 v{vwo}, {hx(32*1024)}, v{vwo}"))
        for i in range(4): L.append(dma_w(SRD_WO, vwo, S_SM2, i, f"wo{p}", [(res, True)]))
    return L

OFREG = [list(range(0, 64, 4)) + list(range(128, 176, 4)) + list(range(240, 256, 4)),
         list(range(64, 128, 4)) + list(range(176, 240, 4))]
def OF(half, j, qb): return OFREG[half][8*qb + j]
def oaf_reads(p):
    win, base, ps, res = oslot(p)
    return [I(f"ds_read_b64_tr_b16 {vr(V_R(p) + 4*j + 2*e, 2)}, v{V_OA+win} offset:{base + (j>>1)*ps + (j&1)*4096 + e*2048}",
              tag=f"oaf{p}", res_r=[(res, True)]) for j in range(8) for e in range(2)]
def of_reads(half, qb):
    return [I(f"ds_read_b128 {ar(OF(half, j, qb))}, v{V_XR if half else V_L16} offset:{(j>>1)*16384 + 8192 + (j&1)*4096 + qb*1024}",
              tag=f"of{half}_{qb}", res_r=[('V1' if half else 'K1', True)]) for j in range(8)]
def sp_load(st):
    L = [I(f"s_add_u32 s{S_CB2}, s{S_CB}, {st*8192}")]
    for half in range(2):
        L.append(I(f"buffer_load_dwordx4 {vr(V_SP(st) + 4*half)}, v{V_L16}, {sr(SRD_WS)}, s{S_CB2} offen offset:{half*1024} sc1", tag=f"sp{st}"))
    return L
def sp_max(st):
    b = V_SP(st); m = V_MX
    return [I(f"v_max3_u32 v{m}, v{b}, v{b+1}, v{b+2}"), I(f"v_max3_u32 v{m}, v{m}, v{b+3}, v{b+4}"),
            I(f"v_max3_u32 v{m}, v{m}, v{b+5}, v{b+6}"), I(f"v_max_u32 v{m}, v{m}, v{b+7}")]

def finale():
    m = []; blk = []; sg = {}; per = []
    for i in range(8):
        for qb in range(4):
            blk.append(len(m))
            o = ar(A_O + 16*i + 4*qb)
            for ks in range(4): m.append(mf(o, ar(A_VF + 16*(i&1) + 4*ks), vr(P(1, qb, ks)), o))
            if i == 0:
                for h in range(2):
                    sg[(qb, h)] = len(m); m.append(smf(1, qb, h))
    blk.append(len(m))
    for p, (ci, half) in enumerate(PER):
        lo = len(m)
        for qb in range(4):
            d = vr(V_OACC + 16*(ci & 1) + 4*qb)
            for j in range(8):
                m.append(mf(d, vr(V_R(p) + 4*j), ar(OF(half, j, qb)), "0" if (j == 0 and half == 0) else d))
        per.append((lo, len(m) - 1))
    G = Gaps(m)
    cnt_check(G, per[2][1] - 6, 16, 'B', read=False)
    Xa = blk[4] - 1
    X0 = blk[4*int(OPT.get('x0', 3))] - 1
    Xb = blk[4*int(OPT.get('xb', 5))] - 1
    X1 = blk[28] - 1
    p0, p2 = per[0][0], per[2][0]
    Xc = p0 + 23
    X2 = per[1][0] + int(OPT.get('x2', 17))
    quiet = set()
    def paced(items, lo, step, h=None):
        pos = lo - step
        for x in items:
            if x.kind == 'dma':
                pos = max(pos + step, h[0] if h else 0)
                while pos in quiet or any(y.is_mem() and y.kind != 'dsr' for y in G.seq(pos)) or (h and h[0] == pos and h[1] == 2): pos += 1
                h = G.pin(pos, x)
            else:
                st = max(lo - 3, h[0] if h else 0, 0)
                h = G.place(x, st, st + 2, after=h)
        return h
    w1pos = [X1 - 4 - 4*k for k in range(7, -1, -1)]
    w2pos = [X2 - 4 - int(OPT.get('w2s', 5))*k for k in range(7, -1, -1)]
    for g in w1pos + w2pos: quiet |= {g, g + 1}
    assert w1pos[-1] > Xb
    ex, cv = softmax_items(31, 1)
    for r in range(4): G.pin(r, ex[r])
    G.pin(4, cv[0]); G.pin(4, cv[1])
    def ds_stream(rd, lo, hi, per_gap=2):
        g = lo
        for x in rd:
            while g in quiet or sum(y.kind == 'dsr' for y in G.seq(g)) >= per_gap or (x.is_b128r() and any(y.is_b128r() for y in G.seq(g))): g += 1
            assert g <= hi, (x.text, g, hi)
            G.pin(g, x)
    for i in range(7):
        ds_stream(v_reads(i + 1, 1), blk[4*i] + (1 if i == 0 else 0), blk[4*i + 4] - 4, 1 if i == 0 else 2)
        if blk[4*i + 4] - 1 not in (Xa, X0, Xb, X1): G.pin(blk[4*i + 4] - 1, W(lgkm=['fr']))
    G.head.append(I(f"v_accvgpr_read_b32 v{V_WOB}, a{A_WOB}"))
    su = [I(x) for x in (f"v_lshrrev_b32 v26, 6, v{V_L16}", "v_lshlrev_b32 v26, 7, v26", f"v_bfe_u32 v27, v{V_L16}, 4, 2", "v_lshl_add_u32 v26, v27, 3, v26",
           "v_lshlrev_b32 v31, 14, v27", f"v_bfe_u32 v27, v{V_L16}, 7, 2", f"v_xor_b32 v27, s{S_W}, v27", f"v_lshl_add_u32 v{V_OA}, v27, 5, v26",
           f"v_add_u32 v{V_OA+2}, 0x20000, v{V_OA}")]
    for k, x in enumerate(su): G.pin(5 + k // 2, x)
    ds_stream(oaf_reads(0), 10, Xa - 4)
    d1 = wo_dma(1)
    for x in d1:
        if x.res_w: x.res_w = [('K0x', True)]
    h = paced(d1 + wo_dma(2), 2, 2)
    G.pin(Xa, W(lgkm=['fr', 'oaf0'])); G.pin(Xa, I("s_barrier"))
    h = paced(wo_dma(3), max(h[0], Xa) + 2, 2, h)
    e0 = sg[(3, 1)] + 5
    su = [I(x) for x in (f"v_add_u32 v{V_XW}, s{S_RING}, v{V_L16}", f"v_add_u32 v{V_OA+1}, 0x10000, v{V_OA}", f"v_add_u32 v{V_XR}, 0x10000, v{V_L16}",
           f"s_lshl_b32 s{S_SO+1}, s{S_R}, 8", f"s_add_u32 s{S_SO+1}, s{S_SO+1}, s{S_W}", f"s_lshl_b32 s{S_SO+1}, s{S_SO+1}, 11")]
    G.stream(su, 18, e0)
    MK = 8192 + 4096 + 3072
    for x in (I("s_cbranch_vccnz L_MARK"), I("L_MARKED:")): G.pin(X0 - 1, x)
    STUBS.extend([I("L_MARK:"), I(f"v_mov_b32 v35, -1"), I(f"ds_write_b32 v{V_XW}, v35 offset:{MK}"), I("s_waitcnt lgkmcnt(0)"), I("s_branch L_MARKED")])
    G.pin(X0, W(vm=['wo2'], lgkm=['fr'])); G.pin(X0, I("s_barrier"))
    G.pin(X0, I(f"ds_read_b32 v35, v31 offset:{MK}", tag='mk', res_r=[('MK', True)]))
    FB = X0 + 6
    G.pin(FB - 2, W(lgkm=['mk'])); G.pin(FB - 2, I(f"v_cmp_eq_u32 vcc, -1, v35"))
    for x in (I("s_cbranch_vccnz L_FALLBACK0"), I("L_NOFB:")): G.pin(FB, x)
    STUBS.extend([I("L_FALLBACK0:"), I(f"s_cmp_lg_u32 s{S_PASS}, 0"), I("s_cbranch_scc1 L_NOFB"), I("s_branch L_FALLBACK")])
    o1 = oaf_reads(1)
    for x in o1: x.res_r = x.res_r + [('K0x', True)]
    ds_stream(o1 + oaf_reads(2), FB, Xb - 3)
    G.pin(Xb, W(lgkm=['fr', 'oaf2'])); G.pin(Xb, I("s_barrier"))
    G.pin(X1, W(vm=['wo3'], lgkm=['fr', 'ow0'])); G.pin(X1, I("s_barrier"))
    for qb in range(3): G.pin(p0 + 8*qb - 1, W(lgkm=[f'of0_{qb}']))
    ds_stream(of_reads(0, 0) + of_reads(0, 1) + of_reads(0, 2) + of_reads(0, 3), X1 + 1, Xc - 3)
    ds_stream(oaf_reads(3), p0, Xc - 2)
    G.pin(Xc, W(lgkm=['of0_3', 'oaf3'])); G.pin(Xc, I("s_barrier"))
    G.pin(X2, W(lgkm=['ow1'])); G.pin(X2, I("s_barrier"))
    for qb in range(4): G.pin(p2 + 8*qb - 1, W(lgkm=[f'of1_{qb}']))
    ds_stream(of_reads(1, 0) + of_reads(1, 1) + of_reads(1, 2) + of_reads(1, 3), X2 + 1, p2 + 20)
    skip = set(int(x) for x in OPT.get('skip', '99').split(',') if x)
    for p in range(2, 15):
        lo, hi = per[p]
        q = p + 1
        lg = [f"oaf{q}"] if p > 2 else ['of1_3']
        if q < 15 and q not in skip:
            G.pin(hi, W(vm=[f"wo{q+2 if q+1 in skip else q+1}"], lgkm=lg)); G.pin(hi, I("s_barrier"))
        else:
            G.pin(hi, W(lgkm=lg))
        if p > 2:
            for k, x in enumerate(oaf_reads(q)): G.pin(lo + 1 + 3*(k // 2), x)
    h = paced(wo_dma(4) + wo_dma(5), Xb + 1, 4, h)
    h = paced(wo_dma(6) + wo_dma(7), max(h[0] + 4, Xc + 1), 4, h)
    pace = int(OPT.get('pace', 40))
    for k in range(8):
        q = 8 + k
        rel = q - 5
        while rel in skip: rel += 1
        h = paced(wo_dma(q), max(per[rel][0], per[3][0] + pace*k, h[0] + 2), pace // 8, h)
    items = []
    for qb in range(4):
        items += [I(f"v_accvgpr_read_b32 v{V_RL+qb}, a{A_L+4*qb}"), I(f"v_accvgpr_read_b32 v{V_NT}, a{A_L+4*qb+1}"),
                  I(f"v_add_f32 v{V_RL+qb}, v{V_RL+qb}, v{V_NT}")]
    items += [I(f"v_add_f32 v{V_NT}, v{V_RL}, v{V_RL+1}"), I(f"v_add_f32 v{V_NT+1}, v{V_RL+2}, v{V_RL+3}"), I(f"v_add_f32 v{V_NT}, v{V_NT}, v{V_NT+1}"),
              I(f"v_cmp_ngt_f32 vcc, {hx(f2u(2.0**30))}, v{V_NT}")]
    items += [I(f"v_rcp_f32 v{V_RL+qb}, v{V_RL+qb}") for qb in range(4)]
    h = G.stream(items, e0, e0 + 12)
    assert h[0] < X0 - 2
    def norm(i, qb):
        e = blk[4*i + qb] + 3 + 6
        st = V_STG + 16*((i >> 1) & 1) + 4*qb
        o = A_O + 16*i + 4*qb; T = V_NT
        seq = [I(f"v_accvgpr_read_b32 v{T+r}, a{o+r}") for r in range(4)]
        seq += [I(f"v_mul_f32 v{T+r}, v{T+r}, v{V_RL+qb}") for r in range(4)]
        seq += [I(f"v_cvt_pk_bf16_f32 v{st+2*(i&1)}, v{T}, v{T+1}"), I(f"v_cvt_pk_bf16_f32 v{st+2*(i&1)+1}, v{T+2}, v{T+3}")]
        return [(x, e) for x in seq]
    for hf, wpos in ((0, w1pos), (1, w2pos)):
        for k in range(8):
            u, qb = 2*hf + (k >> 2), k & 3
            G.pin(wpos[k], I(f"ds_write_b128 v{V_XW}, {vr(V_STG + 16*(u&1) + 4*qb)} offset:{8192 + (u&1)*4096 + qb*1024}", tag=f'ow{hf}',
                             res_w=[('V1' if hf else 'K1', True)] + ([('MK', True)] if (hf, k) == (0, 7) else [])))
    G.pin(X1, I(f"v_add_u32 v{V_XW}, 0x10000, v{V_XW}"))
    for hf, wpos in ((0, w1pos), (1, w2pos)):
        lo = h[0] + 1; span = wpos[7] - lo
        for k in range(8):
            u, qb = 2*hf + (k >> 2), k & 3
            its = norm(2*u, qb) + norm(2*u + 1, qb)
            if hf: its = [(x, max(e, w1pos[k] + 2)) for x, e in its]
            hi = min(wpos[k] - 1, max(lo + (span * (k + 1)) // 8, its[-1][1] + 4))
            h = G.stream(its, h[0] + 1, max(hi, h[0] + 3))
            assert h[0] < wpos[k]
    G.stream([I(f"v_accvgpr_read_b32 v{V_XT+k}, a{A_XT+k}") for k in range(8)] + [I(f"v_accvgpr_read_b32 v{36+k}, a{A_Y7+k}") for k in range(4)], X2 - 3, X2 + 14)
    for ci in range(7):
        pl = PER.index((ci, 1))
        a = V_OACC + 16*(ci & 1)
        e0 = per[pl][0] + 20
        items = [(I(x), e0) for x in (f"s_add_u32 s{S_SO}, s{S_G}, {1 + ci}", f"s_and_b32 s{S_SO}, s{S_SO}, 7", f"s_lshl_b32 s{S_SO}, s{S_SO}, 16",
                 f"s_add_u32 s{S_SO}, s{S_SO}, s{S_SO+1}", f"s_add_u32 s{S_SO+1}, s{S_SO+1}, 8192")]
        st = V_STG + 8*(ci & 1)
        for half in range(2):
            e = per[pl][0] + 16*half + 15 + 6
            for k in range(4*half, 4*half + 4): items.append((I(f"v_cvt_pk_bf16_f32 v{st+k}, v{a+2*k}, v{a+2*k+1}"), e))
            for k in range(4*half, 4*half + 4): items.append((I(f"v_min_u32 v{st+k}, -2, v{st+k}"), e))
            items.append((I(f"buffer_store_dwordx4 {vr(st+4*half)}, v{V_L16}, {sr(SRD_WS)}, s{S_SO} offen offset:{half*1024} sc1", tag='sst'), max(e, per[2][1] + 1)))
        G.stream(items, e0, per[pl + 1][0] + 18)
    it = y_add(0) + y_add(1, 36)
    for q0 in range(0, 16, 4):
        T = V_NT
        it += [I(f"v_mul_f32 v{T+r}, {hx(f2u(-math.log2(math.e)))}, v{V_YS+q0+r}") for r in range(4)]
        it += [I(f"v_exp_f32 v{T+r}, v{T+r}") for r in range(4)]
        it += [I(f"v_add_f32 v{T+r}, 1.0, v{T+r}") for r in range(4)]
        it += [I(f"v_rcp_f32 v{T+r}, v{T+r}") for r in range(4)]
        it += [I(f"v_mul_f32 v{V_YS+q0+r}, v{V_YS+q0+r}, v{T+r}") for r in range(4)]
    V_XF = 144
    for h in range(2): it += [I(f"v_permlane16_swap_b32 v{V_XT+4*h}, v{V_XT+4*h+2}"), I(f"v_permlane16_swap_b32 v{V_XT+4*h+1}, v{V_XT+4*h+3}")]
    for k in range(8): it += [I(f"v_lshlrev_b32 v{V_XF+2*k}, 16, v{V_XT+k}"), I(f"v_and_b32 v{V_XF+2*k+1}, 0xffff0000, v{V_XT+k}")]
    it += xo_voff(3, 2)
    ld = []
    for st in range(5): ld += sp_load(st)
    even(G, ld, per[13][0], per[14][1])
    G.stream(sp_load(5), per[15][0] + 8, per[15][1])
    G.stream(it, per[4][0], per[15][1])
    if OPT['stamps']:
        for x in stamp(9): G.pin(p0 - 1, x, post=True)
    for k in range(16): ministamp(G, per[k][1], 48 + k)
    print(f"; finale est cycles {G.cycles()} (pv part {G.cyc(0, p0-1)}, periods {[G.cyc(a, b) for a, b in per]})", file=sys.stderr)
    L = with_m0_pad(G.flat()); A = lambda t, **k: L.append(I(t, **k))
    L += sp_load(6)
    L += stamp(10)
    A(f"s_mov_b32 s{S_SPIN}, 0x40000")
    acc = V_OACC + 16; U = 160
    for st in range(7):
        L.append(W(vm=[f"sp{st}"]))
        A(f"L_CHK{st}:")
        L += sp_max(st)
        A(f"v_cmp_eq_u32 vcc, -1, v{V_MX}")
        for k in range(4):
            r = V_SP(st) + k
            A(f"v_lshlrev_b32 v{U+2*k}, 16, v{r}"); A(f"v_and_b32 v{U+1+2*k}, 0xffff0000, v{r}")
        A(f"s_cbranch_vccnz L_RETRY{st}")
        A(f"L_GO{st}:")
        for k in range(4, 8):
            r = V_SP(st) + k
            A(f"v_lshlrev_b32 v{U+2*k}, 16, v{r}"); A(f"v_and_b32 v{U+1+2*k}, 0xffff0000, v{r}")
        for k in range(8): A(f"v_pk_add_f32 {vr(acc+2*k,2)}, {vr(acc+2*k,2)}, {vr(U+2*k,2)}")
        STUBS.extend([I(f"L_RETRY{st}:"), I(f"s_sub_u32 s{S_SPIN}, s{S_SPIN}, 1"), I(f"s_cmp_le_i32 s{S_SPIN}, 0"), I(f"s_cbranch_scc1 L_GO{st}")])
        for q in range(st, 7): STUBS.extend(sp_load(q))
        STUBS.extend([I("s_waitcnt vmcnt(0)"), I(f"s_branch L_CHK{st}")])
    for k in range(8): A(f"v_pk_fma_f32 {vr(acc+2*k,2)}, {vr(acc+2*k,2)}, {vr(V_YS+2*k,2)}, {vr(V_XF+2*k,2)}")
    for k in range(8): A(f"v_cvt_pk_bf16_f32 v{U+k}, v{acc+2*k}, v{acc+2*k+1}")
    for h in range(2):
        A(f"v_permlane16_swap_b32 v{U+4*h}, v{U+4*h+2}"); A(f"v_permlane16_swap_b32 v{U+4*h+1}, v{U+4*h+3}")
    for h in range(2): A(f"buffer_store_dwordx4 {vr(U+4*h)}, v3, {sr(SRD_OUT)}, s{S_XO+h} offen", tag='out')
    return L

def fallback():
    L = []; A = lambda t, **k: L.append(I(t, **k))
    A("L_FALLBACK:")
    A("s_waitcnt vmcnt(0) lgkmcnt(0)"); A("s_nop 7")
    A(f"s_mov_b32 s{S_PASS}, 1")
    A(f"s_mov_b32 s{SRD_WS2+2}, 0")
    A(f"s_lshl_b32 s{S_KO}, s{S_W}, 13"); A(f"s_add_u32 s{S_KO+1}, s{S_KO}, 4096")
    for qb in range(4): A(f"v_mov_b32 v{V_NEGM+4*qb}, 0xff800000")
    A(f"s_mov_b32 s{S_CNT}, 17")
    A("L_FB_LOOP:")
    A("s_waitcnt vmcnt(0) lgkmcnt(0)"); A("s_barrier")
    A(f"s_cmp_lg_u32 s{S_CNT}, 1"); A("s_cbranch_scc1 L_FB_NR")
    A(f"s_lshl_b32 s{S_KO}, s{S_W}, 13"); A(f"s_add_u32 s{S_KO+1}, s{S_KO}, 4096")
    A("L_FB_NR:")
    L += with_m0_pad(kv_dma('K', 0, 0, 'kv') + kv_dma('K', 1, 0, 'kv'))
    A("s_waitcnt vmcnt(0)"); A("s_barrier")
    for kt in range(8):
        L += k_reads(kt, 0); A("s_waitcnt lgkmcnt(0)")
        for qb in range(4):
            d = vr(V_P + 4*qb)
            for kk in range(4): L.append(mf(d, ar(A_KF + 16*(kt&1) + 4*kk), vr(V_Q + 16*qb + 4*kk), d if kk else "0"))
        A("s_nop 7")
        for qb in range(4):
            b = V_NEGM + 4*qb; d = V_P + 4*qb
            A(f"v_max3_f32 v{b}, v{b}, v{d}, v{d+1}"); A(f"v_max3_f32 v{b}, v{b}, v{d+2}, v{d+3}")
    A(f"s_add_u32 s{S_KO}, s{S_KO}, 0x8000"); A(f"s_add_u32 s{S_KO+1}, s{S_KO+1}, 0x8000")
    A(f"s_sub_u32 s{S_CNT}, s{S_CNT}, 1"); A(f"s_cmp_lg_u32 s{S_CNT}, 0"); A("s_cbranch_scc1 L_FB_LOOP")
    L += rowmax_finish()
    A(f"s_lshl_b32 s{S_VO}, s{S_W}, 13"); A(f"s_add_u32 s{S_VO+1}, s{S_VO}, 4096")
    L += with_m0_pad(kv_dma('K', 0, 1, 'kv') + kv_dma('K', 1, 1, 'kv') + kv_dma('V', 0, 0, 'kv') + kv_dma('V', 1, 0, 'kv'))
    L += k_reads(0, 0); A("s_waitcnt lgkmcnt(0)")
    for k in range(4): A(f"s_add_u32 s{S_KO+k}, s{S_KO+k}, 0x8000")
    A("s_branch L_ITER0")
    return L

def build():
    d = OPT['dump']
    p0 = phase0(); p1 = phase1()
    su = stamp(4) + attn_setup() + attn_first_max() + stamp(5)
    it0 = [I("L_ITER0:")] + attn_iter0() + stamp(6)
    g1 = attn_iter(1, first_pv=True, vmtags=('kv', 'yst')); ge, go = attn_iter(0), attn_iter(1, vmtags=('kv', 'fill'))
    go.pin(len(go) - 4, I(f"s_sub_u32 s{S_CNT}, s{S_CNT}, 1")); go.pin(len(go) - 4, I(f"s_cmp_lg_u32 s{S_CNT}, 0"))
    it1_extras(g1); loop_extras(ge, go)
    print(f"; attn iter est cycles {ge.cycles()} {go.cycles()} (it1 {g1.cycles()})", file=sys.stderr)
    it1 = with_m0_pad(g1.flat()) + [I(f"s_mov_b32 s{S_CNT}, 7")] + stamp(7)
    loop = [I(".p2align 6"), I("L_LOOP:")] + ge.flat() + go.flat() + [I("s_cbranch_scc1 L_LOOP")]
    last = [I("L_FIN:")] + stamp(8) + finale()
    if OPT['stamps']: last += [I(f"v_writelane_b32 v63, s{S_SPIN}, 15")]
    last += stamp(11 if not OPT.get('fine') else 14, True)
    op = []
    fb = fallback()
    end = [I("L_END:"), I("s_endpgm")]
    if d == 'q': body = p0 + p1 + dump_regs([vr(V_Q + 4*i) for i in range(16)] + [ar(144 + 4*i) for i in range(28)]) + end; trace = body
    else:
        body = p0 + p1 + su + it0 + it1 + loop + last + end + STUBS + fb
        ka = [i for i, x in enumerate(loop) if x.text == "L_ARRB:"][0]
        trace = p0 + p1 + su + it0 + it1 + loop + loop[:ka] + ARR + loop[ka:] + loop*2 + last
        k = [i for i, x in enumerate(last) if x.text == "s_cbranch_vccnz L_FALLBACK0"][0]
        trace2 = p0 + p1 + su + it0 + it1 + loop*2 + last[:k+1] + fb + it0 + it1 + loop + last
        resolve_waits(trace2)
    resolve_waits(trace)
    e = check(trace, verbose=False)
    if d is None: e += check(trace2, verbose=False)
    seen = set()
    for x in e:
        if x not in seen: print("CHECK:", x, file=sys.stderr); seen.add(x)
    def in_gemm(x): return id(x) in gset
    gset = set(id(x) for x in p1 + op + last)
    if OPT.get('nosst'): body = [x for x in body if x.tag not in ('sst', 'fill')]
    if OPT.get('noy'): body = [x for x in body if x.tag not in ('y0', 'y1')]
    if OPT.get('nodma'): body = [x for x in body if not (in_gemm(x) and x.kind == 'dma')]
    if OPT.get('novalu'): body = [x for x in body if not (in_gemm(x) and x.kind in ('valu', 'trans', 'perm') and any(k in x.text for k in ('f32', 'accvgpr', 'permlane')))]
    if OPT.get('nomfma'): body = [x for x in body if not (in_gemm(x) and x.kind == 'mfma')]
    if OPT.get('nods'): body = [x for x in body if not (in_gemm(x) and x.kind == 'dsr' and 'b32' not in x.text)]
    return body

def kdesc(name, vg, acc):
    return f""".amdhsa_kernel {name}
  .amdhsa_next_free_vgpr {vg}
  .amdhsa_next_free_sgpr 102
  .amdhsa_accum_offset {acc}
  .amdhsa_group_segment_fixed_size 0
  .amdhsa_kernarg_size 104
  .amdhsa_user_sgpr_count 2
  .amdhsa_user_sgpr_kernarg_segment_ptr 1
  .amdhsa_system_sgpr_workgroup_id_x 1
  .amdhsa_float_denorm_mode_32 3
.end_amdhsa_kernel"""

body = build()
K1 = NAME + "_kernel"
out = [f"; @launch grid=(256,1,1) block=(256,1,1) lds=163840",
       '.amdgcn_target "amdgcn-amd-amdhsa--gfx950"', ".text"]
out += [f".globl {K1}", ".p2align 8", f".type {K1},@function", f"{K1}:"] + [x.emit() for x in body]
out += ['.section .rodata,"a"', ".p2align 6", kdesc(K1, 512, 256)]
print("\n".join(out).replace("CODE_LEFT", "L_END-L_PC2"))
```

```python
import sys, struct, math, re
from asmlib import *

NAME = "recurrent_scan__gqa_block_cached__dense_activation_gelu__prompt"
OPT = dict(dump=None, stamps=False, G='2', pfs='128', s2='9', stag='8', q1='early', nw='16', ne='3', xe='8', pvx='2', w1f='17', norot=True, nokt=True)
for a in sys.argv[1:]:
    k, _, v = a.partition('=')
    OPT[k] = v if v else True

NT = lambda k: ' nt' if k in OPT.get('nt', '') else ''
GG = int(OPT['G']); LG = GG.bit_length() - 1
def f2u(x): return struct.unpack('<I', struct.pack('<f', x))[0]
def hx(x): return f"0x{x & 0xffffffff:x}"
def vr(b, n=4): return f"v[{b}:{b+n-1}]" if n > 1 else f"v{b}"
def ar(b, n=4): return f"a[{b}:{b+n-1}]" if n > 1 else f"a{b}"
def sr(b, n=4): return f"s[{b}:{b+n-1}]" if n > 1 else f"s{b}"

S_W = 3
SRD_X, SRD_K, SRD_V, SRD_WQ, SRD_WO, SRD_W1, SRD_W2, SRD_WS, SRD_OUT, SRD_B1, SRD_B2, SRD_DBG = range(4, 52, 4)
S_G, S_R = 52, 53
S_SM1, S_SMQ, S_SM2 = 54, 57, 60
S_RING = 63
S_KO = 64
S_VO = 66
S_CNT, S_PASS = 68, 69
S_QS, S_GB = 70, 71
S_YO = 72
S_T = 76
S_PF = 99
SRD_WS2 = 80
S_CB, S_CB2, S_SPIN = 84, 85, 86
S_STAMP = 96

V_KA, V_VA, V_DV, V_SPI, V_L16 = 0, 4, 12, 14, 15
V_NEGM, V_S, V_SPA = 16, 32, 44
V_T = 48
V_Q, V_P = 64, 128
V_WA = 4
V_AF = 16
V_W1, V_WQ, V_W2, V_GA = 48, 49, 50, 51
V_ACCA, V_ACCB = 128, 192
V_B1 = 64
def XN(ks, qb): return ((15 - ks) * 4 + qb) * 4
A_O, A_L, A_KF, A_VF = 0, 128, 144, 176
A_SPA, A_FILL, A_XT, A_PF, A_WOB, A_Y7 = 208, 212, 216, 224, 225, 228
V_YB, V_YS, V_YT, V_PFO, V_CNT = 40, 44, 60, 61, 62
S_KT, S_NEED, S_CL = 75, 58, 59
S_CA, S_YI, S_YL, S_FO, S_XO = 87, 88, 89, 90, 91

LDS_V, LDS_X = 65536, 131072
WS_S, WS_Y, WS_DUMP = 0, 16 << 20, 64 << 20

mf = lambda d, a, b, c: I(f"v_mfma_f32_16x16x32_bf16 {d}, {a}, {b}, {c}")

segs = {}
def stamp(i, last=False):
    if not OPT['stamps']: return []
    L = [I(f"s_memtime s[{S_STAMP}:{S_STAMP+1}]"), I(f"s_memrealtime s[100:101]"), I("s_waitcnt lgkmcnt(0)"),
         I(f"v_writelane_b32 v63, s{S_STAMP}, {i}"), I(f"v_writelane_b32 v63, s100, {16+i}")]
    if last:
        L += [I("s_lshl_b32 s98, s2, 2"), I(f"s_add_u32 s98, s98, s{S_W}"), I("s_lshl_b32 s98, s98, 8"), I(f"s_add_u32 s98, s98, {hx(WS_DUMP)}"),
              I(f"v_lshrrev_b32 v62, 2, v{V_L16}"), I(f"buffer_store_dword v63, v62, {sr(SRD_WS)}, s98 offen", tag='stamp')]
    return L

def ministamp(G, gap, lane):
    if not OPT.get('mini'): return
    for x in (I(f"s_memtime s[{S_STAMP}:{S_STAMP+1}]"), I("s_waitcnt lgkmcnt(0)"), I(f"v_writelane_b32 v63, s{S_STAMP}, {lane}")): G.pin(gap, x, post=True)

def dump_regs(groups):
    L = [I("s_waitcnt vmcnt(0) lgkmcnt(0)"), I("s_nop 7"), I("s_nop 7")]
    L += [I(f"s_lshl_b32 s{S_T}, s2, 2"), I(f"s_add_u32 s{S_T}, s{S_T}, s{S_W}"),
          I(f"s_mul_i32 s{S_T}, s{S_T}, {len(groups)*1024}"), I(f"s_add_u32 s{S_T}, s{S_T}, {hx(WS_DUMP)}")]
    for g in groups:
        L.append(I(f"buffer_store_dwordx4 {g}, v{V_L16}, {sr(SRD_WS)}, s{S_T} offen"))
        L.append(I("s_nop 3"))
        L.append(I(f"s_add_u32 s{S_T}, s{S_T}, 1024"))
    L += [I("s_waitcnt vmcnt(0)"), I("s_endpgm")]
    return L

def srd(L, base, p, nbytes):
    L += [I(f"s_mov_b32 s{base}, s{p}"), I(f"s_mov_b32 s{base+1}, s{p+1}"),
          I(f"s_mov_b32 s{base+2}, {hx(nbytes)}"), I(f"s_mov_b32 s{base+3}, 0x20000")]

def dma_w(srdb, vreg, sm, i, tag, res):
    so = "0" if (i & 3) == 0 else f"s{sm + (i & 3) - 1}"
    off = f" offset:{(i & 3) * 1024}" if i & 3 else ""
    return I(f"buffer_load_dwordx4 v{vreg}, {sr(srdb)}, {so} offen{off} lds", tag=tag, res_w=res)

STAGES = []
for kq in range(8): STAGES.append(dict(m='w1', srd=SRD_W1, v=V_W1, stride=3584, nks=2, ks0=2*kq, acc=V_ACCA, first=kq == 0, col=0))
for hq in range(2):
    for kq in range(8): STAGES.append(dict(m='wq', srd=SRD_WQ, v=V_WQ, stride=8192, nks=2, ks0=2*kq, acc=V_ACCB, first=kq == 0, col=128*hq))
for hc in range(2):
    for kq in range(4): STAGES.append(dict(m='w2', srd=SRD_W2, v=V_W2, stride=1024, nks=2 if kq < 3 else 1, ks0=2*kq, acc=V_ACCA if hc == 0 else V_ACCB,
                                           first=kq == 0, col=512*hc))
def slot_off(s): return 8192 if (s & 3) in (0, 3) else 0
SLOTRES = ['K1', 'V0', 'K0', 'V1']
S_RS = 54
def stage_dma(s):
    st = STAGES[s]; L = []
    for j in range(st['nks']):
        for i in range(4):
            row = 32*(st['ks0'] + j) + (8*i if st['m'] == 'w2' else 16*(i & 1) + 4*(i >> 1))
            L.append(I(f"s_mov_b32 s{S_RS + i}, {hx(row*st['stride'] + st['col'] - 1024*i)}"))
            if i == 0: L.append(I(f"s_add_u32 m0, s{S_RING}, {hx(slot_off(s) + (s & 1) * 65536 + j * 4096)}"))
            off = f" offset:{i*1024}" if i else ""
            L.append(I(f"buffer_load_dwordx4 v{st['v']}, {sr(st['srd'])}, s{S_RS + i} offen{off} lds", tag=f"st{s}", res_w=[(f"slot{s&3}", False)]))
    return L

def with_m0_pad(L):
    out = []
    for i, x in enumerate(L):
        out.append(x)
        if 'm0' in x.wr and i + 1 < len(L) and L[i+1].kind == 'dma': out.append(I("s_nop 0"))
    return out

def interleave(main, extra, start=0, end=None):
    end = len(main) if end is None else end
    out = list(main[:start]); n = end - start; k = 0
    for i in range(n):
        out.append(main[start + i])
        while k < len(extra) and (k + 1) * n <= (i + 1) * len(extra) + 0:
            out.append(extra[k]); k += 1
    return out + extra[k:] + list(main[end:])

def touch(L, srdb, vtmp, sreg, ln, rowlines, rowstride, nrows, sbase_code, step=128):
    A = lambda t, **k: L.append(I(t, **k))
    per_row = rowlines * 128 // step
    rows_share = -(-nrows * GG // 128)
    total = per_row * rows_share
    lg = per_row.bit_length() - 1
    A(f"s_mul_i32 s{sreg}, s94, {rows_share * rowstride}")
    for t in sbase_code: A(t)
    if sbase_code: A(f"s_add_u32 s{sreg}, s{sreg}, s93")
    A(f"v_lshrrev_b32 v{vtmp}, {lg}, v{ln}")
    if total < 64: A(f"v_min_u32 v{vtmp}, {rows_share - 1}, v{vtmp}")
    A(f"v_mul_u32_u24 v{vtmp}, {rowstride}, v{vtmp}")
    A(f"v_and_b32 v32, {per_row - 1}, v{ln}")
    A(f"v_lshl_add_u32 v{vtmp}, v32, {step.bit_length() - 1}, v{vtmp}")
    out = []
    for k in range(max(1, -(-total // 64))):
        if k: out.append(I(f"v_add_u32 v{vtmp}, {(64 // per_row) * rowstride}, v{vtmp}"))
        out.append(I(f"buffer_load_dword v60, v{vtmp}, {sr(srdb)}, s{sreg} offen{NT({SRD_W1: '1', SRD_WQ: 'q', SRD_W2: '2', SRD_K: 'v'}[srdb])}", tag='pf'))
    return out

def lin_touch(srdb, sreg):
    step = int(OPT['pfs']); n = max(1, 4096 * GG // (64 * step))
    L = []
    for k in range(n):
        if k: L.append(I(f"s_add_u32 s{S_T+3}, s{sreg}, {k * 64 * step}"))
        L.append(I(f"buffer_load_dword v60, v61, {sr(srdb)}, s{S_T+3 if k else sreg} offen", tag='pf'))
    return L

LATE = {}
STUBS = []
V_XA = 53
def phase0():
    L = []
    A = lambda t, **k: L.append(I(t, **k))
    A("s_cmp_ge_u32 s2, 256"); A("s_cbranch_scc1 L_END")
    L += stamp(0)
    A("s_load_dwordx16 s[64:79], s[0:1], 0")
    A("s_load_dwordx8 s[80:87], s[0:1], 64")
    A("s_load_dwordx2 s[88:89], s[0:1], 96")
    t0, t1, t2, t3, ln, n16, g4 = 33, 34, 35, 36, 37, 38, 39
    A("s_getpc_b64 s[90:91]"); A("L_PC1:")
    c0 = OPT.get('c0', '6')
    if not OPT.get('nocodepf') and c0 != '0':
        A(f"v_lshlrev_b32 v58, {c0}, v0")
        if OPT.get('c0max'): A(f"v_min_u32 v58, {OPT['c0max']}, v58")
        A("global_load_dword v60, v58, s[90:91]" + NT('c'), tag='pf')
    A(f"v_lshrrev_b32 v{t0}, 6, v0")
    A(f"v_and_b32 v{ln}, 63, v0")
    A(f"v_readfirstlane_b32 s{S_W}, v{t0}")
    SL = []
    if not OPT.get('nowalk'):
        slot = [7, 9, 11, 7, 0, 3, 6, 8, 1, 2, 4, 10, 12, 12, 12, 12]; lim = [0, 0, 0, 0, 7, 15, 6, 6, 15, 15, 15, 7, 0, 0, 0, 0]
        pk = lambda t: sum(v << (4*k) for k, v in enumerate(t))
        A("s_lshr_b32 s48, s2, 3"); A("s_and_b32 s49, s48, 3"); A(f"s_lshl_b32 s50, s{S_W}, 2"); A("s_add_u32 s49, s49, s50"); A("s_lshl_b32 s49, s49, 2")
        A(f"s_mov_b32 s44, {hx(pk(slot) & 0xffffffff)}"); A(f"s_mov_b32 s45, {hx(pk(slot) >> 32)}"); A("s_lshr_b64 s[44:45], s[44:45], s49")
        A("s_and_b32 s44, s44, 15"); A("s_lshl_b32 s44, s44, 3")
        A("s_load_dwordx2 s[46:47], s[0:1], s44")
        A(f"s_mov_b32 s40, {hx(pk(lim) & 0xffffffff)}"); A(f"s_mov_b32 s41, {hx(pk(lim) >> 32)}"); A("s_lshr_b64 s[40:41], s[40:41], s49"); A("s_and_b32 s40, s40, 15")
        A("s_lshr_b32 s41, s48, 2"); A("s_lshl_b32 s41, s41, 1"); A("s_min_u32 s40, s40, s41"); A("s_lshl_b32 s40, s40, 18")
        A("s_lshl_b32 s41, s48, 20"); A(f"s_cmp_eq_u32 s{S_W}, 3"); A("s_cselect_b32 s40, s41, s40")
        A("s_and_b32 s41, s48, 15"); A("s_lshl_b32 s41, s41, 12"); A("s_min_u32 s41, s41, L_END-L_PC1")
        SL = [I("s_load_dword s98, s[46:47], s40"), I(f"s_cmp_lg_u32 s{S_W}, 0"), I("s_cbranch_scc1 L_NOCW"), I("s_load_dword s97, s[90:91], s41"), I("L_NOCW:")]
    A(f"s_lshr_b32 s94, s2, 3")
    A(f"s_and_b32 s{S_G}, s2, {7 & ~(GG-1)}"); A(f"s_and_b32 s93, s94, {GG-1}"); A(f"s_or_b32 s{S_G}, s{S_G}, s93")
    A(f"s_and_b32 s{S_R}, s2, {GG-1}"); A(f"s_mul_i32 s{S_R}, s{S_R}, {32//GG}"); A(f"s_lshr_b32 s94, s94, {LG}"); A(f"s_add_u32 s{S_R}, s{S_R}, s94")
    A(f"s_lshl_b32 s94, s94, 2"); A(f"s_add_u32 s94, s94, s{S_W}")
    A(f"s_lshl_b32 s92, s{S_R}, 16"); A(f"s_lshl_b32 s{S_RING}, s{S_W}, 14"); A(f"s_add_u32 s92, s92, s{S_RING}")
    A(f"v_lshrrev_b32 v{t0}, 2, v{ln}"); A(f"v_lshlrev_b32 v{t0}, 10, v{t0}")
    A(f"v_and_b32 v{t1}, 3, v{ln}"); A(f"v_lshl_add_u32 v{t0}, v{t1}, 4, v{t0}")
    A(f"s_and_b32 s95, s{S_G}, {1 if (GG > 1 and not OPT.get('norot')) else 0}"); A("s_lshl_b32 s93, s95, 9"); A(f"v_xor_b32 v{t0}, s93, v{t0}")
    A(f"v_and_b32 v{n16}, 15, v{ln}")
    A(f"v_lshrrev_b32 v{g4}, 4, v{ln}")
    A(f"v_lshlrev_b32 v{V_L16}, 4, v{ln}")
    tw1 = []
    if not OPT.get('nopf'):
        tw1 = touch(L, SRD_W1, 59, S_NEED, ln, 4, 3584, 512, [f"s_mul_i32 s93, s{S_G}, 448", "s_and_b32 s93, s93, 0xffffff80"])
    A("s_waitcnt lgkmcnt(0)")
    if OPT.get('fine'): L += stamp(11)
    L += SL
    srd(L, SRD_W1, 76, 512*1792*2)
    w1f = int(OPT.get('w1f', 0))
    srd(L, SRD_X, 64, 2048*512*2)
    A(f"s_mov_b32 s{S_CL}, s92")
    XL = []
    for ks in range(16):
        XL.append(I(f"buffer_load_dwordx4 {vr(64+4*ks)}, v{t0}, {sr(SRD_X)}, s{S_CL} offen offset:{(ks&7)*64}{NT('x')}", tag=f'x{ks}'))
        if ks == 7: XL.append(I(f"v_xor_b32 v{t0}, 0x200, v{t0}"))
    XL = XL[:w1f] + tw1 + XL[w1f:]; tw1 = []
    xe = int(OPT.get('xe', 6))
    L += XL[:xe]
    if OPT.get('fine'): L += stamp(12)
    srd(L, SRD_WQ, 70, 512*4096*2); srd(L, SRD_B1, 78, 1792*2)
    A(f"v_and_b32 v{t1}, 7, v{ln}"); A(f"v_lshlrev_b32 v{t2}, 1, v{g4}"); A(f"v_xor_b32 v{t1}, v{t1}, v{t2}")
    A(f"v_lshlrev_b32 v{t1}, 4, v{t1}")
    A(f"v_lshrrev_b32 v{t2}, 5, v{ln}"); A(f"v_bfe_u32 v{t3}, v{ln}, 3, 2"); A(f"v_lshl_add_u32 v{t2}, v{t2}, 3, v{t3}")
    A(f"s_mul_i32 s92, s{S_G}, 448"); A("s_and_b32 s92, s92, 0xffffff80"); A(f"s_lshl_b32 s93, s{S_W}, 7"); A("s_add_u32 s92, s92, s93")
    A(f"v_mul_u32_u24 v{V_W1}, 3584, v{t2}"); A(f"v_add3_u32 v{V_W1}, v{V_W1}, v{t1}, s92")
    if not OPT.get('nozero'):
        A(f"s_mul_i32 s93, s{S_G}, 448"); A("s_sub_u32 s93, s92, s93")
        A(f"v_add_u32 v{t3}, s93, v{t1}"); A(f"v_cmp_lt_u32 vcc, 447, v{t3}"); A(f"v_mov_b32 v{t3}, 0x10000000"); A("s_nop 0")
        A(f"v_cndmask_b32 v{V_W1}, v{V_W1}, v{t3}, vcc")
    vb1 = 57 if OPT.get("s2") else 14
    A(f"v_lshlrev_b32 v{vb1}, 3, v{g4}"); A("s_mov_b32 s95, s92")
    b1l = [I(f"buffer_load_dwordx2 {vr(40+2*ct,2)}, v{vb1}, {sr(SRD_B1)}, s95 offen offset:{32*ct}", tag='b1') for ct in range(4)]
    A(f"s_lshl_b32 s93, s{S_G}, 19")
    A("s_add_u32 s66, s66, s93"); A("s_addc_u32 s67, s67, 0")
    A("s_add_u32 s68, s68, s93"); A("s_addc_u32 s69, s69, 0")
    srd(L, SRD_K, 66, 524288); srd(L, SRD_V, 68, 524288); srd(L, SRD_WO, 72, 4096*512*2)
    srd(L, SRD_W2, 80, 1792*512*2); srd(L, SRD_B2, 82, 1024); srd(L, SRD_OUT, 84, 2048*512*2)
    srd(L, SRD_DBG, 86, 256); srd(L, SRD_WS, 88, 1 << 28); srd(L, SRD_WS2, 88, 1 << 28)
    A(f"s_mul_i32 s{S_PF}, s94, {4096*GG}"); A(f"v_and_b32 v{V_PFO}, {8*GG - 1}, v{ln}"); A(f"v_lshlrev_b32 v{V_PFO}, 7, v{V_PFO}")
    A(f"s_lshl_b32 s93, s{S_G}, 19"); A(f"s_add_u32 s{S_PF}, s{S_PF}, s93")
    twq, twq1, tw2, tkv, tcode = [], [], [], [], []
    if not OPT.get('nopf'):
        if OPT.get('q1', 'late') == 'late':
            twq = touch(L, SRD_WQ, 62, 77, ln, 8, 8192, 512, [f"s_lshl_b32 s93, s{S_G}, 10"], step=256)
            assert len(twq) == 1
            twq1 = [I(twq[0].text + " offset:128", tag='pf')]
        else:
            twq = touch(L, SRD_WQ, 62, 77, ln, 8, 8192, 512, [f"s_lshl_b32 s93, s{S_G}, 10"])
        tw2 = touch(L, SRD_W2, 14 if OPT.get('s2') else 57, 78, ln, 8, 1024, 224, [f"s_mul_i32 s93, s{S_G}, {224*1024}"])
        tk = touch(L, SRD_K, 55, 79, ln, 2, 256, int(OPT.get('kvrows', 384)), [])
        tkv = tk + [I(x.text.replace(sr(SRD_K), sr(SRD_V)), tag='pf') for x in tk if x.kind == 'vld'][-1:]
        if not OPT.get('nocodepf'):
            A("s_getpc_b64 s[90:91]"); A("L_PC2:")
            A(f"s_lshr_b32 s93, s2, 3"); A(f"s_lshl_b32 s93, s93, 2"); A(f"s_add_u32 s93, s93, s{S_W}")
            A(f"s_lshl_b32 s93, s93, 9"); A(f"v_lshlrev_b32 v58, 3, v{ln}"); A("v_add_u32 v58, s93, v58")
            A("v_min_u32 v58, CODE_LEFT, v58")
            tcode = [I("global_load_dword v60, v58, s[90:91]" + NT('c'), tag='pf')]
    A(f"s_lshl_b32 s92, s{S_G}, 10"); A(f"s_lshl_b32 s93, s{S_W}, 8"); A("s_add_u32 s92, s92, s93")
    A(f"v_lshlrev_b32 v{V_WQ}, 13, v{t2}"); A(f"v_add3_u32 v{V_WQ}, v{V_WQ}, v{t1}, s92")
    for i in range(1, 4):
        A(f"s_mov_b32 s{S_SM2+i-1}, {hx(8192*i - 1024*i)}")
    A(f"s_mul_i32 s92, s{S_G}, {224*1024}"); A(f"s_lshl_b32 s93, s{S_W}, 7"); A("s_add_u32 s92, s92, s93")
    A(f"v_lshrrev_b32 v{t2}, 3, v{ln}"); A(f"v_lshlrev_b32 v{V_W2}, 10, v{t2}"); A(f"v_add3_u32 v{V_W2}, v{V_W2}, v{t1}, s92")
    A(f"v_lshrrev_b32 v{t1}, 2, v{ln}")
    A(f"v_lshlrev_b32 v{t1}, 7, v{t1}")
    A(f"v_and_b32 v{t2}, 3, v{ln}"); A(f"v_lshl_add_u32 v{t1}, v{t2}, 3, v{t1}")
    A(f"v_add_u32 v{t1}, s{S_RING}, v{t1}")
    A(f"v_bfe_u32 v{t2}, v{ln}, 3, 2")
    for ct in range(4):
        A(f"v_xor_b32 v{t3}, {ct}, v{t2}")
        A(f"v_lshl_add_u32 v{V_WA+ct}, v{t3}, 5, v{t1}")
        A(f"v_add_u32 v{V_WA+4+ct}, 0x10000, v{V_WA+ct}")
    A(f"v_and_b32 v{t1}, 7, v{ln}"); A(f"v_lshlrev_b32 v{t1}, 1, v{t1}"); A(f"v_xor_b32 v{t1}, v{t1}, v{g4}")
    A(f"v_lshlrev_b32 v{t2}, 8, v{n16}"); A(f"v_add_u32 v{t2}, {hx(LDS_X)}, v{t2}")
    for kk in range(4):
        A(f"v_xor_b32 v{t3}, {4*kk}, v{t1}")
        A(f"v_lshl_add_u32 v{V_KA+kk}, v{t3}, 4, v{t2}")
    A(f"v_lshlrev_b32 v{t1}, 1, v{g4}"); A(f"v_xor_b32 v{t1}, v{t1}, v{n16}"); A(f"v_lshlrev_b32 v{t2}, 8, v{g4}")
    A(f"v_lshl_add_u32 v{V_DV}, v{t1}, 4, v{t2}")
    A(f"v_xor_b32 v{V_DV+1}, 0x80, v{V_DV}")
    A(f"v_add_u32 v{V_XA+1}, {hx(LDS_X)}, v{V_DV}"); A(f"v_add_u32 v{V_XA}, {hx(65536 + 8192)}, v{V_DV}")
    A(f"v_and_b32 v{t1}, 3, v{ln}"); A(f"v_lshrrev_b32 v{t2}, 2, v{ln}"); A(f"v_lshlrev_b32 v{t3}, 1, v{t1}"); A(f"v_xor_b32 v{t2}, v{t2}, v{t3}")
    A(f"v_lshlrev_b32 v{t1}, 8, v{t1}"); A(f"v_lshl_add_u32 v{t1}, v{t2}, 4, v{t1}")
    A(f"s_lshl_b32 s92, s{S_W}, 13"); A(f"s_add_u32 s92, s92, {hx(LDS_X)}")
    A(f"s_add_u32 s93, s{S_RING}, {hx(65536 + 8192)}")
    A(f"s_and_b32 s85, s{S_G}, {1 if (GG > 1 and not OPT.get('norot')) else 0}")
    A("s_cselect_b32 s85, s92, s93"); A("s_cselect_b32 s86, s93, s92")
    A(f"v_add_u32 v{t2}, s85, v{t1}"); A(f"v_add_u32 v56, s86, v{t1}")
    A(f"v_and_b32 v52, 1, v{ln}"); A(f"v_bfe_u32 v{t1}, v{ln}, 1, 1"); A(f"v_sub_u32 v52, v52, v{t1}"); A("v_lshlrev_b32 v52, 3, v52")
    A(f"s_mov_b32 s{S_QS}, {hx(f2u(128**-0.5 * math.log2(math.e)))}")
    ga = -2*0.7978845608028654*math.log2(math.e)
    A(f"s_mov_b32 s{S_GB}, {hx(f2u(ga*0.044715))}")
    A(f"v_mov_b32 v{V_GA}, {hx(f2u(ga))}")
    A(f"s_lshl_b32 s92, s{S_R}, 2"); A(f"s_add_u32 s92, s92, s{S_W}"); A("s_lshl_b32 s92, s92, 3"); A(f"s_add_u32 s92, s92, s{S_G}")
    A("s_lshl_b32 s92, s92, 10"); A(f"s_add_u32 s{S_YO}, s92, {hx(WS_Y)}")
    A(f"s_lshl_b32 s92, s{S_R}, 3"); A(f"s_add_u32 s92, s92, s{S_G}"); A("s_lshl_b32 s92, s92, 2"); A(f"s_add_u32 s92, s92, s{S_W}"); A(f"s_lshl_b32 s{S_CB}, s92, 10")
    A(f"s_mov_b32 s{S_PASS}, 0")
    A(f"s_lshl_b32 s{S_KO}, s{S_W}, 13"); A(f"s_add_u32 s{S_KO+1}, s{S_KO}, 4096")
    A(f"s_mov_b32 s{S_VO}, s{S_KO}"); A(f"s_mov_b32 s{S_VO+1}, s{S_KO+1}")
    L += stamp(1)
    F = 128
    sa, qa = 16, 24
    if OPT.get('s2'): LATE['w2'] = twq1 + tw2 + ([] if OPT.get('kvp', '1') == '1' else tkv); LATE['kv'] = tkv if OPT.get('kvp', '1') == '1' else []; tw2 = []; tkv = []
    D = [stage_dma(s) for s in range(3)]
    NE = int(OPT.get('ne', 2))
    vq = XL[xe:] + tcode + b1l + sum(D[:NE], [])
    def pop_vm(n):
        out = []
        while vq and n > 0:
            x = vq.pop(0); out.append(x)
            if x.kind in ('dma', 'vld'): n -= 1
        return with_m0_pad(out)
    for ks in range(16):
        L.append(W(vm=[f'x{ks}']))
        if OPT.get('fine') and ks == 0: L += stamp(13)
        if OPT.get('fine') and ks == 15: L += stamp(5)
        L += pop_vm(int(OPT.get('pv', 1)) + (int(OPT.get('pvx', 0)) if ks == 0 else 0))
        for i in range(4*ks, 4*ks + 4):
            A(f"v_lshlrev_b32 v{F+2*i}, 16, v{64+i}")
            A(f"v_and_b32 v{F+2*i+1}, 0xffff0000, v{64+i}")
        for i in range(4*ks, 4*ks + 4):
            k = i & 3
            x = vr(F+2*i, 2)
            if i < 4:
                A(f"v_pk_mul_f32 {vr(qa+2*k,2)}, {x}, {x}")
            else:
                src = vr(F+2*k, 2) if i < 8 else vr(sa+2*k, 2)
                A(f"v_pk_add_f32 {vr(sa+2*k,2)}, {src}, {x}")
                A(f"v_pk_fma_f32 {vr(qa+2*k,2)}, {x}, {x}, {vr(qa+2*k,2)}")
    if SL: A("s_waitcnt lgkmcnt(0)")
    L += stamp(2)
    M = []; A = lambda t, **k: M.append(I(t, **k))
    for b in (sa, qa):
        A(f"v_pk_add_f32 {vr(b,2)}, {vr(b,2)}, {vr(b+2,2)}"); A(f"v_pk_add_f32 {vr(b+4,2)}, {vr(b+4,2)}, {vr(b+6,2)}")
    for b in (sa, qa): A(f"v_pk_add_f32 {vr(b,2)}, {vr(b,2)}, {vr(b+4,2)}")
    for b in (sa, qa): A(f"v_add_f32 v{b}, v{b}, v{b+1}")
    for qp in ("[1,0,3,2]", "[2,3,0,1]"):
        A("s_nop 1")
        for b in (sa, qa): A(f"v_add_f32_dpp v{b}, v{b}, v{b} quad_perm:{qp} row_mask:0xf bank_mask:0xf")
    A(f"v_mul_f32 v{sa}, {hx(f2u(1/512))}, v{sa}")
    A(f"v_mul_f32 v{qa}, {hx(f2u(1/512))}, v{qa}")
    A(f"v_fma_f32 v{qa}, -v{sa}, v{sa}, v{qa}")
    A(f"v_max_f32 v{qa}, 0, v{qa}")
    A(f"v_cvt_pk_bf16_f32 v{sa+1}, v{sa}, v{qa}")
    A(f"v_lshlrev_b32 v{sa}, 16, v{sa+1}")
    A(f"v_and_b32 v{qa}, 0xffff0000, v{sa+1}")
    A(f"v_add_f32 v{qa}, {hx(f2u(1e-5))}, v{qa}")
    A(f"v_cvt_pk_bf16_f32 v{qa}, v{qa}, v{qa}"); A(f"v_and_b32 v{qa}, 0xffff0000, v{qa}")
    A(f"v_sqrt_f32 v{qa}, v{qa}"); A("s_nop 0")
    A(f"v_cvt_pk_bf16_f32 v{qa}, v{qa}, v{qa}"); A(f"v_and_b32 v{qa}, 0xffff0000, v{qa}")
    A(f"v_rcp_f32 v{qa}, v{qa}"); A("s_nop 0")
    A(f"v_mul_f32 v{sa}, v{sa}, v{qa}")
    A(f"v_sub_f32 v{sa}, 0, v{sa}")
    A(f"v_mov_b32 v{qa+1}, v{qa}"); A(f"v_mov_b32 v{sa+1}, v{sa}")
    def norm(ks):
        for i in range(4*ks, 4*ks+4):
            A(f"v_pk_fma_f32 {vr(F+2*i,2)}, {vr(F+2*i,2)}, {vr(qa,2)}, {vr(sa,2)}")
        for i in range(4*ks, 4*ks+4):
            A(f"v_cvt_pk_bf16_f32 v{64+i}, v{F+2*i}, v{F+2*i+1}")
    for ks in range(16): norm(ks)
    L += with_m0_pad(interleave(M, vq)) + twq + tw2 + tkv
    M = []; A = lambda t, **k: M.append(I(t, **k))
    wr = [I(f"ds_write_b128 v{t2 if ks < 8 else 56}, {vr(64+4*ks)} offset:{(ks&7)*1024}", tag='xw' if ks < 8 else 'xw2', res_w=[('slot3' if ks < 8 else 'hx', True)]) for ks in range(16)]
    nw = int(OPT.get('nw', 8))
    LATE['xw'] = wr[nw:]
    bias = [W(vm=['b1'])]
    for ct in range(4):
        for h in range(2):
            bias += [I(f"v_lshlrev_b32 v{V_B1+4*ct+2*h}, 16, v{40+2*ct+h}"), I(f"v_and_b32 v{V_B1+4*ct+2*h+1}, 0xffff0000, v{40+2*ct+h}")]
    L += wr[:6] + interleave(wr[6:nw], bias)
    L += [W(vm=['st0'])] + af_reads(0, 0)
    L += [W(lgkm=['xw', 'xw2'][:1 if nw == 8 else 2]), I("s_barrier")]
    L += [xn_read(ks, qb) for qb in range(4) for ks in range(2)]
    L += stamp(3)
    return L

def xn_read(ks, qb):
    if ks < 8: return I(f"ds_read_b128 {ar(XN(ks,qb))}, v{V_XA} offset:{qb*16384 + ks*1024}", tag=f'xr{ks>>1}', res_r=[('slot3', True)])
    return I(f"ds_read_b128 {ar(XN(ks,qb))}, v{V_XA+1} offset:{qb*8192 + (ks&7)*1024}", tag=f'xr{ks>>1}', res_r=[('hx', True)])

A_AF2, A_KF0 = 32, 64
def AF(s, k, n=4): return ar(A_AF2 + k, n) if s >= 24 else vr(V_AF + k, n)
def HF(u, qb): return 144 + 16*u + 4*qb
def af_reads(s, p):
    st = STAGES[s]; L = []
    for c in range(2):
        for j in range(st['nks']):
            for e in range(2):
                L.append(I(f"ds_read_b64_tr_b16 {AF(s, 16*p + 8*c + 4*j + 2*e, 2)}, v{V_WA + 4*(s&1) + 2*p + c} offset:{slot_off(s) + j*4096 + e*2048}",
                           tag=f"af{s}_{p}", res_r=[(f"slot{s&3}", False)]))
    return L

def kv_dma(which, half, buf, tag):
    base = (0 if which == 'K' else LDS_V) + buf*8192 + half*4096
    so = (S_KO if which == 'K' else S_VO) + half
    L = [I(f"s_add_u32 m0, s{S_RING}, {hx(base)}")]
    for i in range(4):
        off = f" offset:{i*1024}" if i else ""
        L.append(I(f"buffer_load_dwordx4 v{V_DV + (i&1)}, {sr(SRD_K if which == 'K' else SRD_V)}, s{so} offen{off}{NT('k')} lds",
                   tag=tag, res_w=[(f"{which}{buf}", True)]))
    return L

def even(G, items, lo, hi):
    nd = sum(1 for x in items if x.kind in ('dma', 'vld', 'vst'))
    k = 0; its = []
    for x in items:
        e = lo + (k * (hi - lo + 1)) // max(nd, 1)
        if x.kind in ('dma', 'vld', 'vst'): k += 1
        else: e = max(lo, e - 3)
        its.append((x, min(e, hi)))
    return G.stream(its, lo, hi)

def k0_reads(kt):
    return [I(f"ds_read_b128 {ar(A_KF0 + 16*(kt&1) + 4*kk)}, v{V_KA+kk} offset:{kt*4096}", tag='fr', res_r=[('hx', True)]) for kk in range(4)]

def y_pack(acc, ct):
    a = acc + 16*ct
    return [I(f"v_cvt_pk_bf16_f32 v{a+8+k}, v{a+2*k}, v{a+2*k+1}") for k in range(7, -1, -1)]
def y_stores(hc):
    acc = V_ACCB if hc else V_ACCA
    return [(I(f"s_add_u32 s{S_YO + 1 + (ct&1)}, s{S_YO}, {hx(((hc*4 + ct)*2 + half) << 20)}"),
             I(f"buffer_store_dwordx4 {vr(acc + 16*ct + 8 + 4*half)}, v{V_L16}, {sr(SRD_WS2)}, s{S_YO + 1 + (ct&1)} offen sc1", tag='yst'))
            for half in range(2) for ct in range(4)]

def phase1():
    m = []; per = {}; done = {}; blk = []
    FM = (26, 0)
    for s, st in enumerate(STAGES):
        for p in range(2):
            lo = len(m)
            for c in range(2):
                ct = 2*p + c
                for qb in range(4):
                    if s >= 28 and qb % 2 == 0:
                        n = len(blk); kt, q2 = n >> 2, n & 3
                        blk.append(len(m))
                        d = vr(V_S + 4*(n % 2))
                        for kk in range(4): m.append(mf(d, ar(A_KF0 + 16*(kt&1) + 4*kk), vr(V_Q + 16*q2 + 4*kk), d if kk else vr(V_NEGM + 4*q2)))
                    d = vr(st['acc'] + 16*ct + 4*qb)
                    js = list(range(st['nks']))
                    if qb & 1 and not OPT.get('nosnake'): js.reverse()
                    for j in js:
                        cc = d
                        if st['first'] and j == js[0]: cc = vr(V_B1 + 4*ct) if st['m'] == 'w1' else "0"
                        b = HF(st['ks0'] + j, qb) if st['m'] == 'w2' else XN(st['ks0'] + j, qb)
                        m.append(mf(d, AF(s, 16*p + 8*c + 4*j), ar(b), cc))
                    done[(s, ct, qb)] = len(m) - 1
            if (s, p) == FM:
                fm0 = len(m)
                for qb in range(4):
                    d = vr(V_NEGM + 4*qb)
                    for kk in range(4): m.append(mf(d, ar(A_KF0 + 4*kk), vr(V_Q + 16*qb + 4*kk), d if kk else "0"))
            per[(s, p)] = (lo, len(m) - 1)
    G = Gaps(m)
    NS = len(STAGES)
    G.head += [W(lgkm=['xr0'])]
    for n in range(1, 32):
        b = blk[n]
        ex, cv = softmax_items(n - 1, 0)
        if n < 24:
            for r in range(4): G.pin(b + 2*r, ex[r])
            G.pin(b + 3, cv[0]); G.pin(b + 7, cv[1])
        else:
            for r in range(4): G.pin(b + 1 + r, ex[r])
            G.pin(b + 5, cv[0]); G.pin(b + 5, cv[1])
    Bh, Bk = per[(23, 1)][1], per[(25, 1)][1]
    for s in range(NS):
        for p in range(2):
            ns, npp = (s, 1) if p == 0 else (s + 1, 0)
            lo, hi = per[(s, p)]
            lg = [f"af{ns}_{npp}"] if ns < NS else []
            if npp == 0 and ns < 8: lg.append(f"xr{ns}")
            if (ns, npp) == (24, 0): lg.append('hr')
            vm = [f"st{s+1}"] if (p == 0 and s + 1 < NS) else []
            rd = af_reads(ns, npp) if ns < NS else []
            if s >= 28:
                kt = 2*(s - 28) + p
                rd = (k0_reads(kt + 1) if kt < 7 else k_reads(0, 1) + v_reads(0, 0)) + rd
                lg.append('fr')
                if kt == 6: vm.append('kv')
            if hi == Bk: vm.append('k0')
            G.pin(hi, W(vm=vm or None, lgkm=lg))
            if hi in (Bh, Bk) or (s, p) == (31, 0): G.pin(hi, I("s_barrier"))
            h = None
            if s >= 28: G.stream(rd, lo, hi - 6)
            else:
                for k, x in enumerate(rd): h = G.place(x, lo + (k // 2) * 2 + 1 if (len(rd) == 8 and s != int(OPT.get('hs', 21))) else lo, hi - 1, after=h)
    G.stream(k0_reads(0), Bk + 1, fm0 - 6)
    G.pin(fm0 - 1, W(lgkm=['fr']))
    xr = [xn_read(ks, qb) for ks in range(2, 8) for qb in range(4)]
    b1 = per[(int(OPT.get('b1s', 1)), 0)][1] if LATE['xw'] else per[(0, 1)][1]
    for k, x in enumerate(LATE['xw']): G.pin(2*k, x)
    for k, x in enumerate(xr): G.pin(2*len(LATE['xw']) + k, x)
    G.pin(b1, W(lgkm=['xr3'] + (['xw2'] if LATE['xw'] else []))); G.pin(b1, I("s_barrier"))
    G.stream([xn_read(ks, qb) for ks in range(8, 16) for qb in range(4)], b1 + 1, per[(3, 1)][1] - 8, spread=True)
    G.pin(per[(6, 1)][1], I("s_barrier"))
    hs = int(OPT.get('hs', 21))
    hwpos = [per[(hs, p)][0] + k for p in range(2) for k in (5, 8, 11, 14)]
    hbar = per[(hs + 1, 0)][0] + 5
    pause = (hwpos[0] - int(OPT.get('pz', 16)), hwpos[-1] + 2) if OPT.get('pz') != '0' else (0, -1)
    slow = int(OPT.get('pzs', 7))
    jobs = []
    for t in range(int(OPT.get('ne', 2)), NS):
        s = t - 4
        rel = per[(s, 1)][0] if s >= 0 else (b1 + 1 if t == 3 else 0)
        d = stage_dma(t)
        if t == 3:
            for x in d:
                if x.res_w: x.res_w = [('slot3', True)]
        jobs.append((rel, d, per[(t - 1, 0)][1]))
        if t == 27:
            d = [I(f"s_lshl_b32 s{S_T+1}, s{S_W}, 13")] + kv_dma('K', 0, 0, 'k0') + kv_dma('K', 1, 0, 'k0')
            k = 0
            for n_, x in enumerate(d):
                if x.res_w: x.res_w = [('hx', True)]
                if 'm0' in x.wr: d[n_] = I(f"s_add_u32 m0, s{S_T+1}, {hx(LDS_X + 4096*k)}"); k += 1
            jobs.append((Bh + 1, d + [I("s_nop 0"), I(f"s_add_u32 s{S_KO}, s{S_KO}, 0x8000"), I(f"s_add_u32 s{S_KO+1}, s{S_KO+1}, 0x8000")], Bk))
    for which, buf, s in (('K', 1, 28), ('V', 0, 29)):
        d = kv_dma(which, 0, buf, 'kv') + kv_dma(which, 1, buf, 'kv')
        for x in d:
            if x.res_w: x.res_w = x.res_w + [(f'slot{s&3}', False)]
        so = S_KO if which == 'K' else S_VO
        jobs.append((per[(s, 1)][0], d + [I("s_nop 0"), I(f"s_add_u32 s{so}, s{so}, 0x8000"), I(f"s_add_u32 s{so+1}, s{so+1}, 0x8000")], per[(31, 0)][1]))
    kz = [n for n, jb in enumerate(jobs) if any(x.tag == 'k0' for x in jb[1])][0]
    if OPT.get('k0first', '1') == '1': jobs[kz], jobs[kz - 1] = jobs[kz - 1], jobs[kz]
    if OPT.get('swap34', '1') == '1':
        k3 = [n for n, jb in enumerate(jobs) if any(x.tag == 'st3' for x in jb[1])][0]
        jobs[k3], jobs[k3 + 1] = jobs[k3 + 1], jobs[k3]
    c1, c2, c3 = float(OPT.get('catch1', 3.5)), float(OPT.get('catch', 3.5)), float(OPT.get('catch3', 3))
    margin = int(OPT.get('margin', 28)); mins = float(OPT.get('mins', 2))
    T = []; t = -99.0
    for rel, d, dl in jobs:
        k = 0
        for x in d:
            if x.kind != 'dma': continue
            step = c1 if t < per[(8, 0)][0] else (c2 if t < pause[0] else c3)
            if pause[0] <= t + step <= pause[1]: step = min(slow, pause[1] + 1 - t)
            t = max(rel + (4*k if rel else 0), t + step)
            if rel >= per[(int(OPT.get('alap0', 22)), 0)][0] and x.tag not in ('st31', 'kv', 'st30'):
                nd = sum(y.kind == 'dma' for y in d)
                t = max(t, dl - int(OPT.get('alap', 40)) - 4*(nd - 1 - k))
            k += 1
            T.append([t, rel, dl - margin])
    for n in range(len(T) - 1, -1, -1):
        lim = T[n][2] if n == len(T) - 1 else min(T[n][2], T[n + 1][0] - mins)
        T[n][0] = max(T[n][1], min(T[n][0], lim))
    for n in range(1, len(T)): T[n][0] = max(T[n][0], T[n - 1][0] + mins)
    h = None; n = 0; LAG = []
    for rel, d, dl in jobs:
        for x in d:
            if x.kind == 'dma':
                pos = max(int(T[n][0]), h[0] if h else 0); n += 1
                while pos in hwpos or pos - 1 in hwpos or any(y.kind in ('dma', 'dsw') for y in G.seq(pos)): pos += 1
                h = G.place(x, pos, pos + (1 if pos < blk[0] else 8), after=h); last = h[0]
            else:
                lo_ = max(rel - 3, h[0] if h else 0, 0)
                h = G.place(x, lo_, max(lo_, int(T[n][0]) - 1 if n < len(T) else lo_ + 3), after=h)
        LAG.append(dl - last)
    print('; dma slack', LAG, file=sys.stderr)
    G.place(kv_dma('K', 0, 0, 'kv')[0], h[0] + 1, len(G) - 1, after=h)
    if 'w2' in LATE and not OPT.get('stag'): G.stream(LATE['w2'], per[(int(OPT['s2']), 0)][0], per[(int(OPT['s2']), 1)][1])
    if 'w2' in LATE and OPT.get('stag') and LATE['w2']:
        ns = int(OPT['stag'])
        G.head = [I(f"s_lshr_b32 s95, s2, {3 + LG}"), I(f"s_and_b32 s95, s95, {ns - 1}")] + G.head
        for k in range(ns):
            g = per[(int(OPT['s2']) + k * int(OPT.get('stagstep', 1)), 0)][0] + 1
            for n_, x in enumerate(LATE['w2']):
                assert x.kind == 'vld'
                sreg = re.search(r'\], (s\d+) offen', x.text).group(1)
                while G.seq(g) or G.seq(g + 1): g += 1
                G.pin(g, I(f"s_cmp_eq_u32 s95, {k}")); G.pin(g, I(f"s_cselect_b32 s{92 + (n_ & 1)}, {sreg}, 0x10000000"))
                G.pin(g + 1, I(x.text.replace(sreg + " offen", f"s{92 + (n_ & 1)} offen"), tag='pf'))
    if LATE.get('kv'): G.stream(LATE['kv'], pause[0] + int(OPT.get('kvo', 6)), hwpos[0] - 1)
    for (sb, op) in ((8, 'v_add_u32'), (24, 'v_sub_u32')):
        for win in range(2):
            for ct in range(4):
                r = V_WA + 4*win + ct
                G.place(I(f"{op} v{r}, v{r}, v52"), per[(sb - 2 + win, 1)][0], per[(sb - 1 + win, 0)][1])
    ha, hr = V_XA, V_XA + 1
    G.stream([I(f"s_lshl_b32 s{S_T}, s{S_W}, 13"), I(f"s_add_u32 s{S_T}, s{S_T}, {hx(LDS_X)}"), I(f"v_add_u32 v{ha}, s{S_T}, v{V_L16}"),
              I(f"s_and_b32 s{S_T}, s{S_G}, 1"), I(f"s_lshl_b32 s{S_T}, s{S_T}, 12"), I(f"s_add_u32 s{S_T}, s{S_T}, {hx(LDS_X)}"),
              I(f"v_add_u32 v{hr}, s{S_T}, v{V_L16}")], per[(5, 0)][0], per[(6, 1)][1])
    for hq in range(2):
        s = 15 + 8*hq
        for p in range(2):
            kk = 2*hq + p
            items = []
            for half in range(2):
                ct = 2*p + half
                for qb in range(4):
                    e = done[(s, ct, qb)] + 6
                    a = V_ACCB + 16*ct + 4*qb; q = V_Q + 16*qb + 4*kk
                    for r in range(4): items.append((I(f"v_mul_f32 v{a+r}, s{S_QS}, v{a+r}"), e))
                    items.append((I(f"v_cvt_pk_bf16_f32 v{q+2*half}, v{a}, v{a+1}"), e))
                    items.append((I(f"v_cvt_pk_bf16_f32 v{q+2*half+1}, v{a+2}, v{a+3}"), e))
            if hq == 0:
                hnd = None
                for k in range(8):
                    its = items[6*k:6*k + 6]; e = its[0][1]
                    hn = G.stream(its, e, e - 6 + 30)
                    hnd = hn if hnd is None else max(hnd, hn)
            else:
                hnd = G.stream(items, items[0][1], fm0 - (40 if p == 0 else 12))
            sw = []
            for qb in range(4):
                q = V_Q + 16*qb + 4*kk
                sw += [I(f"v_permlane32_swap_b32 v{q}, v{q+2}"), I(f"v_permlane32_swap_b32 v{q+1}, v{q+3}")]
            G.stream(sw, hnd[0] + 2, hnd[0] + 60 if hq == 0 else fm0 - 2)
    G.pin(hbar, W(lgkm=['hw'])); G.pin(hbar, I("s_barrier"))
    hrd = [I(f"ds_read_b128 {ar(HF(u,qb))}, v{hr} offset:{u*4096 + qb*1024}", tag='hr', res_r=[('hx', True)]) for u in range(7) for qb in range(4)]
    G.stream(hrd, hbar + 1, per[(23, 1)][1] - 6)
    items = []
    T = 56
    for p in range(2):
        for qb in range(4):
            for half in range(2):
                ct = 2*p + half
                e = done[(7, ct, qb)] + 6
                a = V_ACCA + 16*ct + 4*qb
                seq = []
                seq += [f"v_mul_f32 v{T+r}, v{a+r}, v{a+r}" for r in range(4)]
                seq += [f"v_fma_f32 v{T+r}, v{T+r}, s{S_GB}, v{V_GA}" for r in range(4)]
                seq += [f"v_mul_f32 v{T+r}, v{T+r}, v{a+r}" for r in range(4)]
                seq += [f"v_exp_f32 v{T+r}, v{T+r}" for r in range(4)]
                seq += [f"v_add_f32 v{T+r}, 1.0, v{T+r}" for r in range(4)]
                seq += [f"v_rcp_f32 v{T+r}, v{T+r}" for r in range(4)]
                seq += [f"v_mul_f32 v{T+r}, v{T+r}, v{a+r}" for r in range(4)]
                a0 = V_ACCA + 16*(2*p) + 4*qb
                seq += [f"v_cvt_pk_bf16_f32 v{a0+2*half}, v{T}, v{T+1}", f"v_cvt_pk_bf16_f32 v{a0+2*half+1}, v{T+2}, v{T+3}"]
                items += [(I(x), e) for x in seq]
            G.pin(hwpos[4*p + qb], I(f"ds_write_b128 v{ha}, {vr(V_ACCA + 32*p + 4*qb)} offset:{p*4096 + qb*1024}", tag='hw', res_w=[('hx', True)]))
    n1 = len(items) * 7 // 8
    h = G.stream(items[:n1], items[0][1], hwpos[0] - 1 - int(OPT.get('gl', 0)))
    G.stream(items[n1:], h[0] + 1, hwpos[7] - 1)
    it = []
    for qb in range(4):
        b = V_NEGM + 4*qb
        it += [(I(f"v_max3_f32 v{b}, v{b}, v{b+1}, v{b+2}"), fm0 + 4*qb + 11), (I(f"v_max_f32 v{b}, v{b}, v{b+3}"), fm0 + 4*qb + 11)]
    it += [x for x in rowmax_finish() if x.kind != 'nop']
    G.stream(it, fm0 + 11, blk[0] - 2)
    for ct in range(4): G.stream(y_pack(V_ACCA, ct), done[(27, ct, 3)] + 6, blk[ct + 1] + 2)
    for k, x in enumerate(y_stores(0)):
        g = blk[(7, 7, 11, 11, 15, 15, 19, 19)[k]] + (1, 5)[k & 1]
        G.pin(g - 1, x[0]); G.pin(g, x[1])
    su = attn_setup()
    G.stream(su['pre'] + [I(f"v_accvgpr_write_b32 a{A_L + 4*q + k}, 0") for q in range(4) for k in range(2)], blk[12], blk[20] - 1)
    G.stream(su['va'][:8], blk[20], blk[28] - 1)
    G.stream(su['sp'], blk[24], len(G) - 2)
    e = max(i for i in range(len(G)) if any(x.kind == 'dsr' and x.res_r == [('hx', True)] for x in G.seq(i)))
    G.stream([I(f"v_subrev_u32 v{V_KA+kk}, {hx(LDS_X)}, v{V_KA+kk}") for kk in range(4)], e, blk[28] - 1)
    global VA_LATE
    VA_LATE = su['va'][8:]
    for k in range(16): ministamp(G, per[(2*k + 1, 1)][1], 32 + k)
    out = with_m0_pad(G.flat()) + [I("s_nop 0")]
    print(f"; phase1: {len(G)} mfma, est cycles {G.cycles()} pairs {[G.cyc(per[(2*k,0)][0], per[(2*k+1,1)][1]) for k in range(16)]}", file=sys.stderr)
    return out

def P(buf, qb, ks): return V_P + 64*buf + 16*qb + 4*ks
def k_reads(kt, buf, res=True):
    return [I(f"ds_read_b128 {ar(A_KF + 16*(kt&1) + 4*kk)}, v{V_KA+kk} offset:{(kt>>1)*16384 + (kt&1)*4096 + buf*8192}",
              tag='fr', res_r=[(f"K{buf}", True)] if res else None) for kk in range(4)]
def v_reads(dt, buf):
    return [I(f"ds_read_b64_tr_b16 {ar(A_VF + 16*(dt&1) + 4*ks + 2*e, 2)}, v{V_VA+dt} offset:{ks*16384 + buf*8192 + e*4096}",
              tag='fr', res_r=[(f"V{buf}", True)]) for ks in range(4) for e in range(2)]

def attn_setup():
    t1, t2, t3 = 56, 57, 58
    pre = [f"v_bfe_u32 v{t3}, v{V_L16}, 4, 2",
           f"v_cmp_eq_u32 vcc, 1, v{t3}", f"v_mov_b32 v{t1}, 0x44444444", f"v_mov_b32 v{t2}, 0xeeeeeeee", f"v_cndmask_b32 v{V_SPI}, v{t1}, v{t2}, vcc",
           f"v_cmp_gt_u32 vcc, 2, v{t3}", f"v_mov_b32 v{t1}, 0x3f803f80", f"v_lshrrev_b32 v{t2}, 6, v{V_L16}", f"v_cndmask_b32 v59, 0, v{t1}, vcc",
           f"v_lshlrev_b32 v{t1}, 8, v{t2}", f"v_and_b32 v{t2}, 7, v{t2}", f"v_lshl_add_u32 v{t1}, v{t3}, 3, v{t1}", f"v_add_u32 v{t1}, 0x10000, v{t1}"]
    va = []
    for dt in range(8): va += [f"v_xor_b32 v{V_VA+dt}, {dt}, v{t2}", f"v_lshl_add_u32 v{V_VA+dt}, v{V_VA+dt}, 5, v{t1}"]
    sp = [f"v_accvgpr_write_b32 a{A_SPA+i}, v59" for i in range(4)] + [f"v_accvgpr_write_b32 a{A_FILL+i}, -1" for i in range(4)]
    return dict(pre=[I(x) for x in pre], va=[I(x) for x in va], sp=[I(x) for x in sp])

def rowmax_finish():
    L = []; A = lambda t, **k: L.append(I(t, **k))
    for sw in ("v_permlane32_swap_b32", "v_permlane16_swap_b32"):
        for qb in range(4): A(f"v_mov_b32 v{V_NEGM+4*qb+1}, v{V_NEGM+4*qb}")
        A("s_nop 1")
        for qb in range(4): A(f"{sw} v{V_NEGM+4*qb}, v{V_NEGM+4*qb+1}")
        for qb in range(4): A(f"v_max_f32 v{V_NEGM+4*qb}, v{V_NEGM+4*qb}, v{V_NEGM+4*qb+1}")
    for qb in range(4): A(f"v_sub_f32 v{V_NEGM+4*qb}, 0, v{V_NEGM+4*qb}")
    for qb in range(4):
        for r in range(1, 4): A(f"v_mov_b32 v{V_NEGM+4*qb+r}, v{V_NEGM+4*qb}")
    return L

NSB = 3
def softmax_items(n, pbuf):
    kt, qb = n >> 2, n & 3
    s = V_S + 4*(n % 2)
    p = P(pbuf, qb, kt >> 1) + 2*(kt & 1)
    ex = [I(f"v_exp_f32 v{s+r}, v{s+r}") for r in range(4)]
    cv = [I(f"v_cvt_pk_bf16_f32 v{p}, v{s}, v{s+1}"), I(f"v_cvt_pk_bf16_f32 v{p+1}, v{s+2}, v{s+3}")]
    return ex, cv

def smf(pbuf, qb, h):
    return I(f"v_smfmac_f32_16x16x64_bf16 {ar(A_L + 4*qb)}, {ar(A_SPA)}, {vr(P(pbuf, qb, 2*h), 8)}, v{V_SPI}")

def attn_iter(par, first_pv=False, vmtags=('kv',), d0=0):
    m = []; blk = []; sg = []
    for i in range(8):
        for qb in range(4):
            n = 4*i + qb
            blk.append(len(m))
            d = vr(V_S + 4*(n % 2))
            for kk in range(4):
                m.append(mf(d, ar(A_KF + 16*(i&1) + 4*kk), vr(V_Q + 16*qb + 4*kk), d if kk else vr(V_NEGM + 4*qb)))
            o = ar(A_O + 16*i + 4*qb)
            for ks in range(4):
                m.append(mf(o, ar(A_VF + 16*(i&1) + 4*ks), vr(P(par ^ 1, qb, ks)), "0" if (first_pv and ks == 0) else o))
        sg.append(len(m))
        m.append(smf(par ^ 1, i >> 1, i & 1))
    G = Gaps(m)
    for n in range(32):
        b = blk[n]
        ex, cv = softmax_items((n - 1) % 32, par if n else par ^ 1)
        for r in range(4): G.pin(b + 2*r, ex[r])
        G.pin(b + 3, cv[0]); G.pin(b + 7, cv[1])
    for i in range(8):
        if i < 7: rd = k_reads(i + 1, par) + v_reads(i + 1, par ^ 1)
        else: rd = k_reads(0, par ^ 1) + v_reads(0, par)
        k = 0
        for qb in range(3):
            b = blk[4*i + qb]
            for gp in (3, 5, 5, 7):
                G.pin(b + gp, rd[k]); k += 1
        if i == 6:
            G.pin(sg[i], W(vm=list(vmtags), lgkm=['fr'])); G.pin(sg[i], I("s_barrier"))
        else:
            G.pin(sg[i], W(lgkm=['fr']))
    groups = [kv_dma('K', 0, par ^ 1, 'kv'), kv_dma('K', 1, par ^ 1, 'kv'), kv_dma('V', 0, par, 'kv'), kv_dma('V', 1, par, 'kv')]
    for i in range(4):
        for qb in range(4): G.pin(blk[4*(i + d0) + qb] + 1, groups[i][1 + qb])
        if i < 3: G.pin(blk[4*(i + d0) + 3] + 4, groups[i + 1][0])
    nxt = kv_dma('K', 0, par, 'kv')[0]
    G.pin(blk[4*7 + 3] + 3, nxt)
    for k in range(4): G.pin(blk[4*7 + (k >> 1)] + 1, I(f"s_add_u32 s{S_KO+k}, s{S_KO+k}, 0x8000"))
    G.blk = blk; G.sg = sg
    return G

def y_load(half, dst=None):
    dst = V_YB if dst is None else dst
    return I(f"buffer_load_dwordx4 {vr(dst)}, v{V_L16}, {sr(SRD_WS)}, s{S_YL} offen sc1", tag=f'yl{dst}')
def y_add(half, src=None):
    src = V_YB if src is None else src
    L = []
    for k in range(4):
        a = V_YS + 8*half + 2*k
        L += [I(f"v_lshlrev_b32 v{V_YT}, 16, v{src+k}"), I(f"v_and_b32 v{src+k}, 0xffff0000, v{src+k}"),
              I(f"v_add_f32 v{a}, v{a}, v{V_YT}"), I(f"v_add_f32 v{a+1}, v{a+1}, v{src+k}")]
    return L
def y_next():
    return [I(f"s_add_u32 s{S_YI}, s{S_YI}, 1024"), I(f"s_and_b32 s{S_YI}, s{S_YI}, 0x1fff"), I(f"s_add_u32 s{S_YL}, s{S_YI}, s{S_CB2}")]
def cnt_load(): return I(f"buffer_load_dword v{V_CNT}, off, {sr(SRD_DBG)}, s{S_CL} sc1", tag='cnt')
def cnt_check(G, gap, need, name, read=True):
    if read: G.pin(gap, I(f"v_readfirstlane_b32 s{S_T+2}, v{V_CNT}"))
    G.pin(gap + (1 if read else 2), I(f"s_cmp_lt_u32 s{S_T+2}, {need}"))
    for x in (I(f"s_cbranch_scc1 L_W{name}"), I(f"L_B{name}:")): G.pin(gap + 2, x)
    STUBS.extend([I(f"L_W{name}:"), I(f"s_mov_b32 s{S_SPIN}, 0x40000"), I(f"L_W{name}_l:"), cnt_load(), I(f"s_sub_u32 s{S_SPIN}, s{S_SPIN}, 1"),
                  I("s_waitcnt vmcnt(0)"), I(f"v_readfirstlane_b32 s{S_T+2}, v{V_CNT}"), I("s_nop 3"),
                  I(f"s_cmp_ge_u32 s{S_T+2}, {need}"), I(f"s_cbranch_scc1 L_B{name}"),
                  I(f"s_cmp_gt_i32 s{S_SPIN}, 0"), I(f"s_cbranch_scc1 L_W{name}_l"), I(f"s_branch L_B{name}")])
def arrive(va, vd):
    return [I(f"v_add_u32 v{va}, s{S_RING}, v{V_L16}"), I(f"v_or_b32 v{va}, s{S_PASS}, v{va}"), I(f"v_min_u32 v{va}, 1, v{va}"), I(f"v_lshlrev_b32 v{va}, 12, v{va}"),
            I(f"v_mov_b32 v{vd}, 1")], I(f"buffer_atomic_add v{vd}, v{va}, {sr(SRD_DBG)}, s{S_CA} offen sc1", tag='atom')

def xo_voff(dst, t):
    return [I(f"v_bfe_u32 v{dst}, v{V_L16}, 4, 5"), I(f"v_lshlrev_b32 v{dst}, 10, v{dst}"),
            I(f"v_lshrrev_b32 v{t}, 9, v{V_L16}"), I(f"v_lshl_add_u32 v{dst}, v{t}, 4, v{dst}")]

def it1_extras(G):
    blk = G.blk
    t0, t1, t2 = V_YS + 8, V_YS + 9, V_YS + 10
    su = [I(x) for x in (f"s_lshl_b32 s{S_CA}, s{S_R}, 3", f"s_mov_b32 s{S_FO}, s{S_CB}",
          f"s_and_b32 s{S_CB2}, s{S_G}, 4", f"s_add_u32 s{S_CB2}, s{S_CB2}, s{S_W}", f"s_lshl_b32 s{S_CB2}, s{S_CB2}, 21",
          f"s_lshl_b32 s{S_YI}, s{S_R}, 2", f"s_and_b32 s{S_YL}, s{S_G}, 3", f"s_add_u32 s{S_YI}, s{S_YI}, s{S_YL}", f"s_lshl_b32 s{S_YI}, s{S_YI}, 13",
          f"s_add_u32 s{S_CB2}, s{S_CB2}, s{S_YI}", f"s_add_u32 s{S_CB2}, s{S_CB2}, {hx(WS_Y)}",
          f"s_add_u32 s{S_YI}, s{S_G}, 7", f"s_lshl_b32 s{S_YI}, s{S_YI}, 10", f"s_mov_b32 s{S_YL}, {hx(1 << 28)}",
          f"s_lshl_b32 s{S_T}, s{S_G}, 7", f"s_lshl_b32 s{S_T+1}, s{S_W}, 5", f"s_add_u32 s{S_T}, s{S_T}, s{S_T+1}",
          f"v_lshrrev_b32 v{t0}, 8, v{V_L16}", f"v_lshlrev_b32 v{t0}, 3, v{t0}")]
    su.append(I(f"buffer_load_dwordx2 {vr(V_YB,2)}, v{t0}, {sr(SRD_B2)}, s{S_T} offen", tag='b2'))
    su += [I(f"s_lshl_b32 s{S_XO}, s{S_R}, 16"), I(f"s_add_u32 s{S_XO}, s{S_XO}, s{S_T}"), I(f"s_add_u32 s{S_XO+1}, s{S_XO}, 32768")]
    su += xo_voff(t1, t2)
    for h in range(2): su.append(I(f"buffer_load_dwordx4 {ar(A_XT+4*h)}, v{t1}, {sr(SRD_X)}, s{S_XO+h} offen", tag='xt'))
    su += [I(x) for x in (f"v_bfe_u32 v{t0}, v{V_L16}, 4, 3", f"v_lshrrev_b32 v{t2}, 8, v{V_L16}", f"v_lshlrev_b32 v{t2}, 1, v{t2}", f"v_xor_b32 v{t0}, v{t0}, v{t2}",
           f"v_lshrrev_b32 v{t2}, 7, v{V_L16}", f"v_lshlrev_b32 v{t2}, 10, v{t2}", f"v_lshl_add_u32 v{t2}, v{t0}, 4, v{t2}",
           f"s_lshl_b32 s{S_T}, s{S_G}, 19", f"s_lshl_b32 s{S_T+1}, s{S_W}, 17", f"s_add_u32 s{S_T}, s{S_T}, s{S_T+1}",
           f"v_add_u32 v{t2}, s{S_T}, v{t2}", f"v_accvgpr_write_b32 a{A_WOB}, v{t2}", f"s_lshl_b32 s{S_WO+1}, s{S_W}, 13")]
    for ct in range(4): G.stream(y_pack(V_ACCB, ct), 0 if ct < 3 else 4, blk[ct + 1] + 2)
    for k, x in enumerate(y_stores(1)):
        g = (blk[15] + 5, G.sg[3], blk[17] + 1, blk[18] + 1, blk[19] + 1, blk[19] + 5, blk[23] + 1, blk[23] + 5)[k]
        G.pin(g - 1, x[0]); G.pin(g, x[1])
    G.stream(VA_LATE, blk[4] + 3, blk[12] - 1)
    k = [n for n, x in enumerate(su) if x.tag == 'b2'][0]
    h = G.stream(su[:k+1], blk[1], blk[8])
    G.stream(su[k+1:], blk[20], blk[25])
    h = G.stream(wo_dma(0, vwo=t0, vwob=t2), blk[25] + 1, blk[31] + 2)
    ini = [W(vm=['b2'])]
    for q in (0, 1, 3):
        for k in range(2):
            ini += [I(f"v_lshlrev_b32 v{V_YS+4*q+2*k}, 16, v{V_YB+k}"), I(f"v_and_b32 v{V_YS+4*q+2*k+1}, 0xffff0000, v{V_YB+k}")]
    G.stream(ini + [y_load(0)], blk[12], blk[22])
    G.stream([I(f"v_mov_b32 v{V_YS+8+k}, v{V_YS+k}") for k in range(4)], h[0], len(G) - 1)
    G.stream([I(f"s_min_u32 s{SRD_WS2+2}, s{SRD_WS2+2}, {hx(14 << 20)}"),
              I(f"s_mov_b32 s{S_NEED}, 0"), I(f"s_mov_b32 s{S_CL}, 0x1000")], blk[25], blk[31])

def kv_touch(srdb):
    return I(f"buffer_load_dword a{A_PF}, v{V_PFO}, {sr(srdb)}, s{S_KT} offen", tag='pf')
def fills():
    return [I(f"buffer_store_dwordx4 {ar(A_FILL)}, v{V_L16}, {sr(SRD_WS2)}, s{S_FO} offen sc1", tag='fill') for k in range(3)]

def loop_extras(ge, go):
    for G, half in ((ge, 0), (go, 1)):
        blk = G.blk
        it = [W(vm=[f'yl{V_YB}'] + (['cnt'] if half else []))] + y_add(half)
        if half == 0:
            G.stream(it, blk[16], blk[22])
            G.pin(blk[22] + 1, y_load(1))
            for k, x in enumerate(fills()[:2]): G.pin(blk[23 + 4*k] + 1, x); G.pin(blk[23 + 4*k] + 6, I(f"s_add_u32 s{S_FO}, s{S_FO}, 0x100000"))
            G.pin(blk[31] + 1, cnt_load())
            G.pin(blk[30] + 1, I(f"s_cmp_eq_u32 s{S_CNT}, 7"))
            for x in (I("s_cbranch_scc1 L_AR0"), I("L_AR0B:")): G.pin(blk[30] + 2, x)
            pre, atom = arrive(V_YT, V_CNT)
            global AR0
            AR0 = [I("L_AR0:")] + pre + [atom, I("s_branch L_AR0B")]
            STUBS.extend(AR0)
        else:
            cnt_check(G, blk[21] + 1, f"s{S_NEED}", 'A')
            G.pin(blk[25] + 2, I(f"s_mov_b32 s{S_NEED}, 8")); G.pin(blk[25] + 4, I(f"s_mov_b32 s{S_CL}, s{S_CA}"))
            G.stream(it, blk[16], blk[22])
            G.stream(y_next(), blk[16], blk[21])
            G.pin(blk[22] + 1, y_load(0))
            f0 = fills()[2]; f0.tag = 'fill2'; G.pin(blk[27] + 1, f0); G.pin(blk[27] + 6, I(f"s_add_u32 s{S_FO}, s{S_FO}, 0x100000")); G.pin(blk[24] + 2, I(f"s_add_u32 s{S_YL}, s{S_YL}, 0x100000"))
            if not OPT.get('nopf'):
                G.pin(blk[23] + 1, I(f"buffer_load_dword a{A_PF}, v{V_PFO}, {sr(SRD_WO)}, s{S_PF} offen{NT('o')}", tag='pf'))
                G.pin(blk[26] + 2, I(f"s_add_u32 s{S_PF}, s{S_PF}, {1024*GG}"))
            G.pin(blk[30] + 1, I(f"s_cmp_eq_u32 s{S_CNT}, 3"))
            for x in (I("s_cbranch_scc1 L_ARR"), I("L_ARRB:")): G.pin(blk[30] + 2, x)
            pre, atom = arrive(V_YT, V_CNT)
            global ARR
            ARR = [I("L_ARR:")] + pre + [atom]
            for k, (ds, half) in enumerate(((2, 1), (3, 0), (3, 1))):
                ARR += [I(f"s_add_u32 s{93+k}, s{S_YI}, {ds*1024}"), I(f"s_and_b32 s{93+k}, s{93+k}, 0x1fff"), I(f"s_add_u32 s{93+k}, s{93+k}, s{S_CB2}")]
                if half: ARR.append(I(f"s_add_u32 s{93+k}, s{93+k}, 0x100000"))
                ARR.append(I(f"buffer_load_dwordx4 {ar(A_Y7+4*k)}, v{V_L16}, {sr(SRD_WS)}, s{93+k} offen sc1", tag='y7'))
            if not OPT.get('nocode2'):
                ARR += [I("s_getpc_b64 s[94:95]"), I("L_PC3:"), I("s_sub_u32 s94, s94, L_PC3-L_FIN"), I("s_subb_u32 s95, s95, 0"),
                        I(f"s_lshr_b32 s93, s2, 3"), I(f"s_lshl_b32 s93, s93, 2"), I(f"s_add_u32 s93, s93, s{S_W}"), I("s_lshl_b32 s93, s93, 7"),
                        I("s_min_u32 s93, s93, L_END-L_FIN"), I(f"v_mov_b32 v{V_YT}, s93"),
                        I(f"global_load_dword a{A_PF}, v{V_YT}, s[94:95]", tag='pf')]
            ARR += [I("s_branch L_ARRB")]
            STUBS.extend(ARR)

def attn_iter0():
    m = []; blk = []
    for i in range(8):
        for qb in range(4):
            n = 4*i + qb
            blk.append(len(m))
            d = vr(V_S + 4*(n % 3) if n < 30 else V_S + 4*(n % 2))
            for kk in range(4):
                m.append(mf(d, ar(A_KF + 16*(i&1) + 4*kk), vr(V_Q + 16*qb + 4*kk), d if kk else vr(V_NEGM + 4*qb)))
    G = Gaps(m)
    G.head += [I(f"v_accvgpr_write_b32 a{A_L + k}, 0") for k in range(16)]
    tail = []
    for n in range(31):
        kt, qb = n >> 2, n & 3
        s = V_S + 4*(n % 3) if n < 30 else V_S + 4*(n % 2)
        p = P(0, qb, kt >> 1) + 2*(kt & 1)
        ex = [I(f"v_exp_f32 v{s+r}, v{s+r}") for r in range(4)]
        cv = [I(f"v_cvt_pk_bf16_f32 v{p}, v{s}, v{s+1}"), I(f"v_cvt_pk_bf16_f32 v{p+1}, v{s+2}, v{s+3}")]
        if n + 2 < 32:
            b = blk[n + 2]
            G.pin(b - 1, ex[0]); G.pin(b, ex[1]); G.pin(b + 1, ex[2]); G.pin(b + 1, cv[0]); G.pin(b + 2, ex[3]); G.pin(b + 3, cv[1])
        else:
            tail += ex + cv
    for i in range(8):
        rd = k_reads(i + 1, 0) if i < 7 else k_reads(0, 1) + v_reads(0, 0)
        lo = blk[4*i]
        for k, x in enumerate(rd): G.pin(lo + (k if i == 7 else 2*k), x)
        if i == 6:
            G.pin(blk[4*i + 3] + 3, W(vm=['kv'], lgkm=['fr'])); G.pin(blk[4*i + 3] + 3, I("s_barrier"))
        elif i < 7:
            G.pin(blk[4*i + 3] + 3, W(lgkm=['fr']))
    G.pin(3, kv_dma('K', 0, 0, 'kv')[0]); G.pin(5, I("s_nop 0"))
    out = G.flat() + [I("s_nop 3")] + tail + [W(lgkm=['fr'])]
    print(f"; iter0 est cycles {G.cycles()}", file=sys.stderr)
    return out

V_RL, V_NT, V_XW, V_WO, V_WOB, V_OA = 16, 20, 28, 29, 30, 32
V_STG = 128
def V_R(p): return [160, 64, 96, 224][p] if p < 4 else (64 if p & 1 else 160)
V_OACC = 192
def V_SP(st): return 96 + 8*st if st < 4 else 224 + 8*(st - 4)
V_XT, V_MX, V_XR = 4, 24, 27
S_WO, S_SO = 76, 93
PER = [(0, 0), (1, 0), (0, 1), (1, 1)] + [(c, h) for c in range(2, 8) for h in range(2)]
SLOTS = dict(A=(2, 0, 8192, 'hx'), B=(1, 0, 16384, 'V0'), C=(1, 8192, 16384, 'V1'), D=(0, 0, 16384, 'K0'), E=(0, 8192, 16384, 'K1'))
def oslot(p): return SLOTS["ADBADBAECDBAECDB"[p]]

def wo_dma(p, vwo=None, vwob=None):
    vwo = V_WO if vwo is None else vwo; vwob = V_WOB if vwob is None else vwob
    ci, half = PER[p]
    win, base, ps, res = oslot(p)
    L = [I(f"s_add_u32 s{S_WO}, s{S_G}, {1 + ci}"), I(f"s_and_b32 s{S_WO}, s{S_WO}, 7"), I(f"s_lshl_b32 s{S_WO}, s{S_WO}, 7")]
    if half: L.append(I(f"s_add_u32 s{S_WO}, s{S_WO}, {hx(64*1024)}"))
    L.append(I(f"v_add_u32 v{vwo}, s{S_WO}, v{vwob}"))
    for h in range(2):
        L.append(I(f"s_add_u32 m0, s{S_RING if ps == 16384 else S_WO+1}, {hx(win*65536 + base + h*4096)}"))
        if h: L.append(I(f"v_add_u32 v{vwo}, {hx(32*1024)}, v{vwo}"))
        for i in range(4): L.append(dma_w(SRD_WO, vwo, S_SM2, i, f"wo{p}", [(res, True)]))
    return L

OFREG = [list(range(0, 64, 4)) + list(range(128, 176, 4)) + list(range(240, 256, 4)),
         list(range(64, 128, 4)) + list(range(176, 240, 4))]
def OF(half, j, qb): return OFREG[half][8*qb + j]
def oaf_reads(p):
    win, base, ps, res = oslot(p)
    return [I(f"ds_read_b64_tr_b16 {vr(V_R(p) + 4*j + 2*e, 2)}, v{V_OA+win} offset:{base + (j>>1)*ps + (j&1)*4096 + e*2048}",
              tag=f"oaf{p}", res_r=[(res, True)]) for j in range(8) for e in range(2)]
def of_reads(half, qb):
    return [I(f"ds_read_b128 {ar(OF(half, j, qb))}, v{V_XR if half else V_L16} offset:{(j>>1)*16384 + 8192 + (j&1)*4096 + qb*1024}",
              tag=f"of{half}_{qb}", res_r=[('V1' if half else 'K1', True)]) for j in range(8)]
def sp_load(st):
    L = []
    for half in range(2):
        L.append(I(f"s_add_u32 s{S_YI+half}, s{S_CB}, {hx((2*st + half) << 20)}"))
        L.append(I(f"buffer_load_dwordx4 {vr(V_SP(st) + 4*half)}, v{V_L16}, {sr(SRD_WS)}, s{S_YI+half} offen sc1", tag=f"sp{st}"))
    return L
def sp_max(st):
    b = V_SP(st); m = V_MX
    return [I(f"v_max3_u32 v{m}, v{b}, v{b+1}, v{b+2}"), I(f"v_max3_u32 v{m}, v{m}, v{b+3}, v{b+4}"),
            I(f"v_max3_u32 v{m}, v{m}, v{b+5}, v{b+6}"), I(f"v_max_u32 v{m}, v{m}, v{b+7}")]

def finale():
    m = []; blk = []; sg = {}; per = []
    for i in range(8):
        for qb in range(4):
            blk.append(len(m))
            o = ar(A_O + 16*i + 4*qb)
            for ks in (range(4) if (qb & 1 == 0 or OPT.get('nosnake')) else range(3, -1, -1)): m.append(mf(o, ar(A_VF + 16*(i&1) + 4*ks), vr(P(1, qb, ks)), o))
            if i == 0:
                for h in range(2):
                    sg[(qb, h)] = len(m); m.append(smf(1, qb, h))
    blk.append(len(m))
    for p, (ci, half) in enumerate(PER):
        lo = len(m)
        for qb in range(4):
            d = vr(V_OACC + 16*(ci & 1) + 4*qb)
            js = list(range(8))
            if qb & 1 and not OPT.get('nosnake'): js.reverse()
            for j in js:
                m.append(mf(d, vr(V_R(p) + 4*j), ar(OF(half, j, qb)), "0" if (j == js[0] and half == 0) else d))
        per.append((lo, len(m) - 1))
    G = Gaps(m)
    cnt_check(G, per[2][1] - 6, 16, 'B', read=False)
    Xa = blk[4] - 1
    X0 = blk[4*int(OPT.get('x0', 3))] - 1
    Xb = blk[4*int(OPT.get('xb', 5))] - 1
    X1 = blk[28] - 1
    p0, p2 = per[0][0], per[2][0]
    Xc = p0 + 23
    X2 = per[1][0] + int(OPT.get('x2', 17))
    quiet = set()
    def paced(items, lo, step, h=None):
        pos = lo - step
        for x in items:
            if x.kind == 'dma':
                pos = max(pos + step, h[0] if h else 0)
                while pos in quiet or any(y.is_mem() and y.kind != 'dsr' for y in G.seq(pos)) or (h and h[0] == pos and h[1] == 2): pos += 1
                h = G.pin(pos, x)
            else:
                st = max(lo - 3, h[0] if h else 0, 0)
                h = G.place(x, st, st + 2, after=h)
        return h
    w1pos = [X1 - 4 - 4*k for k in range(7, -1, -1)]
    w2pos = [X2 - 4 - int(OPT.get('w2s', 5))*k for k in range(7, -1, -1)]
    for g in w1pos + w2pos: quiet |= {g, g + 1}
    assert w1pos[-1] > Xb
    ex, cv = softmax_items(31, 1)
    for r in range(4): G.pin(r, ex[r])
    G.pin(4, cv[0]); G.pin(4, cv[1])
    def ds_stream(rd, lo, hi, per_gap=2):
        g = lo
        for x in rd:
            while g in quiet or sum(y.kind == 'dsr' for y in G.seq(g)) >= per_gap or (x.is_b128r() and any(y.is_b128r() for y in G.seq(g))): g += 1
            assert g <= hi, (x.text, g, hi)
            G.pin(g, x)
    for i in range(7):
        ds_stream(v_reads(i + 1, 1), blk[4*i] + (1 if i == 0 else 0), blk[4*i + 4] - 4, 1 if i == 0 else 2)
        if blk[4*i + 4] - 1 not in (Xa, X0, Xb, X1): G.pin(blk[4*i + 4] - 1, W(lgkm=['fr']))
    G.head.append(I(f"v_accvgpr_read_b32 v{V_WOB}, a{A_WOB}"))
    su = [I(x) for x in (f"v_lshrrev_b32 v26, 6, v{V_L16}", "v_lshlrev_b32 v26, 7, v26", f"v_bfe_u32 v27, v{V_L16}, 4, 2", "v_lshl_add_u32 v26, v27, 3, v26",
           "v_lshlrev_b32 v31, 14, v27", f"v_bfe_u32 v27, v{V_L16}, 7, 2", f"v_xor_b32 v27, s{S_W}, v27", f"v_lshl_add_u32 v{V_OA}, v27, 5, v26",
           f"v_add_u32 v{V_OA+2}, 0x20000, v{V_OA}")]
    for k, x in enumerate(su): G.pin(5 + k // 2, x)
    ds_stream(oaf_reads(0), 10, Xa - 4)
    d1 = wo_dma(1)
    for x in d1:
        if x.res_w: x.res_w = [('K0x', True)]
    h = paced(d1 + wo_dma(2), 2, 2)
    G.pin(Xa, W(lgkm=['fr', 'oaf0'])); G.pin(Xa, I("s_barrier"))
    h = paced(wo_dma(3), max(h[0], Xa) + 2, 2, h)
    e0 = sg[(3, 1)] + 5
    su = [I(x) for x in (f"v_add_u32 v{V_XW}, s{S_RING}, v{V_L16}", f"v_add_u32 v{V_OA+1}, 0x10000, v{V_OA}", f"v_add_u32 v{V_XR}, 0x10000, v{V_L16}",
           f"s_lshl_b32 s{S_SO+1}, s{S_R}, 5", f"s_add_u32 s{S_SO+1}, s{S_SO+1}, s{S_W}", f"s_lshl_b32 s{S_SO+1}, s{S_SO+1}, 10")]
    G.stream(su, 18, e0)
    MK = 8192 + 4096 + 3072
    for x in (I("s_cbranch_vccnz L_MARK"), I("L_MARKED:")): G.pin(X0 - 1, x)
    STUBS.extend([I("L_MARK:"), I(f"v_mov_b32 v35, -1"), I(f"ds_write_b32 v{V_XW}, v35 offset:{MK}"), I("s_waitcnt lgkmcnt(0)"), I("s_branch L_MARKED")])
    G.pin(X0, W(vm=['wo2'], lgkm=['fr'])); G.pin(X0, I("s_barrier"))
    G.pin(X0, I(f"ds_read_b32 v35, v31 offset:{MK}", tag='mk', res_r=[('MK', True)]))
    FB = X0 + 6
    G.pin(FB - 2, W(lgkm=['mk'])); G.pin(FB - 2, I(f"v_cmp_eq_u32 vcc, -1, v35"))
    for x in (I("s_cbranch_vccnz L_FALLBACK0"), I("L_NOFB:")): G.pin(FB, x)
    STUBS.extend([I("L_FALLBACK0:"), I(f"s_cmp_lg_u32 s{S_PASS}, 0"), I("s_cbranch_scc1 L_NOFB"), I("s_branch L_FALLBACK")])
    o1 = oaf_reads(1)
    for x in o1: x.res_r = x.res_r + [('K0x', True)]
    ds_stream(o1 + oaf_reads(2), FB, Xb - 3)
    G.pin(Xb, W(lgkm=['fr', 'oaf2'])); G.pin(Xb, I("s_barrier"))
    G.pin(X1, W(vm=['wo3'], lgkm=['fr', 'ow0'])); G.pin(X1, I("s_barrier"))
    for qb in range(3): G.pin(p0 + 8*qb - 1, W(lgkm=[f'of0_{qb}']))
    ds_stream(of_reads(0, 0) + of_reads(0, 1) + of_reads(0, 2) + of_reads(0, 3), X1 + 1, Xc - 3)
    ds_stream(oaf_reads(3), p0, Xc - 2)
    G.pin(Xc, W(lgkm=['of0_3', 'oaf3'])); G.pin(Xc, I("s_barrier"))
    G.pin(X2, W(lgkm=['ow1'])); G.pin(X2, I("s_barrier"))
    for qb in range(4): G.pin(p2 + 8*qb - 1, W(lgkm=[f'of1_{qb}']))
    ds_stream(of_reads(1, 0) + of_reads(1, 1) + of_reads(1, 2) + of_reads(1, 3), X2 + 1, p2 + 20)
    skip = set(int(x) for x in OPT.get('skip', '99').split(',') if x)
    for p in range(2, 15):
        lo, hi = per[p]
        q = p + 1
        lg = [f"oaf{q}"] if p > 2 else ['of1_3']
        if q < 15 and q not in skip:
            G.pin(hi, W(vm=[f"wo{q+2 if q+1 in skip else q+1}"], lgkm=lg)); G.pin(hi, I("s_barrier"))
        else:
            G.pin(hi, W(lgkm=lg))
        if p > 2:
            for k, x in enumerate(oaf_reads(q)): G.pin(lo + 1 + 3*(k // 2), x)
    h = paced(wo_dma(4) + wo_dma(5), Xb + 1, 4, h)
    h = paced(wo_dma(6) + wo_dma(7), max(h[0] + 4, Xc + 1), 4, h)
    pace = int(OPT.get('pace', 40))
    for k in range(8):
        q = 8 + k
        rel = q - 5
        while rel in skip: rel += 1
        h = paced(wo_dma(q), max(per[rel][0], per[3][0] + pace*k, h[0] + 2), pace // 8, h)
    items = []
    for qb in range(4):
        items += [I(f"v_accvgpr_read_b32 v{V_RL+qb}, a{A_L+4*qb}"), I(f"v_accvgpr_read_b32 v{V_NT}, a{A_L+4*qb+1}"),
                  I(f"v_add_f32 v{V_RL+qb}, v{V_RL+qb}, v{V_NT}")]
    items += [I(f"v_add_f32 v{V_NT}, v{V_RL}, v{V_RL+1}"), I(f"v_add_f32 v{V_NT+1}, v{V_RL+2}, v{V_RL+3}"), I(f"v_add_f32 v{V_NT}, v{V_NT}, v{V_NT+1}"),
              I(f"v_cmp_ngt_f32 vcc, {hx(f2u(2.0**30))}, v{V_NT}")]
    items += [I(f"v_rcp_f32 v{V_RL+qb}, v{V_RL+qb}") for qb in range(4)]
    h = G.stream(items, e0, e0 + 12)
    assert h[0] < X0 - 2
    def norm(i, qb):
        e = blk[4*i + qb] + 3 + 6
        st = V_STG + 16*((i >> 1) & 1) + 4*qb
        o = A_O + 16*i + 4*qb; T = V_NT
        seq = [I(f"v_accvgpr_read_b32 v{T+r}, a{o+r}") for r in range(4)]
        seq += [I(f"v_mul_f32 v{T+r}, v{T+r}, v{V_RL+qb}") for r in range(4)]
        seq += [I(f"v_cvt_pk_bf16_f32 v{st+2*(i&1)}, v{T}, v{T+1}"), I(f"v_cvt_pk_bf16_f32 v{st+2*(i&1)+1}, v{T+2}, v{T+3}")]
        return [(x, e) for x in seq]
    for hf, wpos in ((0, w1pos), (1, w2pos)):
        for k in range(8):
            u, qb = 2*hf + (k >> 2), k & 3
            G.pin(wpos[k], I(f"ds_write_b128 v{V_XW}, {vr(V_STG + 16*(u&1) + 4*qb)} offset:{8192 + (u&1)*4096 + qb*1024}", tag=f'ow{hf}',
                             res_w=[('V1' if hf else 'K1', True)] + ([('MK', True)] if (hf, k) == (0, 7) else [])))
    G.pin(X1, I(f"v_add_u32 v{V_XW}, 0x10000, v{V_XW}"))
    for hf, wpos in ((0, w1pos), (1, w2pos)):
        lo = h[0] + 1; span = wpos[7] - lo
        for k in range(8):
            u, qb = 2*hf + (k >> 2), k & 3
            its = norm(2*u, qb) + norm(2*u + 1, qb)
            if hf: its = [(x, max(e, w1pos[k] + 2)) for x, e in its]
            hi = min(wpos[k] - 1, max(lo + (span * (k + 1)) // 8, its[-1][1] + 4))
            h = G.stream(its, h[0] + 1, max(hi, h[0] + 3))
            assert h[0] < wpos[k]
    G.stream([I(f"v_accvgpr_read_b32 v{V_XT+k}, a{A_XT+k}") for k in range(8)] + [I(f"v_accvgpr_read_b32 v{(36, 16, 0)[k >> 2] + (k & 3)}, a{A_Y7+k}") for k in range(12)], X2 - 3, X2 + 22)
    for ci in range(7):
        pl = PER.index((ci, 1))
        a = V_OACC + 16*(ci & 1)
        e0 = per[pl][0] + 20
        items = [(I(x), e0) for x in (f"s_add_u32 s{S_SO}, s{S_G}, {1 + ci}", f"s_and_b32 s{S_SO}, s{S_SO}, 7", f"s_lshl_b32 s{S_SO}, s{S_SO}, 12",
                 f"s_add_u32 s{S_SO}, s{S_SO}, s{S_SO+1}", f"s_add_u32 s{S_SO+2}, s{S_SO}, 0x100000", f"s_add_u32 s{S_SO+1}, s{S_SO+1}, 0x200000")]
        st = V_STG + 8*(ci & 1)
        for half in range(2):
            e = per[pl][0] + 16*half + 15 + 6
            for k in range(4*half, 4*half + 4): items.append((I(f"v_cvt_pk_bf16_f32 v{st+k}, v{a+2*k}, v{a+2*k+1}"), e))
            for k in range(4*half, 4*half + 4): items.append((I(f"v_min_u32 v{st+k}, -2, v{st+k}"), e))
            items.append((I(f"buffer_store_dwordx4 {vr(st+4*half)}, v{V_L16}, {sr(SRD_WS)}, s{S_SO + 2*half} offen sc1", tag='sst'), max(e, per[2][1] + 1)))
        G.stream(items, e0, per[pl + 1][0] + 18)
    it = y_add(0) + y_add(1, 36) + y_add(0, 16) + y_add(1, 0)
    for q0 in range(0, 16, 4):
        T = V_NT
        it += [I(f"v_mul_f32 v{T+r}, {hx(f2u(-math.log2(math.e)))}, v{V_YS+q0+r}") for r in range(4)]
        it += [I(f"v_exp_f32 v{T+r}, v{T+r}") for r in range(4)]
        it += [I(f"v_add_f32 v{T+r}, 1.0, v{T+r}") for r in range(4)]
        it += [I(f"v_rcp_f32 v{T+r}, v{T+r}") for r in range(4)]
        it += [I(f"v_mul_f32 v{V_YS+q0+r}, v{V_YS+q0+r}, v{T+r}") for r in range(4)]
    V_XF = 144
    for h in range(2): it += [I(f"v_permlane16_swap_b32 v{V_XT+4*h}, v{V_XT+4*h+2}"), I(f"v_permlane16_swap_b32 v{V_XT+4*h+1}, v{V_XT+4*h+3}")]
    for k in range(8): it += [I(f"v_lshlrev_b32 v{V_XF+2*k}, 16, v{V_XT+k}"), I(f"v_and_b32 v{V_XF+2*k+1}, 0xffff0000, v{V_XT+k}")]
    it += xo_voff(3, 2)
    ld = []
    for st in range(5): ld += sp_load(st)
    even(G, ld, per[13][0], per[14][1])
    G.stream(sp_load(5), per[15][0] + 8, per[15][1])
    G.stream(it, per[4][0], per[15][1])
    if OPT['stamps']:
        for x in stamp(9): G.pin(p0 - 1, x, post=True)
    for k in range(16): ministamp(G, per[k][1], 48 + k)
    print(f"; finale est cycles {G.cycles()} (pv part {G.cyc(0, p0-1)}, periods {[G.cyc(a, b) for a, b in per]})", file=sys.stderr)
    L = with_m0_pad(G.flat()); A = lambda t, **k: L.append(I(t, **k))
    L += sp_load(6)
    L += stamp(10)
    A(f"s_mov_b32 s{S_SPIN}, 0x40000")
    acc = V_OACC + 16; U = 160
    for st in range(7):
        L.append(W(vm=[f"sp{st}"]))
        A(f"L_CHK{st}:")
        L += sp_max(st)
        A(f"v_cmp_eq_u32 vcc, -1, v{V_MX}")
        for k in range(4):
            r = V_SP(st) + k
            A(f"v_lshlrev_b32 v{U+2*k}, 16, v{r}"); A(f"v_and_b32 v{U+1+2*k}, 0xffff0000, v{r}")
        A(f"s_cbranch_vccnz L_RETRY{st}")
        A(f"L_GO{st}:")
        for k in range(4, 8):
            r = V_SP(st) + k
            A(f"v_lshlrev_b32 v{U+2*k}, 16, v{r}"); A(f"v_and_b32 v{U+1+2*k}, 0xffff0000, v{r}")
        for k in range(8): A(f"v_pk_add_f32 {vr(acc+2*k,2)}, {vr(acc+2*k,2)}, {vr(U+2*k,2)}")
        STUBS.extend([I(f"L_RETRY{st}:"), I(f"s_sub_u32 s{S_SPIN}, s{S_SPIN}, 1"), I(f"s_cmp_le_i32 s{S_SPIN}, 0"), I(f"s_cbranch_scc1 L_GO{st}")])
        for q in range(st, 7): STUBS.extend(sp_load(q))
        STUBS.extend([I("s_waitcnt vmcnt(0)"), I(f"s_branch L_CHK{st}")])
    for k in range(8): A(f"v_pk_fma_f32 {vr(acc+2*k,2)}, {vr(acc+2*k,2)}, {vr(V_YS+2*k,2)}, {vr(V_XF+2*k,2)}")
    for k in range(8): A(f"v_cvt_pk_bf16_f32 v{U+k}, v{acc+2*k}, v{acc+2*k+1}")
    for h in range(2):
        A(f"v_permlane16_swap_b32 v{U+4*h}, v{U+4*h+2}"); A(f"v_permlane16_swap_b32 v{U+4*h+1}, v{U+4*h+3}")
    for h in range(2): A(f"buffer_store_dwordx4 {vr(U+4*h)}, v3, {sr(SRD_OUT)}, s{S_XO+h} offen {OPT.get('outf', '').replace('+', ' ')}", tag='out')
    return L

def fallback():
    L = []; A = lambda t, **k: L.append(I(t, **k))
    A("L_FALLBACK:")
    A("s_waitcnt vmcnt(0) lgkmcnt(0)"); A("s_nop 7")
    A(f"s_mov_b32 s{S_PASS}, 1")
    A(f"s_mov_b32 s{SRD_WS2+2}, 0")
    A(f"s_lshl_b32 s{S_KO}, s{S_W}, 13"); A(f"s_add_u32 s{S_KO+1}, s{S_KO}, 4096")
    for qb in range(4): A(f"v_mov_b32 v{V_NEGM+4*qb}, 0xff800000")
    A(f"s_mov_b32 s{S_CNT}, 17")
    A("L_FB_LOOP:")
    A("s_waitcnt vmcnt(0) lgkmcnt(0)"); A("s_barrier")
    A(f"s_cmp_lg_u32 s{S_CNT}, 1"); A("s_cbranch_scc1 L_FB_NR")
    A(f"s_lshl_b32 s{S_KO}, s{S_W}, 13"); A(f"s_add_u32 s{S_KO+1}, s{S_KO}, 4096")
    A("L_FB_NR:")
    L += with_m0_pad(kv_dma('K', 0, 0, 'kv') + kv_dma('K', 1, 0, 'kv'))
    A("s_waitcnt vmcnt(0)"); A("s_barrier")
    for kt in range(8):
        L += k_reads(kt, 0); A("s_waitcnt lgkmcnt(0)")
        for qb in range(4):
            d = vr(V_P + 4*qb)
            for kk in range(4): L.append(mf(d, ar(A_KF + 16*(kt&1) + 4*kk), vr(V_Q + 16*qb + 4*kk), d if kk else "0"))
        A("s_nop 7")
        for qb in range(4):
            b = V_NEGM + 4*qb; d = V_P + 4*qb
            A(f"v_max3_f32 v{b}, v{b}, v{d}, v{d+1}"); A(f"v_max3_f32 v{b}, v{b}, v{d+2}, v{d+3}")
    A(f"s_add_u32 s{S_KO}, s{S_KO}, 0x8000"); A(f"s_add_u32 s{S_KO+1}, s{S_KO+1}, 0x8000")
    A(f"s_sub_u32 s{S_CNT}, s{S_CNT}, 1"); A(f"s_cmp_lg_u32 s{S_CNT}, 0"); A("s_cbranch_scc1 L_FB_LOOP")
    L += rowmax_finish()
    A(f"s_lshl_b32 s{S_VO}, s{S_W}, 13"); A(f"s_add_u32 s{S_VO+1}, s{S_VO}, 4096")
    L += with_m0_pad(kv_dma('K', 0, 1, 'kv') + kv_dma('K', 1, 1, 'kv') + kv_dma('V', 0, 0, 'kv') + kv_dma('V', 1, 0, 'kv'))
    L += k_reads(0, 0); A("s_waitcnt lgkmcnt(0)")
    for k in range(4): A(f"s_add_u32 s{S_KO+k}, s{S_KO+k}, 0x8000")
    L += attn_setup()['pre']
    L += attn_iter0()
    A("s_branch L_IT1")
    return L

def build():
    d = OPT['dump']
    p0 = phase0(); p1 = phase1()
    su = stamp(4) + (stamp(5) if not OPT.get('fine') else []) + stamp(6)
    it0 = []
    g1 = attn_iter(1, first_pv=True); ge, go = attn_iter(0, vmtags=('kv', 'yst')), attn_iter(1, vmtags=('kv', 'fill'))
    go.pin(len(go) - 4, I(f"s_sub_u32 s{S_CNT}, s{S_CNT}, 1")); go.pin(len(go) - 4, I(f"s_cmp_lg_u32 s{S_CNT}, 0"))
    it1_extras(g1); loop_extras(ge, go)
    if OPT.get('trip'):
        for G_, base in ((ge, 32), (go, 48)):
            for x in (I(f"s_memtime s[{S_STAMP}:{S_STAMP+1}]"), I(f"s_add_u32 s98, s{S_CNT}, {base}"), I("s_waitcnt lgkmcnt(0)"), I(f"v_mov_b32 v{V_YT}, s{S_STAMP}"), I(f"v_lshrrev_b32 v{V_CNT if G_ is go else V_YT}, 0, v{V_YT}")): pass
            for x in (I(f"s_memtime s[{S_STAMP}:{S_STAMP+1}]"), I(f"s_mov_b32 s101, m0"), I(f"s_add_u32 m0, s{S_CNT}, {base}"), I("s_waitcnt lgkmcnt(0)"), I(f"v_writelane_b32 v63, s{S_STAMP}, m0"), I("s_nop 1"), I("s_mov_b32 m0, s101")): G_.pin(G_.sg[6], x, post=True)
    print(f"; attn iter est cycles {ge.cycles()} {go.cycles()} (it1 {g1.cycles()})", file=sys.stderr)
    if OPT.get('idle'): su = su + [I("s_nop 15")] * (int(OPT['idle']) // 64)
    if OPT.get('idlel'):
        for k in range(int(OPT['idlel'])): ge.pin(ge.sg[k], I("s_nop 15"), post=True); go.pin(go.sg[k], I("s_nop 15"), post=True)
    it1 = [I("L_IT1:")] + with_m0_pad(g1.flat()) + [I(f"s_mov_b32 s{S_CNT}, 7")] + stamp(7)
    loop = [I(".p2align 6"), I("L_LOOP:")] + ge.flat() + go.flat() + [I("s_cbranch_scc1 L_LOOP")]
    last = [I("L_FIN:")] + stamp(8) + finale()
    if OPT['stamps']: last += [I(f"v_writelane_b32 v63, s{S_SPIN}, 15")]
    last += stamp(11 if not OPT.get('fine') else 14, True)
    op = []
    fb = fallback()
    end = [I("L_END:"), I("s_endpgm")]
    if d == 'q': body = p0 + p1 + dump_regs([vr(V_Q + 4*i) for i in range(16)] + [ar(144 + 4*i) for i in range(28)]) + end; trace = body
    else:
        body = p0 + p1 + su + it0 + it1 + loop + last + end + STUBS + fb
        ka = [i for i, x in enumerate(loop) if x.text == "L_ARRB:"][0]
        k0 = [i for i, x in enumerate(loop) if x.text == "L_AR0B:"][0]
        trace = p0 + p1 + su + it0 + it1 + loop[:k0] + AR0 + loop[k0:] + loop + loop[:ka] + ARR + loop[ka:] + loop*2 + last
        k = [i for i, x in enumerate(last) if x.text == "s_cbranch_vccnz L_FALLBACK0"][0]
        trace2 = p0 + p1 + su + it0 + it1 + loop*2 + last[:k+1] + fb + it0 + it1 + loop + last
        resolve_waits(trace2)
    resolve_waits(trace)
    e = check(trace, verbose=False)
    if d is None: e += check(trace2, verbose=False)
    seen = set()
    e = [x for x in e if 's_memtime' not in x]
    for x in e[:6]: print("CHECK:", x, file=sys.stderr)
    if e: print("FAILED CHECK", len(e), file=sys.stderr); sys.exit(1)
    def in_gemm(x): return id(x) in gset
    gset = set(id(x) for x in p1 + op + last)
    if OPT.get('drop'): body = [x for x in body if not (id(x) in set(id(y) for y in loop) and x.tag in OPT['drop'].split(','))]
    if OPT.get('nosst'): body = [x for x in body if x.tag not in ('sst', 'fill')]
    if OPT.get('noy'): body = [x for x in body if x.tag not in ('y0', 'y1')]
    if OPT.get('nodma'): body = [x for x in body if not (in_gemm(x) and x.kind == 'dma')]
    if OPT.get('novalu'): body = [x for x in body if not (in_gemm(x) and x.kind in ('valu', 'trans', 'perm') and any(k in x.text for k in ('f32', 'accvgpr', 'permlane')))]
    if OPT.get('nomfma'): body = [x for x in body if not (in_gemm(x) and x.kind == 'mfma')]
    if OPT.get('nods'): body = [x for x in body if not (in_gemm(x) and x.kind == 'dsr' and 'b32' not in x.text)]
    return body

def kdesc(name, vg, acc):
    return f""".amdhsa_kernel {name}
  .amdhsa_next_free_vgpr {vg}
  .amdhsa_next_free_sgpr 102
  .amdhsa_accum_offset {acc}
  .amdhsa_group_segment_fixed_size 0
  .amdhsa_kernarg_size 104
  .amdhsa_user_sgpr_count 2
  .amdhsa_user_sgpr_kernarg_segment_ptr 1
  .amdhsa_system_sgpr_workgroup_id_x 1
  .amdhsa_float_denorm_mode_32 3
.end_amdhsa_kernel"""

body = build()
K1 = NAME + "_kernel"
out = [f"; @launch grid=(256,1,1) block=(256,1,1) lds=163840",
       '.amdgcn_target "amdgcn-amd-amdhsa--gfx950"', ".text"]
out += [f".globl {K1}", ".p2align 12" if not OPT.get('noalign') else ".p2align 8", ".p2align 8", f".type {K1},@function", f"{K1}:"] + [x.emit() for x in body]
out += ['.section .rodata,"a"', ".p2align 6", kdesc(K1, 512, 256)]
print("\n".join(out).replace("CODE_LEFT", "L_END-L_PC2"))
```

```python
import re

REG_RE = re.compile(r'(?<![\w.])(-?)(?:abs\()?([vas])(?:(\d+)|\[(\d+):(\d+)\])\)?(?![\w])')
TRANS = ('v_exp_f32', 'v_rcp_f32', 'v_rsq_f32', 'v_sqrt_f32', 'v_log_f32')

def regs_of(op):
    op = op.strip()
    out = []
    for m in REG_RE.finditer(op):
        f = m.group(2)
        if m.group(3) is not None:
            out.append(f + m.group(3))
        else:
            out += [f + str(i) for i in range(int(m.group(4)), int(m.group(5)) + 1)]
    for sp in ('m0', 'vcc', 'exec'):
        if re.search(r'(?<![\w])' + sp + r'(?![\w])', op):
            out.append(sp)
    return out

def split_ops(s):
    out, depth, cur = [], 0, ''
    for ch in s:
        if ch in '[(': depth += 1
        if ch in '])': depth -= 1
        if ch == ',' and depth == 0:
            out.append(cur); cur = ''
        else:
            cur += ch
    if cur.strip(): out.append(cur)
    return [o.strip() for o in out]

class Ins:
    __slots__ = ('text', 'kind', 'rd', 'wr', 'tag', 'vm', 'lgkm', 'vmN', 'lgkmN', 'srcC', 'srcAB', 'res_r', 'res_w', 'wide', 'data', 'cmt')
    def __init__(self, text, tag=None, res_r=None, res_w=None, cmt=None):
        self.text = text; self.tag = tag; self.vm = None; self.lgkm = None; self.vmN = None; self.lgkmN = None
        self.srcC = []; self.srcAB = []; self.res_r = res_r; self.res_w = res_w; self.wide = False; self.data = []; self.cmt = cmt
        t = text.strip()
        if t.endswith(':') or t.startswith('.') or t.startswith(';'):
            self.kind = 'label'; self.rd = set(); self.wr = set(); return
        sp = t.split(None, 1)
        mn = sp[0]; ops = split_ops(sp[1]) if len(sp) > 1 else []
        R = [regs_of(o) for o in ops]
        allr = lambda lo: set(r for x in R[lo:] for r in x)
        rd, wr = set(), set()
        if mn.startswith('v_mfma'):
            k = 'mfma'; wr = set(R[0]); rd = allr(1); self.srcC = R[3]; self.srcAB = R[1] + R[2]
        elif mn.startswith('v_smfmac'):
            k = 'mfma'; wr = set(R[0]); rd = allr(0); self.srcC = R[0]; self.srcAB = R[1] + R[2] + R[3]
        elif mn.startswith('v_permlane'):
            k = 'perm'; wr = allr(0); rd = allr(0)
        elif mn.startswith('v_readfirstlane') or mn.startswith('v_readlane'):
            k = 'rdlane'; wr = set(R[0]); rd = allr(1)
        elif mn.startswith('v_nop'):
            k = 'valu'
        elif mn.startswith('v_'):
            k = 'trans' if mn.replace('_e32', '').replace('_e64', '') in TRANS else 'valu'
            wr = set(R[0]); rd = allr(1)
            if mn.startswith('v_fmac') or mn.startswith('v_dot2c') or mn.startswith('v_pk_fmac'): rd |= wr
            if re.match(r'v_(add|sub|subrev)_co_u32|v_addc_co', mn): wr |= set(R[1]); rd = allr(2)
        elif mn.startswith('ds_read') or mn.startswith('ds_bpermute') or mn.startswith('ds_swizzle'):
            k = 'dsr'; wr = set(R[0]); rd = allr(1)
        elif mn.startswith('ds_write'):
            k = 'dsw'; rd = allr(0); self.data = R[1] + (R[2] if mn.startswith('ds_write2') else []); self.wide = len(self.data) >= 3
        elif mn.startswith('buffer_load') and re.search(r'\blds\b', t):
            k = 'dma'; rd = allr(0) | {'m0'}
        elif mn.startswith('buffer_load') or mn.startswith('global_load'):
            k = 'vld'; wr = set(R[0]); rd = allr(1)
        elif mn.startswith('buffer_store') or mn.startswith('buffer_atomic'):
            k = 'vst'; rd = allr(0); self.data = R[0]; self.wide = len(R[0]) >= 3
            if mn.startswith('buffer_atomic') and re.search(r'\bsc0\b', t): k = 'vld'; wr = set(R[0])
        elif mn.startswith('global_store') or mn.startswith('global_atomic'):
            k = 'vst'; rd = allr(0); self.data = R[1]; self.wide = len(R[1]) >= 3
        elif mn.startswith('buffer_inv') or mn.startswith('buffer_wbl2'):
            k = 'vst'
        elif mn.startswith('s_load') or mn.startswith('s_memtime') or mn.startswith('s_memrealtime'):
            k = 'smem'; wr = set(R[0]); rd = allr(1)
        elif mn == 's_waitcnt':
            k = 'wait'
            m = re.search(r'vmcnt\((\d+)\)', t); self.vmN = int(m.group(1)) if m else None
            m = re.search(r'lgkmcnt\((\d+)\)', t); self.lgkmN = int(m.group(1)) if m else None
        elif mn == 's_barrier': k = 'barrier'
        elif mn == 's_nop': k = 'nop'
        elif mn.startswith('s_cbranch') or mn in ('s_branch', 's_endpgm', 's_setprio', 's_sleep'):
            k = 'ctl'
        elif mn.startswith('s_cmp') or mn.startswith('s_bitcmp'):
            k = 'salu'; rd = allr(0)
        elif mn.startswith('s_'):
            k = 'salu'; wr = set(R[0]); rd = allr(1)
            if 'saveexec' in mn: wr |= {'exec'}; rd |= {'exec'}
            if mn.startswith('s_addk') or mn.startswith('s_mulk'): rd |= wr
        else:
            raise ValueError("unknown instr " + text)
        self.kind = k; self.rd = rd; self.wr = wr
    def cost(self):
        if self.kind == 'dsw': return {1: 2, 2: 3}.get(len(self.data), 5)
        if self.kind == 'vst': return 5 if self.wide else 3
        if self.kind in ('trans', 'dma', 'vld', 'perm'): return 2
        if self.kind == 'label': return 0
        if self.kind == 'nop': return int(self.text.split()[1]) + 1
        return 1
    def is_valu(self): return self.kind in ('valu', 'trans', 'perm', 'rdlane')
    def is_scalar(self): return self.kind in ('salu', 'wait', 'barrier', 'ctl') or (self.kind == 'nop' and self.cost() == 1)
    def is_b128r(self): return self.kind == 'dsr' and len(self.wr) == 4
    def is_mem(self): return self.kind in ('dsr', 'dsw', 'dma', 'vld', 'vst')
    def emit(self):
        if self.kind == 'wait' and (self.vm is not None or self.lgkm is not None):
            p = []
            if self.vmN is not None: p.append(f"vmcnt({min(self.vmN, 63)})")
            if self.lgkmN is not None: p.append(f"lgkmcnt({min(self.lgkmN, 15)})")
            assert p, "unresolved wait"
            t = "s_waitcnt " + " ".join(p)
        else:
            t = self.text
        if self.kind == 'label': return t
        return "    " + t + (f"  ; {self.cmt}" if self.cmt else "")

def I(text, **kw): return Ins(text, **kw)

def W(vm=None, lgkm=None):
    w = Ins("s_waitcnt vmcnt(0)")
    w.vm = list(vm) if vm is not None else None; w.lgkm = list(lgkm) if lgkm is not None else None
    w.vmN = None; w.lgkmN = None
    return w

def resolve_waits(trace):
    vmq, lq = [], []
    for ins in trace:
        if ins.kind in ('dma', 'vld', 'vst'): vmq.append(ins.tag)
        elif ins.kind in ('dsr', 'dsw'): lq.append(ins.tag)
        elif ins.kind == 'wait':
            for tg, q, attr in ((ins.vm, vmq, 'vmN'), (ins.lgkm, lq, 'lgkmN')):
                if tg is None: continue
                n = None
                for i in range(len(q) - 1, -1, -1):
                    if q[i] in tg:
                        n = len(q) - 1 - i; break
                assert n is not None, f"wait target {tg} never issued"
                cur = getattr(ins, attr)
                setattr(ins, attr, n if cur is None else min(cur, n))

def check(trace, verbose=True):
    errs = []
    tr = [x for x in trace if x.kind != 'label']
    pos = []; p = 0
    for x in tr:
        pos.append(p)
        p += (int(x.text.split()[1]) + 1) if x.kind == 'nop' else 1
    def err(i, j, msg): errs.append(f"{msg}: [{j}] {tr[j].text}  ->  [{i}] {tr[i].text}")
    for i, x in enumerate(tr):
        j = i - 1
        while j >= 0:
            y = tr[j]
            d = pos[i] - pos[j] - 1
            if y.kind == 'nop': j -= 1; continue
            if d >= 11: break
            if y.is_valu():
                w = y.wr
                if x.kind == 'mfma' and d < 2 and (w & x.rd): err(i, j, "VALU->MFMA<2")
                if x.kind == 'perm' and d < 2 and (w & x.rd): err(i, j, "VALU->permlane<2")
                if x.kind == 'rdlane' and d < 1 and (w & x.rd): err(i, j, "VALU->readlane<1")
                if y.kind == 'trans' and x.kind in ('valu', 'perm', 'rdlane') and d < 1 and (w & x.rd): err(i, j, "trans->VALU<1")
                sw = set(r for r in w if r[0] == 's' or r == 'vcc')
                if sw:
                    if x.is_valu() and d < 2 and (sw & x.rd): err(i, j, "VALU sgpr->VALU<2")
                    if x.kind in ('dma', 'vld', 'vst') and d < 5 and (sw & x.rd): err(i, j, "VALU sgpr->VMEM<5")
                if 'dpp' in x.text or 'row_' in x.text:
                    if d < 2 and (w & x.rd): err(i, j, "VALU->DPP<2")
            if y.kind == 'mfma':
                D = y.wr
                if x.kind == 'mfma':
                    if d < 8 and (D & set(x.srcAB)): err(i, j, "MFMA D->MFMA AB<8")
                    c = set(x.srcC)
                    if (D & c) and c != D and d < 6: err(i, j, "MFMA D->MFMA C partial<6")
                elif x.is_valu() or x.is_mem():
                    if d < (10 if 'x4_f32' in y.text else 8) and (D & (x.rd | x.wr)): err(i, j, "MFMA D->VALU/mem<8")
                    if x.is_valu() and d < 3 and (set(y.srcC) & x.wr): err(i, j, "MFMA C WAR<3")
            if y.kind == 'salu' and 'm0' in y.wr and x.kind == 'dma' and d < 1: err(i, j, "M0->DMA<1")
            if y.kind in ('vst', 'dsw') and y.wide and d < 2 and (set(y.data) & x.wr): err(i, j, "store data WAR<2")
            j -= 1
    for i, x in enumerate(tr):
        if x.text.startswith('s_cbranch_scc') or x.text.startswith('s_cselect') or x.text.startswith('s_addc') or x.text.startswith('s_subb'):
            j = i - 1
            while j >= 0:
                y = tr[j]
                if y.kind == 'salu' and not re.match(r's_(mov|mul_i32|cselect|getpc|movk|getreg)', y.text):
                    okp = y.text.startswith('s_cmp') or (j == i - 1 or all(tr[q].text.startswith('s_cselect') for q in range(j + 1, i))) and not x.text.startswith('s_cbranch')
                    if not okp: err(i, j, "SCC clobbered before use")
                    break
                j -= 1
    vmq, lq, sm = [], [], []
    res = {}
    def R(n): return res.setdefault(n, dict(w=[], wb=False, r=[], rb=False))
    for i, x in enumerate(tr):
        touched = x.rd | x.wr
        for q, nm in ((vmq, 'vm'), (lq, 'lgkm'), (sm, 'smem')):
            for y in q:
                if y.wr & touched:
                    if nm != 'smem' and not (y.wr & x.rd) and ((nm == 'lgkm' and x.kind == 'dsr') or (nm == 'vm' and x.kind == 'vld')): continue
                    errs.append(f"use before {nm} wait: {y.text} -> [{i}] {x.text}")
        if x.res_r:
            for (n, shared) in x.res_r:
                r = R(n)
                for y in r['w']:
                    if (y in vmq) or (shared and y in lq): errs.append(f"LDS RAW {n}: write not waited: {y.text} -> [{i}] {x.text}")
                if shared and r['wb']: errs.append(f"LDS RAW {n}: no barrier after write -> [{i}] {x.text}")
                r['r'].append(x); r['rb'] = True
        if x.res_w:
            for (n, shared) in x.res_w:
                r = R(n)
                for y in r['r']:
                    if y in lq and (x.kind == 'dma' or shared): errs.append(f"LDS WAR {n}: read not waited: {y.text} -> [{i}] {x.text}")
                if shared and r['rb']: errs.append(f"LDS WAR {n}: no barrier after read -> [{i}] {x.text}")
                r['w'].append(x); r['wb'] = True
        if x.kind in ('dma', 'vld', 'vst'): vmq.append(x)
        elif x.kind in ('dsr', 'dsw'): lq.append(x)
        elif x.kind == 'smem': sm.append(x)
        elif x.kind == 'wait':
            if x.vmN is not None:
                n = min(x.vmN, 63)
                vmq[:] = vmq[len(vmq) - n:] if n else []
            if x.lgkmN is not None:
                n = min(x.lgkmN, 15)
                if n == 0: sm[:] = []
                elif sm: errs.append(f"counted lgkm wait with smem outstanding [{i}]")
                lq[:] = lq[len(lq) - n:] if n else []
        elif x.kind == 'barrier':
            for n, r in res.items():
                r['w'] = [y for y in r['w'] if y in vmq or y in lq]
                r['r'] = [y for y in r['r'] if y in lq]
                r['wb'] = bool(r['w']); r['rb'] = bool(r['r'])
        if len(lq) > 15 and x.kind in ('dsr', 'dsw'):
            pass
    if verbose:
        for e in errs[:40]: print("CHECK:", e)
        if len(errs) > 40: print("... total", len(errs))
    return errs

class Gaps:
    def __init__(self, mfmas, cap=2):
        self.m = list(mfmas); n = len(self.m)
        self.g = [[[], [], []] for _ in range(n)]
        self.cap = [cap] * n
        self.head = []
    def __len__(self): return len(self.m)
    @staticmethod
    def seq_cost(seq):
        seq = [x for x in seq if x.kind != 'label']
        c = sum(x.cost() for x in seq)
        if seq and seq[0].is_scalar() and not (len(seq) > 1 and seq[1].kind in ('dma', 'vld', 'vst')): c -= 1
        return c
    def seq(self, i): return self.g[i][0] + self.g[i][1] + self.g[i][2]
    def used(self, i): return self.seq_cost(self.seq(i))
    def free(self, i): return self.cap[i] - self.used(i)
    def lane_of(self, ins): return 2 if ins.is_valu() else (0 if (ins.is_scalar() or ins.kind == 'label') else 1)
    def pin(self, i, ins, post=None, lane=None):
        if lane is None: lane = 2 if post else self.lane_of(ins)
        self.g[i][lane].append(ins)
        return (i, lane)
    def cost_with(self, i, ins, lane):
        t = [list(x) for x in self.g[i]]; t[lane].append(ins)
        return self.seq_cost(t[0] + t[1] + t[2])
    def place(self, ins, lo, hi=None, after=None, force=True):
        n = len(self.m)
        if hi is None: hi = n - 1
        hi = min(hi, n - 1)
        def lane_at(i):
            l = self.lane_of(ins)
            if after is None or i > after[0]: return l
            if i < after[0]: return None
            if after[1] > l:
                if ins.is_mem() and after[1] == 2: return None
                return after[1]
            return l
        def fits(i, l):
            if ins.is_b128r() and any(x.is_b128r() for x in self.g[i][1]): return False
            c = self.cost_with(i, ins, l)
            if c <= self.cap[i]: return True
            return ins.cost() > self.cap[i] and self.used(i) == 0
        if ins.is_scalar():
            for i in range(lo, min(hi, max(lo, after[0] if after else lo) + 3) + 1):
                l = lane_at(i)
                if l is not None and self.cost_with(i, ins, l) == self.used(i): return self.pin(i, ins, lane=l)
        for i in range(lo, hi + 1):
            l = lane_at(i)
            if l is not None and fits(i, l): return self.pin(i, ins, lane=l)
        assert force, "no room for " + ins.text
        best = None
        for i in range(lo, hi + 1):
            l = lane_at(i)
            if l is None: continue
            if best is None or self.free(i) > self.free(best[0]): best = (i, l)
        if best is None:
            return self.pin(hi, ins, lane=2)
        return self.pin(best[0], ins, lane=best[1])
    def stream(self, items, lo, hi, spread=False):
        its = [(x, lo) if isinstance(x, Ins) else x for x in items]
        need = sum(x.cost() for x, _ in its)
        hi = min(hi, len(self.m) - 1)
        tries = 0
        while True:
            tries += 1
            assert tries < 3000, "stream cannot be placed: " + its[0][0].text
            snap = {i: [list(l) for l in self.g[i]] for i in range(lo, hi + 1)}
            h = None; okay = True
            done = 0
            for k, (x, e) in enumerate(its):
                st = max(lo, e)
                if spread: st = max(st, lo + (k * (hi - lo - 1)) // len(its))
                try:
                    h = self.place(x, st, hi, after=h, force=False)
                except AssertionError:
                    okay = False; break
            if okay: return h
            for i in snap: self.g[i] = snap[i]
            mn = min(self.cap[lo:hi + 1])
            cand = [i for i in range(lo, hi + 1) if self.cap[i] == mn]
            k = max(1, len(cand) // 16)
            step = len(cand) / k
            off = (tries * 0.381966) % 1.0
            for t in range(k): self.cap[cand[min(len(cand) - 1, int((t + off) * step))]] += 1
    def flat(self, pad=True):
        out = list(self.head)
        for i, m in enumerate(self.m):
            out.append(m)
            sq = self.seq(i)
            real = [x for x in sq if x.kind != 'label']
            if pad and len(real) >= 2 and real[0].kind == 'dsr' and real[1].kind == 'dsr':
                prev = [x for x in self.seq(i - 1) if x.kind != 'label'] if i else []
                if not (prev and all(x.is_valu() for x in prev) and self.used(i - 1) >= 2): out.append(Ins("s_nop 0"))
            out += sq
        return out
    def cyc(self, lo, hi): return sum(max(32 if 'x4_f32' in self.m[i].text else 16, 8 + 4 * self.used(i)) for i in range(lo, hi + 1))
    def cycles(self): return self.cyc(0, len(self.m) - 1)
```

```python
import sys, struct, math, re
from asmlib import *

NAME = "recurrent_scan__gqa_block_cached__dense_activation_gelu__prompt"
OPT = dict(dump=None, stamps=False, G='2', pfs='128', s2='9', stag='8', q1='early', nw='16', ne='3', xe='8', pvx='2', cearly=True, c0='5', hop=True, w1f='17', norot=True, nokt=True)
for a in sys.argv[1:]:
    k, _, v = a.partition('=')
    OPT[k] = v if v else True

NT = lambda k: ' nt' if k in OPT.get('nt', '') else ''
GG = int(OPT['G']); LG = GG.bit_length() - 1
def f2u(x): return struct.unpack('<I', struct.pack('<f', x))[0]
def hx(x): return f"0x{x & 0xffffffff:x}"
def vr(b, n=4): return f"v[{b}:{b+n-1}]" if n > 1 else f"v{b}"
def ar(b, n=4): return f"a[{b}:{b+n-1}]" if n > 1 else f"a{b}"
def sr(b, n=4): return f"s[{b}:{b+n-1}]" if n > 1 else f"s{b}"

S_W = 3
SRD_X, SRD_K, SRD_V, SRD_WQ, SRD_WO, SRD_W1, SRD_W2, SRD_WS, SRD_OUT, SRD_B1, SRD_B2, SRD_DBG = range(4, 52, 4)
S_G, S_R = 52, 53
S_SM1, S_SMQ, S_SM2 = 54, 57, 60
S_RING = 63
S_KO = 64
S_VO = 66
S_CNT, S_PASS = 68, 69
S_QS, S_GB = 70, 71
S_YO = 72
S_T = 76
S_PF = 99
SRD_WS2 = 80
S_CB, S_CB2, S_SPIN = 84, 85, 86
S_STAMP = 96

V_KA, V_VA, V_DV, V_SPI, V_L16 = 0, 4, 12, 14, 15
V_NEGM, V_S, V_SPA = 16, 32, 44
V_T = 48
V_Q, V_P = 64, 128
V_WA = 4
V_AF = 16
V_W1, V_WQ, V_W2, V_GA = 48, 49, 50, 51
V_ACCA, V_ACCB = 128, 192
V_B1 = 64
def XN(ks, qb): return ((15 - ks) * 4 + qb) * 4
A_O, A_L, A_KF, A_VF = 0, 128, 144, 176
A_SPA, A_FILL, A_XT, A_PF, A_WOB, A_Y7 = 208, 212, 216, 224, 225, 228
V_YB, V_YS, V_YT, V_PFO, V_CNT = 40, 44, 60, 61, 62
S_KT, S_NEED, S_CL = 75, 58, 59
S_CA, S_YI, S_YL, S_FO, S_XO = 87, 88, 89, 90, 91

LDS_V, LDS_X = 65536, 131072
WS_S, WS_Y, WS_DUMP = 0, 16 << 20, 64 << 20

mf = lambda d, a, b, c: I(f"v_mfma_f32_16x16x32_bf16 {d}, {a}, {b}, {c}")

segs = {}
def stamp(i, last=False):
    if not OPT['stamps']: return []
    L = [I(f"s_memtime s[{S_STAMP}:{S_STAMP+1}]"), I(f"s_memrealtime s[100:101]"), I("s_waitcnt lgkmcnt(0)"),
         I(f"v_writelane_b32 v63, s{S_STAMP}, {i}"), I(f"v_writelane_b32 v63, s100, {16+i}")]
    if last:
        L += [I("s_lshl_b32 s98, s2, 2"), I(f"s_add_u32 s98, s98, s{S_W}"), I("s_lshl_b32 s98, s98, 8"), I(f"s_add_u32 s98, s98, {hx(WS_DUMP)}"),
              I(f"v_lshrrev_b32 v62, 2, v{V_L16}"), I(f"buffer_store_dword v63, v62, {sr(SRD_WS)}, s98 offen", tag='stamp')]
    return L

def ministamp(G, gap, lane):
    if not OPT.get('mini'): return
    for x in (I(f"s_memtime s[{S_STAMP}:{S_STAMP+1}]"), I("s_waitcnt lgkmcnt(0)"), I(f"v_writelane_b32 v63, s{S_STAMP}, {lane}")): G.pin(gap, x, post=True)

def dump_regs(groups):
    L = [I("s_waitcnt vmcnt(0) lgkmcnt(0)"), I("s_nop 7"), I("s_nop 7")]
    L += [I(f"s_lshl_b32 s{S_T}, s2, 2"), I(f"s_add_u32 s{S_T}, s{S_T}, s{S_W}"),
          I(f"s_mul_i32 s{S_T}, s{S_T}, {len(groups)*1024}"), I(f"s_add_u32 s{S_T}, s{S_T}, {hx(WS_DUMP)}")]
    for g in groups:
        L.append(I(f"buffer_store_dwordx4 {g}, v{V_L16}, {sr(SRD_WS)}, s{S_T} offen"))
        L.append(I("s_nop 3"))
        L.append(I(f"s_add_u32 s{S_T}, s{S_T}, 1024"))
    L += [I("s_waitcnt vmcnt(0)"), I("s_endpgm")]
    return L

def srd(L, base, p, nbytes):
    L += [I(f"s_mov_b32 s{base}, s{p}"), I(f"s_mov_b32 s{base+1}, s{p+1}"),
          I(f"s_mov_b32 s{base+2}, {hx(nbytes)}"), I(f"s_mov_b32 s{base+3}, 0x20000")]

def dma_w(srdb, vreg, sm, i, tag, res):
    so = "0" if (i & 3) == 0 else f"s{sm + (i & 3) - 1}"
    off = f" offset:{(i & 3) * 1024}" if i & 3 else ""
    return I(f"buffer_load_dwordx4 v{vreg}, {sr(srdb)}, {so} offen{off} lds", tag=tag, res_w=res)

STAGES = []
for kq in range(8): STAGES.append(dict(m='w1', srd=SRD_W1, v=V_W1, stride=3584, nks=2, ks0=2*kq, acc=V_ACCA, first=kq == 0, col=0))
for hq in range(2):
    for kq in range(8): STAGES.append(dict(m='wq', srd=SRD_WQ, v=V_WQ, stride=8192, nks=2, ks0=2*kq, acc=V_ACCB, first=kq == 0, col=128*hq))
for hc in range(2):
    for kq in range(4): STAGES.append(dict(m='w2', srd=SRD_W2, v=V_W2, stride=1024, nks=2 if kq < 3 else 1, ks0=2*kq, acc=V_ACCA if hc == 0 else V_ACCB,
                                           first=kq == 0, col=512*hc))
def slot_off(s): return 8192 if (s & 3) in (0, 3) else 0
SLOTRES = ['K1', 'V0', 'K0', 'V1']
S_RS = 54
def stage_dma(s):
    st = STAGES[s]; L = []
    for j in range(st['nks']):
        for i in range(4):
            row = 32*(st['ks0'] + j) + (8*i if st['m'] == 'w2' else 16*(i & 1) + 4*(i >> 1))
            L.append(I(f"s_mov_b32 s{S_RS + i}, {hx(row*st['stride'] + st['col'] - 1024*i)}"))
            if i == 0: L.append(I(f"s_add_u32 m0, s{S_RING}, {hx(slot_off(s) + (s & 1) * 65536 + j * 4096)}"))
            off = f" offset:{i*1024}" if i else ""
            L.append(I(f"buffer_load_dwordx4 v{st['v']}, {sr(st['srd'])}, s{S_RS + i} offen{off} lds", tag=f"st{s}", res_w=[(f"slot{s&3}", False)]))
    return L

def with_m0_pad(L):
    out = []
    for i, x in enumerate(L):
        out.append(x)
        if 'm0' in x.wr and i + 1 < len(L) and L[i+1].kind == 'dma': out.append(I("s_nop 0"))
    return out

def interleave(main, extra, start=0, end=None):
    end = len(main) if end is None else end
    out = list(main[:start]); n = end - start; k = 0
    for i in range(n):
        out.append(main[start + i])
        while k < len(extra) and (k + 1) * n <= (i + 1) * len(extra) + 0:
            out.append(extra[k]); k += 1
    return out + extra[k:] + list(main[end:])

def touch(L, srdb, vtmp, sreg, ln, rowlines, rowstride, nrows, sbase_code, step=128):
    A = lambda t, **k: L.append(I(t, **k))
    per_row = rowlines * 128 // step
    rows_share = -(-nrows * GG // 128)
    total = per_row * rows_share
    lg = per_row.bit_length() - 1
    A(f"s_mul_i32 s{sreg}, s94, {rows_share * rowstride}")
    for t in sbase_code: A(t)
    if sbase_code: A(f"s_add_u32 s{sreg}, s{sreg}, s93")
    A(f"v_lshrrev_b32 v{vtmp}, {lg}, v{ln}")
    if total < 64: A(f"v_min_u32 v{vtmp}, {rows_share - 1}, v{vtmp}")
    A(f"v_mul_u32_u24 v{vtmp}, {rowstride}, v{vtmp}")
    A(f"v_and_b32 v32, {per_row - 1}, v{ln}")
    A(f"v_lshl_add_u32 v{vtmp}, v32, {step.bit_length() - 1}, v{vtmp}")
    out = []
    for k in range(max(1, -(-total // 64))):
        if k: out.append(I(f"v_add_u32 v{vtmp}, {(64 // per_row) * rowstride}, v{vtmp}"))
        out.append(I(f"buffer_load_dword v60, v{vtmp}, {sr(srdb)}, s{sreg} offen{NT({SRD_W1: '1', SRD_WQ: 'q', SRD_W2: '2', SRD_K: 'v'}[srdb])}", tag='pf'))
    return out

def lin_touch(srdb, sreg):
    step = int(OPT['pfs']); n = max(1, 4096 * GG // (64 * step))
    L = []
    for k in range(n):
        if k: L.append(I(f"s_add_u32 s{S_T+3}, s{sreg}, {k * 64 * step}"))
        L.append(I(f"buffer_load_dword v60, v61, {sr(srdb)}, s{S_T+3 if k else sreg} offen", tag='pf'))
    return L

LATE = {}
STUBS = []
V_XA = 53
def phase0():
    L = []
    A = lambda t, **k: L.append(I(t, **k))
    A("s_cmp_ge_u32 s2, 256"); A("s_cbranch_scc1 L_END")
    L += stamp(0)
    A("s_load_dwordx16 s[64:79], s[0:1], 0")
    A("s_load_dwordx8 s[80:87], s[0:1], 64")
    A("s_load_dwordx2 s[88:89], s[0:1], 96")
    t0, t1, t2, t3, ln, n16, g4 = 33, 34, 35, 36, 37, 38, 39
    A("s_getpc_b64 s[90:91]"); A("L_PC1:")
    c0 = OPT.get('c0', '6')
    if not OPT.get('nocodepf') and c0 != '0':
        A(f"v_lshlrev_b32 v58, {c0}, v0")
        if OPT.get('c0max'): A(f"v_min_u32 v58, {OPT['c0max']}, v58")
        A("global_load_dword v60, v58, s[90:91]" + NT('c'), tag='pf')
    if OPT.get('cearly'):
        A("s_lshr_b32 s93, s2, 3"); A("s_lshl_b32 s93, s93, 11"); A("v_lshlrev_b32 v57, 3, v0"); A("v_add_u32 v57, s93, v57")
        A("v_min_u32 v57, L_END-L_PC1, v57"); A("global_load_dword v60, v57, s[90:91]", tag='pf')
    A(f"v_lshrrev_b32 v{t0}, 6, v0")
    A(f"v_and_b32 v{ln}, 63, v0")
    A(f"v_readfirstlane_b32 s{S_W}, v{t0}")
    SL = []
    if not OPT.get('nowalk'):
        slot = [7, 9, 11, 7, 0, 3, 6, 8, 1, 2, 4, 10, 12, 12, 12, 12]; lim = [0, 0, 0, 0, 7, 15, 6, 6, 15, 15, 15, 7, 0, 0, 0, 0]
        pk = lambda t: sum(v << (4*k) for k, v in enumerate(t))
        A("s_lshr_b32 s48, s2, 3"); A("s_and_b32 s49, s48, 3"); A(f"s_lshl_b32 s50, s{S_W}, 2"); A("s_add_u32 s49, s49, s50"); A("s_lshl_b32 s49, s49, 2")
        A(f"s_mov_b32 s44, {hx(pk(slot) & 0xffffffff)}"); A(f"s_mov_b32 s45, {hx(pk(slot) >> 32)}"); A("s_lshr_b64 s[44:45], s[44:45], s49")
        A("s_and_b32 s44, s44, 15"); A("s_lshl_b32 s44, s44, 3")
        A("s_load_dwordx2 s[46:47], s[0:1], s44")
        A(f"s_mov_b32 s40, {hx(pk(lim) & 0xffffffff)}"); A(f"s_mov_b32 s41, {hx(pk(lim) >> 32)}"); A("s_lshr_b64 s[40:41], s[40:41], s49"); A("s_and_b32 s40, s40, 15")
        A("s_lshr_b32 s41, s48, 2"); A("s_lshl_b32 s41, s41, 1"); A("s_min_u32 s40, s40, s41"); A("s_lshl_b32 s40, s40, 18")
        A("s_lshl_b32 s41, s48, 20"); A(f"s_cmp_eq_u32 s{S_W}, 3"); A("s_cselect_b32 s40, s41, s40")
        SL = [I("s_load_dword s98, s[46:47], s40")]
    A(f"s_lshr_b32 s94, s2, 3")
    A(f"s_and_b32 s{S_G}, s2, {7 & ~(GG-1)}"); A(f"s_and_b32 s93, s94, {GG-1}"); A(f"s_or_b32 s{S_G}, s{S_G}, s93")
    A(f"s_and_b32 s{S_R}, s2, {GG-1}"); A(f"s_mul_i32 s{S_R}, s{S_R}, {32//GG}"); A(f"s_lshr_b32 s94, s94, {LG}"); A(f"s_add_u32 s{S_R}, s{S_R}, s94")
    A(f"s_lshl_b32 s94, s94, 2"); A(f"s_add_u32 s94, s94, s{S_W}")
    A(f"s_lshl_b32 s92, s{S_R}, 16"); A(f"s_lshl_b32 s{S_RING}, s{S_W}, 14"); A(f"s_add_u32 s92, s92, s{S_RING}")
    A(f"v_lshrrev_b32 v{t0}, 2, v{ln}"); A(f"v_lshlrev_b32 v{t0}, 10, v{t0}")
    A(f"v_and_b32 v{t1}, 3, v{ln}"); A(f"v_lshl_add_u32 v{t0}, v{t1}, 4, v{t0}")
    A(f"s_and_b32 s95, s{S_G}, {1 if (GG > 1 and not OPT.get('norot')) else 0}"); A("s_lshl_b32 s93, s95, 9"); A(f"v_xor_b32 v{t0}, s93, v{t0}")
    A(f"v_and_b32 v{n16}, 15, v{ln}")
    A(f"v_lshrrev_b32 v{g4}, 4, v{ln}")
    A(f"v_lshlrev_b32 v{V_L16}, 4, v{ln}")
    tw1 = []
    if not OPT.get('nopf'):
        tw1 = touch(L, SRD_W1, 59, S_NEED, ln, 4, 3584, 512, [f"s_mul_i32 s93, s{S_G}, 448", "s_and_b32 s93, s93, 0xffffff80"])
    A("s_waitcnt lgkmcnt(0)")
    if OPT.get('fine'): L += stamp(11)
    L += SL
    srd(L, SRD_W1, 76, 512*1792*2)
    w1f = int(OPT.get('w1f', 0))
    srd(L, SRD_X, 64, 2048*512*2)
    A(f"s_mov_b32 s{S_CL}, s92")
    XL = []
    for ks in range(16):
        XL.append(I(f"buffer_load_dwordx4 {vr(64+4*ks)}, v{t0}, {sr(SRD_X)}, s{S_CL} offen offset:{(ks&7)*64}{NT('x')}", tag=f'x{ks}'))
        if ks == 7: XL.append(I(f"v_xor_b32 v{t0}, 0x200, v{t0}"))
    XL = XL[:w1f] + tw1 + XL[w1f:]; tw1 = []
    xe = int(OPT.get('xe', 6))
    L += XL[:xe]
    if OPT.get('fine'): L += stamp(12)
    srd(L, SRD_WQ, 70, 512*4096*2); srd(L, SRD_B1, 78, 1792*2)
    A(f"v_and_b32 v{t1}, 7, v{ln}"); A(f"v_lshlrev_b32 v{t2}, 1, v{g4}"); A(f"v_xor_b32 v{t1}, v{t1}, v{t2}")
    A(f"v_lshlrev_b32 v{t1}, 4, v{t1}")
    A(f"v_lshrrev_b32 v{t2}, 5, v{ln}"); A(f"v_bfe_u32 v{t3}, v{ln}, 3, 2"); A(f"v_lshl_add_u32 v{t2}, v{t2}, 3, v{t3}")
    A(f"s_mul_i32 s92, s{S_G}, 448"); A("s_and_b32 s92, s92, 0xffffff80"); A(f"s_lshl_b32 s93, s{S_W}, 7"); A("s_add_u32 s92, s92, s93")
    A(f"v_mul_u32_u24 v{V_W1}, 3584, v{t2}"); A(f"v_add3_u32 v{V_W1}, v{V_W1}, v{t1}, s92")
    if not OPT.get('nozero'):
        A(f"s_mul_i32 s93, s{S_G}, 448"); A("s_sub_u32 s93, s92, s93")
        A(f"v_add_u32 v{t3}, s93, v{t1}"); A(f"v_cmp_lt_u32 vcc, 447, v{t3}"); A(f"v_mov_b32 v{t3}, 0x10000000"); A("s_nop 0")
        A(f"v_cndmask_b32 v{V_W1}, v{V_W1}, v{t3}, vcc")
    vb1 = 57 if OPT.get("s2") else 14
    A(f"v_lshlrev_b32 v{vb1}, 3, v{g4}"); A("s_mov_b32 s95, s92")
    b1l = [I(f"buffer_load_dwordx2 {vr(40+2*ct,2)}, v{vb1}, {sr(SRD_B1)}, s95 offen offset:{32*ct}", tag='b1') for ct in range(4)]
    A(f"s_lshl_b32 s93, s{S_G}, 19")
    A("s_add_u32 s66, s66, s93"); A("s_addc_u32 s67, s67, 0")
    A("s_add_u32 s68, s68, s93"); A("s_addc_u32 s69, s69, 0")
    srd(L, SRD_K, 66, 524288); srd(L, SRD_V, 68, 524288); srd(L, SRD_WO, 72, 4096*512*2)
    srd(L, SRD_W2, 80, 1792*512*2); srd(L, SRD_B2, 82, 1024); srd(L, SRD_OUT, 84, 2048*512*2)
    srd(L, SRD_DBG, 86, 256); srd(L, SRD_WS, 88, 1 << 28); srd(L, SRD_WS2, 88, 1 << 28)
    A(f"s_mul_i32 s{S_PF}, s94, {4096*GG}"); A(f"v_and_b32 v{V_PFO}, {8*GG - 1}, v{ln}"); A(f"v_lshlrev_b32 v{V_PFO}, 7, v{V_PFO}")
    A(f"s_lshl_b32 s93, s{S_G}, 19"); A(f"s_add_u32 s{S_PF}, s{S_PF}, s93")
    twq, twq1, tw2, tkv, tcode = [], [], [], [], []
    if not OPT.get('nopf'):
        if OPT.get('q1', 'late') == 'late':
            twq = touch(L, SRD_WQ, 62, 77, ln, 8, 8192, 512, [f"s_lshl_b32 s93, s{S_G}, 10"], step=256)
            assert len(twq) == 1
            twq1 = [I(twq[0].text + " offset:128", tag='pf')]
        else:
            twq = touch(L, SRD_WQ, 62, 77, ln, 8, 8192, 512, [f"s_lshl_b32 s93, s{S_G}, 10"])
        tw2 = touch(L, SRD_W2, 14 if OPT.get('s2') else 57, 78, ln, 8, 1024, 224, [f"s_mul_i32 s93, s{S_G}, {224*1024}"])
        tk = touch(L, SRD_K, 55, 79, ln, 2, 256, int(OPT.get('kvrows', 384)), [])
        tkv = tk + [I(x.text.replace(sr(SRD_K), sr(SRD_V)), tag='pf') for x in tk if x.kind == 'vld'][-1:]
        if not OPT.get('nocodepf') and not OPT.get('cearly'):
            A("s_getpc_b64 s[90:91]"); A("L_PC2:")
            A(f"s_lshr_b32 s93, s2, 3"); A(f"s_lshl_b32 s93, s93, 2"); A(f"s_add_u32 s93, s93, s{S_W}")
            A(f"s_lshl_b32 s93, s93, 9"); A(f"v_lshlrev_b32 v58, 3, v{ln}"); A("v_add_u32 v58, s93, v58")
            A("v_min_u32 v58, CODE_LEFT, v58")
            tcode = [I("global_load_dword v60, v58, s[90:91]" + NT('c'), tag='pf')]
    A(f"s_lshl_b32 s92, s{S_G}, 10"); A(f"s_lshl_b32 s93, s{S_W}, 8"); A("s_add_u32 s92, s92, s93")
    A(f"v_lshlrev_b32 v{V_WQ}, 13, v{t2}"); A(f"v_add3_u32 v{V_WQ}, v{V_WQ}, v{t1}, s92")
    A(f"s_mul_i32 s92, s{S_G}, {224*1024}"); A(f"s_lshl_b32 s93, s{S_W}, 7"); A("s_add_u32 s92, s92, s93")
    A(f"v_lshrrev_b32 v{t2}, 3, v{ln}"); A(f"v_lshlrev_b32 v{V_W2}, 10, v{t2}"); A(f"v_add3_u32 v{V_W2}, v{V_W2}, v{t1}, s92")
    A(f"v_lshrrev_b32 v{t1}, 2, v{ln}")
    A(f"v_lshlrev_b32 v{t1}, 7, v{t1}")
    A(f"v_and_b32 v{t2}, 3, v{ln}"); A(f"v_lshl_add_u32 v{t1}, v{t2}, 3, v{t1}")
    A(f"v_add_u32 v{t1}, s{S_RING}, v{t1}")
    A(f"v_bfe_u32 v{t2}, v{ln}, 3, 2")
    for ct in range(4):
        A(f"v_xor_b32 v{t3}, {ct}, v{t2}")
        A(f"v_lshl_add_u32 v{V_WA+ct}, v{t3}, 5, v{t1}")
        A(f"v_add_u32 v{V_WA+4+ct}, 0x10000, v{V_WA+ct}")
    A(f"v_and_b32 v{t1}, 7, v{ln}"); A(f"v_lshlrev_b32 v{t1}, 1, v{t1}"); A(f"v_xor_b32 v{t1}, v{t1}, v{g4}")
    A(f"v_lshlrev_b32 v{t2}, 8, v{n16}"); A(f"v_add_u32 v{t2}, {hx(LDS_X)}, v{t2}")
    for kk in range(4):
        A(f"v_xor_b32 v{t3}, {4*kk}, v{t1}")
        A(f"v_lshl_add_u32 v{V_KA+kk}, v{t3}, 4, v{t2}")
    A(f"v_lshlrev_b32 v{t1}, 1, v{g4}"); A(f"v_xor_b32 v{t1}, v{t1}, v{n16}"); A(f"v_lshlrev_b32 v{t2}, 8, v{g4}")
    A(f"v_lshl_add_u32 v{V_DV}, v{t1}, 4, v{t2}")
    A(f"v_xor_b32 v{V_DV+1}, 0x80, v{V_DV}")
    A(f"v_add_u32 v{V_XA+1}, {hx(LDS_X)}, v{V_DV}"); A(f"v_add_u32 v{V_XA}, {hx(65536 + 8192)}, v{V_DV}")
    A(f"v_and_b32 v{t1}, 3, v{ln}"); A(f"v_lshrrev_b32 v{t2}, 2, v{ln}"); A(f"v_lshlrev_b32 v{t3}, 1, v{t1}"); A(f"v_xor_b32 v{t2}, v{t2}, v{t3}")
    A(f"v_lshlrev_b32 v{t1}, 8, v{t1}"); A(f"v_lshl_add_u32 v{t1}, v{t2}, 4, v{t1}")
    A(f"s_lshl_b32 s92, s{S_W}, 13"); A(f"s_add_u32 s92, s92, {hx(LDS_X)}")
    A(f"s_add_u32 s93, s{S_RING}, {hx(65536 + 8192)}")
    A(f"s_and_b32 s85, s{S_G}, {1 if (GG > 1 and not OPT.get('norot')) else 0}")
    A("s_cselect_b32 s85, s92, s93"); A("s_cselect_b32 s86, s93, s92")
    A(f"v_add_u32 v{t2}, s85, v{t1}"); A(f"v_add_u32 v56, s86, v{t1}")
    A(f"v_and_b32 v52, 1, v{ln}"); A(f"v_bfe_u32 v{t1}, v{ln}, 1, 1"); A(f"v_sub_u32 v52, v52, v{t1}"); A("v_lshlrev_b32 v52, 3, v52")
    A(f"s_mov_b32 s{S_QS}, {hx(f2u(128**-0.5 * math.log2(math.e)))}")
    ga = -2*0.7978845608028654*math.log2(math.e)
    A(f"s_mov_b32 s{S_GB}, {hx(f2u(ga*0.044715))}")
    A(f"v_mov_b32 v{V_GA}, {hx(f2u(ga))}")
    A(f"s_lshl_b32 s92, s{S_R}, 2"); A(f"s_add_u32 s92, s92, s{S_W}"); A("s_lshl_b32 s92, s92, 3"); A(f"s_add_u32 s92, s92, s{S_G}")
    A("s_lshl_b32 s92, s92, 10"); A(f"s_add_u32 s{S_YO}, s92, {hx(WS_Y)}")
    A(f"s_lshl_b32 s92, s{S_R}, 3"); A(f"s_add_u32 s92, s92, s{S_G}"); A("s_lshl_b32 s92, s92, 2"); A(f"s_add_u32 s92, s92, s{S_W}"); A(f"s_lshl_b32 s{S_CB}, s92, 10")
    A(f"s_mov_b32 s{S_PASS}, 0")
    A(f"s_lshl_b32 s{S_KO}, s{S_W}, 13"); A(f"s_add_u32 s{S_KO+1}, s{S_KO}, 4096")
    A(f"s_mov_b32 s{S_VO}, s{S_KO}"); A(f"s_mov_b32 s{S_VO+1}, s{S_KO+1}")
    HOP = []
    if OPT.get('hop'):
        HOP = [I("s_mov_b64 exec, 0")]
        for w in range(3): HOP += [I(f"s_cmp_eq_u32 s{S_W}, {w}"), I(f"s_cbranch_scc1 L_PAD{w}")]
        HOP += [I("s_branch L_PAD3"), I("L_PADX:"), I("s_mov_b64 exec, -1")]
    L += stamp(1)
    F = 128
    sa, qa = 16, 24
    if OPT.get('s2'): LATE['w2'] = twq1 + tw2 + ([] if OPT.get('kvp', '1') == '1' else tkv); LATE['kv'] = tkv if OPT.get('kvp', '1') == '1' else []; tw2 = []; tkv = []
    D = [stage_dma(s) for s in range(3)]
    NE = int(OPT.get('ne', 2))
    vq = XL[xe:] + tcode + b1l + sum(D[:NE], [])
    def pop_vm(n):
        out = []
        while vq and n > 0:
            x = vq.pop(0); out.append(x)
            if x.kind in ('dma', 'vld'): n -= 1
        return with_m0_pad(out)
    for ks in range(16):
        L.append(W(vm=[f'x{ks}']))
        if OPT.get('fine') and ks == 0: L += stamp(13)
        if OPT.get('fine') and ks == 15: L += stamp(5)
        L += pop_vm(int(OPT.get('pv', 1)) + (int(OPT.get('pvx', 0)) if ks == 0 else 0))
        if str(ks) == OPT.get('hopat', 'w'): L += HOP
        for i in range(4*ks, 4*ks + 4):
            A(f"v_lshlrev_b32 v{F+2*i}, 16, v{64+i}")
            A(f"v_and_b32 v{F+2*i+1}, 0xffff0000, v{64+i}")
        for i in range(4*ks, 4*ks + 4):
            k = i & 3
            x = vr(F+2*i, 2)
            if i < 4:
                A(f"v_pk_mul_f32 {vr(qa+2*k,2)}, {x}, {x}")
            else:
                src = vr(F+2*k, 2) if i < 8 else vr(sa+2*k, 2)
                A(f"v_pk_add_f32 {vr(sa+2*k,2)}, {src}, {x}")
                A(f"v_pk_fma_f32 {vr(qa+2*k,2)}, {x}, {x}, {vr(qa+2*k,2)}")
    if SL: A("s_waitcnt lgkmcnt(0)")
    L += stamp(2)
    M = []; A = lambda t, **k: M.append(I(t, **k))
    for b in (sa, qa):
        A(f"v_pk_add_f32 {vr(b,2)}, {vr(b,2)}, {vr(b+2,2)}"); A(f"v_pk_add_f32 {vr(b+4,2)}, {vr(b+4,2)}, {vr(b+6,2)}")
    for b in (sa, qa): A(f"v_pk_add_f32 {vr(b,2)}, {vr(b,2)}, {vr(b+4,2)}")
    for b in (sa, qa): A(f"v_add_f32 v{b}, v{b}, v{b+1}")
    for qp in ("[1,0,3,2]", "[2,3,0,1]"):
        A("s_nop 1")
        for b in (sa, qa): A(f"v_add_f32_dpp v{b}, v{b}, v{b} quad_perm:{qp} row_mask:0xf bank_mask:0xf")
    A(f"v_mul_f32 v{sa}, {hx(f2u(1/512))}, v{sa}")
    A(f"v_mul_f32 v{qa}, {hx(f2u(1/512))}, v{qa}")
    A(f"v_fma_f32 v{qa}, -v{sa}, v{sa}, v{qa}")
    A(f"v_max_f32 v{qa}, 0, v{qa}")
    A(f"v_cvt_pk_bf16_f32 v{sa+1}, v{sa}, v{qa}")
    A(f"v_lshlrev_b32 v{sa}, 16, v{sa+1}")
    A(f"v_and_b32 v{qa}, 0xffff0000, v{sa+1}")
    A(f"v_add_f32 v{qa}, {hx(f2u(1e-5))}, v{qa}")
    A(f"v_cvt_pk_bf16_f32 v{qa}, v{qa}, v{qa}"); A(f"v_and_b32 v{qa}, 0xffff0000, v{qa}")
    A(f"v_sqrt_f32 v{qa}, v{qa}"); A("s_nop 0")
    A(f"v_cvt_pk_bf16_f32 v{qa}, v{qa}, v{qa}"); A(f"v_and_b32 v{qa}, 0xffff0000, v{qa}")
    A(f"v_rcp_f32 v{qa}, v{qa}"); A("s_nop 0")
    A(f"v_mul_f32 v{sa}, v{sa}, v{qa}")
    A(f"v_sub_f32 v{sa}, 0, v{sa}")
    A(f"v_mov_b32 v{qa+1}, v{qa}"); A(f"v_mov_b32 v{sa+1}, v{sa}")
    def norm(ks):
        for i in range(4*ks, 4*ks+4):
            A(f"v_pk_fma_f32 {vr(F+2*i,2)}, {vr(F+2*i,2)}, {vr(qa,2)}, {vr(sa,2)}")
        for i in range(4*ks, 4*ks+4):
            A(f"v_cvt_pk_bf16_f32 v{64+i}, v{F+2*i}, v{F+2*i+1}")
    for ks in range(16): norm(ks)
    L += with_m0_pad(interleave(M, vq)) + twq + tw2 + tkv
    if OPT.get('hopat', 'w') == 'w': L += HOP
    M = []; A = lambda t, **k: M.append(I(t, **k))
    wr = [I(f"ds_write_b128 v{t2 if ks < 8 else 56}, {vr(64+4*ks)} offset:{(ks&7)*1024}", tag='xw' if ks < 8 else 'xw2', res_w=[('slot3' if ks < 8 else 'hx', True)]) for ks in range(16)]
    nw = int(OPT.get('nw', 8))
    LATE['xw'] = wr[nw:]
    bias = [W(vm=['b1'])]
    for ct in range(4):
        for h in range(2):
            bias += [I(f"v_lshlrev_b32 v{V_B1+4*ct+2*h}, 16, v{40+2*ct+h}"), I(f"v_and_b32 v{V_B1+4*ct+2*h+1}, 0xffff0000, v{40+2*ct+h}")]
    L += wr[:6] + interleave(wr[6:nw], bias)
    L += [W(vm=['st0'])] + af_reads(0, 0)
    L += [W(lgkm=['xw', 'xw2'][:1 if nw == 8 else 2]), I("s_barrier")]
    L += [xn_read(ks, qb) for qb in range(4) for ks in range(2)]
    L += stamp(3)
    return L

def xn_read(ks, qb):
    if ks < 8: return I(f"ds_read_b128 {ar(XN(ks,qb))}, v{V_XA} offset:{qb*16384 + ks*1024}", tag=f'xr{ks>>1}', res_r=[('slot3', True)])
    return I(f"ds_read_b128 {ar(XN(ks,qb))}, v{V_XA+1} offset:{qb*8192 + (ks&7)*1024}", tag=f'xr{ks>>1}', res_r=[('hx', True)])

A_AF2, A_KF0 = 32, 64
def AF(s, k, n=4): return ar(A_AF2 + k, n) if s >= 24 else vr(V_AF + k, n)
def HF(u, qb): return 144 + 16*u + 4*qb
def af_reads(s, p):
    st = STAGES[s]; L = []
    for c in range(2):
        for j in range(st['nks']):
            for e in range(2):
                L.append(I(f"ds_read_b64_tr_b16 {AF(s, 16*p + 8*c + 4*j + 2*e, 2)}, v{V_WA + 4*(s&1) + 2*p + c} offset:{slot_off(s) + j*4096 + e*2048}",
                           tag=f"af{s}_{p}", res_r=[(f"slot{s&3}", False)]))
    return L

def kv_dma(which, half, buf, tag):
    base = (0 if which == 'K' else LDS_V) + buf*8192 + half*4096
    so = (S_KO if which == 'K' else S_VO) + half
    L = [I(f"s_add_u32 m0, s{S_RING}, {hx(base)}")]
    for i in range(4):
        off = f" offset:{i*1024}" if i else ""
        L.append(I(f"buffer_load_dwordx4 v{V_DV + (i&1)}, {sr(SRD_K if which == 'K' else SRD_V)}, s{so} offen{off}{NT('k')} lds",
                   tag=tag, res_w=[(f"{which}{buf}", True)]))
    return L

def even(G, items, lo, hi):
    nd = sum(1 for x in items if x.kind in ('dma', 'vld', 'vst'))
    k = 0; its = []
    for x in items:
        e = lo + (k * (hi - lo + 1)) // max(nd, 1)
        if x.kind in ('dma', 'vld', 'vst'): k += 1
        else: e = max(lo, e - 3)
        its.append((x, min(e, hi)))
    return G.stream(its, lo, hi)

def k0_reads(kt):
    return [I(f"ds_read_b128 {ar(A_KF0 + 16*(kt&1) + 4*kk)}, v{V_KA+kk} offset:{kt*4096}", tag='fr', res_r=[('hx', True)]) for kk in range(4)]

def y_pack(acc, ct):
    a = acc + 16*ct
    return [I(f"v_cvt_pk_bf16_f32 v{a+8+k}, v{a+2*k}, v{a+2*k+1}") for k in range(7, -1, -1)]
def y_stores(hc):
    acc = V_ACCB if hc else V_ACCA
    return [(I(f"s_add_u32 s{S_YO + 1 + (ct&1)}, s{S_YO}, {hx(((hc*4 + ct)*2 + half) << 20)}"),
             I(f"buffer_store_dwordx4 {vr(acc + 16*ct + 8 + 4*half)}, v{V_L16}, {sr(SRD_WS2)}, s{S_YO + 1 + (ct&1)} offen sc1", tag='yst'))
            for half in range(2) for ct in range(4)]

def phase1():
    m = []; per = {}; done = {}; blk = []
    FM = (26, 0)
    for s, st in enumerate(STAGES):
        for p in range(2):
            lo = len(m)
            for c in range(2):
                ct = 2*p + c
                for qb in range(4):
                    if s >= 28 and qb % 2 == 0:
                        n = len(blk); kt, q2 = n >> 2, n & 3
                        blk.append(len(m))
                        d = vr(V_S + 4*(n % 2))
                        for kk in range(4): m.append(mf(d, ar(A_KF0 + 16*(kt&1) + 4*kk), vr(V_Q + 16*q2 + 4*kk), d if kk else vr(V_NEGM + 4*q2)))
                    d = vr(st['acc'] + 16*ct + 4*qb)
                    js = list(range(st['nks']))
                    if qb & 1 and not OPT.get('nosnake'): js.reverse()
                    for j in js:
                        cc = d
                        if st['first'] and j == js[0]: cc = vr(V_B1 + 4*ct) if st['m'] == 'w1' else "0"
                        b = HF(st['ks0'] + j, qb) if st['m'] == 'w2' else XN(st['ks0'] + j, qb)
                        ab = (AF(s, 16*p + 8*c + 4*j), ar(b))
                        if st['m'] in str(OPT.get('swap1', '')): ab = ab[::-1]
                        m.append(mf(d, ab[0], ab[1], cc))
                    done[(s, ct, qb)] = len(m) - 1
            if (s, p) == FM:
                fm0 = len(m)
                for qb in range(4):
                    d = vr(V_NEGM + 4*qb)
                    for kk in range(4): m.append(mf(d, ar(A_KF0 + 4*kk), vr(V_Q + 16*qb + 4*kk), d if kk else "0"))
            per[(s, p)] = (lo, len(m) - 1)
    G = Gaps(m)
    NS = len(STAGES)
    G.head += [W(lgkm=['xr0'])]
    for n in range(1, 32):
        b = blk[n]
        ex, cv = softmax_items(n - 1, 0)
        if n < 24:
            for r in range(4): G.pin(b + 2*r, ex[r])
            G.pin(b + 3, cv[0]); G.pin(b + 7, cv[1])
        else:
            for r in range(4): G.pin(b + 1 + r, ex[r])
            G.pin(b + 5, cv[0]); G.pin(b + 5, cv[1])
    Bh, Bk = per[(23, 1)][1], per[(25, 1)][1]
    for s in range(NS):
        for p in range(2):
            ns, npp = (s, 1) if p == 0 else (s + 1, 0)
            lo, hi = per[(s, p)]
            lg = [f"af{ns}_{npp}"] if ns < NS else []
            if npp == 0 and ns < 8: lg.append(f"xr{ns}")
            if (ns, npp) == (24, 0): lg.append('hr')
            vm = [f"st{s+1}"] if (p == 0 and s + 1 < NS) else []
            rd = af_reads(ns, npp) if ns < NS else []
            if s >= 28:
                kt = 2*(s - 28) + p
                rd = (k0_reads(kt + 1) if kt < 7 else k_reads(0, 1) + v_reads(0, 0)) + rd
                lg.append('fr')
                if kt == 6: vm.append('kv')
            if hi == Bk: vm.append('k0')
            G.pin(hi, W(vm=vm or None, lgkm=lg))
            if hi in (Bh, Bk) or (s, p) == (31, 0): G.pin(hi, I("s_barrier"))
            h = None
            if s >= 28: G.stream(rd, lo, hi - 6)
            else:
                for k, x in enumerate(rd): h = G.place(x, lo + (k // 2) * 2 + 1 if (len(rd) == 8 and s != int(OPT.get('hs', 21))) else lo, hi - 1, after=h)
    G.stream(k0_reads(0), Bk + 1, fm0 - 6)
    G.pin(fm0 - 1, W(lgkm=['fr']))
    xr = [xn_read(ks, qb) for ks in range(2, 8) for qb in range(4)]
    b1 = per[(int(OPT.get('b1s', 1)), 0)][1] if LATE['xw'] else per[(0, 1)][1]
    for k, x in enumerate(LATE['xw']): G.pin(2*k, x)
    for k, x in enumerate(xr): G.pin(2*len(LATE['xw']) + k, x)
    G.pin(b1, W(lgkm=['xr3'] + (['xw2'] if LATE['xw'] else []))); G.pin(b1, I("s_barrier"))
    G.stream([xn_read(ks, qb) for ks in range(8, 16) for qb in range(4)], b1 + 1, per[(3, 1)][1] - 8, spread=True)
    G.pin(per[(6, 1)][1], I("s_barrier"))
    hs = int(OPT.get('hs', 21))
    hwpos = [per[(hs, p)][0] + k for p in range(2) for k in (5, 8, 11, 14)]
    hbar = per[(hs + 1, 0)][0] + 5
    pause = (hwpos[0] - int(OPT.get('pz', 16)), hwpos[-1] + 2) if OPT.get('pz') != '0' else (0, -1)
    slow = int(OPT.get('pzs', 7))
    jobs = []
    for t in range(int(OPT.get('ne', 2)), NS):
        s = t - 4
        rel = per[(s, 1)][0] if s >= 0 else (b1 + 1 if t == 3 else 0)
        d = stage_dma(t)
        if t == 3:
            for x in d:
                if x.res_w: x.res_w = [('slot3', True)]
        jobs.append((rel, d, per[(t - 1, 0)][1]))
        if t == 27:
            d = [I(f"s_lshl_b32 s{S_T+1}, s{S_W}, 13")] + kv_dma('K', 0, 0, 'k0') + kv_dma('K', 1, 0, 'k0')
            k = 0
            for n_, x in enumerate(d):
                if x.res_w: x.res_w = [('hx', True)]
                if 'm0' in x.wr: d[n_] = I(f"s_add_u32 m0, s{S_T+1}, {hx(LDS_X + 4096*k)}"); k += 1
            jobs.append((Bh + 1, d + [I("s_nop 0"), I(f"s_add_u32 s{S_KO}, s{S_KO}, 0x8000"), I(f"s_add_u32 s{S_KO+1}, s{S_KO+1}, 0x8000")], Bk))
    for which, buf, s in (('K', 1, 28), ('V', 0, 29)):
        d = kv_dma(which, 0, buf, 'kv') + kv_dma(which, 1, buf, 'kv')
        for x in d:
            if x.res_w: x.res_w = x.res_w + [(f'slot{s&3}', False)]
        so = S_KO if which == 'K' else S_VO
        jobs.append((per[(s, 1)][0], d + [I("s_nop 0"), I(f"s_add_u32 s{so}, s{so}, 0x8000"), I(f"s_add_u32 s{so+1}, s{so+1}, 0x8000")], per[(31, 0)][1]))
    kz = [n for n, jb in enumerate(jobs) if any(x.tag == 'k0' for x in jb[1])][0]
    if OPT.get('k0first', '1') == '1': jobs[kz], jobs[kz - 1] = jobs[kz - 1], jobs[kz]
    if OPT.get('swap34', '1') == '1':
        k3 = [n for n, jb in enumerate(jobs) if any(x.tag == 'st3' for x in jb[1])][0]
        jobs[k3], jobs[k3 + 1] = jobs[k3 + 1], jobs[k3]
    c1, c2, c3 = float(OPT.get('catch1', 3.5)), float(OPT.get('catch', 3.5)), float(OPT.get('catch3', 3))
    margin = int(OPT.get('margin', 28)); mins = float(OPT.get('mins', 2))
    T = []; t = -99.0
    for rel, d, dl in jobs:
        k = 0
        for x in d:
            if x.kind != 'dma': continue
            step = c1 if t < per[(8, 0)][0] else (c2 if t < pause[0] else c3)
            if pause[0] <= t + step <= pause[1]: step = min(slow, pause[1] + 1 - t)
            t = max(rel + (4*k if rel else 0), t + step)
            if rel >= per[(int(OPT.get('alap0', 22)), 0)][0] and x.tag not in ('st31', 'kv', 'st30'):
                nd = sum(y.kind == 'dma' for y in d)
                t = max(t, dl - int(OPT.get('alap', 40)) - 4*(nd - 1 - k))
            k += 1
            T.append([t, rel, dl - margin])
    for n in range(len(T) - 1, -1, -1):
        lim = T[n][2] if n == len(T) - 1 else min(T[n][2], T[n + 1][0] - mins)
        T[n][0] = max(T[n][1], min(T[n][0], lim))
    for n in range(1, len(T)): T[n][0] = max(T[n][0], T[n - 1][0] + mins)
    h = None; n = 0; LAG = []
    for rel, d, dl in jobs:
        for x in d:
            if x.kind == 'dma':
                pos = max(int(T[n][0]), h[0] if h else 0); n += 1
                while pos in hwpos or pos - 1 in hwpos or any(y.kind in ('dma', 'dsw') for y in G.seq(pos)): pos += 1
                h = G.place(x, pos, pos + (1 if pos < blk[0] else 8), after=h); last = h[0]
            else:
                lo_ = max(rel - 3, h[0] if h else 0, 0)
                h = G.place(x, lo_, max(lo_, int(T[n][0]) - 1 if n < len(T) else lo_ + 3), after=h)
        LAG.append(dl - last)
    print('; dma slack', LAG, file=sys.stderr)
    G.place(kv_dma('K', 0, 0, 'kv')[0], h[0] + 1, len(G) - 1, after=h)
    if 'w2' in LATE and not OPT.get('stag'): G.stream(LATE['w2'], per[(int(OPT['s2']), 0)][0], per[(int(OPT['s2']), 1)][1])
    if 'w2' in LATE and OPT.get('stag') and LATE['w2']:
        ns = int(OPT['stag'])
        G.head = [I(f"s_lshr_b32 s95, s2, {3 + LG}"), I(f"s_and_b32 s95, s95, {ns - 1}")] + G.head
        for k in range(ns):
            g = per[(int(OPT['s2']) + k * int(OPT.get('stagstep', 1)), 0)][0] + 1
            for n_, x in enumerate(LATE['w2']):
                assert x.kind == 'vld'
                sreg = re.search(r'\], (s\d+) offen', x.text).group(1)
                while G.seq(g) or G.seq(g + 1): g += 1
                G.pin(g, I(f"s_cmp_eq_u32 s95, {k}")); G.pin(g, I(f"s_cselect_b32 s{92 + (n_ & 1)}, {sreg}, 0x10000000"))
                G.pin(g + 1, I(x.text.replace(sreg + " offen", f"s{92 + (n_ & 1)} offen"), tag='pf'))
    if LATE.get('kv'): G.stream(LATE['kv'], pause[0] + int(OPT.get('kvo', 6)), hwpos[0] - 1)
    for (sb, op) in ((8, 'v_add_u32'), (24, 'v_sub_u32')):
        for win in range(2):
            for ct in range(4):
                r = V_WA + 4*win + ct
                G.place(I(f"{op} v{r}, v{r}, v52"), per[(sb - 2 + win, 1)][0], per[(sb - 1 + win, 0)][1])
    ha, hr = V_XA, V_XA + 1
    G.stream([I(f"s_lshl_b32 s{S_T}, s{S_W}, 13"), I(f"s_add_u32 s{S_T}, s{S_T}, {hx(LDS_X)}"), I(f"v_add_u32 v{ha}, s{S_T}, v{V_L16}"),
              I(f"s_and_b32 s{S_T}, s{S_G}, 1"), I(f"s_lshl_b32 s{S_T}, s{S_T}, 12"), I(f"s_add_u32 s{S_T}, s{S_T}, {hx(LDS_X)}"),
              I(f"v_add_u32 v{hr}, s{S_T}, v{V_L16}")], per[(5, 0)][0], per[(6, 1)][1])
    for hq in range(2):
        s = 15 + 8*hq
        for p in range(2):
            kk = 2*hq + p
            items = []
            for half in range(2):
                ct = 2*p + half
                for qb in range(4):
                    e = done[(s, ct, qb)] + 6
                    a = V_ACCB + 16*ct + 4*qb; q = V_Q + 16*qb + 4*kk
                    for r in range(4): items.append((I(f"v_mul_f32 v{a+r}, s{S_QS}, v{a+r}"), e))
                    items.append((I(f"v_cvt_pk_bf16_f32 v{q+2*half}, v{a}, v{a+1}"), e))
                    items.append((I(f"v_cvt_pk_bf16_f32 v{q+2*half+1}, v{a+2}, v{a+3}"), e))
            if hq == 0:
                hnd = None
                for k in range(8):
                    its = items[6*k:6*k + 6]; e = its[0][1]
                    hn = G.stream(its, e, e - 6 + 30)
                    hnd = hn if hnd is None else max(hnd, hn)
            else:
                hnd = G.stream(items, items[0][1], fm0 - (40 if p == 0 else 12))
            sw = []
            for qb in range(4):
                q = V_Q + 16*qb + 4*kk
                sw += [I(f"v_permlane32_swap_b32 v{q}, v{q+2}"), I(f"v_permlane32_swap_b32 v{q+1}, v{q+3}")]
            G.stream(sw, hnd[0] + 2, hnd[0] + 60 if hq == 0 else fm0 - 2)
    G.pin(hbar, W(lgkm=['hw'])); G.pin(hbar, I("s_barrier"))
    hrd = [I(f"ds_read_b128 {ar(HF(u,qb))}, v{hr} offset:{u*4096 + qb*1024}", tag='hr', res_r=[('hx', True)]) for u in range(7) for qb in range(4)]
    G.stream(hrd, hbar + 1, per[(23, 1)][1] - 6)
    items = []
    T = 56
    for p in range(2):
        for qb in range(4):
            for half in range(2):
                ct = 2*p + half
                e = done[(7, ct, qb)] + 6
                a = V_ACCA + 16*ct + 4*qb
                seq = []
                seq += [f"v_mul_f32 v{T+r}, v{a+r}, v{a+r}" for r in range(4)]
                seq += [f"v_fma_f32 v{T+r}, v{T+r}, s{S_GB}, v{V_GA}" for r in range(4)]
                seq += [f"v_mul_f32 v{T+r}, v{T+r}, v{a+r}" for r in range(4)]
                seq += [f"v_exp_f32 v{T+r}, v{T+r}" for r in range(4)]
                seq += [f"v_add_f32 v{T+r}, 1.0, v{T+r}" for r in range(4)]
                seq += [f"v_rcp_f32 v{T+r}, v{T+r}" for r in range(4)]
                seq += [f"v_mul_f32 v{T+r}, v{T+r}, v{a+r}" for r in range(4)]
                a0 = V_ACCA + 16*(2*p) + 4*qb
                seq += [f"v_cvt_pk_bf16_f32 v{a0+2*half}, v{T}, v{T+1}", f"v_cvt_pk_bf16_f32 v{a0+2*half+1}, v{T+2}, v{T+3}"]
                items += [(I(x), e) for x in seq]
            G.pin(hwpos[4*p + qb], I(f"ds_write_b128 v{ha}, {vr(V_ACCA + 32*p + 4*qb)} offset:{p*4096 + qb*1024}", tag='hw', res_w=[('hx', True)]))
    n1 = len(items) * 7 // 8
    h = G.stream(items[:n1], items[0][1], hwpos[0] - 1 - int(OPT.get('gl', 0)))
    G.stream(items[n1:], h[0] + 1, hwpos[7] - 1)
    it = []
    for qb in range(4):
        b = V_NEGM + 4*qb
        it += [(I(f"v_max3_f32 v{b}, v{b}, v{b+1}, v{b+2}"), fm0 + 4*qb + 11), (I(f"v_max_f32 v{b}, v{b}, v{b+3}"), fm0 + 4*qb + 11)]
    it += [x for x in rowmax_finish() if x.kind != 'nop']
    G.stream(it, fm0 + 11, blk[0] - 2)
    for ct in range(4): G.stream(y_pack(V_ACCA, ct), done[(27, ct, 3)] + 6, blk[ct + 1] + 2)
    for k, x in enumerate(y_stores(0)):
        g = blk[(7, 7, 11, 11, 15, 15, 19, 19)[k]] + (1, 5)[k & 1]
        G.pin(g - 1, x[0]); G.pin(g, x[1])
    su = attn_setup()
    G.stream(su['pre'] + [I(f"v_accvgpr_write_b32 a{A_L + 4*q + k}, 0") for q in range(4) for k in range(2)], blk[12], blk[20] - 1)
    G.stream(su['va'][:8], blk[20], blk[28] - 1)
    G.stream(su['sp'], blk[24], len(G) - 2)
    e = max(i for i in range(len(G)) if any(x.kind == 'dsr' and x.res_r == [('hx', True)] for x in G.seq(i)))
    G.stream([I(f"v_subrev_u32 v{V_KA+kk}, {hx(LDS_X)}, v{V_KA+kk}") for kk in range(4)], e, blk[28] - 1)
    global VA_LATE
    VA_LATE = su['va'][8:]
    for k in range(16): ministamp(G, per[(2*k + 1, 1)][1], 32 + k)
    out = with_m0_pad(G.flat()) + [I("s_nop 0")]
    print(f"; phase1: {len(G)} mfma, est cycles {G.cycles()} pairs {[G.cyc(per[(2*k,0)][0], per[(2*k+1,1)][1]) for k in range(16)]}", file=sys.stderr)
    return out

def P(buf, qb, ks): return V_P + 64*buf + 16*qb + 4*ks
def k_reads(kt, buf, res=True):
    return [I(f"ds_read_b128 {ar(A_KF + 16*(kt&1) + 4*kk)}, v{V_KA+kk} offset:{(kt>>1)*16384 + (kt&1)*4096 + buf*8192}",
              tag='fr', res_r=[(f"K{buf}", True)] if res else None) for kk in range(4)]
def v_reads(dt, buf):
    return [I(f"ds_read_b64_tr_b16 {ar(A_VF + 16*(dt&1) + 4*ks + 2*e, 2)}, v{V_VA+dt} offset:{ks*16384 + buf*8192 + e*4096}",
              tag='fr', res_r=[(f"V{buf}", True)]) for ks in range(4) for e in range(2)]

def attn_setup():
    t1, t2, t3 = 56, 57, 58
    pre = [f"v_bfe_u32 v{t3}, v{V_L16}, 4, 2",
           f"v_cmp_eq_u32 vcc, 1, v{t3}", f"v_mov_b32 v{t1}, 0x44444444", f"v_mov_b32 v{t2}, 0xeeeeeeee", f"v_cndmask_b32 v{V_SPI}, v{t1}, v{t2}, vcc",
           f"v_cmp_gt_u32 vcc, 2, v{t3}", f"v_mov_b32 v{t1}, 0x3f803f80", f"v_lshrrev_b32 v{t2}, 6, v{V_L16}", f"v_cndmask_b32 v59, 0, v{t1}, vcc",
           f"v_lshlrev_b32 v{t1}, 8, v{t2}", f"v_and_b32 v{t2}, 7, v{t2}", f"v_lshl_add_u32 v{t1}, v{t3}, 3, v{t1}", f"v_add_u32 v{t1}, 0x10000, v{t1}"]
    va = []
    for dt in range(8): va += [f"v_xor_b32 v{V_VA+dt}, {dt}, v{t2}", f"v_lshl_add_u32 v{V_VA+dt}, v{V_VA+dt}, 5, v{t1}"]
    sp = [f"v_accvgpr_write_b32 a{A_SPA+i}, v59" for i in range(4)] + [f"v_accvgpr_write_b32 a{A_FILL+i}, -1" for i in range(4)]
    return dict(pre=[I(x) for x in pre], va=[I(x) for x in va], sp=[I(x) for x in sp])

def rowmax_finish():
    L = []; A = lambda t, **k: L.append(I(t, **k))
    for sw in ("v_permlane32_swap_b32", "v_permlane16_swap_b32"):
        for qb in range(4): A(f"v_mov_b32 v{V_NEGM+4*qb+1}, v{V_NEGM+4*qb}")
        A("s_nop 1")
        for qb in range(4): A(f"{sw} v{V_NEGM+4*qb}, v{V_NEGM+4*qb+1}")
        for qb in range(4): A(f"v_max_f32 v{V_NEGM+4*qb}, v{V_NEGM+4*qb}, v{V_NEGM+4*qb+1}")
    for qb in range(4): A(f"v_sub_f32 v{V_NEGM+4*qb}, 0, v{V_NEGM+4*qb}")
    for qb in range(4):
        for r in range(1, 4): A(f"v_mov_b32 v{V_NEGM+4*qb+r}, v{V_NEGM+4*qb}")
    return L

NSB = 3
def softmax_items(n, pbuf):
    kt, qb = n >> 2, n & 3
    s = V_S + 4*(n % 2)
    p = P(pbuf, qb, kt >> 1) + 2*(kt & 1)
    ex = [I(f"v_exp_f32 v{s+r}, v{s+r}") for r in range(4)]
    cv = [I(f"v_cvt_pk_bf16_f32 v{p}, v{s}, v{s+1}"), I(f"v_cvt_pk_bf16_f32 v{p+1}, v{s+2}, v{s+3}")]
    return ex, cv

def smf(pbuf, qb, h):
    return I(f"v_smfmac_f32_16x16x64_bf16 {ar(A_L + 4*qb)}, {ar(A_SPA)}, {vr(P(pbuf, qb, 2*h), 8)}, v{V_SPI}")

def attn_iter(par, first_pv=False, vmtags=('kv',), d0=0):
    m = []; blk = []; sg = []
    for i in range(8):
        for qb in range(4):
            n = 4*i + qb
            blk.append(len(m))
            d = vr(V_S + 4*(n % 2))
            for kk in range(4):
                m.append(mf(d, ar(A_KF + 16*(i&1) + 4*kk), vr(V_Q + 16*qb + 4*kk), d if kk else vr(V_NEGM + 4*qb)))
            o = ar(A_O + 16*i + 4*qb)
            for ks in range(4):
                ab = (ar(A_VF + 16*(i&1) + 4*ks), vr(P(par ^ 1, qb, ks)))
                ab = ab[::-1]
                m.append(mf(o, ab[0], ab[1], "0" if (first_pv and ks == 0) else o))
        sg.append(len(m))
        m.append(smf(par ^ 1, i >> 1, i & 1))
    G = Gaps(m)
    for n in range(32):
        b = blk[n]
        ex, cv = softmax_items((n - 1) % 32, par if n else par ^ 1)
        for r in range(4): G.pin(b + 2*r, ex[r])
        G.pin(b + 3, cv[0]); G.pin(b + 7, cv[1])
    for i in range(8):
        if i < 7: rd = k_reads(i + 1, par) + v_reads(i + 1, par ^ 1)
        else: rd = k_reads(0, par ^ 1) + v_reads(0, par)
        k = 0
        for qb in range(3):
            b = blk[4*i + qb]
            for gp in (3, 5, 5, 7):
                G.pin(b + gp, rd[k]); k += 1
        if i == 6:
            G.pin(sg[i], W(vm=list(vmtags), lgkm=['fr'])); G.pin(sg[i], I("s_barrier"))
        else:
            G.pin(sg[i], W(lgkm=['fr']))
    groups = [kv_dma('K', 0, par ^ 1, 'kv'), kv_dma('K', 1, par ^ 1, 'kv'), kv_dma('V', 0, par, 'kv'), kv_dma('V', 1, par, 'kv')]
    for i in range(4):
        for qb in range(4): G.pin(blk[4*(i + d0) + qb] + 1, groups[i][1 + qb])
        if i < 3: G.pin(blk[4*(i + d0) + 3] + 4, groups[i + 1][0])
    nxt = kv_dma('K', 0, par, 'kv')[0]
    G.pin(blk[4*7 + 3] + 3, nxt)
    for k in range(4): G.pin(blk[4*7 + (k >> 1)] + 1, I(f"s_add_u32 s{S_KO+k}, s{S_KO+k}, 0x8000"))
    G.blk = blk; G.sg = sg
    return G

def y_load(half, dst=None):
    dst = V_YB if dst is None else dst
    return I(f"buffer_load_dwordx4 {vr(dst)}, v{V_L16}, {sr(SRD_WS)}, s{S_YL} offen sc1", tag=f'yl{dst}')
def y_add(half, src=None, V_YT=V_YT):
    src = V_YB if src is None else src
    L = []
    for k in range(4):
        a = V_YS + 8*half + 2*k
        L += [I(f"v_lshlrev_b32 v{V_YT}, 16, v{src+k}"), I(f"v_and_b32 v{src+k}, 0xffff0000, v{src+k}"),
              I(f"v_add_f32 v{a}, v{a}, v{V_YT}"), I(f"v_add_f32 v{a+1}, v{a+1}, v{src+k}")]
    return L
def y_next():
    return [I(f"s_add_u32 s{S_YI}, s{S_YI}, 1024"), I(f"s_and_b32 s{S_YI}, s{S_YI}, 0x1fff"), I(f"s_add_u32 s{S_YL}, s{S_YI}, s{S_CB2}")]
def cnt_load(vreg=None): return I(f"buffer_load_dword v{vreg or V_CNT}, off, {sr(SRD_DBG)}, s{S_CL} sc1", tag='cnt')
def cnt_check(G, gap, need, name, read=True, vreg=None):
    if read: G.pin(gap, I(f"v_readfirstlane_b32 s{S_T+2}, v{V_CNT}"))
    G.pin(gap + (1 if read else 2), I(f"s_cmp_lt_u32 s{S_T+2}, {need}"))
    for x in (I(f"s_cbranch_scc1 L_W{name}"), I(f"L_B{name}:")): G.pin(gap + 2, x)
    STUBS.extend([I(f"L_W{name}:"), I(f"s_mov_b32 s{S_SPIN}, 0x40000"), I(f"L_W{name}_l:"), cnt_load(vreg), I(f"s_sub_u32 s{S_SPIN}, s{S_SPIN}, 1"),
                  I("s_waitcnt vmcnt(0)"), I(f"v_readfirstlane_b32 s{S_T+2}, v{vreg or V_CNT}"), I("s_nop 3"),
                  I(f"s_cmp_ge_u32 s{S_T+2}, {need}"), I(f"s_cbranch_scc1 L_B{name}"),
                  I(f"s_cmp_gt_i32 s{S_SPIN}, 0"), I(f"s_cbranch_scc1 L_W{name}_l"), I(f"s_branch L_B{name}")])
def arrive(va, vd):
    return [I(f"v_add_u32 v{va}, s{S_RING}, v{V_L16}"), I(f"v_or_b32 v{va}, s{S_PASS}, v{va}"), I(f"v_min_u32 v{va}, 1, v{va}"), I(f"v_lshlrev_b32 v{va}, 12, v{va}"),
            I(f"v_mov_b32 v{vd}, 1")], I(f"buffer_atomic_add v{vd}, v{va}, {sr(SRD_DBG)}, s{S_CA} offen sc1", tag='atom')

def xo_voff(dst, t):
    return [I(f"v_bfe_u32 v{dst}, v{V_L16}, 4, 5"), I(f"v_lshlrev_b32 v{dst}, 10, v{dst}"),
            I(f"v_lshrrev_b32 v{t}, 9, v{V_L16}"), I(f"v_lshl_add_u32 v{dst}, v{t}, 4, v{dst}")]

def it1_extras(G):
    blk = G.blk
    t0, t1, t2 = V_YS + 8, V_YS + 9, V_YS + 10
    su = [I(x) for x in (f"s_lshl_b32 s{S_CA}, s{S_R}, 3", f"s_mov_b32 s{S_FO}, s{S_CB}",
          f"s_and_b32 s{S_CB2}, s{S_G}, 4", f"s_add_u32 s{S_CB2}, s{S_CB2}, s{S_W}", f"s_lshl_b32 s{S_CB2}, s{S_CB2}, 21",
          f"s_lshl_b32 s{S_YI}, s{S_R}, 2", f"s_and_b32 s{S_YL}, s{S_G}, 3", f"s_add_u32 s{S_YI}, s{S_YI}, s{S_YL}", f"s_lshl_b32 s{S_YI}, s{S_YI}, 13",
          f"s_add_u32 s{S_CB2}, s{S_CB2}, s{S_YI}", f"s_add_u32 s{S_CB2}, s{S_CB2}, {hx(WS_Y)}",
          f"s_add_u32 s{S_YI}, s{S_G}, 7", f"s_lshl_b32 s{S_YI}, s{S_YI}, 10", f"s_mov_b32 s{S_YL}, {hx(1 << 28)}",
          f"s_lshl_b32 s{S_T}, s{S_G}, 7", f"s_lshl_b32 s{S_T+1}, s{S_W}, 5", f"s_add_u32 s{S_T}, s{S_T}, s{S_T+1}",
          f"v_lshrrev_b32 v{t0}, 8, v{V_L16}", f"v_lshlrev_b32 v{t0}, 3, v{t0}")]
    su.append(I(f"buffer_load_dwordx2 {vr(V_YB,2)}, v{t0}, {sr(SRD_B2)}, s{S_T} offen", tag='b2'))
    su += [I(f"s_lshl_b32 s{S_XO}, s{S_R}, 16"), I(f"s_add_u32 s{S_XO}, s{S_XO}, s{S_T}"), I(f"s_add_u32 s{S_XO+1}, s{S_XO}, 32768")]
    su += xo_voff(t1, t2)
    for h in range(2): su.append(I(f"buffer_load_dwordx4 {ar(A_XT+4*h)}, v{t1}, {sr(SRD_X)}, s{S_XO+h} offen", tag='xt'))
    su += [I(x) for x in (f"v_bfe_u32 v{t0}, v{V_L16}, 4, 3", f"v_lshrrev_b32 v{t2}, 8, v{V_L16}", f"v_lshlrev_b32 v{t2}, 1, v{t2}", f"v_xor_b32 v{t0}, v{t0}, v{t2}",
           f"v_lshrrev_b32 v{t2}, 7, v{V_L16}", f"v_lshlrev_b32 v{t2}, 10, v{t2}", f"v_lshl_add_u32 v{t2}, v{t0}, 4, v{t2}",
           f"s_lshl_b32 s{S_T}, s{S_G}, 19", f"s_lshl_b32 s{S_T+1}, s{S_W}, 17", f"s_add_u32 s{S_T}, s{S_T}, s{S_T+1}",
           f"v_add_u32 v{t2}, s{S_T}, v{t2}", f"v_accvgpr_write_b32 a{A_WOB}, v{t2}", f"s_lshl_b32 s{S_WO+1}, s{S_W}, 13")]
    for ct in range(4): G.stream(y_pack(V_ACCB, ct), 0 if ct < 3 else 4, blk[ct + 1] + 2)
    for k, x in enumerate(y_stores(1)):
        g = (blk[15] + 5, G.sg[3], blk[17] + 1, blk[18] + 1, blk[19] + 1, blk[19] + 5, blk[23] + 1, blk[23] + 5)[k]
        G.pin(g - 1, x[0]); G.pin(g, x[1])
    G.stream(VA_LATE, blk[4] + 3, blk[12] - 1)
    k = [n for n, x in enumerate(su) if x.tag == 'b2'][0]
    h = G.stream(su[:k+1], blk[1], blk[8])
    G.stream(su[k+1:], blk[20], blk[25])
    h = G.stream(wo_dma(0, vwob=t2), blk[25] + 1, blk[31] + 2)
    ini = [W(vm=['b2'])]
    for q in (0, 1, 3):
        for k in range(2):
            ini += [I(f"v_lshlrev_b32 v{V_YS+4*q+2*k}, 16, v{V_YB+k}"), I(f"v_and_b32 v{V_YS+4*q+2*k+1}, 0xffff0000, v{V_YB+k}")]
    G.stream(ini + [y_load(0)], blk[12], blk[22])
    G.stream([I(f"v_mov_b32 v{V_YS+8+k}, v{V_YS+k}") for k in range(4)], h[0], len(G) - 1)
    G.stream([I(f"s_min_u32 s{SRD_WS2+2}, s{SRD_WS2+2}, {hx(14 << 20)}"),
              I(f"s_mov_b32 s{S_NEED}, 0"), I(f"s_mov_b32 s{S_CL}, 0x1000")], blk[25], blk[31])

def kv_touch(srdb):
    return I(f"buffer_load_dword a{A_PF}, v{V_PFO}, {sr(srdb)}, s{S_KT} offen", tag='pf')
def fills():
    return [I(f"buffer_store_dwordx4 {ar(A_FILL)}, v{V_L16}, {sr(SRD_WS2)}, s{S_FO} offen sc1", tag='fill') for k in range(3)]

def loop_extras(ge, go):
    for G, half in ((ge, 0), (go, 1)):
        blk = G.blk
        it = [W(vm=[f'yl{V_YB}'] + (['cnt'] if half else []))] + y_add(half)
        if half == 0:
            G.stream(it, blk[16], blk[22])
            G.pin(blk[22] + 1, y_load(1))
            for k, x in enumerate(fills()[:2]): G.pin(blk[23 + 4*k] + 1, x); G.pin(blk[23 + 4*k] + 6, I(f"s_add_u32 s{S_FO}, s{S_FO}, 0x100000"))
            G.pin(blk[31] + 1, cnt_load())
            G.pin(blk[30] + 1, I(f"s_cmp_eq_u32 s{S_CNT}, 7"))
            for x in (I("s_cbranch_scc1 L_AR0"), I("L_AR0B:")): G.pin(blk[30] + 2, x)
            pre, atom = arrive(V_YT, V_CNT)
            global AR0
            AR0 = [I("L_AR0:")] + pre + [atom, I("s_branch L_AR0B")]
            STUBS.extend(AR0)
        else:
            cnt_check(G, blk[21] + 1, f"s{S_NEED}", 'A')
            G.pin(blk[25] + 2, I(f"s_mov_b32 s{S_NEED}, 8")); G.pin(blk[25] + 4, I(f"s_mov_b32 s{S_CL}, s{S_CA}"))
            G.stream(it, blk[16], blk[22])
            G.stream(y_next(), blk[16], blk[21])
            G.pin(blk[22] + 1, y_load(0))
            f0 = fills()[2]; f0.tag = 'fill2'; G.pin(blk[27] + 1, f0); G.pin(blk[27] + 6, I(f"s_add_u32 s{S_FO}, s{S_FO}, 0x100000")); G.pin(blk[24] + 2, I(f"s_add_u32 s{S_YL}, s{S_YL}, 0x100000"))
            if not OPT.get('nopf'):
                G.pin(blk[23] + 1, I(f"buffer_load_dword a{A_PF}, v{V_PFO}, {sr(SRD_WO)}, s{S_PF} offen{NT('o')}", tag='pf'))
                G.pin(blk[26] + 2, I(f"s_add_u32 s{S_PF}, s{S_PF}, {1024*GG}"))
            G.pin(blk[30] + 1, I(f"s_cmp_eq_u32 s{S_CNT}, 3"))
            for x in (I("s_cbranch_scc1 L_ARR"), I("L_ARRB:")): G.pin(blk[30] + 2, x)
            pre, atom = arrive(V_YT, V_CNT)
            global ARR
            ARR = [I("L_ARR:")] + pre + [atom]
            for k, (ds, half) in enumerate(((2, 1), (3, 0), (3, 1))):
                ARR += [I(f"s_add_u32 s{93+k}, s{S_YI}, {ds*1024}"), I(f"s_and_b32 s{93+k}, s{93+k}, 0x1fff"), I(f"s_add_u32 s{93+k}, s{93+k}, s{S_CB2}")]
                if half: ARR.append(I(f"s_add_u32 s{93+k}, s{93+k}, 0x100000"))
                ARR.append(I(f"buffer_load_dwordx4 {ar(A_Y7+4*k)}, v{V_L16}, {sr(SRD_WS)}, s{93+k} offen sc1", tag='y7'))
            if not OPT.get('nocode2'):
                ARR += [I("s_getpc_b64 s[94:95]"), I("L_PC3:"), I("s_sub_u32 s94, s94, L_PC3-L_FIN"), I("s_subb_u32 s95, s95, 0"),
                        I(f"s_lshr_b32 s93, s2, 3"), I(f"s_lshl_b32 s93, s93, 2"), I(f"s_add_u32 s93, s93, s{S_W}"), I("s_lshl_b32 s93, s93, 7"),
                        I("s_min_u32 s93, s93, L_END-L_FIN"), I(f"v_mov_b32 v{V_YT}, s93"),
                        I(f"global_load_dword a{A_PF}, v{V_YT}, s[94:95]", tag='pf')]
            ARR += [I("s_branch L_ARRB")]
            STUBS.extend(ARR)

def attn_iter0():
    m = []; blk = []
    for i in range(8):
        for qb in range(4):
            n = 4*i + qb
            blk.append(len(m))
            d = vr(V_S + 4*(n % 3) if n < 30 else V_S + 4*(n % 2))
            for kk in range(4):
                m.append(mf(d, ar(A_KF + 16*(i&1) + 4*kk), vr(V_Q + 16*qb + 4*kk), d if kk else vr(V_NEGM + 4*qb)))
    G = Gaps(m)
    G.head += [I(f"v_accvgpr_write_b32 a{A_L + k}, 0") for k in range(16)]
    tail = []
    for n in range(31):
        kt, qb = n >> 2, n & 3
        s = V_S + 4*(n % 3) if n < 30 else V_S + 4*(n % 2)
        p = P(0, qb, kt >> 1) + 2*(kt & 1)
        ex = [I(f"v_exp_f32 v{s+r}, v{s+r}") for r in range(4)]
        cv = [I(f"v_cvt_pk_bf16_f32 v{p}, v{s}, v{s+1}"), I(f"v_cvt_pk_bf16_f32 v{p+1}, v{s+2}, v{s+3}")]
        if n + 2 < 32:
            b = blk[n + 2]
            G.pin(b - 1, ex[0]); G.pin(b, ex[1]); G.pin(b + 1, ex[2]); G.pin(b + 1, cv[0]); G.pin(b + 2, ex[3]); G.pin(b + 3, cv[1])
        else:
            tail += ex + cv
    for i in range(8):
        rd = k_reads(i + 1, 0) if i < 7 else k_reads(0, 1) + v_reads(0, 0)
        lo = blk[4*i]
        for k, x in enumerate(rd): G.pin(lo + (k if i == 7 else 2*k), x)
        if i == 6:
            G.pin(blk[4*i + 3] + 3, W(vm=['kv'], lgkm=['fr'])); G.pin(blk[4*i + 3] + 3, I("s_barrier"))
        elif i < 7:
            G.pin(blk[4*i + 3] + 3, W(lgkm=['fr']))
    G.pin(3, kv_dma('K', 0, 0, 'kv')[0]); G.pin(5, I("s_nop 0"))
    out = G.flat() + [I("s_nop 3")] + tail + [W(lgkm=['fr'])]
    print(f"; iter0 est cycles {G.cycles()}", file=sys.stderr)
    return out

V_RL, V_XW, V_XR, V_MISC, V_WOB, V_NT, V_OA = 16, 32, 33, 34, 35, 36, 60
V_STG = 128
def V_R(p): return [160, 64, 96, 224][p] if p < 4 else (64 if p & 1 else 160)
V_OACC = 192
def V_SP(st): return 96 + 8*st if st < 4 else 224 + 8*(st - 4)
V_XT, V_MX, V_SEL = 4, 28, 16
S_WO, S_SO = 76, 93
PER = [(0, 0), (1, 0), (0, 1), (1, 1)] + [(c, h) for c in range(2, 8) for h in range(2)]
SLOTS = dict(A=(2, 0, 8192, 'hx'), B=(1, 0, 16384, 'V0'), C=(1, 8192, 16384, 'V1'), D=(0, 0, 16384, 'K0'), E=(0, 8192, 16384, 'K1'))
def oslot(p): return SLOTS["ADBADBAECDBAECDB"[p]]

def wo_dma(p, vwob=None):
    vwob = V_WOB if vwob is None else vwob
    ci, half = PER[p]
    win, base, ps, res = oslot(p)
    L = [I(f"s_add_u32 s{S_WO}, s{S_G}, {1 + ci}"), I(f"s_and_b32 s{S_WO}, s{S_WO}, 7"), I(f"s_lshl_b32 s{S_WO}, s{S_WO}, 7")]
    for h in range(2):
        for i in range(4):
            L.append(I(f"s_add_u32 s{S_RS + i}, s{S_WO}, {hx((half*64 + h*32 + 8*i)*1024 - 1024*i)}"))
            if i == 0: L.append(I(f"s_add_u32 m0, s{S_RING if ps == 16384 else S_WO+1}, {hx(win*65536 + base + h*4096)}"))
            off = f" offset:{i*1024}" if i else ""
            L.append(I(f"buffer_load_dwordx4 v{vwob}, {sr(SRD_WO)}, s{S_RS + i} offen{off} lds", tag=f"wo{p}", res_w=[(res, True)]))
    return L

OFREG = [list(range(0, 64, 4)) + list(range(128, 176, 4)) + list(range(240, 256, 4)),
         list(range(64, 128, 4)) + list(range(176, 240, 4))]
def OF(half, j, qb): return OFREG[half][8*qb + j]
def oaf_reads(p):
    win, base, ps, res = oslot(p)
    return [I(f"ds_read_b64_tr_b16 {vr(V_R(p) + 4*j + 2*e, 2)}, v{V_OA+win} offset:{base + (j>>1)*ps + (j&1)*4096 + e*2048}",
              tag=f"oaf{p}", res_r=[(res, True)]) for j in range(8) for e in range(2)]
def of_reads(half, qb):
    return [I(f"ds_read_b64_tr_b16 {ar(OF(half, j, qb) + 2*e, 2)}, v{V_XR} offset:{(j>>1)*16384 + 8192 + (j&1)*4096 + e*2048}",
              tag=f"of{half}_{qb}", res_r=[('V1' if half else 'K1', True)]) for j in (range(8) if qb & 1 == 0 else range(7, -1, -1)) for e in range(2)]
def swz(dst, row, unit, t):
    return [I(x) for x in (f"v_bfe_u32 v{t}, v{row}, 1, 2", f"v_lshlrev_b32 v{t}, 2, v{t}", f"v_and_or_b32 v{t}, v{row}, 1, v{t}", f"v_xor_b32 v{unit}, v{unit}, v{t}",
                           f"v_lshrrev_b32 v{t}, 2, v{row}", f"v_and_b32 v{t}, 2, v{t}", f"v_xor_b32 v{unit}, v{unit}, v{t}",
                           f"v_lshlrev_b32 v{dst}, 7, v{row}", f"v_lshl_add_u32 v{dst}, v{unit}, 3, v{dst}")]
def sp_load(st):
    L = []
    for half in range(2):
        L.append(I(f"s_add_u32 s{S_YI+half}, s{S_CB}, {hx((2*st + half) << 20)}"))
        L.append(I(f"buffer_load_dwordx4 {vr(V_SP(st) + 4*half)}, v{V_L16}, {sr(SRD_WS)}, s{S_YI+half} offen sc1", tag=f"sp{st}"))
    return L
def sp_max(st):
    b = V_SP(st); m = V_MX
    return [I(f"v_max3_u32 v{m}, v{b}, v{b+1}, v{b+2}"), I(f"v_max3_u32 v{m}, v{m}, v{b+3}, v{b+4}"),
            I(f"v_max3_u32 v{m}, v{m}, v{b+5}, v{b+6}"), I(f"v_max_u32 v{m}, v{m}, v{b+7}")]

def finale():
    m = []; blk = []; sg = {}; per = []
    for i in range(8):
        for qb in range(4):
            blk.append(len(m))
            o = ar(A_O + 16*i + 4*qb)
            for ks in (range(4) if (qb & 1 == 0 or OPT.get('nosnake')) else range(3, -1, -1)): m.append(mf(o, vr(P(1, qb, ks)), ar(A_VF + 16*(i&1) + 4*ks), o))
            if (i, qb) == (2, 0):
                tm0 = len(m)
                for q in range(4): m.append(I(f"v_mfma_f32_16x16x4_f32 {vr(V_RL + 4*q)}, v{V_NT+q}, v{V_MISC}, 0"))
            if i == 0:
                for h in range(2):
                    sg[(qb, h)] = len(m); m.append(smf(1, qb, h))
    blk.append(len(m))
    for p, (ci, half) in enumerate(PER):
        lo = len(m)
        for qb in range(4):
            d = vr(V_OACC + 16*(ci & 1) + 4*qb)
            js = list(range(8))
            if qb & 1 and not OPT.get('nosnake'): js.reverse()
            for j in js:
                m.append(mf(d, vr(V_R(p) + 4*j), ar(OF(half, j, qb)), "0" if (j == js[0] and half == 0) else d))
        per.append((lo, len(m) - 1))
    G = Gaps(m)
    for q in range(4): G.cap[tm0 + q] = 6
    cnt_check(G, per[2][1] - 6, 16, 'B', read=False, vreg=V_MISC)
    Xa = blk[4] - 1
    X0 = blk[4*int(OPT.get('x0', 3))] - 1
    Xb = blk[4*int(OPT.get('xb', 5))] - 1
    X1 = blk[28] - 1
    p0, p2 = per[0][0], per[2][0]
    Xc = p0 + int(OPT.get('xc', 29))
    X2 = per[1][0] + int(OPT.get('x2', 17))
    quiet = set()
    def paced(items, lo, step, h=None):
        pos = lo - step
        for x in items:
            if x.kind == 'dma':
                pos = max(pos + step, h[0] if h else 0)
                while pos in quiet or any(y.is_mem() and y.kind != 'dsr' for y in G.seq(pos)) or (h and h[0] == pos and h[1] == 2): pos += 1
                h = G.pin(pos, x)
            else:
                st = max(lo - 3, h[0] if h else 0, 0)
                h = G.place(x, st, st + 2, after=h)
        return h
    w1pos = [X1 - 3 - 4*k for k in range(7, -1, -1)]
    w2pos = [X2 - 4 - int(OPT.get('w2s', 5))*k for k in range(7, -1, -1)]
    for g in w1pos + w2pos: quiet |= {g, g + 1}
    assert w1pos[0] > Xb
    ex, cv = softmax_items(31, 1)
    for r in range(4): G.pin(r, ex[r])
    G.pin(4, cv[0]); G.pin(4, cv[1])
    def ds_stream(rd, lo, hi, per_gap=2):
        g = lo
        for x in rd:
            while g in quiet or sum(y.kind == 'dsr' for y in G.seq(g)) >= per_gap or (x.is_b128r() and any(y.is_b128r() for y in G.seq(g))): g += 1
            assert g <= hi, (x.text, g, hi)
            G.pin(g, x)
        return g
    for i in range(7):
        ds_stream(v_reads(i + 1, 1), blk[4*i] + (1 if i == 0 else 0), blk[4*i + 4] - 4, 1 if i == 0 else 2)
        if blk[4*i + 4] - 1 not in (Xa, X0, Xb, X1): G.pin(blk[4*i + 4] - 1, W(lgkm=['fr']))
    G.head.append(I(f"v_accvgpr_read_b32 v{V_WOB}, a{A_WOB}"))
    su = [I(x) for x in (f"v_lshrrev_b32 v16, 6, v{V_L16}", "v_lshlrev_b32 v18, 7, v16", f"v_bfe_u32 v17, v{V_L16}, 4, 2", "v_lshl_add_u32 v18, v17, 3, v18",
           f"v_bfe_u32 v19, v{V_L16}, 7, 2", f"v_xor_b32 v19, s{S_W}, v19", f"v_lshl_add_u32 v{V_OA}, v19, 5, v18",
           f"v_add_u32 v{V_OA+2}, 0x20000, v{V_OA}")]
    for k, x in enumerate(su): G.pin(5 + k // 2, x)
    ds_stream(oaf_reads(0), 10, Xa - 4)
    d1 = wo_dma(1)
    for x in d1:
        if x.res_w: x.res_w = [('K0x', True)]
    h = paced(d1 + wo_dma(2), 2, 2)
    G.pin(Xa, W(lgkm=['fr', 'oaf0'])); G.pin(Xa, I("s_barrier"))
    h = paced(wo_dma(3), max(h[0], Xa) + 2, 2, h)
    e0 = sg[(3, 1)] + 5
    su = swz(V_XR, 16, 17, 18) + [I(f"v_bfe_u32 v16, v{V_L16}, 4, 4"), I(f"v_lshrrev_b32 v17, 8, v{V_L16}"),
          I(f"v_cmp_eq_u32 vcc, 0, v17")] + swz(V_XW, 16, 17, 18) + [I(f"v_cndmask_b32 v{V_MISC}, 0, 1.0, vcc")]
    su += [I(x) for x in (f"v_add_u32 v{V_XW}, s{S_RING}, v{V_XW}", f"v_add_u32 v{V_OA+1}, 0x10000, v{V_OA}",
           f"s_lshl_b32 s{S_SO+1}, s{S_R}, 5", f"s_add_u32 s{S_SO+1}, s{S_SO+1}, s{S_W}", f"s_lshl_b32 s{S_SO+1}, s{S_SO+1}, 10")]
    G.stream(su, 9, e0 - 1)
    G.stream([I(f"v_bfe_u32 v{V_MISC}, v{V_L16}, 4, 2"), I(f"v_lshlrev_b32 v{V_MISC}, 14, v{V_MISC}")], tm0 + 3, X0 - 1)
    for x in (I("s_cbranch_vccnz L_MARK"), I("L_MARKED:")): G.pin(tm0 - 1, x)
    STUBS.extend([I("L_MARK:"), I(f"v_mov_b32 v16, -1"), I(f"v_mov_b32 v17, s{S_RING}"), I(f"ds_write_b32 v17, v16 offset:8192"), I("s_waitcnt lgkmcnt(0)"), I("s_branch L_MARKED")])
    G.pin(X0, W(vm=['wo2'], lgkm=['fr'])); G.pin(X0, I("s_barrier"))
    G.pin(X0, I(f"ds_read_b32 v{V_MISC}, v{V_MISC} offset:8192", tag='mk', res_r=[('K1', True)]))
    FB = X0 + 6
    G.pin(FB - 2, W(lgkm=['mk'])); G.pin(FB - 2, I(f"v_cmp_eq_u32 vcc, -1, v{V_MISC}"))
    for x in (I("s_cbranch_vccnz L_FALLBACK0"), I("L_NOFB:")): G.pin(FB, x)
    STUBS.extend([I("L_FALLBACK0:"), I(f"s_cmp_lg_u32 s{S_PASS}, 0"), I("s_cbranch_scc1 L_NOFB"), I("s_branch L_FALLBACK")])
    o1 = oaf_reads(1)
    for x in o1: x.res_r = x.res_r + [('K0x', True)]
    ds_stream(o1 + oaf_reads(2), FB, Xb - 3)
    G.pin(Xb, W(lgkm=['fr', 'oaf2'])); G.pin(Xb, I("s_barrier"))
    G.pin(X1, W(vm=['wo3'], lgkm=['fr', 'ow0'])); G.pin(X1, I("s_barrier"))
    for half, g, pf in ((0, X1 + 1, p0), (1, X2 + 1, p2)):
        for qb in range(4):
            G.pin(pf + 8*qb - 1, W(lgkm=[f'of{half}_{qb}']))
            g = ds_stream(of_reads(half, qb), g, pf + 8*qb - 4)
            if (half, qb) != (1, 3): G.pin(g, I(f"v_xor_b32 v{V_XR}, {hx((32, 96, 32, 96 + 0x10000)[qb])}, v{V_XR}"))
            g += 1
        if half == 0: ds_stream(oaf_reads(3), p0, Xc - 3, 3)
    G.pin(Xc, W(lgkm=['of0_3', 'oaf3'])); G.pin(Xc, I("s_barrier"))
    G.pin(X2, W(lgkm=['ow1'])); G.pin(X2, I("s_barrier"))
    skip = set(int(x) for x in OPT.get('skip', '99').split(',') if x)
    for p in range(2, 15):
        lo, hi = per[p]
        q = p + 1
        lg = [f"oaf{q}"] if p > 2 else ['of1_3']
        if q < 15 and q not in skip:
            G.pin(hi, W(vm=[f"wo{q+2 if q+1 in skip else q+1}"], lgkm=lg)); G.pin(hi, I("s_barrier"))
        else:
            G.pin(hi, W(lgkm=lg))
        if p > 2:
            for k, x in enumerate(oaf_reads(q)): G.pin(lo + 1 + 3*(k // 2), x)
    h = paced(wo_dma(4) + wo_dma(5), Xb + 1, 4, h)
    h = paced(wo_dma(6) + wo_dma(7), max(h[0] + 4, Xc + 1), 4, h)
    pace = int(OPT.get('pace', 40))
    for k in range(8):
        q = 8 + k
        rel = q - 5
        while rel in skip: rel += 1
        need = q - 1
        while need in skip: need -= 1
        lo = max(per[rel][0], min(per[3][0] + pace*k, per[need][0] - int(OPT.get('fm', 28)) - 32), h[0] + 2)
        step = max(2, min(pace // 8, (per[need][0] - int(OPT.get('fm', 28)) - lo) // 7))
        h = paced(wo_dma(q), lo, step, h)
    items = []
    for qb in range(4):
        items += [I(f"v_accvgpr_read_b32 v{V_NT+qb}, a{A_L+4*qb}"), I(f"v_accvgpr_read_b32 v16, a{A_L+4*qb+1}"),
                  I(f"v_add_f32 v{V_NT+qb}, v{V_NT+qb}, v16")]
    items += [I(f"v_add_f32 v16, v{V_NT}, v{V_NT+1}"), I(f"v_add_f32 v17, v{V_NT+2}, v{V_NT+3}"), I(f"v_add_f32 v16, v16, v17"),
              I(f"v_cmp_ngt_f32 vcc, {hx(f2u(2.0**40))}, v16")]
    items += [I(f"v_rcp_f32 v{V_NT+qb}, v{V_NT+qb}") for qb in range(4)]
    G.stream(items, e0, tm0 - 2)
    h = (tm0 + 2, 2)
    def norm(i, qb):
        e = blk[4*i + qb] + 3 + 6
        st = V_STG + 16*((i >> 1) & 1) + 4*qb
        o = A_O + 16*i + 4*qb; T = V_NT
        seq = [I(f"v_accvgpr_read_b32 v{T+r}, a{o+r}") for r in range(4)]
        seq += [I(f"v_mul_f32 v{T+r}, v{T+r}, v{V_RL+4*qb+r}") for r in range(4)]
        seq += [I(f"v_cvt_pk_bf16_f32 v{st+2*(i&1)}, v{T}, v{T+1}"), I(f"v_cvt_pk_bf16_f32 v{st+2*(i&1)+1}, v{T+2}, v{T+3}")]
        return [(x, e) for x in seq]
    for hf, wpos in ((0, w1pos), (1, w2pos)):
        for k in range(8):
            u, qb = 2*hf + (k >> 2), k & 3
            st = V_STG + 16*(u&1) + 4*qb
            G.pin(wpos[k], I(f"ds_write2st64_b64 v{V_XW}, {vr(st, 2)}, {vr(st + 2, 2)} offset0:{16 + 8*(u&1)} offset1:{20 + 8*(u&1)}", tag=f'ow{hf}',
                             res_w=[('V1' if hf else 'K1', True)]))
            if (hf, k) != (1, 7): G.pin(wpos[k] + 1, I(f"v_xor_b32 v{V_XW}, {hx((32, 96)[k & 1] + (0x10000 if k == 7 else 0))}, v{V_XW}"))
    for hf, wpos in ((0, w1pos), (1, w2pos)):
        lo = h[0] + 1; span = wpos[7] - lo
        for k in range(8):
            u, qb = 2*hf + (k >> 2), k & 3
            its = norm(2*u, qb) + norm(2*u + 1, qb)
            if hf: its = [(x, max(e, w1pos[k] + 2)) for x, e in its]
            hi = min(wpos[k] - 1, max(lo + (span * (k + 1)) // 8, its[-1][1] + 4))
            h = G.stream(its, h[0] + 1, max(hi, h[0] + 3))
            assert h[0] < wpos[k]
    G.stream([I(f"v_accvgpr_read_b32 v{V_XT+k}, a{A_XT+k}") for k in range(8)] + [I(f"v_accvgpr_read_b32 v{16 + k}, a{A_Y7+k}") for k in range(12)], X2 - 3, X2 + 22)
    for ci in range(7):
        pl = PER.index((ci, 1))
        a = V_OACC + 16*(ci & 1)
        e0 = per[pl][0] + 20
        items = [(I(x), e0) for x in (f"s_add_u32 s{S_SO}, s{S_G}, {1 + ci}", f"s_and_b32 s{S_SO}, s{S_SO}, 7", f"s_lshl_b32 s{S_SO}, s{S_SO}, 12",
                 f"s_add_u32 s{S_SO}, s{S_SO}, s{S_SO+1}", f"s_add_u32 s{S_SO+2}, s{S_SO}, 0x100000", f"s_add_u32 s{S_SO+1}, s{S_SO+1}, 0x200000")]
        st = V_STG + 8*(ci & 1)
        for half in range(2):
            e = per[pl][0] + 16*half + 15 + 6
            for k in range(4*half, 4*half + 4): items.append((I(f"v_cvt_pk_bf16_f32 v{st+k}, v{a+2*k}, v{a+2*k+1}"), e))
            for k in range(4*half, 4*half + 4): items.append((I(f"v_min_u32 v{st+k}, -2, v{st+k}"), e))
            items.append((I(f"buffer_store_dwordx4 {vr(st+4*half)}, v{V_L16}, {sr(SRD_WS)}, s{S_SO + 2*half} offen sc1", tag='sst'), max(e, per[2][1] + 1)))
        G.stream(items, e0, per[pl + 1][0] + 18)
    it = y_add(0, None, V_MX) + y_add(1, 16, V_MX) + y_add(0, 20, V_MX) + y_add(1, 24, V_MX)
    for q0 in range(0, 16, 4):
        T = V_NT
        it += [I(f"v_mul_f32 v{T+r}, {hx(f2u(-math.log2(math.e)))}, v{V_YS+q0+r}") for r in range(4)]
        it += [I(f"v_exp_f32 v{T+r}, v{T+r}") for r in range(4)]
        it += [I(f"v_add_f32 v{T+r}, 1.0, v{T+r}") for r in range(4)]
        it += [I(f"v_rcp_f32 v{T+r}, v{T+r}") for r in range(4)]
        it += [I(f"v_mul_f32 v{V_YS+q0+r}, v{V_YS+q0+r}, v{T+r}") for r in range(4)]
    V_XF = 144
    for h in range(2): it += [I(f"v_permlane16_swap_b32 v{V_XT+4*h}, v{V_XT+4*h+2}"), I(f"v_permlane16_swap_b32 v{V_XT+4*h+1}, v{V_XT+4*h+3}")]
    for k in range(8): it += [I(f"v_lshlrev_b32 v{V_XF+2*k}, 16, v{V_XT+k}"), I(f"v_and_b32 v{V_XF+2*k+1}, 0xffff0000, v{V_XT+k}")]
    it += xo_voff(3, 2)
    it += [I(x) for x in (f"v_bfe_u32 v0, v{V_L16}, 6, 2", f"v_lshrrev_b32 v1, 8, v{V_L16}", "v_cmp_eq_u32 vcc, v0, v1",
           f"v_and_b32 v0, 16, v{V_L16}", "v_mov_b32 v1, 0x3f80", "v_lshlrev_b32 v0, v0, v1", "v_cndmask_b32 v0, 0, v0, vcc",
           f"v_and_b32 v1, 32, v{V_L16}", "v_cmp_eq_u32 vcc, 0, v1", f"v_mov_b32 v{V_SEL}, 0", f"v_mov_b32 v{V_SEL+1}, 0",
           f"v_cndmask_b32 v{V_SEL+2}, 0, v0, vcc", f"v_mov_b32 v{V_SEL+4}, 0", f"v_sub_u32 v{V_SEL+3}, v0, v{V_SEL+2}", f"v_mov_b32 v{V_SEL+5}, 0")]
    NE_ = int(OPT.get('ne5', 4))
    lds_ = [float(x) for x in OPT.get('lds', '6.6,8.6,10.6,12.6,14.6,14.6').split(',')]
    h = None
    for st in range(6):
        g = per[0][0] + int(32*lds_[st])
        g = max(g, h[0] + 1 if h else 0)
        h = G.stream(sp_load(st), g, g + 5)
    G.stream(it, per[4][0], per[14][1])
    def chk(sts):
        regs = [V_SP(st) + k for st in sts for k in range(8)]
        out = [I(f"v_max_u32 v{V_MX}, v{regs[0]}, v{regs[1]}")]
        for k in range(2, len(regs), 2): out.append(I(f"v_max3_u32 v{V_MX}, v{V_MX}, v{regs[k]}, v{regs[k+1]}"))
        return out + [I(f"v_cmp_eq_u32 vcc, -1, v{V_MX}")]
    c0 = chk(range(NE_))
    G.stream([I(f"s_mov_b32 s{S_SPIN}, 0x40000"), W(vm=[f"sp{NE_-1}"])] + c0, per[15][1] - len(c0)//2 - 4, per[15][1] - 1)
    if OPT['stamps']:
        for x in stamp(9): G.pin(p0 - 1, x, post=True)
    for k in range(16): ministamp(G, per[k][1], 48 + k)
    print(f"; finale est cycles {G.cycles()} (pv part {G.cyc(0, p0-1)}, periods {[G.cyc(a, b) for a, b in per]})", file=sys.stderr)
    L = with_m0_pad(G.flat()); A = lambda t, **k: L.append(I(t, **k))
    L += sp_load(6)
    L += stamp(10)
    acc = V_OACC + 16; U = 160
    groups = [list(range(NE_))] + [[st] for st in range(NE_, 7)]
    for n_, sts in enumerate(groups):
        A(f"s_cbranch_vccnz L_RETRY{n_}"); A(f"L_GO{n_}:")
        mm = [mf(vr(acc + 4*qb), vr(V_SEL + (0 if qb & 1 else 2)), vr(V_SP(st) + 4*(qb >> 1)), vr(acc + 4*qb)) for qb in range(4) for st in sts]
        nx = [W(vm=[f"sp{groups[n_+1][0]}"])] + chk(groups[n_ + 1]) + [I("s_nop 1")] if n_ + 1 < len(groups) else [I("s_nop 7")]
        L += mm + nx
        STUBS.append(I(f"L_RETRY{n_}:"))
        for st in sts:
            if len(sts) > 1: STUBS.extend(chk([st]) + [I("s_nop 3"), I(f"s_cbranch_vccz L_RN{st}")])
            STUBS.extend([I(f"L_RL{st}:")] + sp_load(st) + [I(f"s_sub_u32 s{S_SPIN}, s{S_SPIN}, 1"), I("s_waitcnt vmcnt(0)")] + chk([st]) +
                         [I(f"s_cmp_le_i32 s{S_SPIN}, 0"), I(f"s_cbranch_scc1 L_RN{st}"), I("s_nop 1"), I(f"s_cbranch_vccnz L_RL{st}"), I(f"L_RN{st}:")])
        STUBS.append(I(f"s_branch L_GO{n_}"))
    for k in range(8): A(f"v_pk_fma_f32 {vr(acc+2*k,2)}, {vr(acc+2*k,2)}, {vr(V_YS+2*k,2)}, {vr(V_XF+2*k,2)}")
    for k in range(8): A(f"v_cvt_pk_bf16_f32 v{U+k}, v{acc+2*k}, v{acc+2*k+1}")
    for h in range(2):
        A(f"v_permlane16_swap_b32 v{U+4*h}, v{U+4*h+2}"); A(f"v_permlane16_swap_b32 v{U+4*h+1}, v{U+4*h+3}")
    for h in range(2): A(f"buffer_store_dwordx4 {vr(U+4*h)}, v3, {sr(SRD_OUT)}, s{S_XO+h} offen {OPT.get('outf', '').replace('+', ' ')}", tag='out')
    return L

def fallback():
    L = []; A = lambda t, **k: L.append(I(t, **k))
    A("L_FALLBACK:")
    A("s_waitcnt vmcnt(0) lgkmcnt(0)"); A("s_nop 7")
    A(f"s_mov_b32 s{S_PASS}, 1")
    A(f"s_mov_b32 s{SRD_WS2+2}, 0")
    A(f"s_lshl_b32 s{S_KO}, s{S_W}, 13"); A(f"s_add_u32 s{S_KO+1}, s{S_KO}, 4096")
    for qb in range(4): A(f"v_mov_b32 v{V_NEGM+4*qb}, 0xff800000")
    A(f"s_mov_b32 s{S_CNT}, 17")
    A("L_FB_LOOP:")
    A("s_waitcnt vmcnt(0) lgkmcnt(0)"); A("s_barrier")
    A(f"s_cmp_lg_u32 s{S_CNT}, 1"); A("s_cbranch_scc1 L_FB_NR")
    A(f"s_lshl_b32 s{S_KO}, s{S_W}, 13"); A(f"s_add_u32 s{S_KO+1}, s{S_KO}, 4096")
    A("L_FB_NR:")
    L += with_m0_pad(kv_dma('K', 0, 0, 'kv') + kv_dma('K', 1, 0, 'kv'))
    A("s_waitcnt vmcnt(0)"); A("s_barrier")
    for kt in range(8):
        L += k_reads(kt, 0); A("s_waitcnt lgkmcnt(0)")
        for qb in range(4):
            d = vr(V_P + 4*qb)
            for kk in range(4): L.append(mf(d, ar(A_KF + 16*(kt&1) + 4*kk), vr(V_Q + 16*qb + 4*kk), d if kk else "0"))
        A("s_nop 7")
        for qb in range(4):
            b = V_NEGM + 4*qb; d = V_P + 4*qb
            A(f"v_max3_f32 v{b}, v{b}, v{d}, v{d+1}"); A(f"v_max3_f32 v{b}, v{b}, v{d+2}, v{d+3}")
    A(f"s_add_u32 s{S_KO}, s{S_KO}, 0x8000"); A(f"s_add_u32 s{S_KO+1}, s{S_KO+1}, 0x8000")
    A(f"s_sub_u32 s{S_CNT}, s{S_CNT}, 1"); A(f"s_cmp_lg_u32 s{S_CNT}, 0"); A("s_cbranch_scc1 L_FB_LOOP")
    L += rowmax_finish()
    A(f"s_lshl_b32 s{S_VO}, s{S_W}, 13"); A(f"s_add_u32 s{S_VO+1}, s{S_VO}, 4096")
    L += with_m0_pad(kv_dma('K', 0, 1, 'kv') + kv_dma('K', 1, 1, 'kv') + kv_dma('V', 0, 0, 'kv') + kv_dma('V', 1, 0, 'kv'))
    L += k_reads(0, 0); A("s_waitcnt lgkmcnt(0)")
    for k in range(4): A(f"s_add_u32 s{S_KO+k}, s{S_KO+k}, 0x8000")
    L += attn_setup()['pre']
    L += attn_iter0()
    A("s_branch L_IT1")
    return L

def build():
    d = OPT['dump']
    p0 = phase0(); p1 = phase1()
    su = stamp(4) + (stamp(5) if not OPT.get('fine') else []) + stamp(6)
    it0 = []
    g1 = attn_iter(1, first_pv=True); ge, go = attn_iter(0, vmtags=('kv', 'yst')), attn_iter(1, vmtags=('kv', 'fill'))
    go.pin(len(go) - 4, I(f"s_sub_u32 s{S_CNT}, s{S_CNT}, 1")); go.pin(len(go) - 4, I(f"s_cmp_lg_u32 s{S_CNT}, 0"))
    it1_extras(g1); loop_extras(ge, go)
    if OPT.get('trip'):
        for G_, base in ((ge, 32), (go, 48)):
            for x in (I(f"s_memtime s[{S_STAMP}:{S_STAMP+1}]"), I(f"s_add_u32 s98, s{S_CNT}, {base}"), I("s_waitcnt lgkmcnt(0)"), I(f"v_mov_b32 v{V_YT}, s{S_STAMP}"), I(f"v_lshrrev_b32 v{V_CNT if G_ is go else V_YT}, 0, v{V_YT}")): pass
            for x in (I(f"s_memtime s[{S_STAMP}:{S_STAMP+1}]"), I(f"s_mov_b32 s101, m0"), I(f"s_add_u32 m0, s{S_CNT}, {base}"), I("s_waitcnt lgkmcnt(0)"), I(f"v_writelane_b32 v63, s{S_STAMP}, m0"), I("s_nop 1"), I("s_mov_b32 m0, s101")): G_.pin(G_.sg[6], x, post=True)
    print(f"; attn iter est cycles {ge.cycles()} {go.cycles()} (it1 {g1.cycles()})", file=sys.stderr)
    if OPT.get('idle'): su = su + [I("s_nop 15")] * (int(OPT['idle']) // 64)
    if OPT.get('idlel'):
        for k in range(int(OPT['idlel'])): ge.pin(ge.sg[k], I("s_nop 15"), post=True); go.pin(go.sg[k], I("s_nop 15"), post=True)
    it1 = [I("L_IT1:")] + with_m0_pad(g1.flat()) + [I(f"s_mov_b32 s{S_CNT}, 7")] + stamp(7)
    loop = [I(".p2align 6"), I("L_LOOP:")] + ge.flat() + go.flat() + [I("s_cbranch_scc1 L_LOOP")]
    last = [I("L_FIN:")] + stamp(8) + finale()
    if OPT['stamps']: last += [I(f"v_writelane_b32 v63, s{S_SPIN}, 15")]
    last += stamp(11 if not OPT.get('fine') else 14, True)
    op = []
    fb = fallback()
    end = [I("L_END:"), I("s_endpgm")]
    if d == 'q': body = p0 + p1 + dump_regs([vr(V_Q + 4*i) for i in range(16)] + [ar(144 + 4*i) for i in range(28)]) + end; trace = body
    else:
        body = p0 + p1 + su + it0 + it1 + loop + last + end + STUBS + fb
        ka = [i for i, x in enumerate(loop) if x.text == "L_ARRB:"][0]
        k0 = [i for i, x in enumerate(loop) if x.text == "L_AR0B:"][0]
        trace = p0 + p1 + su + it0 + it1 + loop[:k0] + AR0 + loop[k0:] + loop + loop[:ka] + ARR + loop[ka:] + loop*2 + last
        k = [i for i, x in enumerate(last) if x.text == "s_cbranch_vccnz L_FALLBACK0"][0]
        trace2 = p0 + p1 + su + it0 + it1 + loop*2 + last[:k+1] + fb + it0 + it1 + loop + last
        resolve_waits(trace2)
    resolve_waits(trace)
    e = check(trace, verbose=False)
    if d is None: e += check(trace2, verbose=False)
    seen = set()
    e = [x for x in e if 's_memtime' not in x]
    for x in e[:6]: print("CHECK:", x, file=sys.stderr)
    if e: print("FAILED CHECK", len(e), file=sys.stderr); sys.exit(1)
    def in_gemm(x): return id(x) in gset
    gset = set(id(x) for x in p1 + op + last)
    if OPT.get('drop'): body = [x for x in body if not (id(x) in set(id(y) for y in loop) and x.tag in OPT['drop'].split(','))]
    if OPT.get('dropf'): body = [x for x in body if not (id(x) in set(id(y) for y in last) and ((x.tag and any(x.tag.startswith(t) for t in OPT['dropf'].split(','))) or 'L_RETRY' in x.text or ('bar' in OPT['dropf'] and x.kind == 'barrier')))]
    if OPT.get('nosst'): body = [x for x in body if x.tag not in ('sst', 'fill')]
    if OPT.get('noy'): body = [x for x in body if x.tag not in ('y0', 'y1')]
    if OPT.get('nodma'): body = [x for x in body if not (in_gemm(x) and x.kind == 'dma')]
    if OPT.get('novalu'): body = [x for x in body if not (in_gemm(x) and x.kind in ('valu', 'trans', 'perm') and any(k in x.text for k in ('f32', 'accvgpr', 'permlane')))]
    if OPT.get('nomfma'): body = [x for x in body if not (in_gemm(x) and x.kind == 'mfma')]
    if OPT.get('nods'): body = [x for x in body if not (in_gemm(x) and x.kind == 'dsr' and 'b32' not in x.text)]
    return body

def kdesc(name, vg, acc):
    return f""".amdhsa_kernel {name}
  .amdhsa_next_free_vgpr {vg}
  .amdhsa_next_free_sgpr 102
  .amdhsa_accum_offset {acc}
  .amdhsa_group_segment_fixed_size 0
  .amdhsa_kernarg_size 104
  .amdhsa_user_sgpr_count 2
  .amdhsa_user_sgpr_kernarg_segment_ptr 1
  .amdhsa_system_sgpr_workgroup_id_x 1
  .amdhsa_float_denorm_mode_32 3
.end_amdhsa_kernel"""

def render(body):
    K1 = NAME + "_kernel"
    out = [f"; @launch grid=(256,1,1) block=(256,1,1) lds=163840",
           '.amdgcn_target "amdgcn-amd-amdhsa--gfx950"', ".text"]
    out += [f".globl {K1}", ".p2align 12", ".p2align 8", f".type {K1},@function", f"{K1}:"] + [x.emit() for x in body]
    out += ['.section .rodata,"a"', ".p2align 6", kdesc(K1, 512, 256)]
    return "\n".join(out).replace("CODE_LEFT", "L_END-L_PC2") + "\n"

def addresses(body):
    import subprocess, tempfile, os
    d = tempfile.mkdtemp()
    marked = []
    for n, x in enumerate(body):
        if x.kind == 'mfma' or x.text == "L_END:": marked.append(I(f"ZZ{n}:"))
        marked.append(x)
    txt = re.sub(r'(s_c?branch\w*) L_PAD\w+', r'\1 L_END', render(marked))
    open(d + "/a.s", "w").write(txt)
    subprocess.check_call(["clang", "-x", "assembler", "-target", "amdgcn-amd-amdhsa", "-mcpu=gfx950", "-c", d + "/a.s", "-o", d + "/a.o"])
    o = subprocess.check_output(["llvm-objdump", "-t", d + "/a.o"], text=True)
    return {int(m.group(2)): int(m.group(1), 16) for m in re.finditer(r'^([0-9a-f]+) .*ZZ(\d+)$', o, re.M)}

body = build()
if OPT.get('hop'):
    PRE = 0x300
    offs = [int(x) for x in str(OPT['hop']).split(',')] if OPT['hop'] is not True else [0]
    k = 0; b = 0x2000 - PRE
    while True:
        stop = False
        for off in offs:
            ad = addresses(body)
            endi = [n for n, x in enumerate(body) if x.text == "L_END:"][0]
            cand = [n for n in sorted(ad) if n < endi and ad[n] + 8 >= b + off]
            if not cand: stop = True; break
            n = cand[0]
            body[n+1:n+1] = [I(f"L_PAD{k}:"), I(f"s_cbranch_execz L_PADN{k}")]
            k += 1
        if stop: break
        b += 0x1000
    if not OPT.get('nostubpad'):
        for lab in ("L_AR0:", "L_ARR:"):
            n = [i for i, x in enumerate(body) if x.text == lab][0]
            body[n+1:n+1] = [I(f"L_PAD{k}:"), I(f"s_cbranch_execz L_PADN{k}")]; k += 1
    for x in body:
        m_ = re.match(r's_cbranch_execz L_PADN(\d+)', x.text)
        if m_:
            t = int(m_.group(1)) + 4
            x.text = f"s_cbranch_execz L_PAD{t}" if t < k else "s_cbranch_execz L_PADX"
    print(f"; {k} pads", file=sys.stderr)
print(render(body))
```

```python
import sys, struct, math, re
from asmlib import *

NAME = "recurrent_scan__gqa_block_cached__dense_activation_gelu__prompt"
OPT = dict(dump=None, stamps=False, G='2', pfs='128', s2='12', stag=False, q1='early', nw='16', ne='3', xe='8', pvx='2', cearly=True, c0='4', hop=True, otouch=True, w1f='17', norot=True, nokt=True)
for a in sys.argv[1:]:
    k, _, v = a.partition('=')
    OPT[k] = (False if v == 'off' else v) if v else True

NT = lambda k: ' nt' if k in OPT.get('nt', '') else ''
GG = int(OPT['G']); LG = GG.bit_length() - 1
def f2u(x): return struct.unpack('<I', struct.pack('<f', x))[0]
def hx(x): return f"0x{x & 0xffffffff:x}"
def vr(b, n=4): return f"v[{b}:{b+n-1}]" if n > 1 else f"v{b}"
def ar(b, n=4): return f"a[{b}:{b+n-1}]" if n > 1 else f"a{b}"
def sr(b, n=4): return f"s[{b}:{b+n-1}]" if n > 1 else f"s{b}"

S_W = 3
SRD_X, SRD_K, SRD_V, SRD_WQ, SRD_WO, SRD_W1, SRD_W2, SRD_WS, SRD_OUT, SRD_B1, SRD_B2, SRD_DBG = range(4, 52, 4)
S_G, S_R = 52, 53
S_SM1, S_SMQ, S_SM2 = 54, 57, 60
S_RING = 63
S_KO = 64
S_VO = 66
S_CNT, S_PASS = 68, 69
S_QS, S_GB = 70, 71
S_YO = 72
S_T = 76
S_PF = 99
SRD_WS2 = 80
S_CB, S_CB2, S_SPIN = 84, 85, 86
S_STAMP = 96

V_KA, V_VA, V_DV, V_SPI, V_L16 = 0, 4, 12, 14, 15
V_NEGM, V_S, V_SPA = 16, 32, 44
V_T = 48
V_Q, V_P = 64, 128
V_WA = 4
V_AF = 16
V_W1, V_WQ, V_W2, V_GA = 48, 49, 50, 51
V_ACCA, V_ACCB = 128, 192
V_B1 = 64
def XN(ks, qb): return ((15 - ks) * 4 + qb) * 4
A_O, A_L, A_KF, A_VF = 0, 128, 144, 176
A_SPA, A_FILL, A_XT, A_PF, A_WOB, A_Y7 = 208, 212, 216, 224, 225, 228
V_YB, V_YS, V_YT, V_PFO, V_CNT = 40, 44, 60, 61, 62
S_KT, S_NEED, S_CL = 75, 58, 59
S_CA, S_YI, S_YL, S_FO, S_XO = 87, 88, 89, 90, 91

LDS_V, LDS_X = 65536, 131072
WS_S, WS_Y, WS_DUMP = 0, 16 << 20, 64 << 20
RB = int(OPT.get('rb', 32)); LB = RB.bit_length() - 1; PL = RB << 15; PS = LB + 15
WSO = int(OPT.get('wso', 0)) << 20
S_RB, S_LIM = 60, 61
LAY = OPT.get('lay', '21')
GS_S, GS_Y = (12 if LAY[0] == '1' else 12 + LB), (10 if LAY[1] == '1' else 12 + LB)
S_RBY = 62

mf = lambda d, a, b, c: I(f"v_mfma_f32_16x16x32_bf16 {d}, {a}, {b}, {c}")

segs = {}
def stamp(i, last=False):
    if not OPT['stamps']: return []
    L = [I(f"s_memtime s[{S_STAMP}:{S_STAMP+1}]"), I(f"s_memrealtime s[100:101]"), I("s_waitcnt lgkmcnt(0)"),
         I(f"v_writelane_b32 v63, s{S_STAMP}, {i}"), I(f"v_writelane_b32 v63, s100, {16+i}")]
    if last:
        L += [I("s_lshl_b32 s98, s2, 2"), I(f"s_add_u32 s98, s98, s{S_W}"), I("s_lshl_b32 s98, s98, 8"), I(f"s_add_u32 s98, s98, {hx(WS_DUMP)}"),
              I(f"v_lshrrev_b32 v62, 2, v{V_L16}"), I(f"buffer_store_dword v63, v62, {sr(SRD_WS)}, s98 offen", tag='stamp')]
    return L

def ministamp(G, gap, lane):
    if not OPT.get('mini'): return
    for x in (I(f"s_memtime s[{S_STAMP}:{S_STAMP+1}]"), I("s_waitcnt lgkmcnt(0)"), I(f"v_writelane_b32 v63, s{S_STAMP}, {lane}")): G.pin(gap, x, post=True)

def dump_regs(groups):
    L = [I("s_waitcnt vmcnt(0) lgkmcnt(0)"), I("s_nop 7"), I("s_nop 7")]
    L += [I(f"s_lshl_b32 s{S_T}, s2, 2"), I(f"s_add_u32 s{S_T}, s{S_T}, s{S_W}"),
          I(f"s_mul_i32 s{S_T}, s{S_T}, {len(groups)*1024}"), I(f"s_add_u32 s{S_T}, s{S_T}, {hx(WS_DUMP)}")]
    for g in groups:
        L.append(I(f"buffer_store_dwordx4 {g}, v{V_L16}, {sr(SRD_WS)}, s{S_T} offen"))
        L.append(I("s_nop 3"))
        L.append(I(f"s_add_u32 s{S_T}, s{S_T}, 1024"))
    L += [I("s_waitcnt vmcnt(0)"), I("s_endpgm")]
    return L

def srd(L, base, p, nbytes):
    L += [I(f"s_mov_b32 s{base}, s{p}"), I(f"s_mov_b32 s{base+1}, s{p+1}"),
          I(f"s_mov_b32 s{base+2}, {hx(nbytes)}"), I(f"s_mov_b32 s{base+3}, 0x20000")]

def dma_w(srdb, vreg, sm, i, tag, res):
    so = "0" if (i & 3) == 0 else f"s{sm + (i & 3) - 1}"
    off = f" offset:{(i & 3) * 1024}" if i & 3 else ""
    return I(f"buffer_load_dwordx4 v{vreg}, {sr(srdb)}, {so} offen{off} lds", tag=tag, res_w=res)

STAGES = []
for kq in range(8): STAGES.append(dict(m='w1', srd=SRD_W1, v=V_W1, stride=3584, nks=2, ks0=2*kq, acc=V_ACCA, first=kq == 0, col=0))
for hq in range(2):
    for kq in range(8): STAGES.append(dict(m='wq', srd=SRD_WQ, v=V_WQ, stride=8192, nks=2, ks0=2*kq, acc=V_ACCB, first=kq == 0, col=128*hq))
for hc in range(2):
    for kq in range(4): STAGES.append(dict(m='w2', srd=SRD_W2, v=V_W2, stride=1024, nks=2 if kq < 3 else 1, ks0=2*kq, acc=V_ACCA if hc == 0 else V_ACCB,
                                           first=kq == 0, col=512*hc))
def slot_off(s): return 8192 if (s & 3) in (0, 3) else 0
SLOTRES = ['K1', 'V0', 'K0', 'V1']
S_RS = 54
def stage_dma(s):
    st = STAGES[s]; L = []
    for j in range(st['nks']):
        for i in range(4):
            row = 32*(st['ks0'] + j) + (8*i if st['m'] == 'w2' else 16*(i & 1) + 4*(i >> 1))
            L.append(I(f"s_mov_b32 s{S_RS + i}, {hx(row*st['stride'] + st['col'] - 1024*i)}"))
            if i == 0: L.append(I(f"s_add_u32 m0, s{S_RING}, {hx(slot_off(s) + (s & 1) * 65536 + j * 4096)}"))
            off = f" offset:{i*1024}" if i else ""
            L.append(I(f"buffer_load_dwordx4 v{st['v']}, {sr(st['srd'])}, s{S_RS + i} offen{off} lds", tag=f"st{s}", res_w=[(f"slot{s&3}", False)]))
    return L

def with_m0_pad(L):
    out = []
    for i, x in enumerate(L):
        out.append(x)
        if 'm0' in x.wr and i + 1 < len(L) and L[i+1].kind == 'dma': out.append(I("s_nop 0"))
    return out

def interleave(main, extra, start=0, end=None):
    end = len(main) if end is None else end
    out = list(main[:start]); n = end - start; k = 0
    for i in range(n):
        out.append(main[start + i])
        while k < len(extra) and (k + 1) * n <= (i + 1) * len(extra) + 0:
            out.append(extra[k]); k += 1
    return out + extra[k:] + list(main[end:])

def touch(L, srdb, vtmp, sreg, ln, rowlines, rowstride, nrows, sbase_code, step=128):
    A = lambda t, **k: L.append(I(t, **k))
    per_row = rowlines * 128 // step
    rows_share = -(-nrows * GG // 128)
    total = per_row * rows_share
    lg = per_row.bit_length() - 1
    A(f"s_mul_i32 s{sreg}, s94, {rows_share * rowstride}")
    for t in sbase_code: A(t)
    if sbase_code: A(f"s_add_u32 s{sreg}, s{sreg}, s93")
    A(f"v_lshrrev_b32 v{vtmp}, {lg}, v{ln}")
    if total < 64: A(f"v_min_u32 v{vtmp}, {rows_share - 1}, v{vtmp}")
    A(f"v_mul_u32_u24 v{vtmp}, {rowstride}, v{vtmp}")
    A(f"v_and_b32 v32, {per_row - 1}, v{ln}")
    A(f"v_lshl_add_u32 v{vtmp}, v32, {step.bit_length() - 1}, v{vtmp}")
    out = []
    for k in range(max(1, -(-total // 64))):
        if k: out.append(I(f"v_add_u32 v{vtmp}, {(64 // per_row) * rowstride}, v{vtmp}"))
        out.append(I(f"buffer_load_dword v60, v{vtmp}, {sr(srdb)}, s{sreg} offen{NT({SRD_W1: '1', SRD_WQ: 'q', SRD_W2: '2', SRD_K: 'v'}[srdb])}", tag='pf'))
    return out

def lin_touch(srdb, sreg):
    step = int(OPT['pfs']); n = max(1, 4096 * GG // (64 * step))
    L = []
    for k in range(n):
        if k: L.append(I(f"s_add_u32 s{S_T+3}, s{sreg}, {k * 64 * step}"))
        L.append(I(f"buffer_load_dword v60, v61, {sr(srdb)}, s{S_T+3 if k else sreg} offen", tag='pf'))
    return L

LATE = {}
STUBS = []
V_XA = 53
def phase0():
    L = []
    A = lambda t, **k: L.append(I(t, **k))
    A("s_cmp_ge_u32 s2, 256"); A("s_cbranch_scc1 L_END")
    L += stamp(0)
    A("s_load_dwordx16 s[64:79], s[0:1], 0")
    A("s_load_dwordx8 s[80:87], s[0:1], 64")
    A("s_load_dwordx2 s[88:89], s[0:1], 96")
    t0, t1, t2, t3, ln, n16, g4 = 33, 34, 35, 36, 37, 38, 39
    A("s_getpc_b64 s[90:91]"); A("L_PC1:")
    c0 = OPT.get('c0', '6')
    if not OPT.get('nocodepf') and c0 != '0':
        A(f"v_lshlrev_b32 v58, {c0}, v0")
        if OPT.get('c0max'): A(f"v_min_u32 v58, {OPT['c0max']}, v58")
        A("global_load_dword v60, v58, s[90:91]" + NT('c'), tag='pf')
    if OPT.get('cearly'):
        A("s_lshr_b32 s93, s2, 3"); A("s_lshl_b32 s93, s93, 11"); A("v_lshlrev_b32 v57, 3, v0"); A("v_add_u32 v57, s93, v57")
        A("v_min_u32 v57, L_END-L_PC1, v57"); A("global_load_dword v60, v57, s[90:91]", tag='pf')
    A(f"v_lshrrev_b32 v{t0}, 6, v0")
    A(f"v_and_b32 v{ln}, 63, v0")
    A(f"v_readfirstlane_b32 s{S_W}, v{t0}")
    SL = []
    if not OPT.get('nowalk'):
        slot = [7, 9, 11, 7, 0, 3, 6, 8, 1, 2, 4, 10, 12, 12, 12, 12]; lim = [0, 0, 0, 0, 7, 15, 6, 6, 15, 15, 15, 7, 0, 0, 0, 0]
        pk = lambda t: sum(v << (4*k) for k, v in enumerate(t))
        A("s_lshr_b32 s48, s2, 3"); A("s_and_b32 s49, s48, 3"); A(f"s_lshl_b32 s50, s{S_W}, 2"); A("s_add_u32 s49, s49, s50"); A("s_lshl_b32 s49, s49, 2")
        A(f"s_mov_b32 s44, {hx(pk(slot) & 0xffffffff)}"); A(f"s_mov_b32 s45, {hx(pk(slot) >> 32)}"); A("s_lshr_b64 s[44:45], s[44:45], s49")
        A("s_and_b32 s44, s44, 15"); A("s_lshl_b32 s44, s44, 3")
        A("s_load_dwordx2 s[46:47], s[0:1], s44")
        A(f"s_mov_b32 s40, {hx(pk(lim) & 0xffffffff)}"); A(f"s_mov_b32 s41, {hx(pk(lim) >> 32)}"); A("s_lshr_b64 s[40:41], s[40:41], s49"); A("s_and_b32 s40, s40, 15")
        A("s_lshr_b32 s41, s48, 2"); A("s_lshl_b32 s41, s41, 1"); A("s_min_u32 s40, s40, s41"); A("s_lshl_b32 s40, s40, 18")
        A("s_lshl_b32 s41, s48, 20")
        if WSO: A(f"s_add_u32 s41, s41, {hx(WSO)}")
        A(f"s_cmp_eq_u32 s{S_W}, 3"); A("s_cselect_b32 s40, s41, s40")
        SL = [I("s_load_dword s98, s[46:47], s40")]
    A(f"s_lshr_b32 s94, s2, 3")
    A(f"s_and_b32 s{S_G}, s2, {7 & ~(GG-1)}"); A(f"s_and_b32 s93, s94, {GG-1}"); A(f"s_or_b32 s{S_G}, s{S_G}, s93")
    A(f"s_and_b32 s{S_R}, s2, {GG-1}"); A(f"s_mul_i32 s{S_R}, s{S_R}, {32//GG}"); A(f"s_lshr_b32 s94, s94, {LG}"); A(f"s_add_u32 s{S_R}, s{S_R}, s94")
    A(f"s_lshl_b32 s94, s94, 2"); A(f"s_add_u32 s94, s94, s{S_W}")
    A(f"s_lshl_b32 s92, s{S_R}, 16"); A(f"s_lshl_b32 s{S_RING}, s{S_W}, 14"); A(f"s_add_u32 s92, s92, s{S_RING}")
    A(f"v_lshrrev_b32 v{t0}, 2, v{ln}"); A(f"v_lshlrev_b32 v{t0}, 10, v{t0}")
    A(f"v_and_b32 v{t1}, 3, v{ln}"); A(f"v_lshl_add_u32 v{t0}, v{t1}, 4, v{t0}")
    A(f"s_and_b32 s95, s{S_G}, {1 if (GG > 1 and not OPT.get('norot')) else 0}"); A("s_lshl_b32 s93, s95, 9"); A(f"v_xor_b32 v{t0}, s93, v{t0}")
    A(f"v_and_b32 v{n16}, 15, v{ln}")
    A(f"v_lshrrev_b32 v{g4}, 4, v{ln}")
    A(f"v_lshlrev_b32 v{V_L16}, 4, v{ln}")
    tw1 = []
    if not OPT.get('nopf'):
        tw1 = touch(L, SRD_W1, 59, S_NEED, ln, 4, 3584, 512, [f"s_mul_i32 s93, s{S_G}, 448", "s_and_b32 s93, s93, 0xffffff80"])
    A("s_waitcnt lgkmcnt(0)")
    if OPT.get('fine'): L += stamp(11)
    L += SL
    srd(L, SRD_W1, 76, 512*1792*2)
    w1f = int(OPT.get('w1f', 0))
    srd(L, SRD_X, 64, 2048*512*2)
    A(f"s_mov_b32 s{S_CL}, s92")
    XL = []
    for ks in range(16):
        XL.append(I(f"buffer_load_dwordx4 {vr(64+4*ks)}, v{t0}, {sr(SRD_X)}, s{S_CL} offen offset:{(ks&7)*64}{NT('x')}", tag=f'x{ks}'))
        if ks == 7: XL.append(I(f"v_xor_b32 v{t0}, 0x200, v{t0}"))
    XL = XL[:w1f] + tw1 + XL[w1f:]; tw1 = []
    xe = int(OPT.get('xe', 6))
    L += XL[:xe]
    if OPT.get('fine'): L += stamp(12)
    srd(L, SRD_WQ, 70, 512*4096*2); srd(L, SRD_B1, 78, 1792*2)
    A(f"v_and_b32 v{t1}, 7, v{ln}"); A(f"v_lshlrev_b32 v{t2}, 1, v{g4}"); A(f"v_xor_b32 v{t1}, v{t1}, v{t2}")
    A(f"v_lshlrev_b32 v{t1}, 4, v{t1}")
    A(f"v_lshrrev_b32 v{t2}, 5, v{ln}"); A(f"v_bfe_u32 v{t3}, v{ln}, 3, 2"); A(f"v_lshl_add_u32 v{t2}, v{t2}, 3, v{t3}")
    A(f"s_mul_i32 s92, s{S_G}, 448"); A("s_and_b32 s92, s92, 0xffffff80"); A(f"s_lshl_b32 s93, s{S_W}, 7"); A("s_add_u32 s92, s92, s93")
    A(f"v_mul_u32_u24 v{V_W1}, 3584, v{t2}"); A(f"v_add3_u32 v{V_W1}, v{V_W1}, v{t1}, s92")
    if not OPT.get('nozero'):
        A(f"s_mul_i32 s93, s{S_G}, 448"); A("s_sub_u32 s93, s92, s93")
        A(f"v_add_u32 v{t3}, s93, v{t1}"); A(f"v_cmp_lt_u32 vcc, 447, v{t3}"); A(f"v_mov_b32 v{t3}, 0x10000000"); A("s_nop 0")
        A(f"v_cndmask_b32 v{V_W1}, v{V_W1}, v{t3}, vcc")
    vb1 = 57
    A(f"v_lshlrev_b32 v{vb1}, 3, v{g4}"); A("s_mov_b32 s95, s92")
    b1l = [I(f"buffer_load_dwordx2 {vr(40+2*ct,2)}, v{vb1}, {sr(SRD_B1)}, s95 offen offset:{32*ct}", tag='b1') for ct in range(4)]
    A(f"s_lshl_b32 s93, s{S_G}, 19")
    A("s_add_u32 s66, s66, s93"); A("s_addc_u32 s67, s67, 0")
    A("s_add_u32 s68, s68, s93"); A("s_addc_u32 s69, s69, 0")
    srd(L, SRD_K, 66, 524288); srd(L, SRD_V, 68, 524288); srd(L, SRD_WO, 72, 4096*512*2)
    srd(L, SRD_W2, 80, 1792*512*2); srd(L, SRD_B2, 82, 1024); srd(L, SRD_OUT, 84, 2048*512*2)
    srd(L, SRD_DBG, 86, 256); srd(L, SRD_WS, 88, 1 << 28); srd(L, SRD_WS2, 88, 1 << 28)
    A(f"s_mul_i32 s{S_PF}, s94, {4096*GG}"); A(f"v_and_b32 v{V_PFO}, {8*GG - 1}, v{ln}"); A(f"v_lshlrev_b32 v{V_PFO}, 7, v{V_PFO}")
    A(f"s_lshl_b32 s93, s{S_G}, 19"); A(f"s_add_u32 s{S_PF}, s{S_PF}, s93")
    twq, twq1, tw2, tkv, tcode = [], [], [], [], []
    if not OPT.get('nopf'):
        if OPT.get('q1', 'late') == 'late':
            twq = touch(L, SRD_WQ, 58, 77, ln, 8, 8192, 512, [f"s_lshl_b32 s93, s{S_G}, 10"], step=256)
            assert len(twq) == 1
            twq1 = [I(twq[0].text + " offset:128", tag='pf')]
        else:
            assert OPT.get('cearly')
            twq = touch(L, SRD_WQ, 58, 77, ln, 8, 8192, 512, [f"s_lshl_b32 s93, s{S_G}, 10"])
        tw2 = touch(L, SRD_W2, 14, 78, ln, 8, 1024, 224, [f"s_mul_i32 s93, s{S_G}, {224*1024}"])
        tk = touch(L, SRD_K, 55, 79, ln, 2, 256, int(OPT.get('kvrows', 384)), [])
        tkv = tk + [I(x.text.replace(sr(SRD_K), sr(SRD_V)), tag='pf') for x in tk if x.kind == 'vld'][-1:]
        if not OPT.get('nowo0'):
            n_ = 2*GG
            A(f"s_mul_i32 s93, s94, {n_}"); A(f"v_and_b32 v32, {n_ - 1}, v{ln}"); A(f"v_add_u32 v32, s93, v32")
            A(f"v_lshrrev_b32 v62, 6, v32"); A(f"v_and_b32 v32, 63, v32"); A(f"v_lshl_add_u32 v32, v62, 7, v32"); A(f"v_lshlrev_b32 v62, 10, v32")
            A(f"s_add_u32 s87, s{S_G}, 1"); A("s_and_b32 s87, s87, 7"); A("s_lshl_b32 s87, s87, 7"); A(f"s_lshl_b32 s93, s{S_G}, 19"); A("s_add_u32 s87, s87, s93")
            tkv.append(I(f"buffer_load_dword v60, v62, {sr(SRD_WO)}, s87 offen", tag='pf'))
        if not OPT.get('nocodepf') and not OPT.get('cearly'):
            A("s_getpc_b64 s[90:91]"); A("L_PC2:")
            A(f"s_lshr_b32 s93, s2, 3"); A(f"s_lshl_b32 s93, s93, 2"); A(f"s_add_u32 s93, s93, s{S_W}")
            A(f"s_lshl_b32 s93, s93, 9"); A(f"v_lshlrev_b32 v58, 3, v{ln}"); A("v_add_u32 v58, s93, v58")
            A("v_min_u32 v58, CODE_LEFT, v58")
            tcode = [I("global_load_dword v60, v58, s[90:91]" + NT('c'), tag='pf')]
    A(f"s_lshl_b32 s92, s{S_G}, 10"); A(f"s_lshl_b32 s93, s{S_W}, 8"); A("s_add_u32 s92, s92, s93")
    A(f"v_lshlrev_b32 v{V_WQ}, 13, v{t2}"); A(f"v_add3_u32 v{V_WQ}, v{V_WQ}, v{t1}, s92")
    A(f"s_mul_i32 s92, s{S_G}, {224*1024}"); A(f"s_lshl_b32 s93, s{S_W}, 7"); A("s_add_u32 s92, s92, s93")
    A(f"v_lshrrev_b32 v{t2}, 3, v{ln}"); A(f"v_lshlrev_b32 v{V_W2}, 10, v{t2}"); A(f"v_add3_u32 v{V_W2}, v{V_W2}, v{t1}, s92")
    A(f"v_lshrrev_b32 v{t1}, 2, v{ln}")
    A(f"v_lshlrev_b32 v{t1}, 7, v{t1}")
    A(f"v_and_b32 v{t2}, 3, v{ln}"); A(f"v_lshl_add_u32 v{t1}, v{t2}, 3, v{t1}")
    A(f"v_add_u32 v{t1}, s{S_RING}, v{t1}")
    A(f"v_bfe_u32 v{t2}, v{ln}, 3, 2")
    for ct in range(4):
        A(f"v_xor_b32 v{t3}, {ct}, v{t2}")
        A(f"v_lshl_add_u32 v{V_WA+ct}, v{t3}, 5, v{t1}")
        A(f"v_add_u32 v{V_WA+4+ct}, 0x10000, v{V_WA+ct}")
    A(f"v_and_b32 v{t1}, 7, v{ln}"); A(f"v_lshlrev_b32 v{t1}, 1, v{t1}"); A(f"v_xor_b32 v{t1}, v{t1}, v{g4}")
    A(f"v_lshlrev_b32 v{t2}, 8, v{n16}"); A(f"v_add_u32 v{t2}, {hx(LDS_X)}, v{t2}")
    for kk in range(4):
        A(f"v_xor_b32 v{t3}, {4*kk}, v{t1}")
        A(f"v_lshl_add_u32 v{V_KA+kk}, v{t3}, 4, v{t2}")
    A(f"v_lshlrev_b32 v{t1}, 1, v{g4}"); A(f"v_xor_b32 v{t1}, v{t1}, v{n16}"); A(f"v_lshlrev_b32 v{t2}, 8, v{g4}")
    A(f"v_lshl_add_u32 v{V_DV}, v{t1}, 4, v{t2}")
    A(f"v_xor_b32 v{V_DV+1}, 0x80, v{V_DV}")
    A(f"v_add_u32 v{V_XA+1}, {hx(LDS_X)}, v{V_DV}"); A(f"v_add_u32 v{V_XA}, {hx(65536 + 8192)}, v{V_DV}")
    A(f"v_and_b32 v{t1}, 3, v{ln}"); A(f"v_lshrrev_b32 v{t2}, 2, v{ln}"); A(f"v_lshlrev_b32 v{t3}, 1, v{t1}"); A(f"v_xor_b32 v{t2}, v{t2}, v{t3}")
    A(f"v_lshlrev_b32 v{t1}, 8, v{t1}"); A(f"v_lshl_add_u32 v{t1}, v{t2}, 4, v{t1}")
    A(f"s_lshl_b32 s92, s{S_W}, 13"); A(f"s_add_u32 s92, s92, {hx(LDS_X)}")
    A(f"s_add_u32 s93, s{S_RING}, {hx(65536 + 8192)}")
    A(f"s_and_b32 s85, s{S_G}, {1 if (GG > 1 and not OPT.get('norot')) else 0}")
    A("s_cselect_b32 s85, s92, s93"); A("s_cselect_b32 s86, s93, s92")
    A(f"v_add_u32 v{t2}, s85, v{t1}"); A(f"v_add_u32 v56, s86, v{t1}")
    A(f"v_and_b32 v52, 1, v{ln}"); A(f"v_bfe_u32 v{t1}, v{ln}, 1, 1"); A(f"v_sub_u32 v52, v52, v{t1}"); A("v_lshlrev_b32 v52, 3, v52")
    A(f"s_mov_b32 s{S_QS}, {hx(f2u(128**-0.5 * math.log2(math.e)))}")
    ga = -2*0.7978845608028654*math.log2(math.e)
    A(f"s_mov_b32 s{S_GB}, {hx(f2u(ga*0.044715))}")
    A(f"v_mov_b32 v{V_GA}, {hx(f2u(ga))}")
    A(f"s_lshr_b32 s92, s{S_R}, {LB}"); A(f"s_lshl_b32 s92, s92, {PS + 4}")
    if WSO: A(f"s_add_u32 s92, s92, {hx(WSO)}")
    A(f"s_add_u32 s{S_LIM}, s92, {hx(14*PL)}")
    A(f"s_and_b32 s93, s{S_R}, {RB - 1}")
    A(f"s_lshl_b32 s{S_RB}, s93, {15 if LAY[0] == '1' else 12}"); A(f"s_add_u32 s{S_RB}, s{S_RB}, s92")
    A(f"s_lshl_b32 s{S_RBY}, s93, {15 if LAY[1] == '1' else 12}"); A(f"s_add_u32 s{S_RBY}, s{S_RBY}, s92"); A(f"s_add_u32 s{S_RBY}, s{S_RBY}, {hx(WS_Y)}")
    A(f"s_lshl_b32 s92, s{S_W}, {13 if LAY[1] == '1' else 10}"); A(f"s_lshl_b32 s93, s{S_G}, {GS_Y}"); A("s_add_u32 s92, s92, s93"); A(f"s_add_u32 s{S_YO}, s92, s{S_RBY}")
    A(f"s_lshl_b32 s92, s{S_W}, 10"); A(f"s_lshl_b32 s93, s{S_G}, {GS_S}"); A("s_add_u32 s92, s92, s93"); A(f"s_add_u32 s{S_CB}, s92, s{S_RB}")
    if OPT.get('perm'): A("s_mov_b32 s75, 0x07060302")
    A(f"s_mov_b32 s{S_PASS}, 0")
    A(f"s_lshl_b32 s{S_KO}, s{S_W}, 13"); A(f"s_add_u32 s{S_KO+1}, s{S_KO}, 4096")
    A(f"s_mov_b32 s{S_VO}, s{S_KO}"); A(f"s_mov_b32 s{S_VO+1}, s{S_KO+1}")
    HOP = []
    if OPT.get('hop'):
        HOP = [I("s_mov_b64 exec, 0")]
        for w in range(3): HOP += [I(f"s_cmp_eq_u32 s{S_W}, {w}"), I(f"s_cbranch_scc1 L_PAD{w}")]
        HOP += [I("s_branch L_PAD3"), I("L_PADX:"), I("s_mov_b64 exec, -1")]
    L += stamp(1)
    F = 128
    sa, qa = 16, 24
    if OPT.get('kvp', '1') == '1': LATE['kv'] = tkv; tkv = []
    if OPT.get('s2'): LATE['q1'] = twq1; LATE['w2'] = tw2 + tkv; tw2 = []; tkv = []
    D = [stage_dma(s) for s in range(3)]
    NE = int(OPT.get('ne', 2))
    vq = XL[xe:] + tcode + b1l + sum(D[:NE], [])
    def pop_vm(n):
        out = []
        while vq and n > 0:
            x = vq.pop(0); out.append(x)
            if x.kind in ('dma', 'vld'): n -= 1
        return with_m0_pad(out)
    for ks in range(16):
        L.append(W(vm=[f'x{ks}']))
        if OPT.get('fine') and ks == 0: L += stamp(13)
        if OPT.get('fine') and ks == 15: L += stamp(5)
        L += pop_vm(int(OPT.get('pv', 1)) + (int(OPT.get('pvx', 0)) if ks == 0 else 0))
        if str(ks) == OPT.get('hopat', 'w'): L += HOP
        for i in range(4*ks, 4*ks + 4):
            A(f"v_lshlrev_b32 v{F+2*i}, 16, v{64+i}")
            A(f"v_and_b32 v{F+2*i+1}, 0xffff0000, v{64+i}")
        for i in range(4*ks, 4*ks + 4):
            k = i & 3
            x = vr(F+2*i, 2)
            if i < 4:
                A(f"v_pk_mul_f32 {vr(qa+2*k,2)}, {x}, {x}")
            else:
                src = vr(F+2*k, 2) if i < 8 else vr(sa+2*k, 2)
                A(f"v_pk_add_f32 {vr(sa+2*k,2)}, {src}, {x}")
                A(f"v_pk_fma_f32 {vr(qa+2*k,2)}, {x}, {x}, {vr(qa+2*k,2)}")
    if SL: A("s_waitcnt lgkmcnt(0)")
    L += stamp(2)
    M = []; A = lambda t, **k: M.append(I(t, **k))
    for b in (sa, qa):
        A(f"v_pk_add_f32 {vr(b,2)}, {vr(b,2)}, {vr(b+2,2)}"); A(f"v_pk_add_f32 {vr(b+4,2)}, {vr(b+4,2)}, {vr(b+6,2)}")
    for b in (sa, qa): A(f"v_pk_add_f32 {vr(b,2)}, {vr(b,2)}, {vr(b+4,2)}")
    for b in (sa, qa): A(f"v_add_f32 v{b}, v{b}, v{b+1}")
    for qp in ("[1,0,3,2]", "[2,3,0,1]"):
        A("s_nop 1")
        for b in (sa, qa): A(f"v_add_f32_dpp v{b}, v{b}, v{b} quad_perm:{qp} row_mask:0xf bank_mask:0xf")
    A(f"v_mul_f32 v{sa}, {hx(f2u(1/512))}, v{sa}")
    A(f"v_mul_f32 v{qa}, {hx(f2u(1/512))}, v{qa}")
    A(f"v_fma_f32 v{qa}, -v{sa}, v{sa}, v{qa}")
    A(f"v_max_f32 v{qa}, 0, v{qa}")
    A(f"v_cvt_pk_bf16_f32 v{sa+1}, v{sa}, v{qa}")
    A(f"v_lshlrev_b32 v{sa}, 16, v{sa+1}")
    A(f"v_and_b32 v{qa}, 0xffff0000, v{sa+1}")
    A(f"v_add_f32 v{qa}, {hx(f2u(1e-5))}, v{qa}")
    A(f"v_cvt_pk_bf16_f32 v{qa}, v{qa}, v{qa}"); A(f"v_and_b32 v{qa}, 0xffff0000, v{qa}")
    A(f"v_sqrt_f32 v{qa}, v{qa}"); A("s_nop 0")
    A(f"v_cvt_pk_bf16_f32 v{qa}, v{qa}, v{qa}"); A(f"v_and_b32 v{qa}, 0xffff0000, v{qa}")
    A(f"v_rcp_f32 v{qa}, v{qa}"); A("s_nop 0")
    A(f"v_mul_f32 v{sa}, v{sa}, v{qa}")
    A(f"v_sub_f32 v{sa}, 0, v{sa}")
    A(f"v_mov_b32 v{qa+1}, v{qa}"); A(f"v_mov_b32 v{sa+1}, v{sa}")
    def norm(ks):
        for i in range(4*ks, 4*ks+4):
            A(f"v_pk_fma_f32 {vr(F+2*i,2)}, {vr(F+2*i,2)}, {vr(qa,2)}, {vr(sa,2)}")
        for i in range(4*ks, 4*ks+4):
            A(f"v_cvt_pk_bf16_f32 v{64+i}, v{F+2*i}, v{F+2*i+1}")
    for ks in range(16): norm(ks)
    L += with_m0_pad(interleave(M, vq)) + twq + tw2 + tkv
    if OPT.get('hopat', 'w') == 'w': L += HOP
    M = []; A = lambda t, **k: M.append(I(t, **k))
    wr = [I(f"ds_write_b128 v{t2 if ks < 8 else 56}, {vr(64+4*ks)} offset:{(ks&7)*1024}", tag='xw' if ks < 8 else 'xw2', res_w=[('slot3' if ks < 8 else 'hx', True)] if OPT.get('norot') else [('slot3', True), ('hx', True)]) for ks in range(16)]
    nw = int(OPT.get('nw', 8))
    LATE['xw'] = wr[nw:]
    bias = [W(vm=['b1'])]
    for ct in range(4):
        for h in range(2):
            bias += [I(f"v_lshlrev_b32 v{V_B1+4*ct+2*h}, 16, v{40+2*ct+h}"), I(f"v_and_b32 v{V_B1+4*ct+2*h+1}, 0xffff0000, v{40+2*ct+h}")]
    L += wr[:6] + interleave(wr[6:nw], bias)
    L += [W(vm=['st0'])] + af_reads(0, 0)
    L += [W(lgkm=['xw', 'xw2'][:1 if nw == 8 else 2]), I("s_barrier")]
    L += [xn_read(ks, qb) for qb in range(4) for ks in range(2)]
    L += stamp(3)
    return L

def xn_read(ks, qb):
    if ks < 8: return I(f"ds_read_b128 {ar(XN(ks,qb))}, v{V_XA} offset:{qb*16384 + ks*1024}", tag=f'xr{ks>>1}', res_r=[('slot3', True)])
    return I(f"ds_read_b128 {ar(XN(ks,qb))}, v{V_XA+1} offset:{qb*8192 + (ks&7)*1024}", tag=f'xr{ks>>1}', res_r=[('hx', True)])

A_AF2, A_KF0 = 32, 64
def AF(s, k, n=4): return ar(A_AF2 + k, n) if s >= 24 else vr(V_AF + k, n)
def HF(u, qb): return 144 + 16*u + 4*qb
def af_reads(s, p):
    st = STAGES[s]; L = []
    for c in range(2):
        for j in range(st['nks']):
            for e in range(2):
                L.append(I(f"ds_read_b64_tr_b16 {AF(s, 16*p + 8*c + 4*j + 2*e, 2)}, v{V_WA + 4*(s&1) + 2*p + c} offset:{slot_off(s) + j*4096 + e*2048}",
                           tag=f"af{s}_{p}", res_r=[(f"slot{s&3}", False)]))
    return L

def kv_dma(which, half, buf, tag):
    base = (0 if which == 'K' else LDS_V) + buf*8192 + half*4096
    so = (S_KO if which == 'K' else S_VO) + half
    L = [I(f"s_add_u32 m0, s{S_RING}, {hx(base)}")]
    for i in range(4):
        off = f" offset:{i*1024}" if i else ""
        L.append(I(f"buffer_load_dwordx4 v{V_DV + (i&1)}, {sr(SRD_K if which == 'K' else SRD_V)}, s{so} offen{off}{NT('k')} lds",
                   tag=tag, res_w=[(f"{which}{buf}", True)]))
    return L

def even(G, items, lo, hi):
    nd = sum(1 for x in items if x.kind in ('dma', 'vld', 'vst'))
    k = 0; its = []
    for x in items:
        e = lo + (k * (hi - lo + 1)) // max(nd, 1)
        if x.kind in ('dma', 'vld', 'vst'): k += 1
        else: e = max(lo, e - 3)
        its.append((x, min(e, hi)))
    return G.stream(its, lo, hi)

def k0_reads(kt):
    return [I(f"ds_read_b128 {ar(A_KF0 + 16*(kt&1) + 4*kk)}, v{V_KA+kk} offset:{kt*4096}", tag='fr', res_r=[('hx', True)]) for kk in range(4)]

def y_pack(acc, ct):
    a = acc + 16*ct
    return [I(f"v_cvt_pk_bf16_f32 v{a+8+k}, v{a+2*k}, v{a+2*k+1}") for k in range(7, -1, -1)]
def y_stores(hc):
    acc = V_ACCB if hc else V_ACCA
    return [(I(f"s_add_u32 s{S_YO + 1 + (ct&1)}, s{S_YO}, {hx(((hc*4 + ct)*2 + half) * PL)}"),
             I(f"buffer_store_dwordx4 {vr(acc + 16*ct + 8 + 4*half)}, v{V_L16}, {sr(SRD_WS2)}, s{S_YO + 1 + (ct&1)} offen sc1", tag='yst'))
            for half in range(2) for ct in range(4)]

def phase1():
    m = []; per = {}; done = {}; blk = []
    FM = (26, 0)
    for s, st in enumerate(STAGES):
        for p in range(2):
            lo = len(m)
            for c in range(2):
                ct = 2*p + c
                for qb in range(4):
                    if s >= 28 and qb % 2 == 0:
                        n = len(blk); kt, q2 = n >> 2, n & 3
                        blk.append(len(m))
                        d = vr(V_S + 4*(n % 2))
                        for kk in range(4): m.append(mf(d, ar(A_KF0 + 16*(kt&1) + 4*kk), vr(V_Q + 16*q2 + 4*kk), d if kk else vr(V_NEGM + 4*q2)))
                    d = vr(st['acc'] + 16*ct + 4*qb)
                    js = list(range(st['nks']))
                    if qb & 1 and not OPT.get('nosnake'): js.reverse()
                    for j in js:
                        cc = d
                        if st['first'] and j == js[0]: cc = vr(V_B1 + 4*ct) if st['m'] == 'w1' else "0"
                        b = HF(st['ks0'] + j, qb) if st['m'] == 'w2' else XN(st['ks0'] + j, qb)
                        ab = (AF(s, 16*p + 8*c + 4*j), ar(b))
                        if st['m'] in str(OPT.get('swap1', '')): ab = ab[::-1]
                        m.append(mf(d, ab[0], ab[1], cc))
                    done[(s, ct, qb)] = len(m) - 1
            if (s, p) == FM:
                fm0 = len(m)
                for qb in range(4):
                    d = vr(V_NEGM + 4*qb)
                    for kk in range(4): m.append(mf(d, ar(A_KF0 + 4*kk), vr(V_Q + 16*qb + 4*kk), d if kk else "0"))
            per[(s, p)] = (lo, len(m) - 1)
    G = Gaps(m)
    NS = len(STAGES)
    G.head += [W(lgkm=['xr0'])]
    for n in range(1, 32):
        b = blk[n]
        ex, cv = softmax_items(n - 1, 0)
        if n < 24:
            for r in range(4): G.pin(b + 2*r, ex[r])
            G.pin(b + 3, cv[0]); G.pin(b + 7, cv[1])
        else:
            for r in range(4): G.pin(b + 1 + r, ex[r])
            G.pin(b + 5, cv[0]); G.pin(b + 5, cv[1])
    Bh, Bk = per[(23, 1)][1], per[(25, 1)][1]
    for s in range(NS):
        for p in range(2):
            ns, npp = (s, 1) if p == 0 else (s + 1, 0)
            lo, hi = per[(s, p)]
            lg = [f"af{ns}_{npp}"] if ns < NS else []
            if npp == 0 and ns < 8: lg.append(f"xr{ns}")
            if (ns, npp) == (24, 0): lg.append('hr')
            vm = [f"st{s+1}"] if (p == 0 and s + 1 < NS) else []
            rd = af_reads(ns, npp) if ns < NS else []
            if s >= 28:
                kt = 2*(s - 28) + p
                rd = (k0_reads(kt + 1) if kt < 7 else k_reads(0, 1) + v_reads(0, 0)) + rd
                lg.append('fr')
                if kt == 6: vm.append('kv')
            if hi == Bk: vm.append('k0')
            G.pin(hi, W(vm=vm or None, lgkm=lg))
            if hi in (Bh, Bk) or (s, p) == (31, 0): G.pin(hi, I("s_barrier"))
            h = None
            if s >= 28: G.stream(rd, lo, hi - 6)
            else:
                for k, x in enumerate(rd): h = G.place(x, lo + (k // 2) * 2 + 1 if (len(rd) == 8 and s != int(OPT.get('hs', 21))) else lo, hi - 1, after=h)
    G.stream(k0_reads(0), Bk + 1, fm0 - 6)
    G.pin(fm0 - 1, W(lgkm=['fr']))
    xr = [xn_read(ks, qb) for ks in range(2, 8) for qb in range(4)]
    b1 = per[(int(OPT.get('b1s', 1)), 0)][1] if LATE['xw'] else per[(0, 1)][1]
    for k, x in enumerate(LATE['xw']): G.pin(2*k, x)
    for k, x in enumerate(xr): G.pin(2*len(LATE['xw']) + k, x)
    G.pin(b1, W(lgkm=['xr3'] + (['xw2'] if LATE['xw'] else []))); G.pin(b1, I("s_barrier"))
    G.stream([xn_read(ks, qb) for ks in range(8, 16) for qb in range(4)], b1 + 1, per[(3, 1)][1] - 8, spread=True)
    G.pin(per[(6, 1)][1], I("s_barrier"))
    hs = int(OPT.get('hs', 21))
    hwpos = [per[(hs, p)][0] + k for p in range(2) for k in (5, 8, 11, 14)]
    hbar = per[(hs + 1, 0)][0] + 5
    pause = (hwpos[0] - int(OPT.get('pz', 16)), hwpos[-1] + 2) if OPT.get('pz') != '0' else (0, -1)
    slow = int(OPT.get('pzs', 7))
    jobs = []
    for t in range(int(OPT.get('ne', 2)), NS):
        s = t - 4
        rel = per[(s, 1)][0] if s >= 0 else (b1 + 1 if t == 3 else 0)
        d = stage_dma(t)
        if t == 3:
            for x in d:
                if x.res_w: x.res_w = [('slot3', True)]
        jobs.append((rel, d, per[(t - 1, 0)][1]))
        if t == 27:
            d = [I(f"s_lshl_b32 s{S_T+1}, s{S_W}, 13")] + kv_dma('K', 0, 0, 'k0') + kv_dma('K', 1, 0, 'k0')
            k = 0
            for n_, x in enumerate(d):
                if x.res_w: x.res_w = [('hx', True)]
                if 'm0' in x.wr: d[n_] = I(f"s_add_u32 m0, s{S_T+1}, {hx(LDS_X + 4096*k)}"); k += 1
            jobs.append((Bh + 1, d + [I("s_nop 0"), I(f"s_add_u32 s{S_KO}, s{S_KO}, 0x8000"), I(f"s_add_u32 s{S_KO+1}, s{S_KO+1}, 0x8000")], Bk))
    for which, buf, s in (('K', 1, 28), ('V', 0, 29)):
        d = kv_dma(which, 0, buf, 'kv') + kv_dma(which, 1, buf, 'kv')
        for x in d:
            if x.res_w: x.res_w = x.res_w + [(f'slot{s&3}', False)]
        so = S_KO if which == 'K' else S_VO
        jobs.append((per[(s, 1)][0], d + [I("s_nop 0"), I(f"s_add_u32 s{so}, s{so}, 0x8000"), I(f"s_add_u32 s{so+1}, s{so+1}, 0x8000")], per[(31, 0)][1]))
    kz = [n for n, jb in enumerate(jobs) if any(x.tag == 'k0' for x in jb[1])][0]
    if OPT.get('k0first', '1') == '1': jobs[kz], jobs[kz - 1] = jobs[kz - 1], jobs[kz]
    if OPT.get('swap34', '1') == '1':
        k3 = [n for n, jb in enumerate(jobs) if any(x.tag == 'st3' for x in jb[1])][0]
        jobs[k3], jobs[k3 + 1] = jobs[k3 + 1], jobs[k3]
    c1, c2, c3 = float(OPT.get('catch1', 3.5)), float(OPT.get('catch', 3.5)), float(OPT.get('catch3', 3))
    margin = int(OPT.get('margin', 28)); mins = float(OPT.get('mins', 2))
    T = []; t = -99.0
    for rel, d, dl in jobs:
        k = 0
        for x in d:
            if x.kind != 'dma': continue
            step = c1 if t < per[(8, 0)][0] else (c2 if t < pause[0] else c3)
            if pause[0] <= t + step <= pause[1]: step = min(slow, pause[1] + 1 - t)
            t = max(rel + (4*k if rel else 0), t + step)
            if rel >= per[(int(OPT.get('alap0', 22)), 0)][0] and x.tag not in ('st31', 'kv', 'st30'):
                nd = sum(y.kind == 'dma' for y in d)
                t = max(t, dl - int(OPT.get('alap', 40)) - 4*(nd - 1 - k))
            k += 1
            T.append([t, rel, dl - margin])
    for n in range(len(T) - 1, -1, -1):
        lim = T[n][2] if n == len(T) - 1 else min(T[n][2], T[n + 1][0] - mins)
        T[n][0] = max(T[n][1], min(T[n][0], lim))
    for n in range(1, len(T)): T[n][0] = max(T[n][0], T[n - 1][0] + mins)
    h = None; n = 0; LAG = []
    for rel, d, dl in jobs:
        for x in d:
            if x.kind == 'dma':
                pos = max(int(T[n][0]), h[0] if h else 0); n += 1
                while pos in hwpos or pos - 1 in hwpos or any(y.kind in ('dma', 'dsw') for y in G.seq(pos)): pos += 1
                h = G.place(x, pos, pos + (1 if pos < blk[0] else 8), after=h); last = h[0]
            else:
                lo_ = max(rel - 3, h[0] if h else 0, 0)
                h = G.place(x, lo_, max(lo_, int(T[n][0]) - 1 if n < len(T) else lo_ + 3), after=h)
        LAG.append(dl - last)
    print('; dma slack', LAG, file=sys.stderr)
    G.place(kv_dma('K', 0, 0, 'kv')[0], h[0] + 1, len(G) - 1, after=h)
    if LATE.get('q1'): G.stream(LATE['q1'], per[(int(OPT.get('s1', 6)), 0)][0], per[(int(OPT.get('s1', 6)), 1)][1])
    if 'w2' in LATE and not OPT.get('stag'): G.stream(LATE['w2'], per[(int(OPT['s2']), 0)][0], per[(int(OPT['s2']), 1)][1])
    if 'w2' in LATE and OPT.get('stag') and LATE['w2']:
        ns = int(OPT['stag'])
        G.head = [I(f"s_lshr_b32 s95, s2, {3 + LG}"), I(f"s_and_b32 s95, s95, {ns - 1}")] + G.head
        for k in range(ns):
            g = per[(int(OPT['s2']) + k * int(OPT.get('stagstep', 1)), 0)][0] + 1
            for n_, x in enumerate(LATE['w2']):
                assert x.kind == 'vld'
                sreg = re.search(r'\], (s\d+) offen', x.text).group(1)
                while G.seq(g) or G.seq(g + 1): g += 1
                G.pin(g, I(f"s_cmp_eq_u32 s95, {k}")); G.pin(g, I(f"s_cselect_b32 s{92 + (n_ & 1)}, {sreg}, 0x10000000"))
                G.pin(g + 1, I(x.text.replace(sreg + " offen", f"s{92 + (n_ & 1)} offen"), tag='pf'))
    if LATE.get('kv'): G.stream(LATE['kv'], pause[0] + int(OPT.get('kvo', 6)), hwpos[0] - 1)
    for (sb, op) in ((8, 'v_add_u32'), (24, 'v_sub_u32')):
        for win in range(2):
            for ct in range(4):
                r = V_WA + 4*win + ct
                G.place(I(f"{op} v{r}, v{r}, v52"), per[(sb - 2 + win, 1)][0], per[(sb - 1 + win, 0)][1])
    ha, hr = V_XA, V_XA + 1
    G.stream([I(f"s_lshl_b32 s{S_T}, s{S_W}, 13"), I(f"s_add_u32 s{S_T}, s{S_T}, {hx(LDS_X)}"), I(f"v_add_u32 v{ha}, s{S_T}, v{V_L16}"),
              I(f"s_and_b32 s{S_T}, s{S_G}, 1"), I(f"s_lshl_b32 s{S_T}, s{S_T}, 12"), I(f"s_add_u32 s{S_T}, s{S_T}, {hx(LDS_X)}"),
              I(f"v_add_u32 v{hr}, s{S_T}, v{V_L16}")], per[(5, 0)][0], per[(6, 1)][1])
    for hq in range(2):
        s = 15 + 8*hq
        for p in range(2):
            kk = 2*hq + p
            items = []
            for half in range(2):
                ct = 2*p + half
                for qb in range(4):
                    e = done[(s, ct, qb)] + 6
                    a = V_ACCB + 16*ct + 4*qb; q = V_Q + 16*qb + 4*kk
                    for r in range(4): items.append((I(f"v_mul_f32 v{a+r}, s{S_QS}, v{a+r}"), e))
                    items.append((I(f"v_cvt_pk_bf16_f32 v{q+2*half}, v{a}, v{a+1}"), e))
                    items.append((I(f"v_cvt_pk_bf16_f32 v{q+2*half+1}, v{a+2}, v{a+3}"), e))
            if hq == 0:
                hnd = None
                for k in range(8):
                    its = items[6*k:6*k + 6]; e = its[0][1]
                    hn = G.stream(its, e, e - 6 + 30)
                    hnd = hn if hnd is None else max(hnd, hn)
            else:
                hnd = G.stream(items, items[0][1], fm0 - (40 if p == 0 else 12))
            sw = []
            for qb in range(4):
                q = V_Q + 16*qb + 4*kk
                sw += [I(f"v_permlane32_swap_b32 v{q}, v{q+2}"), I(f"v_permlane32_swap_b32 v{q+1}, v{q+3}")]
            G.stream(sw, hnd[0] + 2, hnd[0] + 60 if hq == 0 else fm0 - 2)
    G.pin(hbar, W(lgkm=['hw'])); G.pin(hbar, I("s_barrier"))
    hrd = [I(f"ds_read_b128 {ar(HF(u,qb))}, v{hr} offset:{u*4096 + qb*1024}", tag='hr', res_r=[('hx', True)]) for u in range(7) for qb in range(4)]
    G.stream(hrd, hbar + 1, per[(23, 1)][1] - 6)
    items = []
    T = 56
    for p in range(2):
        for qb in range(4):
            for half in range(2):
                ct = 2*p + half
                e = done[(7, ct, qb)] + 6
                a = V_ACCA + 16*ct + 4*qb
                seq = []
                seq += [f"v_mul_f32 v{T+r}, v{a+r}, v{a+r}" for r in range(4)]
                seq += [f"v_fma_f32 v{T+r}, v{T+r}, s{S_GB}, v{V_GA}" for r in range(4)]
                seq += [f"v_mul_f32 v{T+r}, v{T+r}, v{a+r}" for r in range(4)]
                seq += [f"v_exp_f32 v{T+r}, v{T+r}" for r in range(4)]
                seq += [f"v_add_f32 v{T+r}, 1.0, v{T+r}" for r in range(4)]
                seq += [f"v_rcp_f32 v{T+r}, v{T+r}" for r in range(4)]
                seq += [f"v_mul_f32 v{T+r}, v{T+r}, v{a+r}" for r in range(4)]
                a0 = V_ACCA + 16*(2*p) + 4*qb
                seq += [f"v_cvt_pk_bf16_f32 v{a0+2*half}, v{T}, v{T+1}", f"v_cvt_pk_bf16_f32 v{a0+2*half+1}, v{T+2}, v{T+3}"]
                items += [(I(x), e) for x in seq]
            G.pin(hwpos[4*p + qb], I(f"ds_write_b128 v{ha}, {vr(V_ACCA + 32*p + 4*qb)} offset:{p*4096 + qb*1024}", tag='hw', res_w=[('hx', True)]))
    n1 = len(items) * 7 // 8
    h = G.stream(items[:n1], items[0][1], hwpos[0] - 1 - int(OPT.get('gl', 0)))
    G.stream(items[n1:], h[0] + 1, hwpos[7] - 1)
    it = []
    for qb in range(4):
        b = V_NEGM + 4*qb
        it += [(I(f"v_max3_f32 v{b}, v{b}, v{b+1}, v{b+2}"), fm0 + 4*qb + 11), (I(f"v_max_f32 v{b}, v{b}, v{b+3}"), fm0 + 4*qb + 11)]
    it += [x for x in rowmax_finish() if x.kind != 'nop']
    G.stream(it, fm0 + 11, blk[0] - 2)
    for ct in range(4): G.stream(y_pack(V_ACCA, ct), done[(27, ct, 3)] + 6, blk[ct + 1] + 2)
    for k, x in enumerate(y_stores(0)):
        g = blk[(7, 7, 11, 11, 15, 15, 19, 19)[k]] + (1, 5)[k & 1]
        G.pin(g - 1, x[0]); G.pin(g, x[1])
    su = attn_setup()
    G.stream(su['pre'] + [I(f"v_accvgpr_write_b32 a{A_L + 4*q + k}, 0") for q in range(4) for k in range(2)], blk[12], blk[20] - 1)
    G.stream(su['va'][:8], blk[20], blk[28] - 1)
    G.stream(su['sp'], blk[24], len(G) - 2)
    e = max(i for i in range(len(G)) if any(x.kind == 'dsr' and x.res_r == [('hx', True)] for x in G.seq(i)))
    G.stream([I(f"v_subrev_u32 v{V_KA+kk}, {hx(LDS_X)}, v{V_KA+kk}") for kk in range(4)], e, blk[28] - 1)
    global VA_LATE
    VA_LATE = su['va'][8:]
    for k in range(16): ministamp(G, per[(2*k + 1, 1)][1], 32 + k)
    out = with_m0_pad(G.flat()) + [I("s_nop 0")]
    print(f"; phase1: {len(G)} mfma, est cycles {G.cycles()} pairs {[G.cyc(per[(2*k,0)][0], per[(2*k+1,1)][1]) for k in range(16)]}", file=sys.stderr)
    return out

def P(buf, qb, ks): return V_P + 64*buf + 16*qb + 4*ks
def k_reads(kt, buf, res=True):
    return [I(f"ds_read_b128 {ar(A_KF + 16*(kt&1) + 4*kk)}, v{V_KA+kk} offset:{(kt>>1)*16384 + (kt&1)*4096 + buf*8192}",
              tag='fr', res_r=[(f"K{buf}", True)] if res else None) for kk in range(4)]
def v_reads(dt, buf):
    return [I(f"ds_read_b64_tr_b16 {ar(A_VF + 16*(dt&1) + 4*ks + 2*e, 2)}, v{V_VA+dt} offset:{ks*16384 + buf*8192 + e*4096}",
              tag='fr', res_r=[(f"V{buf}", True)]) for ks in range(4) for e in range(2)]

def attn_setup():
    t1, t2, t3 = 56, 57, 58
    pre = [f"v_bfe_u32 v{t3}, v{V_L16}, 4, 2",
           f"v_cmp_eq_u32 vcc, 1, v{t3}", f"v_mov_b32 v{t1}, 0x44444444", f"v_mov_b32 v{t2}, 0xeeeeeeee", f"v_cndmask_b32 v{V_SPI}, v{t1}, v{t2}, vcc",
           f"v_cmp_gt_u32 vcc, 2, v{t3}", f"v_mov_b32 v{t1}, 0x3f803f80", f"v_lshrrev_b32 v{t2}, 6, v{V_L16}", f"v_cndmask_b32 v59, 0, v{t1}, vcc",
           f"v_lshlrev_b32 v{t1}, 8, v{t2}", f"v_and_b32 v{t2}, 7, v{t2}", f"v_lshl_add_u32 v{t1}, v{t3}, 3, v{t1}", f"v_add_u32 v{t1}, 0x10000, v{t1}"]
    va = []
    for dt in range(8): va += [f"v_xor_b32 v{V_VA+dt}, {dt}, v{t2}", f"v_lshl_add_u32 v{V_VA+dt}, v{V_VA+dt}, 5, v{t1}"]
    sp = [f"v_accvgpr_write_b32 a{A_SPA+i}, v59" for i in range(4)] + [f"v_accvgpr_write_b32 a{A_FILL+i}, -1" for i in range(4)]
    return dict(pre=[I(x) for x in pre], va=[I(x) for x in va], sp=[I(x) for x in sp])

def rowmax_finish():
    L = []; A = lambda t, **k: L.append(I(t, **k))
    for sw in ("v_permlane32_swap_b32", "v_permlane16_swap_b32"):
        for qb in range(4): A(f"v_mov_b32 v{V_NEGM+4*qb+1}, v{V_NEGM+4*qb}")
        A("s_nop 1")
        for qb in range(4): A(f"{sw} v{V_NEGM+4*qb}, v{V_NEGM+4*qb+1}")
        for qb in range(4): A(f"v_max_f32 v{V_NEGM+4*qb}, v{V_NEGM+4*qb}, v{V_NEGM+4*qb+1}")
    for qb in range(4): A(f"v_sub_f32 v{V_NEGM+4*qb}, {hx(f2u(-float(OPT.get('moff', 10))))}, v{V_NEGM+4*qb}")
    for qb in range(4):
        for r in range(1, 4): A(f"v_mov_b32 v{V_NEGM+4*qb+r}, v{V_NEGM+4*qb}")
    return L

NSB = 3
def softmax_items(n, pbuf):
    kt, qb = n >> 2, n & 3
    s = V_S + 4*(n % 2)
    p = P(pbuf, qb, kt >> 1) + 2*(kt & 1)
    ex = [I(f"v_exp_f32 v{s+r}, v{s+r}") for r in range(4)]
    cv = [I(f"v_cvt_pk_bf16_f32 v{p}, v{s}, v{s+1}"), I(f"v_cvt_pk_bf16_f32 v{p+1}, v{s+2}, v{s+3}")]
    if OPT.get('perm'): cv = [I(f"v_perm_b32 v{p}, v{s+1}, v{s}, s75"), I(f"v_perm_b32 v{p+1}, v{s+3}, v{s+2}, s75")]
    return ex, cv

def smf(pbuf, qb, h):
    return I(f"v_smfmac_f32_16x16x64_bf16 {ar(A_L + 4*qb)}, {ar(A_SPA)}, {vr(P(pbuf, qb, 2*h), 8)}, v{V_SPI}")

def attn_iter(par, first_pv=False, vmtags=('kv',), d0=0):
    m = []; blk = []; sg = []
    for i in range(8):
        for qb in range(4):
            n = 4*i + qb
            blk.append(len(m))
            d = vr(V_S + 4*(n % 2))
            for kk in range(4):
                m.append(mf(d, ar(A_KF + 16*(i&1) + 4*kk), vr(V_Q + 16*qb + 4*kk), d if kk else vr(V_NEGM + 4*qb)))
            o = ar(A_O + 16*i + 4*qb)
            for ks in range(4):
                ab = (ar(A_VF + 16*(i&1) + 4*ks), vr(P(par ^ 1, qb, ks)))
                ab = ab[::-1]
                m.append(mf(o, ab[0], ab[1], "0" if (first_pv and ks == 0) else o))
        sg.append(len(m))
        m.append(smf(par ^ 1, i >> 1, i & 1))
    G = Gaps(m)
    for n in range(32):
        b = blk[n]
        ex, cv = softmax_items((n - 1) % 32, par if n else par ^ 1)
        for r in range(4): G.pin(b + 2*r, ex[r])
        G.pin(b + 3, cv[0]); G.pin(b + 7, cv[1])
    for i in range(8):
        if i < 7: rd = k_reads(i + 1, par) + v_reads(i + 1, par ^ 1)
        else: rd = k_reads(0, par ^ 1) + v_reads(0, par)
        k = 0
        for qb in range(3):
            b = blk[4*i + qb]
            for gp in (3, 5, 5, 7):
                G.pin(b + gp, rd[k]); k += 1
        if i == 6:
            G.pin(sg[i], W(vm=list(vmtags), lgkm=['fr'])); G.pin(sg[i], I("s_barrier"))
        else:
            G.pin(sg[i], W(lgkm=['fr']))
    groups = [kv_dma('K', 0, par ^ 1, 'kv'), kv_dma('K', 1, par ^ 1, 'kv'), kv_dma('V', 0, par, 'kv'), kv_dma('V', 1, par, 'kv')]
    for i in range(4):
        for qb in range(4): G.pin(blk[4*(i + d0) + qb] + 1, groups[i][1 + qb])
        if i < 3: G.pin(blk[4*(i + d0) + 3] + 4, groups[i + 1][0])
    nxt = kv_dma('K', 0, par, 'kv')[0]
    G.pin(blk[4*7 + 3] + 3, nxt)
    for k in range(4): G.pin(blk[4*7 + (k >> 1)] + 1, I(f"s_add_u32 s{S_KO+k}, s{S_KO+k}, 0x8000"))
    G.blk = blk; G.sg = sg
    return G

def y_load(half, dst=None):
    dst = V_YB if dst is None else dst
    return I(f"buffer_load_dwordx4 {vr(dst)}, v{V_L16}, {sr(SRD_WS)}, s{S_YL} offen sc1", tag=f'yl{dst}')
def y_add(half, src=None, V_YT=V_YT):
    src = V_YB if src is None else src
    L = []
    for k in range(4):
        a = V_YS + 8*half + 2*k
        L += [I(f"v_lshlrev_b32 v{V_YT}, 16, v{src+k}"), I(f"v_and_b32 v{src+k}, 0xffff0000, v{src+k}"),
              I(f"v_add_f32 v{a}, v{a}, v{V_YT}"), I(f"v_add_f32 v{a+1}, v{a+1}, v{src+k}")]
    return L
def y_next():
    return [I(f"s_add_u32 s{S_YI}, s{S_YI}, {hx(1 << GS_Y)}"), I(f"s_and_b32 s{S_YI}, s{S_YI}, {hx((8 << GS_Y) - 1)}"), I(f"s_add_u32 s{S_YL}, s{S_YI}, s{S_CB2}")]
def cnt_load(vreg=None): return I(f"buffer_load_dword v{vreg or V_CNT}, off, {sr(SRD_DBG)}, s{S_CL} sc1", tag='cnt')
def cnt_check(G, gap, need, name, read=True, vreg=None):
    if read: G.pin(gap, I(f"v_readfirstlane_b32 s{S_T+2}, v{V_CNT}"))
    G.pin(gap + (1 if read else 2), I(f"s_cmp_lt_u32 s{S_T+2}, {need}"))
    for x in (I(f"s_cbranch_scc1 L_W{name}"), I(f"L_B{name}:")): G.pin(gap + 2, x)
    STUBS.extend([I(f"L_W{name}:"), I(f"s_mov_b32 s{S_SPIN}, 0x40000"), I(f"L_W{name}_l:"), cnt_load(vreg), I(f"s_sub_u32 s{S_SPIN}, s{S_SPIN}, 1"),
                  I("s_waitcnt vmcnt(0)"), I(f"v_readfirstlane_b32 s{S_T+2}, v{vreg or V_CNT}"), I("s_nop 3"),
                  I(f"s_cmp_ge_u32 s{S_T+2}, {need}"), I(f"s_cbranch_scc1 L_B{name}"),
                  I(f"s_cmp_gt_i32 s{S_SPIN}, 0"), I(f"s_cbranch_scc1 L_W{name}_l"), I(f"s_branch L_B{name}")])
def arrive(va, vd):
    return [I(f"v_add_u32 v{va}, s{S_RING}, v{V_L16}"), I(f"v_or_b32 v{va}, s{S_PASS}, v{va}"), I(f"v_min_u32 v{va}, 1, v{va}"), I(f"v_lshlrev_b32 v{va}, 12, v{va}"),
            I(f"v_mov_b32 v{vd}, 1")], I(f"buffer_atomic_add v{vd}, v{va}, {sr(SRD_DBG)}, s{S_CA} offen sc1", tag='atom')

def xo_voff(dst, t):
    return [I(f"v_bfe_u32 v{dst}, v{V_L16}, 4, 5"), I(f"v_lshlrev_b32 v{dst}, 10, v{dst}"),
            I(f"v_lshrrev_b32 v{t}, 9, v{V_L16}"), I(f"v_lshl_add_u32 v{dst}, v{t}, 4, v{dst}")]

def it1_extras(G):
    blk = G.blk
    t0, t1, t2 = V_YS + 8, V_YS + 9, V_YS + 10
    su = [I(x) for x in (f"s_lshl_b32 s{S_CA}, s{S_R}, 3", f"s_mov_b32 s{S_FO}, s{S_CB}",
          f"s_and_b32 s{S_CB2}, s{S_G}, 4", f"s_add_u32 s{S_CB2}, s{S_CB2}, s{S_W}", f"s_lshl_b32 s{S_CB2}, s{S_CB2}, {PS + 1}",
          f"s_and_b32 s{S_YI}, s{S_G}, 3", f"s_lshl_b32 s{S_YI}, s{S_YI}, {13 if LAY[1] == '1' else 10}", f"s_add_u32 s{S_YI}, s{S_YI}, s{S_RBY}",
          f"s_add_u32 s{S_CB2}, s{S_CB2}, s{S_YI}",
          f"s_add_u32 s{S_YI}, s{S_G}, 7", f"s_lshl_b32 s{S_YI}, s{S_YI}, {GS_Y}", f"s_mov_b32 s{S_YL}, {hx(1 << 28)}",
          f"s_lshl_b32 s{S_T}, s{S_G}, 7", f"s_lshl_b32 s{S_T+1}, s{S_W}, 5", f"s_add_u32 s{S_T}, s{S_T}, s{S_T+1}",
          f"v_lshrrev_b32 v{t0}, 8, v{V_L16}", f"v_lshlrev_b32 v{t0}, 3, v{t0}")]
    su.append(I(f"buffer_load_dwordx2 {vr(V_YB,2)}, v{t0}, {sr(SRD_B2)}, s{S_T} offen", tag='b2'))
    su += [I(f"s_lshl_b32 s{S_XO}, s{S_R}, 16"), I(f"s_add_u32 s{S_XO}, s{S_XO}, s{S_T}"), I(f"s_add_u32 s{S_XO+1}, s{S_XO}, 32768")]
    su += xo_voff(t1, t2)
    for h in range(2): su.append(I(f"buffer_load_dwordx4 {ar(A_XT+4*h)}, v{t1}, {sr(SRD_X)}, s{S_XO+h} offen", tag='xt'))
    su += [I(x) for x in (f"v_bfe_u32 v{t0}, v{V_L16}, 4, 3", f"v_lshrrev_b32 v{t2}, 8, v{V_L16}", f"v_lshlrev_b32 v{t2}, 1, v{t2}", f"v_xor_b32 v{t0}, v{t0}, v{t2}",
           f"v_lshrrev_b32 v{t2}, 7, v{V_L16}", f"v_lshlrev_b32 v{t2}, 10, v{t2}", f"v_lshl_add_u32 v{t2}, v{t0}, 4, v{t2}",
           f"s_lshl_b32 s{S_T}, s{S_G}, 19", f"s_lshl_b32 s{S_T+1}, s{S_W}, 17", f"s_add_u32 s{S_T}, s{S_T}, s{S_T+1}",
           f"v_add_u32 v{t2}, s{S_T}, v{t2}", f"v_accvgpr_write_b32 a{A_WOB}, v{t2}", f"s_lshl_b32 s{S_WO+1}, s{S_W}, 13")]
    for ct in range(4): G.stream(y_pack(V_ACCB, ct), 0 if ct < 3 else 4, blk[ct + 1] + 2)
    for k, x in enumerate(y_stores(1)):
        g = (blk[15] + 5, G.sg[3], blk[17] + 1, blk[18] + 1, blk[19] + 1, blk[19] + 5, blk[23] + 1, blk[23] + 5)[k]
        G.pin(g - 1, x[0]); G.pin(g, x[1])
    G.stream(VA_LATE, blk[4] + 3, blk[12] - 1)
    k = [n for n, x in enumerate(su) if x.tag == 'b2'][0]
    h = G.stream(su[:k+1], blk[1], blk[8])
    G.stream(su[k+1:], blk[20], blk[25])
    h = G.stream(wo_dma(0, vwob=t2), blk[25] + 1, blk[31] + 2)
    ini = [W(vm=['b2'])]
    for q in (0, 1, 3):
        for k in range(2):
            ini += [I(f"v_lshlrev_b32 v{V_YS+4*q+2*k}, 16, v{V_YB+k}"), I(f"v_and_b32 v{V_YS+4*q+2*k+1}, 0xffff0000, v{V_YB+k}")]
    G.stream(ini + [y_load(0)], blk[12], blk[22])
    G.stream([I(f"v_mov_b32 v{V_YS+8+k}, v{V_YS+k}") for k in range(4)], h[0], len(G) - 1)
    G.stream([I(f"s_min_u32 s{SRD_WS2+2}, s{SRD_WS2+2}, s{S_LIM}"),
              I(f"s_mov_b32 s{S_NEED}, 0"), I(f"s_mov_b32 s{S_CL}, 0x1000")], blk[25], blk[31])

def kv_touch(srdb):
    return I(f"buffer_load_dword a{A_PF}, v{V_PFO}, {sr(srdb)}, s{S_KT} offen", tag='pf')
def fills():
    return [I(f"buffer_store_dwordx4 {ar(A_FILL)}, v{V_L16}, {sr(SRD_WS2)}, s{S_FO} offen sc1", tag='fill') for k in range(3)]

def loop_extras(ge, go):
    for G, half in ((ge, 0), (go, 1)):
        blk = G.blk
        it = [W(vm=[f'yl{V_YB}'] + (['cnt'] if half else []))] + y_add(half)
        if half == 0:
            G.stream(it, blk[16], blk[22])
            G.pin(blk[22] + 1, y_load(1))
            for k, x in enumerate(fills()[:2]): G.pin(blk[23 + 4*k] + 1, x); G.pin(blk[23 + 4*k] + 6, I(f"s_add_u32 s{S_FO}, s{S_FO}, {hx(PL)}"))
            G.pin(blk[31] + 1, cnt_load())
            G.pin(blk[30] + 1, I(f"s_cmp_eq_u32 s{S_CNT}, 7"))
            for x in (I("s_cbranch_scc1 L_AR0"), I("L_AR0B:")): G.pin(blk[30] + 2, x)
            pre, atom = arrive(V_YT, V_CNT)
            global AR0
            AR0 = [I("L_AR0:")] + pre + [atom, I("s_branch L_AR0B")]
            STUBS.extend(AR0)
        else:
            cnt_check(G, blk[21] + 1, f"s{S_NEED}", 'A')
            G.pin(blk[25] + 2, I(f"s_mov_b32 s{S_NEED}, 8")); G.pin(blk[25] + 4, I(f"s_mov_b32 s{S_CL}, s{S_CA}"))
            G.stream(it, blk[16], blk[22])
            G.stream(y_next(), blk[16], blk[21])
            G.pin(blk[22] + 1, y_load(0))
            f0 = fills()[2]; f0.tag = 'fill2'; G.pin(blk[27] + 1, f0); G.pin(blk[27] + 6, I(f"s_add_u32 s{S_FO}, s{S_FO}, {hx(PL)}")); G.pin(blk[24] + 2, I(f"s_add_u32 s{S_YL}, s{S_YL}, {hx(PL)}"))
            if not OPT.get('nopf'):
                G.pin(blk[23] + 1, I(f"buffer_load_dword a{A_PF}, v{V_PFO}, {sr(SRD_WO)}, s{S_PF} offen{NT('o')}", tag='pf'))
                G.pin(blk[26] + 2, I(f"s_add_u32 s{S_PF}, s{S_PF}, {1024*GG}"))
            G.pin(blk[30] + 1, I(f"s_cmp_eq_u32 s{S_CNT}, 3"))
            for x in (I("s_cbranch_scc1 L_ARR"), I("L_ARRB:")): G.pin(blk[30] + 2, x)
            pre, atom = arrive(V_YT, V_CNT)
            global ARR
            ARR = [I("L_ARR:")] + pre + [atom]
            for k, (ds, half) in enumerate(((2, 1), (3, 0), (3, 1))):
                ARR += [I(f"s_add_u32 s{93+k}, s{S_YI}, {hx(ds << GS_Y)}"), I(f"s_and_b32 s{93+k}, s{93+k}, {hx((8 << GS_Y) - 1)}"), I(f"s_add_u32 s{93+k}, s{93+k}, s{S_CB2}")]
                if half: ARR.append(I(f"s_add_u32 s{93+k}, s{93+k}, {hx(PL)}"))
                ARR.append(I(f"buffer_load_dwordx4 {ar(A_Y7+4*k)}, v{V_L16}, {sr(SRD_WS)}, s{93+k} offen sc1", tag='y7'))
            if not OPT.get('nocode2'):
                ARR += [I("s_getpc_b64 s[94:95]"), I("L_PC3:"), I("s_sub_u32 s94, s94, L_PC3-L_FIN"), I("s_subb_u32 s95, s95, 0"),
                        I(f"s_lshr_b32 s93, s2, 3"), I(f"s_lshl_b32 s93, s93, 2"), I(f"s_add_u32 s93, s93, s{S_W}"), I("s_lshl_b32 s93, s93, 7"),
                        I("s_min_u32 s93, s93, L_END-L_FIN"), I(f"v_mov_b32 v{V_YT}, s93"),
                        I(f"global_load_dword a{A_PF}, v{V_YT}, s[94:95]", tag='pf')]
            if OPT.get('otouch'):
                ARR += [I(f"v_bfe_u32 v{V_CNT}, v{V_L16}, 4, 4"), I(f"v_lshlrev_b32 v{V_CNT}, 10, v{V_CNT}"), I(f"s_add_u32 s93, s{S_XO}, s{S_RING}"),
                        I(f"buffer_load_dword a{A_PF}, v{V_CNT}, {sr(SRD_OUT)}, s93 offen", tag='pf')]
            ARR += [I("s_branch L_ARRB")]
            STUBS.extend(ARR)

def attn_iter0():
    m = []; blk = []
    for i in range(8):
        for qb in range(4):
            n = 4*i + qb
            blk.append(len(m))
            d = vr(V_S + 4*(n % 3) if n < 30 else V_S + 4*(n % 2))
            for kk in range(4):
                m.append(mf(d, ar(A_KF + 16*(i&1) + 4*kk), vr(V_Q + 16*qb + 4*kk), d if kk else vr(V_NEGM + 4*qb)))
    G = Gaps(m)
    G.head += [I(f"v_accvgpr_write_b32 a{A_L + k}, 0") for k in range(16)]
    tail = []
    for n in range(31):
        kt, qb = n >> 2, n & 3
        s = V_S + 4*(n % 3) if n < 30 else V_S + 4*(n % 2)
        p = P(0, qb, kt >> 1) + 2*(kt & 1)
        ex = [I(f"v_exp_f32 v{s+r}, v{s+r}") for r in range(4)]
        cv = [I(f"v_cvt_pk_bf16_f32 v{p}, v{s}, v{s+1}"), I(f"v_cvt_pk_bf16_f32 v{p+1}, v{s+2}, v{s+3}")]
        if n + 2 < 32:
            b = blk[n + 2]
            G.pin(b - 1, ex[0]); G.pin(b, ex[1]); G.pin(b + 1, ex[2]); G.pin(b + 1, cv[0]); G.pin(b + 2, ex[3]); G.pin(b + 3, cv[1])
        else:
            tail += ex + cv
    for i in range(8):
        rd = k_reads(i + 1, 0) if i < 7 else k_reads(0, 1) + v_reads(0, 0)
        lo = blk[4*i]
        for k, x in enumerate(rd): G.pin(lo + (k if i == 7 else 2*k), x)
        if i == 6:
            G.pin(blk[4*i + 3] + 3, W(vm=['kv'], lgkm=['fr'])); G.pin(blk[4*i + 3] + 3, I("s_barrier"))
        elif i < 7:
            G.pin(blk[4*i + 3] + 3, W(lgkm=['fr']))
    G.pin(3, kv_dma('K', 0, 0, 'kv')[0]); G.pin(5, I("s_nop 0"))
    out = G.flat() + [I("s_nop 3")] + tail + [W(lgkm=['fr'])]
    print(f"; iter0 est cycles {G.cycles()}", file=sys.stderr)
    return out

V_RL, V_XW, V_XR, V_MISC, V_WOB, V_NT, V_OA = 16, 32, 33, 34, 35, 36, 60
V_STG = 128
def V_R(p): return [160, 64, 96, 224][p] if p < 4 else (64 if p & 1 else 160)
V_OACC = 192
def V_SP(st): return 96 + 8*st if st < 4 else 224 + 8*(st - 4)
V_XT, V_MX, V_SEL = 4, 28, 16
S_WO, S_SO = 76, 93
PER = [(0, 0), (1, 0), (0, 1), (1, 1)] + [(c, h) for c in range(2, 8) for h in range(2)]
SLOTS = dict(A=(2, 0, 8192, 'hx'), B=(1, 0, 16384, 'V0'), C=(1, 8192, 16384, 'V1'), D=(0, 0, 16384, 'K0'), E=(0, 8192, 16384, 'K1'))
def oslot(p): return SLOTS["ADBADBAECDBAECDB"[p]]

def wo_dma(p, vwob=None):
    vwob = V_WOB if vwob is None else vwob
    ci, half = PER[p]
    win, base, ps, res = oslot(p)
    L = [I(f"s_add_u32 s{S_WO}, s{S_G}, {1 + ci}"), I(f"s_and_b32 s{S_WO}, s{S_WO}, 7"), I(f"s_lshl_b32 s{S_WO}, s{S_WO}, 7")]
    for h in range(2):
        for i in range(4):
            L.append(I(f"s_add_u32 s{S_RS + i}, s{S_WO}, {hx((half*64 + h*32 + 8*i)*1024 - 1024*i)}"))
            if i == 0: L.append(I(f"s_add_u32 m0, s{S_RING if ps == 16384 else S_WO+1}, {hx(win*65536 + base + h*4096)}"))
            off = f" offset:{i*1024}" if i else ""
            L.append(I(f"buffer_load_dwordx4 v{vwob}, {sr(SRD_WO)}, s{S_RS + i} offen{off} lds", tag=f"wo{p}", res_w=[(res, True)]))
    return L

OFREG = [list(range(0, 64, 4)) + list(range(128, 176, 4)) + list(range(240, 256, 4)),
         list(range(64, 128, 4)) + list(range(176, 240, 4))]
def OF(half, j, qb): return OFREG[half][8*qb + j]
def oaf_reads(p):
    win, base, ps, res = oslot(p)
    return [I(f"ds_read_b64_tr_b16 {vr(V_R(p) + 4*j + 2*e, 2)}, v{V_OA+win} offset:{base + (j>>1)*ps + (j&1)*4096 + e*2048}",
              tag=f"oaf{p}", res_r=[(res, True)]) for j in range(8) for e in range(2)]
def of_reads(half, qb):
    return [I(f"ds_read_b64_tr_b16 {ar(OF(half, j, qb) + 2*e, 2)}, v{V_XR} offset:{(j>>1)*16384 + 8192 + (j&1)*4096 + e*2048}",
              tag=f"of{half}_{qb}", res_r=[('V1' if half else 'K1', True)]) for j in (range(8) if qb & 1 == 0 else range(7, -1, -1)) for e in range(2)]
def swz(dst, row, unit, t):
    return [I(x) for x in (f"v_bfe_u32 v{t}, v{row}, 1, 2", f"v_lshlrev_b32 v{t}, 2, v{t}", f"v_and_or_b32 v{t}, v{row}, 1, v{t}", f"v_xor_b32 v{unit}, v{unit}, v{t}",
                           f"v_lshrrev_b32 v{t}, 2, v{row}", f"v_and_b32 v{t}, 2, v{t}", f"v_xor_b32 v{unit}, v{unit}, v{t}",
                           f"v_lshlrev_b32 v{dst}, 7, v{row}", f"v_lshl_add_u32 v{dst}, v{unit}, 3, v{dst}")]
def sp_load(st):
    L = []
    for half in range(2):
        L.append(I(f"s_add_u32 s{S_YI+half}, s{S_CB}, {hx((2*st + half) * PL)}"))
        L.append(I(f"buffer_load_dwordx4 {vr(V_SP(st) + 4*half)}, v{V_L16}, {sr(SRD_WS)}, s{S_YI+half} offen sc1", tag=f"sp{st}"))
    return L
def sp_max(st):
    b = V_SP(st); m = V_MX
    return [I(f"v_max3_u32 v{m}, v{b}, v{b+1}, v{b+2}"), I(f"v_max3_u32 v{m}, v{m}, v{b+3}, v{b+4}"),
            I(f"v_max3_u32 v{m}, v{m}, v{b+5}, v{b+6}"), I(f"v_max_u32 v{m}, v{m}, v{b+7}")]

def finale():
    m = []; blk = []; sg = {}; per = []
    for i in range(8):
        for qb in range(4):
            blk.append(len(m))
            o = ar(A_O + 16*i + 4*qb)
            for ks in (range(4) if (qb & 1 == 0 or OPT.get('nosnake')) else range(3, -1, -1)): m.append(mf(o, vr(P(1, qb, ks)), ar(A_VF + 16*(i&1) + 4*ks), o))
            if (i, qb) == (2, 0):
                tm0 = len(m)
                for q in range(4): m.append(I(f"v_mfma_f32_16x16x4_f32 {vr(V_RL + 4*q)}, v{V_NT+q}, v{V_MISC}, 0"))
            if i == 0:
                for h in range(2):
                    sg[(qb, h)] = len(m); m.append(smf(1, qb, h))
    blk.append(len(m))
    for p, (ci, half) in enumerate(PER):
        lo = len(m)
        for qb in range(4):
            d = vr(V_OACC + 16*(ci & 1) + 4*qb)
            js = list(range(8))
            if qb & 1 and not OPT.get('nosnake'): js.reverse()
            for j in js:
                m.append(mf(d, vr(V_R(p) + 4*j), ar(OF(half, j, qb)), "0" if (j == js[0] and half == 0) else d))
        per.append((lo, len(m) - 1))
    G = Gaps(m)
    for q in range(4): G.cap[tm0 + q] = 6
    cnt_check(G, per[2][1] - 6, 16, 'B', read=False, vreg=V_MISC)
    Xa = blk[4] - 1
    X0 = blk[4*int(OPT.get('x0', 3))] - 1
    Xb = blk[4*int(OPT.get('xb', 5))] - 1
    X1 = blk[28] - 1
    p0, p2 = per[0][0], per[2][0]
    Xc = p0 + int(OPT.get('xc', 29))
    X2 = per[1][0] + int(OPT.get('x2', 17))
    quiet = set()
    def paced(items, lo, step, h=None):
        pos = lo - step
        for x in items:
            if x.kind == 'dma':
                pos = max(pos + step, h[0] if h else 0)
                while pos in quiet or any(y.is_mem() and y.kind != 'dsr' for y in G.seq(pos)) or (h and h[0] == pos and h[1] == 2): pos += 1
                h = G.pin(pos, x)
            else:
                st = max(lo - 3, h[0] if h else 0, 0)
                h = G.place(x, st, st + 2, after=h)
        return h
    w1pos = [X1 - 3 - 4*k for k in range(7, -1, -1)]
    w2pos = [X2 - 4 - int(OPT.get('w2s', 5))*k for k in range(7, -1, -1)]
    for g in w1pos + w2pos: quiet |= {g, g + 1}
    assert w1pos[0] > Xb
    ex, cv = softmax_items(31, 1)
    for r in range(4): G.pin(r, ex[r])
    G.pin(4, cv[0]); G.pin(4, cv[1])
    def ds_stream(rd, lo, hi, per_gap=2):
        g = lo
        for x in rd:
            while g in quiet or sum(y.kind == 'dsr' for y in G.seq(g)) >= per_gap or (x.is_b128r() and any(y.is_b128r() for y in G.seq(g))): g += 1
            assert g <= hi, (x.text, g, hi)
            G.pin(g, x)
        return g
    for i in range(7):
        ds_stream(v_reads(i + 1, 1), blk[4*i] + (1 if i == 0 else 0), blk[4*i + 4] - 4, 1 if i == 0 else 2)
        if blk[4*i + 4] - 1 not in (Xa, X0, Xb, X1): G.pin(blk[4*i + 4] - 1, W(lgkm=['fr']))
    G.head.append(I(f"v_accvgpr_read_b32 v{V_WOB}, a{A_WOB}"))
    su = [I(x) for x in (f"v_lshrrev_b32 v16, 6, v{V_L16}", "v_lshlrev_b32 v18, 7, v16", f"v_bfe_u32 v17, v{V_L16}, 4, 2", "v_lshl_add_u32 v18, v17, 3, v18",
           f"v_bfe_u32 v19, v{V_L16}, 7, 2", f"v_xor_b32 v19, s{S_W}, v19", f"v_lshl_add_u32 v{V_OA}, v19, 5, v18",
           f"v_add_u32 v{V_OA+2}, 0x20000, v{V_OA}")]
    for k, x in enumerate(su): G.pin(5 + k // 2, x)
    ds_stream(oaf_reads(0), 10, Xa - 4)
    d1 = wo_dma(1)
    for x in d1:
        if x.res_w: x.res_w = [('K0x', True)]
    h = paced(d1 + wo_dma(2), 2, 2)
    G.pin(Xa, W(lgkm=['fr', 'oaf0'])); G.pin(Xa, I("s_barrier"))
    h = paced(wo_dma(3), max(h[0], Xa) + 2, 2, h)
    e0 = sg[(3, 1)] + 5
    su = swz(V_XR, 16, 17, 18) + [I(f"v_bfe_u32 v16, v{V_L16}, 4, 4"), I(f"v_lshrrev_b32 v17, 8, v{V_L16}"),
          I(f"v_cmp_eq_u32 vcc, 0, v17")] + swz(V_XW, 16, 17, 18) + [I(f"v_cndmask_b32 v{V_MISC}, 0, 1.0, vcc")]
    su += [I(x) for x in (f"v_add_u32 v{V_XW}, s{S_RING}, v{V_XW}", f"v_add_u32 v{V_OA+1}, 0x10000, v{V_OA}",
           f"s_lshl_b32 s{S_SO+1}, s{S_W}, 10", f"s_add_u32 s{S_SO+1}, s{S_SO+1}, s{S_RB}")]
    G.stream(su, 9, e0 - 1)
    G.stream([I(f"v_bfe_u32 v{V_MISC}, v{V_L16}, 4, 2"), I(f"v_lshlrev_b32 v{V_MISC}, 14, v{V_MISC}")], tm0 + 3, X0 - 1)
    for x in (I("s_cbranch_vccnz L_MARK"), I("L_MARKED:")): G.pin(tm0 - 1, x)
    STUBS.extend([I("L_MARK:"), I(f"v_mov_b32 v16, -1"), I(f"v_mov_b32 v17, s{S_RING}"), I(f"ds_write_b32 v17, v16 offset:8192"), I("s_waitcnt lgkmcnt(0)"), I("s_branch L_MARKED")])
    G.pin(X0, W(vm=['wo2'], lgkm=['fr'])); G.pin(X0, I("s_barrier"))
    G.pin(X0, I(f"ds_read_b32 v{V_MISC}, v{V_MISC} offset:8192", tag='mk', res_r=[('K1', True)]))
    FB = X0 + 6
    G.pin(FB - 2, W(lgkm=['mk'])); G.pin(FB - 2, I(f"v_cmp_eq_u32 vcc, -1, v{V_MISC}"))
    for x in (I("s_cbranch_vccnz L_FALLBACK0"), I("L_NOFB:")): G.pin(FB, x)
    STUBS.extend([I("L_FALLBACK0:"), I(f"s_cmp_lg_u32 s{S_PASS}, 0"), I("s_cbranch_scc1 L_NOFB"), I("s_branch L_FALLBACK")])
    o1 = oaf_reads(1)
    for x in o1: x.res_r = x.res_r + [('K0x', True)]
    ds_stream(o1 + oaf_reads(2), FB, Xb - 3)
    G.pin(Xb, W(lgkm=['fr', 'oaf2'])); G.pin(Xb, I("s_barrier"))
    G.pin(X1, W(vm=['wo3'], lgkm=['fr', 'ow0'])); G.pin(X1, I("s_barrier"))
    for half, g, pf in ((0, X1 + 1, p0), (1, X2 + 1, p2)):
        for qb in range(4):
            G.pin(pf + 8*qb - 1, W(lgkm=[f'of{half}_{qb}']))
            g = ds_stream(of_reads(half, qb), g, pf + 8*qb - 4)
            if (half, qb) != (1, 3): G.pin(g, I(f"v_xor_b32 v{V_XR}, {hx((32, 96, 32, 96 + 0x10000)[qb])}, v{V_XR}"))
            g += 1
        if half == 0: ds_stream(oaf_reads(3), p0, Xc - 3, 3)
    G.pin(Xc, W(lgkm=['of0_3', 'oaf3'])); G.pin(Xc, I("s_barrier"))
    G.pin(X2, W(lgkm=['ow1'])); G.pin(X2, I("s_barrier"))
    skip = set(int(x) for x in OPT.get('skip', '99').split(',') if x)
    for p in range(2, 15):
        lo, hi = per[p]
        q = p + 1
        lg = [f"oaf{q}"] if p > 2 else ['of1_3']
        if q < 15 and q not in skip:
            G.pin(hi, W(vm=[f"wo{q+2 if q+1 in skip else q+1}"], lgkm=lg)); G.pin(hi, I("s_barrier"))
        else:
            G.pin(hi, W(lgkm=lg))
        if p > 2:
            for k, x in enumerate(oaf_reads(q)): G.pin(lo + 1 + 3*(k // 2), x)
    h = paced(wo_dma(4) + wo_dma(5), Xb + 1, 4, h)
    h = paced(wo_dma(6) + wo_dma(7), max(h[0] + 4, Xc + 1), 4, h)
    pace = int(OPT.get('pace', 40))
    for k in range(8):
        q = 8 + k
        rel = q - 5
        while rel in skip: rel += 1
        need = q - 1
        while need in skip: need -= 1
        lo = max(per[rel][0], min(per[3][0] + pace*k, per[need][0] - int(OPT.get('fm', 28)) - 32), h[0] + 2)
        step = max(2, min(pace // 8, (per[need][0] - int(OPT.get('fm', 28)) - lo) // 7))
        h = paced(wo_dma(q), lo, step, h)
    items = []
    for qb in range(4):
        items += [I(f"v_accvgpr_read_b32 v{V_NT+qb}, a{A_L+4*qb}"), I(f"v_accvgpr_read_b32 v16, a{A_L+4*qb+1}"),
                  I(f"v_add_f32 v{V_NT+qb}, v{V_NT+qb}, v16")]
    items += [I(f"v_add_f32 v16, v{V_NT}, v{V_NT+1}"), I(f"v_add_f32 v17, v{V_NT+2}, v{V_NT+3}"), I(f"v_add_f32 v16, v16, v17"),
              I(f"v_cmp_ngt_f32 vcc, {hx(f2u(2.0**(40 - float(OPT.get('moff', 10)))))}, v16")]
    items += [I(f"v_rcp_f32 v{V_NT+qb}, v{V_NT+qb}") for qb in range(4)]
    G.stream(items, e0, tm0 - 2)
    h = (tm0 + 2, 2)
    def norm(i, qb):
        e = blk[4*i + qb] + 3 + 6
        st = V_STG + 16*((i >> 1) & 1) + 4*qb
        o = A_O + 16*i + 4*qb; T = V_NT
        seq = [I(f"v_accvgpr_read_b32 v{T+r}, a{o+r}") for r in range(4)]
        seq += [I(f"v_mul_f32 v{T+r}, v{T+r}, v{V_RL+4*qb+r}") for r in range(4)]
        seq += [I(f"v_cvt_pk_bf16_f32 v{st+2*(i&1)}, v{T}, v{T+1}"), I(f"v_cvt_pk_bf16_f32 v{st+2*(i&1)+1}, v{T+2}, v{T+3}")]
        return [(x, e) for x in seq]
    for hf, wpos in ((0, w1pos), (1, w2pos)):
        for k in range(8):
            u, qb = 2*hf + (k >> 2), k & 3
            st = V_STG + 16*(u&1) + 4*qb
            G.pin(wpos[k], I(f"ds_write2st64_b64 v{V_XW}, {vr(st, 2)}, {vr(st + 2, 2)} offset0:{16 + 8*(u&1)} offset1:{20 + 8*(u&1)}", tag=f'ow{hf}',
                             res_w=[('V1' if hf else 'K1', True)]))
            if (hf, k) != (1, 7): G.pin(wpos[k] + 1, I(f"v_xor_b32 v{V_XW}, {hx((32, 96)[k & 1] + (0x10000 if k == 7 else 0))}, v{V_XW}"))
    for hf, wpos in ((0, w1pos), (1, w2pos)):
        lo = h[0] + 1; span = wpos[7] - lo
        for k in range(8):
            u, qb = 2*hf + (k >> 2), k & 3
            its = norm(2*u, qb) + norm(2*u + 1, qb)
            if hf: its = [(x, max(e, w1pos[k] + 2)) for x, e in its]
            hi = min(wpos[k] - 1, max(lo + (span * (k + 1)) // 8, its[-1][1] + 4))
            h = G.stream(its, h[0] + 1, max(hi, h[0] + 3))
            assert h[0] < wpos[k]
    G.stream([I(f"v_accvgpr_read_b32 v{V_XT+k}, a{A_XT+k}") for k in range(8)] + [I(f"v_accvgpr_read_b32 v{16 + k}, a{A_Y7+k}") for k in range(12)], X2 - 3, X2 + 22)
    for ci in range(7):
        pl = PER.index((ci, 1))
        a = V_OACC + 16*(ci & 1)
        e0 = per[pl][0] + 20
        items = [(I(x), e0) for x in (f"s_add_u32 s{S_SO}, s{S_G}, {1 + ci}", f"s_and_b32 s{S_SO}, s{S_SO}, 7", f"s_lshl_b32 s{S_SO}, s{S_SO}, {GS_S}",
                 f"s_add_u32 s{S_SO}, s{S_SO}, s{S_SO+1}", f"s_add_u32 s{S_SO+2}, s{S_SO}, {hx(PL)}", f"s_add_u32 s{S_SO+1}, s{S_SO+1}, {hx(2*PL)}")]
        st = V_STG + 8*(ci & 1)
        for half in range(2):
            e = per[pl][0] + 16*half + 15 + 6
            for k in range(4*half, 4*half + 4): items.append((I(f"v_cvt_pk_bf16_f32 v{st+k}, v{a+2*k}, v{a+2*k+1}"), e))
            for k in range(4*half, 4*half + 4): items.append((I(f"v_min_u32 v{st+k}, -2, v{st+k}"), e))
            items.append((I(f"buffer_store_dwordx4 {vr(st+4*half)}, v{V_L16}, {sr(SRD_WS)}, s{S_SO + 2*half} offen sc1", tag='sst'), max(e, per[2][1] + 1)))
        G.stream(items, e0, per[pl + 1][0] + 18)
    it = y_add(0, None, V_MX) + y_add(1, 16, V_MX) + y_add(0, 20, V_MX) + y_add(1, 24, V_MX)
    for q0 in range(0, 16, 4):
        T = V_NT
        it += [I(f"v_mul_f32 v{T+r}, {hx(f2u(-math.log2(math.e)))}, v{V_YS+q0+r}") for r in range(4)]
        it += [I(f"v_exp_f32 v{T+r}, v{T+r}") for r in range(4)]
        it += [I(f"v_add_f32 v{T+r}, 1.0, v{T+r}") for r in range(4)]
        it += [I(f"v_rcp_f32 v{T+r}, v{T+r}") for r in range(4)]
        it += [I(f"v_mul_f32 v{V_YS+q0+r}, v{V_YS+q0+r}, v{T+r}") for r in range(4)]
        if OPT.get('eps'): it += [I(f"v_mul_f32 v{V_YS+q0+r}, {hx(f2u(1 + float(OPT['eps'])))}, v{V_YS+q0+r}") for r in range(4)]
    V_XF = 144
    for h in range(2): it += [I(f"v_permlane16_swap_b32 v{V_XT+4*h}, v{V_XT+4*h+2}"), I(f"v_permlane16_swap_b32 v{V_XT+4*h+1}, v{V_XT+4*h+3}")]
    for k in range(8): it += [I(f"v_lshlrev_b32 v{V_XF+2*k}, 16, v{V_XT+k}"), I(f"v_and_b32 v{V_XF+2*k+1}, 0xffff0000, v{V_XT+k}")]
    it += xo_voff(3, 2)
    it += [I(x) for x in (f"v_bfe_u32 v0, v{V_L16}, 6, 2", f"v_lshrrev_b32 v1, 8, v{V_L16}", "v_cmp_eq_u32 vcc, v0, v1",
           f"v_and_b32 v0, 16, v{V_L16}", "v_mov_b32 v1, 0x3f80", "v_lshlrev_b32 v0, v0, v1", "v_cndmask_b32 v0, 0, v0, vcc",
           f"v_and_b32 v1, 32, v{V_L16}", "v_cmp_eq_u32 vcc, 0, v1", f"v_mov_b32 v{V_SEL}, 0", f"v_mov_b32 v{V_SEL+1}, 0",
           f"v_cndmask_b32 v{V_SEL+2}, 0, v0, vcc", f"v_mov_b32 v{V_SEL+4}, 0", f"v_sub_u32 v{V_SEL+3}, v0, v{V_SEL+2}", f"v_mov_b32 v{V_SEL+5}, 0")]
    NE_ = int(OPT.get('ne5', 4))
    lds_ = [float(x) for x in OPT.get('lds', '6.6,8.6,10.6,12.6,14.6,14.6').split(',')]
    h = None
    for st in range(len(lds_)):
        g = per[0][0] + int(32*lds_[st])
        g = max(g, h[0] + 1 if h else 0)
        h = G.stream(sp_load(st), g, g + 5)
    G.stream(it, per[4][0], per[14][1])
    def chk(sts):
        regs = [V_SP(st) + k for st in sts for k in range(8)]
        out = [I(f"v_max_u32 v{V_MX}, v{regs[0]}, v{regs[1]}")]
        for k in range(2, len(regs), 2): out.append(I(f"v_max3_u32 v{V_MX}, v{V_MX}, v{regs[k]}, v{regs[k+1]}"))
        return out + [I(f"v_cmp_eq_u32 vcc, -1, v{V_MX}")]
    c0 = chk(range(NE_))
    G.stream([I(f"s_mov_b32 s{S_SPIN}, 0x40000"), W(vm=[f"sp{NE_-1}"])] + c0, per[15][1] - len(c0)//2 - 4, per[15][1] - 1)
    if OPT['stamps']:
        for x in stamp(9): G.pin(p0 - 1, x, post=True)
    for k in range(16): ministamp(G, per[k][1], 48 + k)
    print(f"; finale est cycles {G.cycles()} (pv part {G.cyc(0, p0-1)}, periods {[G.cyc(a, b) for a, b in per]})", file=sys.stderr)
    L = with_m0_pad(G.flat()); A = lambda t, **k: L.append(I(t, **k))
    if len(lds_) < 7: L += sp_load(6)
    L += stamp(10)
    acc = V_OACC + 16; U = 160
    groups = [list(range(NE_))] + [[st] for st in range(NE_, 7)]
    for n_, sts in enumerate(groups):
        A(f"s_cbranch_vccnz L_RETRY{n_}"); A(f"L_GO{n_}:")
        mm = [mf(vr(acc + 4*qb), vr(V_SEL + (0 if qb & 1 else 2)), vr(V_SP(st) + 4*(qb >> 1)), vr(acc + 4*qb)) for qb in range(4) for st in sts]
        nx = [W(vm=[f"sp{groups[n_+1][0]}"])] + chk(groups[n_ + 1]) + [I("s_nop 1")] if n_ + 1 < len(groups) else [I("s_nop 7")]
        L += mm + nx
        STUBS.append(I(f"L_RETRY{n_}:"))
        for st in sts:
            if len(sts) > 1: STUBS.extend(chk([st]) + [I("s_nop 3"), I(f"s_cbranch_vccz L_RN{st}")])
            STUBS.extend([I(f"L_RL{st}:")] + sp_load(st) + [I(f"s_sub_u32 s{S_SPIN}, s{S_SPIN}, 1"), I("s_waitcnt vmcnt(0)")] + chk([st]) +
                         [I(f"s_cmp_le_i32 s{S_SPIN}, 0"), I(f"s_cbranch_scc1 L_RN{st}"), I("s_nop 1"), I(f"s_cbranch_vccnz L_RL{st}"), I(f"L_RN{st}:")])
        STUBS.append(I(f"s_branch L_GO{n_}"))
    for k in range(8): A(f"v_pk_fma_f32 {vr(acc+2*k,2)}, {vr(acc+2*k,2)}, {vr(V_YS+2*k,2)}, {vr(V_XF+2*k,2)}")
    for k in range(8): A(f"v_cvt_pk_bf16_f32 v{U+k}, v{acc+2*k}, v{acc+2*k+1}")
    for h in range(2):
        A(f"v_permlane16_swap_b32 v{U+4*h}, v{U+4*h+2}"); A(f"v_permlane16_swap_b32 v{U+4*h+1}, v{U+4*h+3}")
    for h in range(2): A(f"buffer_store_dwordx4 {vr(U+4*h)}, v3, {sr(SRD_OUT)}, s{S_XO+h} offen {OPT.get('outf', '').replace('+', ' ')}", tag='out')
    return L

def fallback():
    L = []; A = lambda t, **k: L.append(I(t, **k))
    A("L_FALLBACK:")
    A("s_waitcnt vmcnt(0) lgkmcnt(0)"); A("s_nop 7")
    A(f"s_mov_b32 s{S_PASS}, 1")
    A(f"s_mov_b32 s{SRD_WS2+2}, 0")
    A(f"s_lshl_b32 s{S_KO}, s{S_W}, 13"); A(f"s_add_u32 s{S_KO+1}, s{S_KO}, 4096")
    for qb in range(4): A(f"v_mov_b32 v{V_NEGM+4*qb}, 0xff800000")
    A(f"s_mov_b32 s{S_CNT}, 17")
    A("L_FB_LOOP:")
    A("s_waitcnt vmcnt(0) lgkmcnt(0)"); A("s_barrier")
    A(f"s_cmp_lg_u32 s{S_CNT}, 1"); A("s_cbranch_scc1 L_FB_NR")
    A(f"s_lshl_b32 s{S_KO}, s{S_W}, 13"); A(f"s_add_u32 s{S_KO+1}, s{S_KO}, 4096")
    A("L_FB_NR:")
    L += with_m0_pad(kv_dma('K', 0, 0, 'kv') + kv_dma('K', 1, 0, 'kv'))
    A("s_waitcnt vmcnt(0)"); A("s_barrier")
    for kt in range(8):
        L += k_reads(kt, 0); A("s_waitcnt lgkmcnt(0)")
        for qb in range(4):
            d = vr(V_P + 4*qb)
            for kk in range(4): L.append(mf(d, ar(A_KF + 16*(kt&1) + 4*kk), vr(V_Q + 16*qb + 4*kk), d if kk else "0"))
        A("s_nop 7")
        for qb in range(4):
            b = V_NEGM + 4*qb; d = V_P + 4*qb
            A(f"v_max3_f32 v{b}, v{b}, v{d}, v{d+1}"); A(f"v_max3_f32 v{b}, v{b}, v{d+2}, v{d+3}")
    A(f"s_add_u32 s{S_KO}, s{S_KO}, 0x8000"); A(f"s_add_u32 s{S_KO+1}, s{S_KO+1}, 0x8000")
    A(f"s_sub_u32 s{S_CNT}, s{S_CNT}, 1"); A(f"s_cmp_lg_u32 s{S_CNT}, 0"); A("s_cbranch_scc1 L_FB_LOOP")
    L += rowmax_finish()
    A(f"s_lshl_b32 s{S_VO}, s{S_W}, 13"); A(f"s_add_u32 s{S_VO+1}, s{S_VO}, 4096")
    L += with_m0_pad(kv_dma('K', 0, 1, 'kv') + kv_dma('K', 1, 1, 'kv') + kv_dma('V', 0, 0, 'kv') + kv_dma('V', 1, 0, 'kv'))
    L += k_reads(0, 0); A("s_waitcnt lgkmcnt(0)")
    for k in range(4): A(f"s_add_u32 s{S_KO+k}, s{S_KO+k}, 0x8000")
    L += attn_setup()['pre']
    L += attn_iter0()
    A("s_branch L_IT1")
    return L

def build():
    d = OPT['dump']
    p0 = phase0(); p1 = phase1()
    su = stamp(4) + (stamp(5) if not OPT.get('fine') else []) + stamp(6)
    it0 = []
    g1 = attn_iter(1, first_pv=True); ge, go = attn_iter(0, vmtags=('kv', 'yst')), attn_iter(1, vmtags=('kv', 'fill'))
    go.pin(len(go) - 4, I(f"s_sub_u32 s{S_CNT}, s{S_CNT}, 1")); go.pin(len(go) - 4, I(f"s_cmp_lg_u32 s{S_CNT}, 0"))
    it1_extras(g1); loop_extras(ge, go)
    if OPT.get('trip'):
        for G_, base in ((ge, 32), (go, 48)):
            for x in (I(f"s_memtime s[{S_STAMP}:{S_STAMP+1}]"), I(f"s_add_u32 s98, s{S_CNT}, {base}"), I("s_waitcnt lgkmcnt(0)"), I(f"v_mov_b32 v{V_YT}, s{S_STAMP}"), I(f"v_lshrrev_b32 v{V_CNT if G_ is go else V_YT}, 0, v{V_YT}")): pass
            for x in (I(f"s_memtime s[{S_STAMP}:{S_STAMP+1}]"), I(f"s_mov_b32 s101, m0"), I(f"s_add_u32 m0, s{S_CNT}, {base}"), I("s_waitcnt lgkmcnt(0)"), I(f"v_writelane_b32 v63, s{S_STAMP}, m0"), I("s_nop 1"), I("s_mov_b32 m0, s101")): G_.pin(G_.sg[6], x, post=True)
    print(f"; attn iter est cycles {ge.cycles()} {go.cycles()} (it1 {g1.cycles()})", file=sys.stderr)
    if OPT.get('idle'): su = su + [I("s_nop 15")] * (int(OPT['idle']) // 64)
    if OPT.get('idlel'):
        for k in range(int(OPT['idlel'])): ge.pin(ge.sg[k], I("s_nop 15"), post=True); go.pin(go.sg[k], I("s_nop 15"), post=True)
    it1 = [I("L_IT1:")] + with_m0_pad(g1.flat()) + [I(f"s_mov_b32 s{S_CNT}, 7")] + stamp(7)
    loop = [I(".p2align 6"), I("L_LOOP:")] + ge.flat() + go.flat() + [I("s_cbranch_scc1 L_LOOP")]
    last = [I("L_FIN:")] + stamp(8) + finale()
    if OPT['stamps']: last += [I(f"v_writelane_b32 v63, s{S_SPIN}, 15")]
    last += stamp(11 if not OPT.get('fine') else 14, True)
    op = []
    fb = fallback()
    end = [I("L_END:"), I("s_endpgm")]
    if d == 'q': body = p0 + p1 + dump_regs([vr(V_Q + 4*i) for i in range(16)] + [ar(144 + 4*i) for i in range(28)]) + end; trace = body
    else:
        body = p0 + p1 + su + it0 + it1 + loop + last + end + STUBS + fb
        ka = [i for i, x in enumerate(loop) if x.text == "L_ARRB:"][0]
        k0 = [i for i, x in enumerate(loop) if x.text == "L_AR0B:"][0]
        trace = p0 + p1 + su + it0 + it1 + loop[:k0] + AR0 + loop[k0:] + loop + loop[:ka] + ARR + loop[ka:] + loop*2 + last
        k = [i for i, x in enumerate(last) if x.text == "s_cbranch_vccnz L_FALLBACK0"][0]
        trace2 = p0 + p1 + su + it0 + it1 + loop*2 + last[:k+1] + fb + it0 + it1 + loop + last
        resolve_waits(trace2)
    resolve_waits(trace)
    e = check(trace, verbose=False)
    if d is None: e += check(trace2, verbose=False)
    seen = set()
    e = [x for x in e if 's_memtime' not in x]
    for x in e[:6]: print("CHECK:", x, file=sys.stderr)
    if e: print("FAILED CHECK", len(e), file=sys.stderr); sys.exit(1)
    def in_gemm(x): return id(x) in gset
    gset = set(id(x) for x in p1 + op + last)
    if OPT.get('drop'): body = [x for x in body if not (id(x) in set(id(y) for y in loop) and x.tag in OPT['drop'].split(','))]
    if OPT.get('dropf'): body = [x for x in body if not (id(x) in set(id(y) for y in last) and ((x.tag and any(x.tag.startswith(t) for t in OPT['dropf'].split(','))) or 'L_RETRY' in x.text or ('bar' in OPT['dropf'] and x.kind == 'barrier')))]
    if OPT.get('nosst'): body = [x for x in body if x.tag not in ('sst', 'fill')]
    if OPT.get('noy'): body = [x for x in body if x.tag not in ('y0', 'y1')]
    if OPT.get('nodma'): body = [x for x in body if not (in_gemm(x) and x.kind == 'dma')]
    if OPT.get('novalu'): body = [x for x in body if not (in_gemm(x) and x.kind in ('valu', 'trans', 'perm') and any(k in x.text for k in ('f32', 'accvgpr', 'permlane')))]
    if OPT.get('nomfma'): body = [x for x in body if not (in_gemm(x) and x.kind == 'mfma')]
    if OPT.get('nods'): body = [x for x in body if not (in_gemm(x) and x.kind == 'dsr' and 'b32' not in x.text)]
    return body

def kdesc(name, vg, acc):
    return f""".amdhsa_kernel {name}
  .amdhsa_next_free_vgpr {vg}
  .amdhsa_next_free_sgpr 102
  .amdhsa_accum_offset {acc}
  .amdhsa_group_segment_fixed_size 0
  .amdhsa_kernarg_size 104
  .amdhsa_user_sgpr_count 2
  .amdhsa_user_sgpr_kernarg_segment_ptr 1
  .amdhsa_system_sgpr_workgroup_id_x 1
  .amdhsa_float_denorm_mode_32 3
.end_amdhsa_kernel"""

def render(body):
    K1 = NAME + "_kernel"
    out = [f"; @launch grid=(256,1,1) block=(256,1,1) lds=163840",
           '.amdgcn_target "amdgcn-amd-amdhsa--gfx950"', ".text"]
    out += [f".globl {K1}", ".p2align 12", ".p2align 8", f".type {K1},@function", f"{K1}:"] + [x.emit() for x in body]
    out += ['.section .rodata,"a"', ".p2align 6", kdesc(K1, 512, 256)]
    return "\n".join(out).replace("CODE_LEFT", "L_END-L_PC2") + "\n"

def addresses(body):
    import subprocess, tempfile, os
    d = tempfile.mkdtemp()
    marked = []
    for n, x in enumerate(body):
        if x.kind == 'mfma' or x.text == "L_END:": marked.append(I(f"ZZ{n}:"))
        marked.append(x)
    txt = re.sub(r'(s_c?branch\w*) L_PAD\w+', r'\1 L_END', render(marked))
    open(d + "/a.s", "w").write(txt)
    subprocess.check_call(["clang", "-x", "assembler", "-target", "amdgcn-amd-amdhsa", "-mcpu=gfx950", "-c", d + "/a.s", "-o", d + "/a.o"])
    o = subprocess.check_output(["llvm-objdump", "-t", d + "/a.o"], text=True)
    return {int(m.group(2)): int(m.group(1), 16) for m in re.finditer(r'^([0-9a-f]+) .*ZZ(\d+)$', o, re.M)}

body = build()
if OPT.get('hop'):
    PRE = 0x300
    offs = [int(x) for x in str(OPT['hop']).split(',')] if OPT['hop'] is not True else [0]
    k = 0; b = 0x2000 - PRE
    while True:
        stop = False
        for off in offs:
            ad = addresses(body)
            endi = [n for n, x in enumerate(body) if x.text == "L_END:"][0]
            cand = [n for n in sorted(ad) if n < endi and ad[n] + 8 >= b + off]
            if not cand: stop = True; break
            n = cand[0]
            body[n+1:n+1] = [I(f"L_PAD{k}:"), I(f"s_cbranch_execz L_PADN{k}")]
            k += 1
        if stop: break
        b += 0x1000
    if not OPT.get('nostubpad'):
        for lab in ("L_AR0:", "L_ARR:"):
            n = [i for i, x in enumerate(body) if x.text == lab][0]
            body[n+1:n+1] = [I(f"L_PAD{k}:"), I(f"s_cbranch_execz L_PADN{k}")]; k += 1
    for x in body:
        m_ = re.match(r's_cbranch_execz L_PADN(\d+)', x.text)
        if m_:
            t = int(m_.group(1)) + 4
            x.text = f"s_cbranch_execz L_PAD{t}" if t < k else "s_cbranch_execz L_PADX"
    print(f"; {k} pads", file=sys.stderr)
print(render(body))
```

```python
import sys, struct, math, re
from asmlib import *

NAME = "recurrent_scan__gqa_block_cached__dense_activation_gelu__prompt"
OPT = dict(dump=None, stamps=False, G='2', pfs='128', s2='10', kvrows='256', stag=False, q1='early', nw='8', ne='3', xe='8', pvx='2', cearly=True, c0='4', hop=True, hop0='4', fold=True, gl='28', alap='999', w1f='17', norot=True, nokt=True)
for a in sys.argv[1:]:
    k, _, v = a.partition('=')
    OPT[k] = (False if v == 'off' else v) if v else True

NT = lambda k: ' nt' if k in OPT.get('nt', '') else ''
GG = int(OPT['G']); LG = GG.bit_length() - 1
CQ = 128**-0.5 * math.log2(math.e)
CF = CQ if OPT.get('fold') else 1.0
def f2u(x): return struct.unpack('<I', struct.pack('<f', x))[0]
def hx(x): return f"0x{x & 0xffffffff:x}"
def vr(b, n=4): return f"v[{b}:{b+n-1}]" if n > 1 else f"v{b}"
def ar(b, n=4): return f"a[{b}:{b+n-1}]" if n > 1 else f"a{b}"
def sr(b, n=4): return f"s[{b}:{b+n-1}]" if n > 1 else f"s{b}"

S_W = 3
SRD_X, SRD_K, SRD_V, SRD_WQ, SRD_WO, SRD_W1, SRD_W2, SRD_WS, SRD_OUT, SRD_B1, SRD_B2, SRD_DBG = range(4, 52, 4)
S_G, S_R = 52, 53
S_SM1, S_SMQ, S_SM2 = 54, 57, 60
S_RING = 63
S_KO = 64
S_VO = 66
S_CNT, S_PASS = 68, 69
S_QS, S_GB = 70, 71
S_YO = 72
S_T = 76
S_PF = 99
SRD_WS2 = 80
S_CB, S_CB2, S_SPIN = 84, 85, 86
S_STAMP = 96

V_KA, V_VA, V_DV, V_SPI, V_L16 = 0, 4, 12, 14, 15
V_NEGM, V_S, V_SPA = 16, 32, 44
V_T = 48
V_Q, V_P = 64, 128
V_WA = 4
V_AF = 16
V_W1, V_WQ, V_W2, V_GA = 48, 49, 50, 51
V_ACCA, V_ACCB = 128, 192
V_B1 = 64
def XN(ks, qb): return ((15 - ks) * 4 + qb) * 4
A_O, A_L, A_KF, A_VF = 0, 128, 144, 176
A_SPA, A_FILL, A_XT, A_PF, A_WOB, A_Y7 = 208, 212, 216, 224, 225, 228
V_YB, V_YS, V_YT, V_PFO, V_CNT = 40, 44, 60, 61, 62
S_KT, S_NEED, S_CL = 75, 58, 59
S_CA, S_YI, S_YL, S_FO, S_XO = 87, 88, 89, 90, 91

LDS_V, LDS_X = 65536, 131072
WS_S, WS_Y, WS_DUMP = 0, 16 << 20, 64 << 20
RB = int(OPT.get('rb', 32)); LB = RB.bit_length() - 1; PL = RB << 15; PS = LB + 15
WSO = int(OPT.get('wso', 0)) << 20
S_RB, S_LIM = 60, 61
LAY = OPT.get('lay', '21')
GS_S, GS_Y = (12 if LAY[0] == '1' else 12 + LB), (10 if LAY[1] == '1' else 12 + LB)
S_RBY = 62

mf = lambda d, a, b, c: I(f"v_mfma_f32_16x16x32_bf16 {d}, {a}, {b}, {c}")

segs = {}
def stamp(i, last=False):
    if not OPT['stamps']: return []
    L = [I(f"s_memtime s[{S_STAMP}:{S_STAMP+1}]"), I(f"s_memrealtime s[100:101]"), I("s_waitcnt lgkmcnt(0)"),
         I(f"v_writelane_b32 v63, s{S_STAMP}, {i}"), I(f"v_writelane_b32 v63, s100, {16+i}")]
    if last:
        L += [I("s_lshl_b32 s98, s2, 2"), I(f"s_add_u32 s98, s98, s{S_W}"), I("s_lshl_b32 s98, s98, 8"), I(f"s_add_u32 s98, s98, {hx(WS_DUMP)}"),
              I(f"v_lshrrev_b32 v62, 2, v{V_L16}"), I(f"buffer_store_dword v63, v62, {sr(SRD_WS)}, s98 offen", tag='stamp')]
    return L

def ministamp(G, gap, lane):
    if not OPT.get('mini'): return
    for x in (I(f"s_memtime s[{S_STAMP}:{S_STAMP+1}]"), I("s_waitcnt lgkmcnt(0)"), I(f"v_writelane_b32 v63, s{S_STAMP}, {lane}")): G.pin(gap, x, post=True)

def dump_regs(groups):
    L = [I("s_waitcnt vmcnt(0) lgkmcnt(0)"), I("s_nop 7"), I("s_nop 7")]
    L += [I(f"s_lshl_b32 s{S_T}, s2, 2"), I(f"s_add_u32 s{S_T}, s{S_T}, s{S_W}"),
          I(f"s_mul_i32 s{S_T}, s{S_T}, {len(groups)*1024}"), I(f"s_add_u32 s{S_T}, s{S_T}, {hx(WS_DUMP)}")]
    for g in groups:
        L.append(I(f"buffer_store_dwordx4 {g}, v{V_L16}, {sr(SRD_WS)}, s{S_T} offen"))
        L.append(I("s_nop 3"))
        L.append(I(f"s_add_u32 s{S_T}, s{S_T}, 1024"))
    L += [I("s_waitcnt vmcnt(0)"), I("s_endpgm")]
    return L

def srd(L, base, p, nbytes):
    L += [I(f"s_mov_b32 s{base}, s{p}"), I(f"s_mov_b32 s{base+1}, s{p+1}"),
          I(f"s_mov_b32 s{base+2}, {hx(nbytes)}"), I(f"s_mov_b32 s{base+3}, 0x20000")]

def dma_w(srdb, vreg, sm, i, tag, res):
    so = "0" if (i & 3) == 0 else f"s{sm + (i & 3) - 1}"
    off = f" offset:{(i & 3) * 1024}" if i & 3 else ""
    return I(f"buffer_load_dwordx4 v{vreg}, {sr(srdb)}, {so} offen{off} lds", tag=tag, res_w=res)

STAGES = []
for kq in range(8): STAGES.append(dict(m='w1', srd=SRD_W1, v=V_W1, stride=3584, nks=2, ks0=2*kq, acc=V_ACCA, first=kq == 0, col=0))
for hq in range(2):
    for kq in range(8): STAGES.append(dict(m='wq', srd=SRD_WQ, v=V_WQ, stride=8192, nks=2, ks0=2*kq, acc=V_ACCB, first=kq == 0, col=128*hq))
for hc in range(2):
    for kq in range(4): STAGES.append(dict(m='w2', srd=SRD_W2, v=V_W2, stride=1024, nks=2 if kq < 3 else 1, ks0=2*kq, acc=V_ACCA if hc == 0 else V_ACCB,
                                           first=kq == 0, col=512*hc))
def slot_off(s): return 8192 if (s & 3) in (0, 3) else 0
SLOTRES = ['K1', 'V0', 'K0', 'V1']
S_RS = 54
def stage_dma(s):
    st = STAGES[s]; L = []
    for j in range(st['nks']):
        for i in range(4):
            row = 32*(st['ks0'] + j) + (8*i if st['m'] == 'w2' else 16*(i & 1) + 4*(i >> 1))
            L.append(I(f"s_mov_b32 s{S_RS + i}, {hx(row*st['stride'] + st['col'] - 1024*i)}"))
            if i == 0: L.append(I(f"s_add_u32 m0, s{S_RING}, {hx(slot_off(s) + (s & 1) * 65536 + j * 4096)}"))
            off = f" offset:{i*1024}" if i else ""
            L.append(I(f"buffer_load_dwordx4 v{st['v']}, {sr(st['srd'])}, s{S_RS + i} offen{off} lds", tag=f"st{s}", res_w=[(f"slot{s&3}", False)]))
    return L

def with_m0_pad(L):
    out = []
    for i, x in enumerate(L):
        out.append(x)
        if 'm0' in x.wr and i + 1 < len(L) and L[i+1].kind == 'dma': out.append(I("s_nop 0"))
    return out

def interleave(main, extra, start=0, end=None):
    end = len(main) if end is None else end
    out = list(main[:start]); n = end - start; k = 0
    for i in range(n):
        out.append(main[start + i])
        while k < len(extra) and (k + 1) * n <= (i + 1) * len(extra) + 0:
            out.append(extra[k]); k += 1
    return out + extra[k:] + list(main[end:])

def touch(L, srdb, vtmp, sreg, ln, rowlines, rowstride, nrows, sbase_code, step=128):
    A = lambda t, **k: L.append(I(t, **k))
    per_row = rowlines * 128 // step
    rows_share = -(-nrows * GG // 128)
    total = per_row * rows_share
    lg = per_row.bit_length() - 1
    A(f"s_mul_i32 s{sreg}, s94, {rows_share * rowstride}")
    for t in sbase_code: A(t)
    if sbase_code: A(f"s_add_u32 s{sreg}, s{sreg}, s93")
    A(f"v_lshrrev_b32 v{vtmp}, {lg}, v{ln}")
    if total < 64: A(f"v_min_u32 v{vtmp}, {rows_share - 1}, v{vtmp}")
    A(f"v_mul_u32_u24 v{vtmp}, {rowstride}, v{vtmp}")
    A(f"v_and_b32 v32, {per_row - 1}, v{ln}")
    A(f"v_lshl_add_u32 v{vtmp}, v32, {step.bit_length() - 1}, v{vtmp}")
    out = []
    for k in range(max(1, -(-total // 64))):
        if k: out.append(I(f"v_add_u32 v{vtmp}, {(64 // per_row) * rowstride}, v{vtmp}"))
        out.append(I(f"buffer_load_dword v60, v{vtmp}, {sr(srdb)}, s{sreg} offen{NT({SRD_W1: '1', SRD_WQ: 'q', SRD_W2: '2', SRD_K: 'v'}[srdb])}", tag='pf'))
    return out

def lin_touch(srdb, sreg):
    step = int(OPT['pfs']); n = max(1, 4096 * GG // (64 * step))
    L = []
    for k in range(n):
        if k: L.append(I(f"s_add_u32 s{S_T+3}, s{sreg}, {k * 64 * step}"))
        L.append(I(f"buffer_load_dword v60, v61, {sr(srdb)}, s{S_T+3 if k else sreg} offen", tag='pf'))
    return L

LATE = {}
STUBS = []
V_XA = 53
def phase0():
    L = []
    A = lambda t, **k: L.append(I(t, **k))
    t0, t1, t2, t3, ln, n16, g4 = 33, 34, 35, 36, 37, 38, 39
    L += stamp(0)
    A(f"s_load_dwordx2 s[{SRD_X}:{SRD_X+1}], s[0:1], 0")
    A("s_cmp_ge_u32 s2, 256"); A("s_cbranch_scc1 L_END")
    A("s_getpc_b64 s[90:91]"); A("L_PC1:")
    c0 = OPT.get('c0', '4')
    if c0 != '0':
        A(f"v_lshlrev_b32 v58, {c0}, v0")
        A("global_load_dword v60, v58, s[90:91]", tag='pf')
    CE = [I(x) for x in ("s_lshl_b32 s93, s94, 11", "v_lshlrev_b32 v57, 3, v0", "v_add_u32 v57, s93, v57", "v_min_u32 v57, L_END-L_PC1, v57")]
    CE.append(I("global_load_dword v60, v57, s[90:91]", tag='pf'))
    A(f"s_lshr_b32 s94, s2, 3")
    if OPT.get('ms', 'a') == 'b': L += CE; CE = []
    A(f"s_and_b32 s{S_R}, s2, {GG-1}"); A(f"s_lshl_b32 s{S_R}, s{S_R}, {5 - LG}"); A(f"s_lshr_b32 s95, s94, {LG}"); A(f"s_add_u32 s{S_R}, s{S_R}, s95")
    A(f"s_lshl_b32 s{S_CL}, s{S_R}, 16")
    A(f"v_lshrrev_b32 v{t0}, 2, v0"); A(f"v_lshlrev_b32 v{t0}, 10, v{t0}")
    A(f"v_and_b32 v{t1}, 3, v0"); A(f"v_lshl_add_u32 v{t0}, v{t1}, 4, v{t0}")
    A(f"s_mov_b32 s{SRD_X+2}, {hx(2048*512*2)}"); A(f"s_mov_b32 s{SRD_X+3}, 0x20000")
    XL = [I(f"buffer_load_dwordx4 {vr(64+4*ks)}, v{t0}, {sr(SRD_X)}, s{S_CL} offen offset:{ks*64}", tag=f'x{ks}') for ks in range(16)]
    xe = int(OPT.get('xe', 8)); x0 = int(OPT.get('x0n', 2))
    A("s_waitcnt lgkmcnt(0)")
    L += XL[:x0]
    A("s_load_dwordx16 s[64:79], s[0:1], 0")
    A("s_load_dwordx8 s[80:87], s[0:1], 64")
    A("s_load_dwordx2 s[88:89], s[0:1], 96")
    A(f"v_lshrrev_b32 v{t1}, 6, v0")
    A(f"v_and_b32 v{ln}, 63, v0")
    A(f"v_readfirstlane_b32 s{S_W}, v{t1}")
    SL = []
    if not OPT.get('nowalk'):
        slot = [7, 9, 11, 7, 0, 3, 6, 8, 1, 2, 4, 10, 12, 12, 12, 12]; lim = [0, 0, 0, 0, 7, 15, 6, 6, 15, 15, 15, 7, 0, 0, 0, 0]
        pk = lambda t: sum(v << (4*k) for k, v in enumerate(t))
        A("s_and_b32 s49, s94, 3"); A(f"s_lshl_b32 s50, s{S_W}, 2"); A("s_add_u32 s49, s49, s50"); A("s_lshl_b32 s49, s49, 2")
        A(f"s_mov_b32 s44, {hx(pk(slot) & 0xffffffff)}"); A(f"s_mov_b32 s45, {hx(pk(slot) >> 32)}"); A("s_lshr_b64 s[44:45], s[44:45], s49")
        A("s_and_b32 s44, s44, 15"); A("s_lshl_b32 s44, s44, 3")
        A("s_load_dwordx2 s[46:47], s[0:1], s44")
        A(f"s_mov_b32 s40, {hx(pk(lim) & 0xffffffff)}"); A(f"s_mov_b32 s41, {hx(pk(lim) >> 32)}"); A("s_lshr_b64 s[40:41], s[40:41], s49"); A("s_and_b32 s40, s40, 15")
        A("s_lshr_b32 s41, s94, 2"); A("s_lshl_b32 s41, s41, 1"); A("s_min_u32 s40, s40, s41"); A("s_lshl_b32 s40, s40, 18")
        A("s_lshl_b32 s41, s94, 20")
        if WSO: A(f"s_add_u32 s41, s41, {hx(WSO)}")
        A(f"s_cmp_eq_u32 s{S_W}, 3"); A("s_cselect_b32 s40, s41, s40")
        SL = [I("s_load_dword s98, s[46:47], s40")]
    A("s_waitcnt lgkmcnt(0)")
    L += SL + CE + XL[x0:xe]
    A(f"s_and_b32 s{S_G}, s2, {7 & ~(GG-1)}"); A(f"s_and_b32 s93, s94, {GG-1}"); A(f"s_or_b32 s{S_G}, s{S_G}, s93")
    A(f"s_lshl_b32 s94, s95, 2"); A(f"s_add_u32 s94, s94, s{S_W}")
    A(f"s_lshl_b32 s{S_RING}, s{S_W}, 14")
    A(f"v_and_b32 v{n16}, 15, v{ln}")
    A(f"v_lshrrev_b32 v{g4}, 4, v{ln}")
    A(f"v_lshlrev_b32 v{V_L16}, 4, v{ln}")
    srd(L, SRD_W1, 76, 512*1792*2)
    if not OPT.get('nopf'):
        XL += touch(L, SRD_W1, 59, S_NEED, ln, 4, 3584, 512, [f"s_mul_i32 s93, s{S_G}, 448", "s_and_b32 s93, s93, 0xffffff80"])
    srd(L, SRD_WQ, 70, 512*4096*2); srd(L, SRD_B1, 78, 1792*2)
    A(f"v_and_b32 v{t1}, 7, v{ln}"); A(f"v_lshlrev_b32 v{t2}, 1, v{g4}"); A(f"v_xor_b32 v{t1}, v{t1}, v{t2}")
    A(f"v_lshlrev_b32 v{t1}, 4, v{t1}")
    A(f"v_lshrrev_b32 v{t2}, 5, v{ln}"); A(f"v_bfe_u32 v{t3}, v{ln}, 3, 2"); A(f"v_lshl_add_u32 v{t2}, v{t2}, 3, v{t3}")
    A(f"s_mul_i32 s92, s{S_G}, 448"); A("s_and_b32 s92, s92, 0xffffff80"); A(f"s_lshl_b32 s93, s{S_W}, 7"); A("s_add_u32 s92, s92, s93")
    A(f"v_mul_u32_u24 v{V_W1}, 3584, v{t2}"); A(f"v_add3_u32 v{V_W1}, v{V_W1}, v{t1}, s92")
    if not OPT.get('nozero'):
        A(f"s_mul_i32 s93, s{S_G}, 448"); A("s_sub_u32 s93, s92, s93")
        A(f"v_add_u32 v{t3}, s93, v{t1}"); A(f"v_cmp_lt_u32 vcc, 447, v{t3}"); A(f"v_mov_b32 v{t3}, 0x10000000"); A("s_nop 0")
        A(f"v_cndmask_b32 v{V_W1}, v{V_W1}, v{t3}, vcc")
    vb1 = 57
    A(f"v_lshlrev_b32 v{vb1}, 3, v{g4}"); A("s_mov_b32 s95, s92")
    b1l = [I(f"buffer_load_dwordx2 {vr(40+2*ct,2)}, v{vb1}, {sr(SRD_B1)}, s95 offen offset:{32*ct}", tag='b1') for ct in range(4)]
    A(f"s_lshl_b32 s93, s{S_G}, 19")
    A("s_add_u32 s66, s66, s93"); A("s_addc_u32 s67, s67, 0")
    A("s_add_u32 s68, s68, s93"); A("s_addc_u32 s69, s69, 0")
    srd(L, SRD_K, 66, 524288); srd(L, SRD_V, 68, 524288); srd(L, SRD_WO, 72, 4096*512*2)
    srd(L, SRD_W2, 80, 1792*512*2); srd(L, SRD_B2, 82, 1024); srd(L, SRD_OUT, 84, 2048*512*2)
    srd(L, SRD_DBG, 86, 256); srd(L, SRD_WS, 88, 1 << 28); srd(L, SRD_WS2, 88, 1 << 28)
    A(f"s_mul_i32 s{S_PF}, s94, {4096*GG}"); A(f"v_and_b32 v{V_PFO}, {8*GG - 1}, v{ln}"); A(f"v_lshlrev_b32 v{V_PFO}, 7, v{V_PFO}")
    A(f"s_lshl_b32 s93, s{S_G}, 19"); A(f"s_add_u32 s{S_PF}, s{S_PF}, s93")
    twq, twq1, tw2, tkv, tcode = [], [], [], [], []
    if not OPT.get('nopf'):
        if OPT.get('q1', 'late') == 'late':
            twq = touch(L, SRD_WQ, 58, 77, ln, 8, 8192, 512, [f"s_lshl_b32 s93, s{S_G}, 10"], step=256)
            assert len(twq) == 1
            twq1 = [I(twq[0].text + " offset:128", tag='pf')]
        else:
            assert OPT.get('cearly')
            twq = touch(L, SRD_WQ, 58, 77, ln, 8, 8192, 512, [f"s_lshl_b32 s93, s{S_G}, 10"])
        tw2 = touch(L, SRD_W2, 14, 78, ln, 8, 1024, 224, [f"s_mul_i32 s93, s{S_G}, {224*1024}"])
        tk = touch(L, SRD_K, 55, 79, ln, 2, 256, int(OPT.get('kvrows', 384)), [])
        tkv = tk + [I(x.text.replace(sr(SRD_K), sr(SRD_V)), tag='pf') for x in tk if x.kind == 'vld'][-1:]
        if not OPT.get('nowo0'):
            n_ = 2*GG
            A(f"s_mul_i32 s93, s94, {n_}"); A(f"v_and_b32 v32, {n_ - 1}, v{ln}"); A(f"v_add_u32 v32, s93, v32")
            A(f"v_lshrrev_b32 v62, 6, v32"); A(f"v_and_b32 v32, 63, v32"); A(f"v_lshl_add_u32 v32, v62, 7, v32"); A(f"v_lshlrev_b32 v62, 10, v32")
            A(f"s_add_u32 s87, s{S_G}, 1"); A("s_and_b32 s87, s87, 7"); A("s_lshl_b32 s87, s87, 7"); A(f"s_lshl_b32 s93, s{S_G}, 19"); A("s_add_u32 s87, s87, s93")
            tkv.append(I(f"buffer_load_dword v60, v62, {sr(SRD_WO)}, s87 offen", tag='pf'))
        if not OPT.get('nocodepf') and not OPT.get('cearly'):
            A("s_getpc_b64 s[90:91]"); A("L_PC2:")
            A(f"s_lshr_b32 s93, s2, 3"); A(f"s_lshl_b32 s93, s93, 2"); A(f"s_add_u32 s93, s93, s{S_W}")
            A(f"s_lshl_b32 s93, s93, 9"); A(f"v_lshlrev_b32 v58, 3, v{ln}"); A("v_add_u32 v58, s93, v58")
            A("v_min_u32 v58, CODE_LEFT, v58")
            tcode = [I("global_load_dword v60, v58, s[90:91]" + NT('c'), tag='pf')]
    A(f"s_lshl_b32 s92, s{S_G}, 10"); A(f"s_lshl_b32 s93, s{S_W}, 8"); A("s_add_u32 s92, s92, s93")
    A(f"v_lshlrev_b32 v{V_WQ}, 13, v{t2}"); A(f"v_add3_u32 v{V_WQ}, v{V_WQ}, v{t1}, s92")
    A(f"s_mul_i32 s92, s{S_G}, {224*1024}"); A(f"s_lshl_b32 s93, s{S_W}, 7"); A("s_add_u32 s92, s92, s93")
    A(f"v_lshrrev_b32 v{t2}, 3, v{ln}"); A(f"v_lshlrev_b32 v{V_W2}, 10, v{t2}"); A(f"v_add3_u32 v{V_W2}, v{V_W2}, v{t1}, s92")
    A(f"v_lshrrev_b32 v{t1}, 2, v{ln}")
    A(f"v_lshlrev_b32 v{t1}, 7, v{t1}")
    A(f"v_and_b32 v{t2}, 3, v{ln}"); A(f"v_lshl_add_u32 v{t1}, v{t2}, 3, v{t1}")
    A(f"v_add_u32 v{t1}, s{S_RING}, v{t1}")
    A(f"v_bfe_u32 v{t2}, v{ln}, 3, 2")
    for ct in range(4):
        A(f"v_xor_b32 v{t3}, {ct}, v{t2}")
        A(f"v_lshl_add_u32 v{V_WA+ct}, v{t3}, 5, v{t1}")
        A(f"v_add_u32 v{V_WA+4+ct}, 0x10000, v{V_WA+ct}")
    A(f"v_and_b32 v{t1}, 7, v{ln}"); A(f"v_lshlrev_b32 v{t1}, 1, v{t1}"); A(f"v_xor_b32 v{t1}, v{t1}, v{g4}")
    A(f"v_lshlrev_b32 v{t2}, 8, v{n16}"); A(f"v_add_u32 v{t2}, {hx(LDS_X)}, v{t2}")
    for kk in range(4):
        A(f"v_xor_b32 v{t3}, {4*kk}, v{t1}")
        A(f"v_lshl_add_u32 v{V_KA+kk}, v{t3}, 4, v{t2}")
    A(f"v_lshlrev_b32 v{t1}, 1, v{g4}"); A(f"v_xor_b32 v{t1}, v{t1}, v{n16}"); A(f"v_lshlrev_b32 v{t2}, 8, v{g4}")
    A(f"v_lshl_add_u32 v{V_DV}, v{t1}, 4, v{t2}")
    A(f"v_xor_b32 v{V_DV+1}, 0x80, v{V_DV}")
    A(f"v_add_u32 v{V_XA+1}, {hx(LDS_X)}, v{V_DV}"); A(f"v_add_u32 v{V_XA}, {hx(65536 + 8192)}, v{V_DV}")
    A(f"v_and_b32 v{t1}, 3, v{ln}"); A(f"v_lshrrev_b32 v{t2}, 2, v{ln}"); A(f"v_lshlrev_b32 v{t3}, 1, v{t1}"); A(f"v_xor_b32 v{t2}, v{t2}, v{t3}")
    A(f"v_lshlrev_b32 v{t1}, 8, v{t1}"); A(f"v_lshl_add_u32 v{t1}, v{t2}, 4, v{t1}")
    A(f"s_lshl_b32 s92, s{S_W}, 13"); A(f"s_add_u32 s92, s92, {hx(LDS_X)}")
    A(f"s_add_u32 s93, s{S_RING}, {hx(65536 + 8192)}")
    A(f"s_and_b32 s85, s{S_G}, {1 if (GG > 1 and not OPT.get('norot')) else 0}")
    A("s_cselect_b32 s85, s92, s93"); A("s_cselect_b32 s86, s93, s92")
    A(f"v_add_u32 v{t2}, s85, v{t1}"); A(f"v_add_u32 v56, s86, v{t1}")
    A(f"v_and_b32 v52, 1, v{ln}"); A(f"v_bfe_u32 v{t1}, v{ln}, 1, 1"); A(f"v_sub_u32 v52, v52, v{t1}"); A("v_lshlrev_b32 v52, 3, v52")
    A(f"s_mov_b32 s{S_QS}, {hx(f2u(128**-0.5 * math.log2(math.e)))}")
    ga = -2*0.7978845608028654*math.log2(math.e)
    A(f"s_mov_b32 s{S_GB}, {hx(f2u(ga*0.044715/CF**3))}")
    A(f"v_mov_b32 v{V_GA}, {hx(f2u(ga/CF))}")
    A(f"s_lshr_b32 s92, s{S_R}, {LB}"); A(f"s_lshl_b32 s92, s92, {PS + 4}")
    if WSO: A(f"s_add_u32 s92, s92, {hx(WSO)}")
    A(f"s_add_u32 s{S_LIM}, s92, {hx(14*PL)}")
    A(f"s_and_b32 s93, s{S_R}, {RB - 1}")
    A(f"s_lshl_b32 s{S_RB}, s93, {15 if LAY[0] == '1' else 12}"); A(f"s_add_u32 s{S_RB}, s{S_RB}, s92")
    A(f"s_lshl_b32 s{S_RBY}, s93, {15 if LAY[1] == '1' else 12}"); A(f"s_add_u32 s{S_RBY}, s{S_RBY}, s92"); A(f"s_add_u32 s{S_RBY}, s{S_RBY}, {hx(WS_Y)}")
    A(f"s_lshl_b32 s92, s{S_W}, {13 if LAY[1] == '1' else 10}"); A(f"s_lshl_b32 s93, s{S_G}, {GS_Y}"); A("s_add_u32 s92, s92, s93"); A(f"s_add_u32 s{S_YO}, s92, s{S_RBY}")
    A(f"s_lshl_b32 s92, s{S_W}, 10"); A(f"s_lshl_b32 s93, s{S_G}, {GS_S}"); A("s_add_u32 s92, s92, s93"); A(f"s_add_u32 s{S_CB}, s92, s{S_RB}")
    if OPT.get('perm'): A("s_mov_b32 s75, 0x07060302")
    A(f"s_mov_b32 s{S_PASS}, 0")
    A(f"s_lshl_b32 s{S_KO}, s{S_W}, 13"); A(f"s_add_u32 s{S_KO+1}, s{S_KO}, 4096")
    A(f"s_mov_b32 s{S_VO}, s{S_KO}"); A(f"s_mov_b32 s{S_VO+1}, s{S_KO+1}")
    HOP = []
    if OPT.get('hop'):
        HOP = [I("s_mov_b64 exec, 0")]
        for w in range(3): HOP += [I(f"s_cmp_eq_u32 s{S_W}, {w}"), I(f"s_cbranch_scc1 L_PAD{w}")]
        HOP += [I("s_branch L_PAD3"), I("L_PADX:"), I("s_mov_b64 exec, -1")]
    sd = int(OPT.get('sd', 0)); DEF = []
    if sd: DEF = L[-sd:]; del L[-sd:]
    L += stamp(1)
    F = 128
    sa, qa = 16, 24
    if OPT.get('kvp', '1') == '1': LATE['kv'] = tkv; tkv = []
    if OPT.get('s2'): LATE['q1'] = twq1; LATE['w2'] = tw2 + tkv; tw2 = []; tkv = []
    D = [stage_dma(s) for s in range(3)]
    NE = int(OPT.get('ne', 2))
    vq = XL[xe:] + tcode + b1l + sum(D[:NE], [])
    def pop_vm(n):
        out = []
        while vq and n > 0:
            x = vq.pop(0); out.append(x)
            if x.kind in ('dma', 'vld'): n -= 1
        return with_m0_pad(out)
    for ks in range(16):
        L.append(W(vm=[f'x{ks}']))
        if OPT.get('fine') and ks == 0: L += stamp(13)
        if OPT.get('fine') and ks == 15: L += stamp(5)
        L += pop_vm(int(OPT.get('pv', 1)) + (int(OPT.get('pvx', 0)) if ks == 0 else 0))
        if str(ks) == OPT.get('hopat', 'w'): L += HOP
        for i in range(4*ks, 4*ks + 4):
            A(f"v_lshlrev_b32 v{F+2*i}, 16, v{64+i}")
            A(f"v_and_b32 v{F+2*i+1}, 0xffff0000, v{64+i}")
        for i in range(4*ks, 4*ks + 4):
            k = i & 3
            x = vr(F+2*i, 2)
            if i < 4:
                A(f"v_pk_mul_f32 {vr(qa+2*k,2)}, {x}, {x}")
            else:
                src = vr(F+2*k, 2) if i < 8 else vr(sa+2*k, 2)
                A(f"v_pk_add_f32 {vr(sa+2*k,2)}, {src}, {x}")
                A(f"v_pk_fma_f32 {vr(qa+2*k,2)}, {x}, {x}, {vr(qa+2*k,2)}")
        nst = int(OPT.get('sdn', 5))
        if ks < nst: L += DEF[len(DEF)*ks//nst:len(DEF)*(ks+1)//nst]
    if SL: A("s_waitcnt lgkmcnt(0)")
    L += stamp(2)
    M = []; A = lambda t, **k: M.append(I(t, **k))
    for b in (sa, qa):
        A(f"v_pk_add_f32 {vr(b,2)}, {vr(b,2)}, {vr(b+2,2)}"); A(f"v_pk_add_f32 {vr(b+4,2)}, {vr(b+4,2)}, {vr(b+6,2)}")
    for b in (sa, qa): A(f"v_pk_add_f32 {vr(b,2)}, {vr(b,2)}, {vr(b+4,2)}")
    for b in (sa, qa): A(f"v_add_f32 v{b}, v{b}, v{b+1}")
    for qp in ("[1,0,3,2]", "[2,3,0,1]"):
        A("s_nop 1")
        for b in (sa, qa): A(f"v_add_f32_dpp v{b}, v{b}, v{b} quad_perm:{qp} row_mask:0xf bank_mask:0xf")
    A(f"v_mul_f32 v{sa}, {hx(f2u(1/512))}, v{sa}")
    A(f"v_mul_f32 v{qa}, {hx(f2u(1/512))}, v{qa}")
    A(f"v_fma_f32 v{qa}, -v{sa}, v{sa}, v{qa}")
    A(f"v_max_f32 v{qa}, 0, v{qa}")
    A(f"v_cvt_pk_bf16_f32 v{sa+1}, v{sa}, v{qa}")
    A(f"v_lshlrev_b32 v{sa}, 16, v{sa+1}")
    A(f"v_and_b32 v{qa}, 0xffff0000, v{sa+1}")
    A(f"v_add_f32 v{qa}, {hx(f2u(1e-5))}, v{qa}")
    A(f"v_cvt_pk_bf16_f32 v{qa}, v{qa}, v{qa}"); A(f"v_and_b32 v{qa}, 0xffff0000, v{qa}")
    A(f"v_sqrt_f32 v{qa}, v{qa}"); A("s_nop 0")
    A(f"v_cvt_pk_bf16_f32 v{qa}, v{qa}, v{qa}"); A(f"v_and_b32 v{qa}, 0xffff0000, v{qa}")
    A(f"v_rcp_f32 v{qa}, v{qa}"); A("s_nop 0")
    if OPT.get('fold'): A(f"v_mul_f32 v{qa}, s{S_QS}, v{qa}")
    A(f"v_mul_f32 v{sa}, v{sa}, v{qa}")
    A(f"v_sub_f32 v{sa}, 0, v{sa}")
    A(f"v_mov_b32 v{qa+1}, v{qa}"); A(f"v_mov_b32 v{sa+1}, v{sa}")
    def norm(ks):
        for i in range(4*ks, 4*ks+4):
            A(f"v_pk_fma_f32 {vr(F+2*i,2)}, {vr(F+2*i,2)}, {vr(qa,2)}, {vr(sa,2)}")
        for i in range(4*ks, 4*ks+4):
            A(f"v_cvt_pk_bf16_f32 v{64+i}, v{F+2*i}, v{F+2*i+1}")
    for ks in range(16): norm(ks)
    L += with_m0_pad(interleave(M, vq)) + twq + tw2 + tkv
    if OPT.get('hopat', 'w') == 'w': L += HOP
    M = []; A = lambda t, **k: M.append(I(t, **k))
    wr = [I(f"ds_write_b128 v{t2 if ks < 8 else 56}, {vr(64+4*ks)} offset:{(ks&7)*1024}", tag='xw' if ks < 8 else 'xw2', res_w=[('slot3' if ks < 8 else 'hx', True)] if OPT.get('norot') else [('slot3', True), ('hx', True)]) for ks in range(16)]
    nw = int(OPT.get('nw', 8))
    LATE['xw'] = wr[nw:]
    bias = [W(vm=['b1'])]
    for ct in range(4):
        for h in range(2):
            bias += [I(f"v_lshlrev_b32 v{V_B1+4*ct+2*h}, 16, v{40+2*ct+h}"), I(f"v_and_b32 v{V_B1+4*ct+2*h+1}, 0xffff0000, v{40+2*ct+h}")]
    if OPT.get('fold'): bias += [I(f"v_mul_f32 v{V_B1+k}, s{S_QS}, v{V_B1+k}") for k in range(16)]
    L += wr[:6] + interleave(wr[6:nw], bias)
    L += [W(vm=['st0'])] + af_reads(0, 0)
    L += [W(lgkm=['xw', 'xw2'][:1 if nw == 8 else 2]), I("s_barrier")]
    L += [xn_read(ks, qb) for qb in range(4) for ks in range(2)]
    L += stamp(3)
    return L

def xn_read(ks, qb):
    if ks < 8: return I(f"ds_read_b128 {ar(XN(ks,qb))}, v{V_XA} offset:{qb*16384 + ks*1024}", tag=f'xr{ks>>1}', res_r=[('slot3', True)])
    return I(f"ds_read_b128 {ar(XN(ks,qb))}, v{V_XA+1} offset:{qb*8192 + (ks&7)*1024}", tag=f'xr{ks>>1}', res_r=[('hx', True)])

A_AF2, A_KF0 = 32, 64
def AF(s, k, n=4): return ar(A_AF2 + k, n) if s >= 24 else vr(V_AF + k, n)
def HF(u, qb): return 144 + 16*u + 4*qb
def af_reads(s, p):
    st = STAGES[s]; L = []
    for c in range(2):
        for j in range(st['nks']):
            for e in range(2):
                L.append(I(f"ds_read_b64_tr_b16 {AF(s, 16*p + 8*c + 4*j + 2*e, 2)}, v{V_WA + 4*(s&1) + 2*p + c} offset:{slot_off(s) + j*4096 + e*2048}",
                           tag=f"af{s}_{p}", res_r=[(f"slot{s&3}", False)]))
    return L

def kv_dma(which, half, buf, tag):
    base = (0 if which == 'K' else LDS_V) + buf*8192 + half*4096
    so = (S_KO if which == 'K' else S_VO) + half
    L = [I(f"s_add_u32 m0, s{S_RING}, {hx(base)}")]
    for i in range(4):
        off = f" offset:{i*1024}" if i else ""
        L.append(I(f"buffer_load_dwordx4 v{V_DV + (i&1)}, {sr(SRD_K if which == 'K' else SRD_V)}, s{so} offen{off}{NT('k')} lds",
                   tag=tag, res_w=[(f"{which}{buf}", True)]))
    return L

def even(G, items, lo, hi):
    nd = sum(1 for x in items if x.kind in ('dma', 'vld', 'vst'))
    k = 0; its = []
    for x in items:
        e = lo + (k * (hi - lo + 1)) // max(nd, 1)
        if x.kind in ('dma', 'vld', 'vst'): k += 1
        else: e = max(lo, e - 3)
        its.append((x, min(e, hi)))
    return G.stream(its, lo, hi)

def k0_reads(kt):
    return [I(f"ds_read_b128 {ar(A_KF0 + 16*(kt&1) + 4*kk)}, v{V_KA+kk} offset:{kt*4096}", tag='fr', res_r=[('hx', True)]) for kk in range(4)]

def y_pack(acc, ct):
    a = acc + 16*ct
    return [I(f"v_cvt_pk_bf16_f32 v{a+8+k}, v{a+2*k}, v{a+2*k+1}") for k in range(7, -1, -1)]
def y_stores(hc):
    acc = V_ACCB if hc else V_ACCA
    return [(I(f"s_add_u32 s{S_YO + 1 + (ct&1)}, s{S_YO}, {hx(((hc*4 + ct)*2 + half) * PL)}"),
             I(f"buffer_store_dwordx4 {vr(acc + 16*ct + 8 + 4*half)}, v{V_L16}, {sr(SRD_WS2)}, s{S_YO + 1 + (ct&1)} offen sc1", tag='yst'))
            for half in range(2) for ct in range(4)]

def phase1():
    m = []; per = {}; done = {}; blk = []
    FM = (26, 0)
    for s, st in enumerate(STAGES):
        for p in range(2):
            lo = len(m)
            for c in range(2):
                ct = 2*p + c
                for qb in range(4):
                    if s >= 28 and qb % 2 == 0:
                        n = len(blk); kt, q2 = n >> 2, n & 3
                        blk.append(len(m))
                        d = vr(V_S + 4*(n % 2))
                        for kk in range(4): m.append(mf(d, ar(A_KF0 + 16*(kt&1) + 4*kk), vr(V_Q + 16*q2 + 4*kk), d if kk else vr(V_NEGM + 4*q2)))
                    d = vr(st['acc'] + 16*ct + 4*qb)
                    js = list(range(st['nks']))
                    if qb & 1 and not OPT.get('nosnake'): js.reverse()
                    for j in js:
                        cc = d
                        if st['first'] and j == js[0]: cc = vr(V_B1 + 4*ct) if st['m'] == 'w1' else "0"
                        b = HF(st['ks0'] + j, qb) if st['m'] == 'w2' else XN(st['ks0'] + j, qb)
                        ab = (AF(s, 16*p + 8*c + 4*j), ar(b))
                        if st['m'] in str(OPT.get('swap1', '')): ab = ab[::-1]
                        m.append(mf(d, ab[0], ab[1], cc))
                    done[(s, ct, qb)] = len(m) - 1
            if (s, p) == FM:
                fm0 = len(m)
                for qb in range(4):
                    d = vr(V_NEGM + 4*qb)
                    for kk in range(4): m.append(mf(d, ar(A_KF0 + 4*kk), vr(V_Q + 16*qb + 4*kk), d if kk else "0"))
            per[(s, p)] = (lo, len(m) - 1)
    G = Gaps(m)
    NS = len(STAGES)
    G.head += [W(lgkm=['xr0'])]
    for n in range(1, 32):
        b = blk[n]
        ex, cv = softmax_items(n - 1, 0)
        if n < 24:
            for r in range(4): G.pin(b + 2*r, ex[r])
            G.pin(b + 3, cv[0]); G.pin(b + 7, cv[1])
        else:
            for r in range(4): G.pin(b + 1 + r, ex[r])
            G.pin(b + 5, cv[0]); G.pin(b + 5, cv[1])
    Bh, Bk = per[(23, 1)][1], per[(25, 1)][1]
    for s in range(NS):
        for p in range(2):
            ns, npp = (s, 1) if p == 0 else (s + 1, 0)
            lo, hi = per[(s, p)]
            lg = [f"af{ns}_{npp}"] if ns < NS else []
            if npp == 0 and ns < 8: lg.append(f"xr{ns}")
            if (ns, npp) == (24, 0): lg.append('hr')
            vm = [f"st{s+1}"] if (p == 0 and s + 1 < NS) else []
            rd = af_reads(ns, npp) if ns < NS else []
            if s >= 28:
                kt = 2*(s - 28) + p
                rd = (k0_reads(kt + 1) if kt < 7 else k_reads(0, 1) + v_reads(0, 0)) + rd
                lg.append('fr')
                if kt == 6: vm.append('kv')
            if hi == Bk: vm.append('k0')
            G.pin(hi, W(vm=vm or None, lgkm=lg))
            if hi in (Bh, Bk) or (s, p) == (31, 0): G.pin(hi, I("s_barrier"))
            h = None
            if s >= 28: G.stream(rd, lo, hi - 6)
            else:
                for k, x in enumerate(rd): h = G.place(x, lo + (k // 2) * 2 + 1 if (len(rd) == 8 and s != int(OPT.get('hs', 21))) else lo, hi - 1, after=h)
    G.stream(k0_reads(0), Bk + 1, fm0 - 6)
    G.pin(fm0 - 1, W(lgkm=['fr']))
    xr = [xn_read(ks, qb) for ks in range(2, 8) for qb in range(4)]
    b1 = per[(int(OPT.get('b1s', 1)), 0)][1] if LATE['xw'] else per[(0, 1)][1]
    for k, x in enumerate(LATE['xw']): G.pin(2*k, x)
    for k, x in enumerate(xr): G.pin(2*len(LATE['xw']) + k, x)
    G.pin(b1, W(lgkm=['xr3'] + (['xw2'] if LATE['xw'] else []))); G.pin(b1, I("s_barrier"))
    G.stream([xn_read(ks, qb) for ks in range(8, 16) for qb in range(4)], b1 + 1, per[(3, 1)][1] - 8, spread=True)
    G.pin(per[(6, 1)][1], I("s_barrier"))
    hs = int(OPT.get('hs', 21))
    hwpos = [per[(hs, p)][0] + k for p in range(2) for k in (5, 8, 11, 14)]
    hbar = per[(hs + 1, 0)][0] + 5
    pause = (hwpos[0] - int(OPT.get('pz', 16)), hwpos[-1] + 2) if OPT.get('pz') != '0' else (0, -1)
    slow = int(OPT.get('pzs', 7))
    jobs = []
    for t in range(int(OPT.get('ne', 2)), NS):
        s = t - 4
        rel = per[(s, 1)][0] if s >= 0 else (b1 + 1 if t == 3 else 0)
        d = stage_dma(t)
        if t == 3:
            for x in d:
                if x.res_w: x.res_w = [('slot3', True)]
        jobs.append((rel, d, per[(t - 1, 0)][1]))
        if t == 27:
            d = [I(f"s_lshl_b32 s{S_T+1}, s{S_W}, 13")] + kv_dma('K', 0, 0, 'k0') + kv_dma('K', 1, 0, 'k0')
            k = 0
            for n_, x in enumerate(d):
                if x.res_w: x.res_w = [('hx', True)]
                if 'm0' in x.wr: d[n_] = I(f"s_add_u32 m0, s{S_T+1}, {hx(LDS_X + 4096*k)}"); k += 1
            jobs.append((Bh + 1, d + [I("s_nop 0"), I(f"s_add_u32 s{S_KO}, s{S_KO}, 0x8000"), I(f"s_add_u32 s{S_KO+1}, s{S_KO+1}, 0x8000")], Bk))
    for which, buf, s in (('K', 1, 28), ('V', 0, 29)):
        d = kv_dma(which, 0, buf, 'kv') + kv_dma(which, 1, buf, 'kv')
        for x in d:
            if x.res_w: x.res_w = x.res_w + [(f'slot{s&3}', False)]
        so = S_KO if which == 'K' else S_VO
        jobs.append((per[(s, 1)][0], d + [I("s_nop 0"), I(f"s_add_u32 s{so}, s{so}, 0x8000"), I(f"s_add_u32 s{so+1}, s{so+1}, 0x8000")], per[(31, 0)][1]))
    kz = [n for n, jb in enumerate(jobs) if any(x.tag == 'k0' for x in jb[1])][0]
    if OPT.get('k0first', '1') == '1': jobs[kz], jobs[kz - 1] = jobs[kz - 1], jobs[kz]
    if OPT.get('swap34', '1') == '1':
        k3 = [n for n, jb in enumerate(jobs) if any(x.tag == 'st3' for x in jb[1])][0]
        jobs[k3], jobs[k3 + 1] = jobs[k3 + 1], jobs[k3]
    c1, c2, c3 = float(OPT.get('catch1', 3.5)), float(OPT.get('catch', 3.5)), float(OPT.get('catch3', 3))
    margin = int(OPT.get('margin', 28)); mins = float(OPT.get('mins', 2))
    T = []; t = -99.0
    for rel, d, dl in jobs:
        k = 0
        for x in d:
            if x.kind != 'dma': continue
            step = c1 if t < per[(8, 0)][0] else (c2 if t < pause[0] else c3)
            if pause[0] <= t + step <= pause[1]: step = min(slow, pause[1] + 1 - t)
            t = max(rel + (4*k if rel else 0), t + step)
            if rel >= per[(int(OPT.get('alap0', 22)), 0)][0] and x.tag not in ('st31', 'kv', 'st30'):
                nd = sum(y.kind == 'dma' for y in d)
                t = max(t, dl - int(OPT.get('alap', 40)) - 4*(nd - 1 - k))
            k += 1
            T.append([t, rel, dl - margin])
    for n in range(len(T) - 1, -1, -1):
        lim = T[n][2] if n == len(T) - 1 else min(T[n][2], T[n + 1][0] - mins)
        T[n][0] = max(T[n][1], min(T[n][0], lim))
    for n in range(1, len(T)): T[n][0] = max(T[n][0], T[n - 1][0] + mins)
    h = None; n = 0; LAG = []
    for rel, d, dl in jobs:
        for x in d:
            if x.kind == 'dma':
                pos = max(int(T[n][0]), h[0] if h else 0); n += 1
                while pos in hwpos or pos - 1 in hwpos or any(y.kind in ('dma', 'dsw') for y in G.seq(pos)): pos += 1
                h = G.place(x, pos, pos + (1 if pos < blk[0] else 8), after=h); last = h[0]
            else:
                lo_ = max(rel - 3, h[0] if h else 0, 0)
                h = G.place(x, lo_, max(lo_, int(T[n][0]) - 1 if n < len(T) else lo_ + 3), after=h)
        LAG.append(dl - last)
    print('; dma slack', LAG, file=sys.stderr)
    G.place(kv_dma('K', 0, 0, 'kv')[0], h[0] + 1, len(G) - 1, after=h)
    if LATE.get('q1'): G.stream(LATE['q1'], per[(int(OPT.get('s1', 6)), 0)][0], per[(int(OPT.get('s1', 6)), 1)][1])
    if 'w2' in LATE and not OPT.get('stag'): G.stream(LATE['w2'], per[(int(OPT['s2']), 0)][0], per[(int(OPT['s2']), 1)][1])
    if 'w2' in LATE and OPT.get('stag') and LATE['w2']:
        ns = int(OPT['stag'])
        G.head = [I(f"s_lshr_b32 s95, s2, {3 + LG}"), I(f"s_and_b32 s95, s95, {ns - 1}")] + G.head
        for k in range(ns):
            g = per[(int(OPT['s2']) + k * int(OPT.get('stagstep', 1)), 0)][0] + 1
            for n_, x in enumerate(LATE['w2']):
                assert x.kind == 'vld'
                sreg = re.search(r'\], (s\d+) offen', x.text).group(1)
                while G.seq(g) or G.seq(g + 1): g += 1
                G.pin(g, I(f"s_cmp_eq_u32 s95, {k}")); G.pin(g, I(f"s_cselect_b32 s{92 + (n_ & 1)}, {sreg}, 0x10000000"))
                G.pin(g + 1, I(x.text.replace(sreg + " offen", f"s{92 + (n_ & 1)} offen"), tag='pf'))
    if LATE.get('kv'): G.stream(LATE['kv'], pause[0] + int(OPT.get('kvo', 6)), hwpos[0] - 1)
    for (sb, op) in ((8, 'v_add_u32'), (24, 'v_sub_u32')):
        for win in range(2):
            for ct in range(4):
                r = V_WA + 4*win + ct
                G.place(I(f"{op} v{r}, v{r}, v52"), per[(sb - 2 + win, 1)][0], per[(sb - 1 + win, 0)][1])
    ha, hr = V_XA, V_XA + 1
    G.stream([I(f"s_lshl_b32 s{S_T}, s{S_W}, 13"), I(f"s_add_u32 s{S_T}, s{S_T}, {hx(LDS_X)}"), I(f"v_add_u32 v{ha}, s{S_T}, v{V_L16}"),
              I(f"s_and_b32 s{S_T}, s{S_G}, 1"), I(f"s_lshl_b32 s{S_T}, s{S_T}, 12"), I(f"s_add_u32 s{S_T}, s{S_T}, {hx(LDS_X)}"),
              I(f"v_add_u32 v{hr}, s{S_T}, v{V_L16}")], per[(5, 0)][0], per[(6, 1)][1])
    for hq in range(2):
        s = 15 + 8*hq
        for p in range(2):
            kk = 2*hq + p
            items = []
            for half in range(2):
                ct = 2*p + half
                for qb in range(4):
                    e = done[(s, ct, qb)] + 6
                    a = V_ACCB + 16*ct + 4*qb; q = V_Q + 16*qb + 4*kk
                    if not OPT.get('fold'):
                        for r in range(4): items.append((I(f"v_mul_f32 v{a+r}, s{S_QS}, v{a+r}"), e))
                    items.append((I(f"v_cvt_pk_bf16_f32 v{q+2*half}, v{a}, v{a+1}"), e))
                    items.append((I(f"v_cvt_pk_bf16_f32 v{q+2*half+1}, v{a+2}, v{a+3}"), e))
            if hq == 0:
                hnd = None
                for k in range(8):
                    nq_ = len(items) // 8
                    its = items[nq_*k:nq_*k + nq_]; e = its[0][1]
                    hn = G.stream(its, e, e - 6 + 30)
                    hnd = hn if hnd is None else max(hnd, hn)
            else:
                hnd = G.stream(items, items[0][1], fm0 - (40 if p == 0 else 12))
            sw = []
            for qb in range(4):
                q = V_Q + 16*qb + 4*kk
                sw += [I(f"v_permlane32_swap_b32 v{q}, v{q+2}"), I(f"v_permlane32_swap_b32 v{q+1}, v{q+3}")]
            G.stream(sw, hnd[0] + 2, hnd[0] + 60 if hq == 0 else fm0 - 2)
    G.pin(hbar, W(lgkm=['hw'])); G.pin(hbar, I("s_barrier"))
    hrd = [I(f"ds_read_b128 {ar(HF(u,qb))}, v{hr} offset:{u*4096 + qb*1024}", tag='hr', res_r=[('hx', True)]) for u in range(7) for qb in range(4)]
    G.stream(hrd, hbar + 1, per[(23, 1)][1] - 6)
    items = []
    T = 56
    for p in range(2):
        for qb in range(4):
            for half in range(2):
                ct = 2*p + half
                e = done[(7, ct, qb)] + 6
                a = V_ACCA + 16*ct + 4*qb
                seq = []
                seq += [f"v_mul_f32 v{T+r}, v{a+r}, v{a+r}" for r in range(4)]
                seq += [f"v_fma_f32 v{T+r}, v{T+r}, s{S_GB}, v{V_GA}" for r in range(4)]
                seq += [f"v_mul_f32 v{T+r}, v{T+r}, v{a+r}" for r in range(4)]
                seq += [f"v_exp_f32 v{T+r}, v{T+r}" for r in range(4)]
                seq += [f"v_add_f32 v{T+r}, 1.0, v{T+r}" for r in range(4)]
                seq += [f"v_rcp_f32 v{T+r}, v{T+r}" for r in range(4)]
                seq += [f"v_mul_f32 v{T+r}, v{T+r}, v{a+r}" for r in range(4)]
                a0 = V_ACCA + 16*(2*p) + 4*qb
                seq += [f"v_cvt_pk_bf16_f32 v{a0+2*half}, v{T}, v{T+1}", f"v_cvt_pk_bf16_f32 v{a0+2*half+1}, v{T+2}, v{T+3}"]
                items += [(I(x), e) for x in seq]
            G.pin(hwpos[4*p + qb], I(f"ds_write_b128 v{ha}, {vr(V_ACCA + 32*p + 4*qb)} offset:{p*4096 + qb*1024}", tag='hw', res_w=[('hx', True)]))
    n1 = len(items) * 7 // 8
    h = G.stream(items[:n1], items[0][1], hwpos[0] - 1 - int(OPT.get('gl', 0)))
    G.stream(items[n1:], h[0] + 1, hwpos[7] - 1)
    it = []
    for qb in range(4):
        b = V_NEGM + 4*qb
        it += [(I(f"v_max3_f32 v{b}, v{b}, v{b+1}, v{b+2}"), fm0 + 4*qb + 11), (I(f"v_max_f32 v{b}, v{b}, v{b+3}"), fm0 + 4*qb + 11)]
    it += [x for x in rowmax_finish() if x.kind != 'nop']
    G.stream(it, fm0 + 11, blk[0] - 2)
    for ct in range(4): G.stream(y_pack(V_ACCA, ct), done[(27, ct, 3)] + 6, blk[ct + 1] + 2)
    for k, x in enumerate(y_stores(0)):
        g = blk[(7, 7, 11, 11, 15, 15, 19, 19)[k]] + (1, 5)[k & 1]
        G.pin(g - 1, x[0]); G.pin(g, x[1])
    su = attn_setup()
    G.stream(su['pre'] + [I(f"v_accvgpr_write_b32 a{A_L + 4*q + k}, 0") for q in range(4) for k in range(2)], blk[12], blk[20] - 1)
    G.stream(su['va'][:8], blk[20], blk[28] - 1)
    G.stream(su['sp'], blk[24], len(G) - 2)
    e = max(i for i in range(len(G)) if any(x.kind == 'dsr' and x.res_r == [('hx', True)] for x in G.seq(i)))
    G.stream([I(f"v_subrev_u32 v{V_KA+kk}, {hx(LDS_X)}, v{V_KA+kk}") for kk in range(4)], e, blk[28] - 1)
    global VA_LATE
    VA_LATE = su['va'][8:]
    for k in range(16): ministamp(G, per[(2*k + 1, 1)][1], 32 + k)
    out = with_m0_pad(G.flat()) + [I("s_nop 0")]
    print(f"; phase1: {len(G)} mfma, est cycles {G.cycles()} pairs {[G.cyc(per[(2*k,0)][0], per[(2*k+1,1)][1]) for k in range(16)]}", file=sys.stderr)
    return out

def P(buf, qb, ks): return V_P + 64*buf + 16*qb + 4*ks
def k_reads(kt, buf, res=True):
    return [I(f"ds_read_b128 {ar(A_KF + 16*(kt&1) + 4*kk)}, v{V_KA+kk} offset:{(kt>>1)*16384 + (kt&1)*4096 + buf*8192}",
              tag='fr', res_r=[(f"K{buf}", True)] if res else None) for kk in range(4)]
def v_reads(dt, buf):
    return [I(f"ds_read_b64_tr_b16 {ar(A_VF + 16*(dt&1) + 4*ks + 2*e, 2)}, v{V_VA+dt} offset:{ks*16384 + buf*8192 + e*4096}",
              tag='fr', res_r=[(f"V{buf}", True)]) for ks in range(4) for e in range(2)]

def attn_setup():
    t1, t2, t3 = 56, 57, 58
    pre = [f"v_bfe_u32 v{t3}, v{V_L16}, 4, 2",
           f"v_cmp_eq_u32 vcc, 1, v{t3}", f"v_mov_b32 v{t1}, 0x44444444", f"v_mov_b32 v{t2}, 0xeeeeeeee", f"v_cndmask_b32 v{V_SPI}, v{t1}, v{t2}, vcc",
           f"v_cmp_gt_u32 vcc, 2, v{t3}", f"v_mov_b32 v{t1}, 0x3f803f80", f"v_lshrrev_b32 v{t2}, 6, v{V_L16}", f"v_cndmask_b32 v59, 0, v{t1}, vcc",
           f"v_lshlrev_b32 v{t1}, 8, v{t2}", f"v_and_b32 v{t2}, 7, v{t2}", f"v_lshl_add_u32 v{t1}, v{t3}, 3, v{t1}", f"v_add_u32 v{t1}, 0x10000, v{t1}"]
    va = []
    for dt in range(8): va += [f"v_xor_b32 v{V_VA+dt}, {dt}, v{t2}", f"v_lshl_add_u32 v{V_VA+dt}, v{V_VA+dt}, 5, v{t1}"]
    sp = [f"v_accvgpr_write_b32 a{A_SPA+i}, v59" for i in range(4)] + [f"v_accvgpr_write_b32 a{A_FILL+i}, -1" for i in range(4)]
    return dict(pre=[I(x) for x in pre], va=[I(x) for x in va], sp=[I(x) for x in sp])

def rowmax_finish():
    L = []; A = lambda t, **k: L.append(I(t, **k))
    for sw in ("v_permlane32_swap_b32", "v_permlane16_swap_b32"):
        for qb in range(4): A(f"v_mov_b32 v{V_NEGM+4*qb+1}, v{V_NEGM+4*qb}")
        A("s_nop 1")
        for qb in range(4): A(f"{sw} v{V_NEGM+4*qb}, v{V_NEGM+4*qb+1}")
        for qb in range(4): A(f"v_max_f32 v{V_NEGM+4*qb}, v{V_NEGM+4*qb}, v{V_NEGM+4*qb+1}")
    for qb in range(4): A(f"v_sub_f32 v{V_NEGM+4*qb}, {hx(f2u(-float(OPT.get('moff', 10))))}, v{V_NEGM+4*qb}")
    for qb in range(4):
        for r in range(1, 4): A(f"v_mov_b32 v{V_NEGM+4*qb+r}, v{V_NEGM+4*qb}")
    return L

NSB = 3
def softmax_items(n, pbuf):
    kt, qb = n >> 2, n & 3
    s = V_S + 4*(n % 2)
    p = P(pbuf, qb, kt >> 1) + 2*(kt & 1)
    ex = [I(f"v_exp_f32 v{s+r}, v{s+r}") for r in range(4)]
    cv = [I(f"v_cvt_pk_bf16_f32 v{p}, v{s}, v{s+1}"), I(f"v_cvt_pk_bf16_f32 v{p+1}, v{s+2}, v{s+3}")]
    if OPT.get('perm'): cv = [I(f"v_perm_b32 v{p}, v{s+1}, v{s}, s75"), I(f"v_perm_b32 v{p+1}, v{s+3}, v{s+2}, s75")]
    return ex, cv

def smf(pbuf, qb, h):
    return I(f"v_smfmac_f32_16x16x64_bf16 {ar(A_L + 4*qb)}, {ar(A_SPA)}, {vr(P(pbuf, qb, 2*h), 8)}, v{V_SPI}")

def attn_iter(par, first_pv=False, vmtags=('kv',), d0=0):
    m = []; blk = []; sg = []
    for i in range(8):
        for qb in range(4):
            n = 4*i + qb
            blk.append(len(m))
            d = vr(V_S + 4*(n % 2))
            for kk in range(4):
                m.append(mf(d, ar(A_KF + 16*(i&1) + 4*kk), vr(V_Q + 16*qb + 4*kk), d if kk else vr(V_NEGM + 4*qb)))
            o = ar(A_O + 16*i + 4*qb)
            for ks in range(4):
                ab = (ar(A_VF + 16*(i&1) + 4*ks), vr(P(par ^ 1, qb, ks)))
                ab = ab[::-1]
                m.append(mf(o, ab[0], ab[1], "0" if (first_pv and ks == 0) else o))
        sg.append(len(m))
        m.append(smf(par ^ 1, i >> 1, i & 1))
    G = Gaps(m)
    for n in range(32):
        b = blk[n]
        ex, cv = softmax_items((n - 1) % 32, par if n else par ^ 1)
        for r in range(4): G.pin(b + 2*r, ex[r])
        G.pin(b + 3, cv[0]); G.pin(b + 7, cv[1])
    for i in range(8):
        if i < 7: rd = k_reads(i + 1, par) + v_reads(i + 1, par ^ 1)
        else: rd = k_reads(0, par ^ 1) + v_reads(0, par)
        k = 0
        for qb in range(3):
            b = blk[4*i + qb]
            for gp in (3, 5, 5, 7):
                G.pin(b + gp, rd[k]); k += 1
        if i == 6:
            G.pin(sg[i], W(vm=list(vmtags), lgkm=['fr'])); G.pin(sg[i], I("s_barrier"))
        else:
            G.pin(sg[i], W(lgkm=['fr']))
    groups = [kv_dma('K', 0, par ^ 1, 'kv'), kv_dma('K', 1, par ^ 1, 'kv'), kv_dma('V', 0, par, 'kv'), kv_dma('V', 1, par, 'kv')]
    for i in range(4):
        for qb in range(4): G.pin(blk[4*(i + d0) + qb] + 1, groups[i][1 + qb])
        if i < 3: G.pin(blk[4*(i + d0) + 3] + 4, groups[i + 1][0])
    nxt = kv_dma('K', 0, par, 'kv')[0]
    G.pin(blk[4*7 + 3] + 3, nxt)
    for k in range(4): G.pin(blk[4*7 + (k >> 1)] + 1, I(f"s_add_u32 s{S_KO+k}, s{S_KO+k}, 0x8000"))
    G.blk = blk; G.sg = sg
    return G

def y_load(half, dst=None):
    dst = V_YB if dst is None else dst
    return I(f"buffer_load_dwordx4 {vr(dst)}, v{V_L16}, {sr(SRD_WS)}, s{S_YL} offen sc1", tag=f'yl{dst}')
def y_add(half, src=None, V_YT=V_YT):
    src = V_YB if src is None else src
    L = []
    for k in range(4):
        a = V_YS + 8*half + 2*k
        L += [I(f"v_lshlrev_b32 v{V_YT}, 16, v{src+k}"), I(f"v_and_b32 v{src+k}, 0xffff0000, v{src+k}"),
              I(f"v_add_f32 v{a}, v{a}, v{V_YT}"), I(f"v_add_f32 v{a+1}, v{a+1}, v{src+k}")]
    return L
def y_next():
    return [I(f"s_add_u32 s{S_YI}, s{S_YI}, {hx(1 << GS_Y)}"), I(f"s_and_b32 s{S_YI}, s{S_YI}, {hx((8 << GS_Y) - 1)}"), I(f"s_add_u32 s{S_YL}, s{S_YI}, s{S_CB2}")]
def cnt_load(vreg=None): return I(f"buffer_load_dword v{vreg or V_CNT}, off, {sr(SRD_DBG)}, s{S_CL} sc1", tag='cnt')
def cnt_check(G, gap, need, name, read=True, vreg=None):
    if read: G.pin(gap, I(f"v_readfirstlane_b32 s{S_T+2}, v{V_CNT}"))
    G.pin(gap + (1 if read else 2), I(f"s_cmp_lt_u32 s{S_T+2}, {need}"))
    for x in (I(f"s_cbranch_scc1 L_W{name}"), I(f"L_B{name}:")): G.pin(gap + 2, x)
    STUBS.extend([I(f"L_W{name}:"), I(f"s_mov_b32 s{S_SPIN}, 0x40000"), I(f"L_W{name}_l:"), cnt_load(vreg), I(f"s_sub_u32 s{S_SPIN}, s{S_SPIN}, 1"),
                  I("s_waitcnt vmcnt(0)"), I(f"v_readfirstlane_b32 s{S_T+2}, v{vreg or V_CNT}"), I("s_nop 3"),
                  I(f"s_cmp_ge_u32 s{S_T+2}, {need}"), I(f"s_cbranch_scc1 L_B{name}"),
                  I(f"s_cmp_gt_i32 s{S_SPIN}, 0"), I(f"s_cbranch_scc1 L_W{name}_l"), I(f"s_branch L_B{name}")])
def arrive(va, vd):
    return [I(f"v_add_u32 v{va}, s{S_RING}, v{V_L16}"), I(f"v_or_b32 v{va}, s{S_PASS}, v{va}"), I(f"v_min_u32 v{va}, 1, v{va}"), I(f"v_lshlrev_b32 v{va}, 12, v{va}"),
            I(f"v_mov_b32 v{vd}, 1")], I(f"buffer_atomic_add v{vd}, v{va}, {sr(SRD_DBG)}, s{S_CA} offen sc1", tag='atom')

def xo_voff(dst, t):
    return [I(f"v_bfe_u32 v{dst}, v{V_L16}, 4, 5"), I(f"v_lshlrev_b32 v{dst}, 10, v{dst}"),
            I(f"v_lshrrev_b32 v{t}, 9, v{V_L16}"), I(f"v_lshl_add_u32 v{dst}, v{t}, 4, v{dst}")]

def it1_extras(G):
    blk = G.blk
    t0, t1, t2 = V_YS + 8, V_YS + 9, V_YS + 10
    su = [I(x) for x in (f"s_lshl_b32 s{S_CA}, s{S_R}, 3", f"s_mov_b32 s{S_FO}, s{S_CB}",
          f"s_and_b32 s{S_CB2}, s{S_G}, 4", f"s_add_u32 s{S_CB2}, s{S_CB2}, s{S_W}", f"s_lshl_b32 s{S_CB2}, s{S_CB2}, {PS + 1}",
          f"s_and_b32 s{S_YI}, s{S_G}, 3", f"s_lshl_b32 s{S_YI}, s{S_YI}, {13 if LAY[1] == '1' else 10}", f"s_add_u32 s{S_YI}, s{S_YI}, s{S_RBY}",
          f"s_add_u32 s{S_CB2}, s{S_CB2}, s{S_YI}",
          f"s_add_u32 s{S_YI}, s{S_G}, 7", f"s_lshl_b32 s{S_YI}, s{S_YI}, {GS_Y}", f"s_mov_b32 s{S_YL}, {hx(1 << 28)}",
          f"s_lshl_b32 s{S_T}, s{S_G}, 7", f"s_lshl_b32 s{S_T+1}, s{S_W}, 5", f"s_add_u32 s{S_T}, s{S_T}, s{S_T+1}",
          f"v_lshrrev_b32 v{t0}, 8, v{V_L16}", f"v_lshlrev_b32 v{t0}, 3, v{t0}")]
    su.append(I(f"buffer_load_dwordx2 {vr(V_YB,2)}, v{t0}, {sr(SRD_B2)}, s{S_T} offen", tag='b2'))
    su += [I(f"s_lshl_b32 s{S_XO}, s{S_R}, 16"), I(f"s_add_u32 s{S_XO}, s{S_XO}, s{S_T}"), I(f"s_add_u32 s{S_XO+1}, s{S_XO}, 32768")]
    su += xo_voff(t1, t2)
    for h in range(2): su.append(I(f"buffer_load_dwordx4 {ar(A_XT+4*h)}, v{t1}, {sr(SRD_X)}, s{S_XO+h} offen", tag='xt'))
    su += [I(x) for x in (f"v_bfe_u32 v{t0}, v{V_L16}, 4, 3", f"v_lshrrev_b32 v{t2}, 8, v{V_L16}", f"v_lshlrev_b32 v{t2}, 1, v{t2}", f"v_xor_b32 v{t0}, v{t0}, v{t2}",
           f"v_lshrrev_b32 v{t2}, 7, v{V_L16}", f"v_lshlrev_b32 v{t2}, 10, v{t2}", f"v_lshl_add_u32 v{t2}, v{t0}, 4, v{t2}",
           f"s_lshl_b32 s{S_T}, s{S_G}, 19", f"s_lshl_b32 s{S_T+1}, s{S_W}, 17", f"s_add_u32 s{S_T}, s{S_T}, s{S_T+1}",
           f"v_add_u32 v{t2}, s{S_T}, v{t2}", f"v_accvgpr_write_b32 a{A_WOB}, v{t2}", f"s_lshl_b32 s{S_WO+1}, s{S_W}, 13")]
    for ct in range(4): G.stream(y_pack(V_ACCB, ct), 0 if ct < 3 else 4, blk[ct + 1] + 2)
    for k, x in enumerate(y_stores(1)):
        g = (blk[15] + 5, G.sg[3], blk[17] + 1, blk[18] + 1, blk[19] + 1, blk[19] + 5, blk[23] + 1, blk[23] + 5)[k]
        G.pin(g - 1, x[0]); G.pin(g, x[1])
    G.stream(VA_LATE, blk[4] + 3, blk[12] - 1)
    k = [n for n, x in enumerate(su) if x.tag == 'b2'][0]
    h = G.stream(su[:k+1], blk[1], blk[8])
    G.stream(su[k+1:], blk[20], blk[25])
    h = G.stream(wo_dma(0, vwob=t2), blk[25] + 1, blk[31] + 2)
    ini = [W(vm=['b2'])]
    for k in range(2):
        ini += [I(f"v_lshlrev_b32 v{V_YS+12+2*k}, 16, v{V_YB+k}"), I(f"v_and_b32 v{V_YS+12+2*k+1}, 0xffff0000, v{V_YB+k}")]
    for q in (0, 1, 3):
        ini += [I(f"v_mul_f32 v{V_YS+4*q+k}, {'s%d' % S_QS if OPT.get('fold') else '1.0'}, v{V_YS+12+k}") for k in range(4)]
    G.stream(ini + [y_load(0)], blk[12], blk[22])
    G.stream([I(f"v_mov_b32 v{V_YS+8+k}, v{V_YS+k}") for k in range(4)], h[0], len(G) - 1)
    G.stream([I(f"s_min_u32 s{SRD_WS2+2}, s{SRD_WS2+2}, s{S_LIM}"),
              I(f"s_mov_b32 s{S_NEED}, 0"), I(f"s_mov_b32 s{S_CL}, 0x1000")], blk[25], blk[31])

def kv_touch(srdb):
    return I(f"buffer_load_dword a{A_PF}, v{V_PFO}, {sr(srdb)}, s{S_KT} offen", tag='pf')
def fills():
    return [I(f"buffer_store_dwordx4 {ar(A_FILL)}, v{V_L16}, {sr(SRD_WS2)}, s{S_FO} offen sc1", tag='fill') for k in range(3)]

def loop_extras(ge, go):
    for G, half in ((ge, 0), (go, 1)):
        blk = G.blk
        it = [W(vm=[f'yl{V_YB}'] + (['cnt'] if half else []))] + y_add(half)
        if half == 0:
            G.stream(it, blk[16], blk[22])
            G.pin(blk[22] + 1, y_load(1))
            for k, x in enumerate(fills()[:2]): G.pin(blk[23 + 4*k] + 1, x); G.pin(blk[23 + 4*k] + 6, I(f"s_add_u32 s{S_FO}, s{S_FO}, {hx(PL)}"))
            G.pin(blk[31] + 1, cnt_load())
            G.pin(blk[30] + 1, I(f"s_cmp_eq_u32 s{S_CNT}, 7"))
            for x in (I("s_cbranch_scc1 L_AR0"), I("L_AR0B:")): G.pin(blk[30] + 2, x)
            pre, atom = arrive(V_YT, V_CNT)
            global AR0
            AR0 = [I("L_AR0:")] + pre + [atom, I("s_branch L_AR0B")]
            STUBS.extend(AR0)
        else:
            cnt_check(G, blk[21] + 1, f"s{S_NEED}", 'A')
            G.pin(blk[25] + 2, I(f"s_mov_b32 s{S_NEED}, 8")); G.pin(blk[25] + 4, I(f"s_mov_b32 s{S_CL}, s{S_CA}"))
            G.stream(it, blk[16], blk[22])
            G.stream(y_next(), blk[16], blk[21])
            G.pin(blk[22] + 1, y_load(0))
            f0 = fills()[2]; f0.tag = 'fill2'; G.pin(blk[27] + 1, f0); G.pin(blk[27] + 6, I(f"s_add_u32 s{S_FO}, s{S_FO}, {hx(PL)}")); G.pin(blk[24] + 2, I(f"s_add_u32 s{S_YL}, s{S_YL}, {hx(PL)}"))
            if not OPT.get('nopf'):
                G.pin(blk[23] + 1, I(f"buffer_load_dword a{A_PF}, v{V_PFO}, {sr(SRD_WO)}, s{S_PF} offen{NT('o')}", tag='pf'))
                G.pin(blk[26] + 2, I(f"s_add_u32 s{S_PF}, s{S_PF}, {1024*GG}"))
            G.pin(blk[30] + 1, I(f"s_cmp_eq_u32 s{S_CNT}, 3"))
            for x in (I("s_cbranch_scc1 L_ARR"), I("L_ARRB:")): G.pin(blk[30] + 2, x)
            pre, atom = arrive(V_YT, V_CNT)
            global ARR
            ARR = [I("L_ARR:")] + pre + [atom]
            for k, (ds, half) in enumerate(((2, 1), (3, 0), (3, 1))):
                ARR += [I(f"s_add_u32 s{93+k}, s{S_YI}, {hx(ds << GS_Y)}"), I(f"s_and_b32 s{93+k}, s{93+k}, {hx((8 << GS_Y) - 1)}"), I(f"s_add_u32 s{93+k}, s{93+k}, s{S_CB2}")]
                if half: ARR.append(I(f"s_add_u32 s{93+k}, s{93+k}, {hx(PL)}"))
                ARR.append(I(f"buffer_load_dwordx4 {ar(A_Y7+4*k)}, v{V_L16}, {sr(SRD_WS)}, s{93+k} offen sc1", tag='y7'))
            if not OPT.get('nocode2'):
                ARR += [I("s_getpc_b64 s[94:95]"), I("L_PC3:"), I("s_sub_u32 s94, s94, L_PC3-L_FIN"), I("s_subb_u32 s95, s95, 0"),
                        I(f"s_lshr_b32 s93, s2, 3"), I(f"s_lshl_b32 s93, s93, 2"), I(f"s_add_u32 s93, s93, s{S_W}"), I("s_lshl_b32 s93, s93, 7"),
                        I("s_min_u32 s93, s93, L_END-L_FIN"), I(f"v_mov_b32 v{V_YT}, s93"),
                        I(f"global_load_dword a{A_PF}, v{V_YT}, s[94:95]", tag='pf')]
            if OPT.get('otouch'):
                ARR += [I(f"v_bfe_u32 v{V_CNT}, v{V_L16}, 4, 4"), I(f"v_lshlrev_b32 v{V_CNT}, 10, v{V_CNT}"), I(f"s_add_u32 s93, s{S_XO}, s{S_RING}"),
                        I(f"buffer_load_dword a{A_PF}, v{V_CNT}, {sr(SRD_OUT)}, s93 offen", tag='pf')]
            ARR += [I("s_branch L_ARRB")]
            STUBS.extend(ARR)

def attn_iter0():
    m = []; blk = []
    for i in range(8):
        for qb in range(4):
            n = 4*i + qb
            blk.append(len(m))
            d = vr(V_S + 4*(n % 3) if n < 30 else V_S + 4*(n % 2))
            for kk in range(4):
                m.append(mf(d, ar(A_KF + 16*(i&1) + 4*kk), vr(V_Q + 16*qb + 4*kk), d if kk else vr(V_NEGM + 4*qb)))
    G = Gaps(m)
    G.head += [I(f"v_accvgpr_write_b32 a{A_L + k}, 0") for k in range(16)]
    tail = []
    for n in range(31):
        kt, qb = n >> 2, n & 3
        s = V_S + 4*(n % 3) if n < 30 else V_S + 4*(n % 2)
        p = P(0, qb, kt >> 1) + 2*(kt & 1)
        ex = [I(f"v_exp_f32 v{s+r}, v{s+r}") for r in range(4)]
        cv = [I(f"v_cvt_pk_bf16_f32 v{p}, v{s}, v{s+1}"), I(f"v_cvt_pk_bf16_f32 v{p+1}, v{s+2}, v{s+3}")]
        if n + 2 < 32:
            b = blk[n + 2]
            G.pin(b - 1, ex[0]); G.pin(b, ex[1]); G.pin(b + 1, ex[2]); G.pin(b + 1, cv[0]); G.pin(b + 2, ex[3]); G.pin(b + 3, cv[1])
        else:
            tail += ex + cv
    for i in range(8):
        rd = k_reads(i + 1, 0) if i < 7 else k_reads(0, 1) + v_reads(0, 0)
        lo = blk[4*i]
        for k, x in enumerate(rd): G.pin(lo + (k if i == 7 else 2*k), x)
        if i == 6:
            G.pin(blk[4*i + 3] + 3, W(vm=['kv'], lgkm=['fr'])); G.pin(blk[4*i + 3] + 3, I("s_barrier"))
        elif i < 7:
            G.pin(blk[4*i + 3] + 3, W(lgkm=['fr']))
    G.pin(3, kv_dma('K', 0, 0, 'kv')[0]); G.pin(5, I("s_nop 0"))
    out = G.flat() + [I("s_nop 3")] + tail + [W(lgkm=['fr'])]
    print(f"; iter0 est cycles {G.cycles()}", file=sys.stderr)
    return out

V_RL, V_XW, V_XR, V_MISC, V_WOB, V_NT, V_OA = 16, 32, 33, 34, 35, 36, 60
V_STG = 128
def V_R(p): return [160, 64, 96, 224][p] if p < 4 else (64 if p & 1 else 160)
V_OACC = 192
def V_SP(st): return 96 + 8*st if st < 4 else 224 + 8*(st - 4)
V_XT, V_MX, V_SEL = 4, 28, 16
S_WO, S_SO = 76, 93
PER = [(0, 0), (1, 0), (0, 1), (1, 1)] + [(c, h) for c in range(2, 8) for h in range(2)]
SLOTS = dict(A=(2, 0, 8192, 'hx'), B=(1, 0, 16384, 'V0'), C=(1, 8192, 16384, 'V1'), D=(0, 0, 16384, 'K0'), E=(0, 8192, 16384, 'K1'))
EARLY4 = bool(OPT.get("e4"))
def oslot(p): return SLOTS[("ADBADBAEDCBAEDCB" if EARLY4 else "ADBADBAECDBAECDB")[p]]

def wo_dma(p, vwob=None):
    vwob = V_WOB if vwob is None else vwob
    ci, half = PER[p]
    win, base, ps, res = oslot(p)
    L = [I(f"s_add_u32 s{S_WO}, s{S_G}, {1 + ci}"), I(f"s_and_b32 s{S_WO}, s{S_WO}, 7"), I(f"s_lshl_b32 s{S_WO}, s{S_WO}, 7")]
    for h in range(2):
        for i in range(4):
            L.append(I(f"s_add_u32 s{S_RS + i}, s{S_WO}, {hx((half*64 + h*32 + 8*i)*1024 - 1024*i)}"))
            if i == 0: L.append(I(f"s_add_u32 m0, s{S_RING if ps == 16384 else S_WO+1}, {hx(win*65536 + base + h*4096)}"))
            off = f" offset:{i*1024}" if i else ""
            L.append(I(f"buffer_load_dwordx4 v{vwob}, {sr(SRD_WO)}, s{S_RS + i} offen{off} lds", tag=f"wo{p}", res_w=[(res, True)]))
    return L

OFREG = [list(range(0, 64, 4)) + list(range(128, 176, 4)) + list(range(240, 256, 4)),
         list(range(64, 128, 4)) + list(range(176, 240, 4))]
def OF(half, j, qb): return OFREG[half][8*qb + j]
def oaf_reads(p):
    win, base, ps, res = oslot(p)
    return [I(f"ds_read_b64_tr_b16 {vr(V_R(p) + 4*j + 2*e, 2)}, v{V_OA+win} offset:{base + (j>>1)*ps + (j&1)*4096 + e*2048}",
              tag=f"oaf{p}", res_r=[(res, True)]) for j in range(8) for e in range(2)]
def of_reads(half, qb):
    return [I(f"ds_read_b64_tr_b16 {ar(OF(half, j, qb) + 2*e, 2)}, v{V_XR} offset:{(j>>1)*16384 + 8192 + (j&1)*4096 + e*2048}",
              tag=f"of{half}_{qb}", res_r=[('V1' if half else 'K1', True)]) for j in (range(8) if qb & 1 == 0 else range(7, -1, -1)) for e in range(2)]
def swz(dst, row, unit, t):
    return [I(x) for x in (f"v_bfe_u32 v{t}, v{row}, 1, 2", f"v_lshlrev_b32 v{t}, 2, v{t}", f"v_and_or_b32 v{t}, v{row}, 1, v{t}", f"v_xor_b32 v{unit}, v{unit}, v{t}",
                           f"v_lshrrev_b32 v{t}, 2, v{row}", f"v_and_b32 v{t}, 2, v{t}", f"v_xor_b32 v{unit}, v{unit}, v{t}",
                           f"v_lshlrev_b32 v{dst}, 7, v{row}", f"v_lshl_add_u32 v{dst}, v{unit}, 3, v{dst}")]
def sp_load(st):
    L = []
    for half in range(2):
        L.append(I(f"s_add_u32 s{S_YI+half}, s{S_CB}, {hx((2*st + half) * PL)}"))
        L.append(I(f"buffer_load_dwordx4 {vr(V_SP(st) + 4*half)}, v{V_L16}, {sr(SRD_WS)}, s{S_YI+half} offen {OPT.get('spf', 'sc1').replace('+', ' ')}", tag=f"sp{st}"))
    return L
def sp_max(st):
    b = V_SP(st); m = V_MX
    return [I(f"v_max3_u32 v{m}, v{b}, v{b+1}, v{b+2}"), I(f"v_max3_u32 v{m}, v{m}, v{b+3}, v{b+4}"),
            I(f"v_max3_u32 v{m}, v{m}, v{b+5}, v{b+6}"), I(f"v_max_u32 v{m}, v{m}, v{b+7}")]

def finale():
    m = []; blk = []; sg = {}; per = []
    for i in range(8):
        for qb in range(4):
            blk.append(len(m))
            o = ar(A_O + 16*i + 4*qb)
            for ks in (range(4) if (qb & 1 == 0 or OPT.get('nosnake')) else range(3, -1, -1)): m.append(mf(o, vr(P(1, qb, ks)), ar(A_VF + 16*(i&1) + 4*ks), o))
            if (i, qb) == (2, 0):
                tm0 = len(m)
                for q in range(4): m.append(I(f"v_mfma_f32_16x16x4_f32 {vr(V_RL + 4*q)}, v{V_NT+q}, v{V_MISC}, 0"))
            if i == 0:
                for h in range(2):
                    sg[(qb, h)] = len(m); m.append(smf(1, qb, h))
    blk.append(len(m))
    for p, (ci, half) in enumerate(PER):
        lo = len(m)
        for qb in range(4):
            d = vr(V_OACC + 16*(ci & 1) + 4*qb)
            js = list(range(8))
            if qb & 1 and not OPT.get('nosnake'): js.reverse()
            for j in js:
                m.append(mf(d, vr(V_R(p) + 4*j), ar(OF(half, j, qb)), "0" if (j == js[0] and half == 0) else d))
        per.append((lo, len(m) - 1))
    G = Gaps(m)
    for q in range(4): G.cap[tm0 + q] = 6
    cnt_check(G, per[2][1] - 6, 16, 'B', read=False, vreg=V_MISC)
    Xa = blk[4] - 1
    X0 = blk[4*int(OPT.get('x0', 3))] - 1
    Xb = blk[4*int(OPT.get('xb', 5))] - 1
    X1 = blk[28] - 1
    p0, p2 = per[0][0], per[2][0]
    Xc = p0 + int(OPT.get('xc', 29))
    X2 = per[1][0] + int(OPT.get('x2', 17))
    quiet = set()
    def paced(items, lo, step, h=None):
        pos = lo - step
        for x in items:
            if x.kind == 'dma':
                pos = max(pos + step, h[0] if h else 0)
                while pos in quiet or any(y.is_mem() and y.kind != 'dsr' for y in G.seq(pos)) or (h and h[0] == pos and h[1] == 2): pos += 1
                h = G.pin(pos, x)
            else:
                st = max(lo - 3, h[0] if h else 0, 0)
                h = G.place(x, st, st + 2, after=h)
        return h
    w1pos = [X1 - 3 - 4*k for k in range(7, -1, -1)]
    w2pos = [X2 - 4 - int(OPT.get('w2s', 5))*k for k in range(7, -1, -1)]
    for g in w1pos + w2pos: quiet |= {g, g + 1}
    assert w1pos[0] > Xb
    ex, cv = softmax_items(31, 1)
    for r in range(4): G.pin(r, ex[r])
    G.pin(4, cv[0]); G.pin(4, cv[1])
    def ds_stream(rd, lo, hi, per_gap=2):
        g = lo
        for x in rd:
            while g in quiet or sum(y.kind == 'dsr' for y in G.seq(g)) >= per_gap or (x.is_b128r() and any(y.is_b128r() for y in G.seq(g))): g += 1
            assert g <= hi, (x.text, g, hi)
            G.pin(g, x)
        return g
    for i in range(7):
        ds_stream(v_reads(i + 1, 1), blk[4*i] + (1 if i == 0 else 0), blk[4*i + 4] - 4, 1 if i == 0 else 2)
        if blk[4*i + 4] - 1 not in (Xa, X0, Xb, X1): G.pin(blk[4*i + 4] - 1, W(lgkm=['fr']))
    G.head.append(I(f"v_accvgpr_read_b32 v{V_WOB}, a{A_WOB}"))
    su = [I(x) for x in (f"v_lshrrev_b32 v16, 6, v{V_L16}", "v_lshlrev_b32 v18, 7, v16", f"v_bfe_u32 v17, v{V_L16}, 4, 2", "v_lshl_add_u32 v18, v17, 3, v18",
           f"v_bfe_u32 v19, v{V_L16}, 7, 2", f"v_xor_b32 v19, s{S_W}, v19", f"v_lshl_add_u32 v{V_OA}, v19, 5, v18",
           f"v_add_u32 v{V_OA+2}, 0x20000, v{V_OA}")]
    for k, x in enumerate(su): G.pin(5 + k // 2, x)
    ds_stream(oaf_reads(0), 10, Xa - 4)
    d1 = wo_dma(1)
    for x in d1:
        if x.res_w: x.res_w = [('K0x', True)]
    h = paced(d1 + wo_dma(2), 2, int(OPT.get('fs', 2)))
    G.pin(Xa, W(lgkm=['fr', 'oaf0'])); G.pin(Xa, I("s_barrier"))
    h = paced(wo_dma(3), max(h[0], Xa) + 2, int(OPT.get('fs3', 2)), h)
    e0 = sg[(3, 1)] + 5
    su = swz(V_XR, 16, 17, 18) + [I(f"v_bfe_u32 v16, v{V_L16}, 4, 4"), I(f"v_lshrrev_b32 v17, 8, v{V_L16}"),
          I(f"v_cmp_eq_u32 vcc, 0, v17")] + swz(V_XW, 16, 17, 18) + [I(f"v_cndmask_b32 v{V_MISC}, 0, 1.0, vcc")]
    su += [I(x) for x in (f"v_add_u32 v{V_XW}, s{S_RING}, v{V_XW}", f"v_add_u32 v{V_OA+1}, 0x10000, v{V_OA}",
           f"s_lshl_b32 s{S_SO+1}, s{S_W}, 10", f"s_add_u32 s{S_SO+1}, s{S_SO+1}, s{S_RB}")]
    G.stream(su, 9, e0 - 1)
    G.stream([I(f"v_bfe_u32 v{V_MISC}, v{V_L16}, 4, 2"), I(f"v_lshlrev_b32 v{V_MISC}, 14, v{V_MISC}")], tm0 + 3, X0 - 1)
    for x in (I("s_cbranch_vccnz L_MARK"), I("L_MARKED:")): G.pin(tm0 - 1, x)
    STUBS.extend([I("L_MARK:"), I(f"v_mov_b32 v16, -1"), I(f"v_mov_b32 v17, s{S_RING}"), I(f"ds_write_b32 v17, v16 offset:8192"), I("s_waitcnt lgkmcnt(0)"), I("s_branch L_MARKED")])
    G.pin(X0, W(vm=['wo2'], lgkm=['fr'])); G.pin(X0, I("s_barrier"))
    G.pin(X0, I(f"ds_read_b32 v{V_MISC}, v{V_MISC} offset:8192", tag='mk', res_r=[('K1', True)]))
    FB = X0 + 6
    G.pin(FB - 2, W(lgkm=['mk'])); G.pin(FB - 2, I(f"v_cmp_eq_u32 vcc, -1, v{V_MISC}"))
    for x in (I("s_cbranch_vccnz L_FALLBACK0"), I("L_NOFB:")): G.pin(FB, x)
    STUBS.extend([I("L_FALLBACK0:"), I(f"s_cmp_lg_u32 s{S_PASS}, 0"), I("s_cbranch_scc1 L_NOFB"), I("s_branch L_FALLBACK")])
    o1 = oaf_reads(1)
    for x in o1: x.res_r = x.res_r + [('K0x', True)]
    ds_stream(o1 + oaf_reads(2), FB, Xb - 3)
    G.pin(Xb, W(lgkm=['fr', 'oaf2'])); G.pin(Xb, I("s_barrier"))
    G.pin(X1, W(vm=['wo3'], lgkm=['fr', 'ow0'])); G.pin(X1, I("s_barrier"))
    for half, g, pf in ((0, X1 + 1, p0), (1, X2 + 1, p2)):
        for qb in range(4):
            G.pin(pf + 8*qb - 1, W(lgkm=[f'of{half}_{qb}']))
            g = ds_stream(of_reads(half, qb), g, pf + 8*qb - 4)
            if (half, qb) != (1, 3): G.pin(g, I(f"v_xor_b32 v{V_XR}, {hx((32, 96, 32, 96 + 0x10000)[qb])}, v{V_XR}"))
            g += 1
        if half == 0: ds_stream(oaf_reads(3), p0, Xc - 3, 3)
    G.pin(Xc, W(vm=['wo4'] if EARLY4 else None, lgkm=['of0_3', 'oaf3'])); G.pin(Xc, I("s_barrier"))
    if EARLY4: ds_stream(oaf_reads(4), per[1][0], X2 - 2, 3)
    G.pin(X2, W(lgkm=['ow1'] + (['oaf4'] if EARLY4 else []))); G.pin(X2, I("s_barrier"))
    skip = set(int(x) for x in OPT.get('skip', '99').split(',') if x)
    for p in range(2, 15):
        lo, hi = per[p]
        q = p + 1
        lg = [f"oaf{q}"] if p > 2 else ['of1_3']
        if EARLY4 and p == 3:
            G.pin(hi, W(vm=['wo5'])); G.pin(hi, I("s_barrier")); continue
        if q < 15 and q not in skip:
            G.pin(hi, W(vm=[f"wo{q+2 if q+1 in skip else q+1}"], lgkm=lg)); G.pin(hi, I("s_barrier"))
        else:
            G.pin(hi, W(lgkm=lg))
        if p > 2:
            for k, x in enumerate(oaf_reads(q)): G.pin(lo + 1 + 3*(k // 2), x)
    h = paced(wo_dma(4) + wo_dma(5), Xb + 1, 4, h)
    h = paced(wo_dma(6) + wo_dma(7), max(h[0] + 4, Xc + 1), int(OPT.get('fs6', 4)), h)
    if EARLY4: h = paced(wo_dma(8), max(h[0] + 3, X2 + 1), int(OPT.get('fs6', 4)), h)
    pace = int(OPT.get('pace', 40))
    for k in range(7 if EARLY4 else 8):
        q = (9 if EARLY4 else 8) + k
        rel = q - 5 if not (EARLY4 and q == 9) else 3
        while rel in skip: rel += 1
        need = q - 1
        while need in skip: need -= 1
        lo = max(per[rel][0], min(per[3][0] + pace*k, per[need][0] - int(OPT.get('fm', 28)) - 32), h[0] + 2)
        step = max(2, min(pace // 8, (per[need][0] - int(OPT.get('fm', 28)) - lo) // 7))
        h = paced(wo_dma(q), lo, step, h)
    items = []
    for qb in range(4):
        items += [I(f"v_accvgpr_read_b32 v{V_NT+qb}, a{A_L+4*qb}"), I(f"v_accvgpr_read_b32 v16, a{A_L+4*qb+1}"),
                  I(f"v_add_f32 v{V_NT+qb}, v{V_NT+qb}, v16")]
    items += [I(f"v_add_f32 v16, v{V_NT}, v{V_NT+1}"), I(f"v_add_f32 v17, v{V_NT+2}, v{V_NT+3}"), I(f"v_add_f32 v16, v16, v17"),
              I(f"v_cmp_ngt_f32 vcc, {hx(f2u(2.0**(40 - float(OPT.get('moff', 10)))))}, v16")]
    items += [I(f"v_rcp_f32 v{V_NT+qb}, v{V_NT+qb}") for qb in range(4)]
    G.stream(items, e0, tm0 - 2)
    h = (tm0 + 2, 2)
    def norm(i, qb):
        e = blk[4*i + qb] + 3 + 6
        st = V_STG + 16*((i >> 1) & 1) + 4*qb
        o = A_O + 16*i + 4*qb; T = V_NT
        seq = [I(f"v_accvgpr_read_b32 v{T+r}, a{o+r}") for r in range(4)]
        seq += [I(f"v_mul_f32 v{T+r}, v{T+r}, v{V_RL+4*qb+r}") for r in range(4)]
        seq += [I(f"v_cvt_pk_bf16_f32 v{st+2*(i&1)}, v{T}, v{T+1}"), I(f"v_cvt_pk_bf16_f32 v{st+2*(i&1)+1}, v{T+2}, v{T+3}")]
        return [(x, e) for x in seq]
    for hf, wpos in ((0, w1pos), (1, w2pos)):
        for k in range(8):
            u, qb = 2*hf + (k >> 2), k & 3
            st = V_STG + 16*(u&1) + 4*qb
            G.pin(wpos[k], I(f"ds_write2st64_b64 v{V_XW}, {vr(st, 2)}, {vr(st + 2, 2)} offset0:{16 + 8*(u&1)} offset1:{20 + 8*(u&1)}", tag=f'ow{hf}',
                             res_w=[('V1' if hf else 'K1', True)]))
            if (hf, k) != (1, 7): G.pin(wpos[k] + 1, I(f"v_xor_b32 v{V_XW}, {hx((32, 96)[k & 1] + (0x10000 if k == 7 else 0))}, v{V_XW}"))
    for hf, wpos in ((0, w1pos), (1, w2pos)):
        lo = h[0] + 1; span = wpos[7] - lo
        for k in range(8):
            u, qb = 2*hf + (k >> 2), k & 3
            its = norm(2*u, qb) + norm(2*u + 1, qb)
            if hf: its = [(x, max(e, w1pos[k] + 2)) for x, e in its]
            hi = min(wpos[k] - 1, max(lo + (span * (k + 1)) // 8, its[-1][1] + 4))
            h = G.stream(its, h[0] + 1, max(hi, h[0] + 3))
            assert h[0] < wpos[k]
    G.stream([I(f"v_accvgpr_read_b32 v{V_XT+k}, a{A_XT+k}") for k in range(8)] + [I(f"v_accvgpr_read_b32 v{16 + k}, a{A_Y7+k}") for k in range(12)], X2 - 3, X2 + 22)
    for ci in range(7):
        pl = PER.index((ci, 1))
        a = V_OACC + 16*(ci & 1)
        e0 = per[pl][0] + 20
        items = [(I(x), e0) for x in (f"s_add_u32 s{S_SO}, s{S_G}, {1 + ci}", f"s_and_b32 s{S_SO}, s{S_SO}, 7", f"s_lshl_b32 s{S_SO}, s{S_SO}, {GS_S}",
                 f"s_add_u32 s{S_SO}, s{S_SO}, s{S_SO+1}", f"s_add_u32 s{S_SO+2}, s{S_SO}, {hx(PL)}", f"s_add_u32 s{S_SO+1}, s{S_SO+1}, {hx(2*PL)}")]
        st = V_STG + 8*(ci & 1)
        for half in range(2):
            e = per[pl][0] + 16*half + 15 + 6
            for k in range(4*half, 4*half + 4): items.append((I(f"v_cvt_pk_bf16_f32 v{st+k}, v{a+2*k}, v{a+2*k+1}"), e))
            for k in range(4*half, 4*half + 4): items.append((I(f"v_min_u32 v{st+k}, -2, v{st+k}"), e))
            items.append((I(f"buffer_store_dwordx4 {vr(st+4*half)}, v{V_L16}, {sr(SRD_WS)}, s{S_SO + 2*half} offen {OPT.get('ssf', 'sc1').replace('+', ' ')}", tag='sst'), max(e, per[2][1] + 1)))
        G.stream(items, e0, per[pl + 1][0] + 18)
    it = y_add(0, None, V_MX) + y_add(1, 16, V_MX) + y_add(0, 20, V_MX) + y_add(1, 24, V_MX)
    for q0 in range(0, 16, 4):
        T = V_NT
        it += [I(f"v_mul_f32 v{T+r}, {hx(f2u(-math.log2(math.e)/CF))}, v{V_YS+q0+r}") for r in range(4)]
        it += [I(f"v_exp_f32 v{T+r}, v{T+r}") for r in range(4)]
        it += [I(f"v_fma_f32 v{T+r}, v{T+r}, s{S_QS}, s{S_QS}" if OPT.get('fold') else f"v_add_f32 v{T+r}, 1.0, v{T+r}") for r in range(4)]
        it += [I(f"v_rcp_f32 v{T+r}, v{T+r}") for r in range(4)]
        it += [I(f"v_mul_f32 v{V_YS+q0+r}, v{V_YS+q0+r}, v{T+r}") for r in range(4)]
        if OPT.get('eps'): it += [I(f"v_mul_f32 v{V_YS+q0+r}, {hx(f2u(1 + float(OPT['eps'])))}, v{V_YS+q0+r}") for r in range(4)]
    V_XF = 144
    for h in range(2): it += [I(f"v_permlane16_swap_b32 v{V_XT+4*h}, v{V_XT+4*h+2}"), I(f"v_permlane16_swap_b32 v{V_XT+4*h+1}, v{V_XT+4*h+3}")]
    for k in range(8): it += [I(f"v_lshlrev_b32 v{V_XF+2*k}, 16, v{V_XT+k}"), I(f"v_and_b32 v{V_XF+2*k+1}, 0xffff0000, v{V_XT+k}")]
    it += xo_voff(3, 2)
    it += [I(x) for x in (f"v_bfe_u32 v0, v{V_L16}, 6, 2", f"v_lshrrev_b32 v1, 8, v{V_L16}", "v_cmp_eq_u32 vcc, v0, v1",
           f"v_and_b32 v0, 16, v{V_L16}", "v_mov_b32 v1, 0x3f80", "v_lshlrev_b32 v0, v0, v1", "v_cndmask_b32 v0, 0, v0, vcc",
           f"v_and_b32 v1, 32, v{V_L16}", "v_cmp_eq_u32 vcc, 0, v1", f"v_mov_b32 v{V_SEL}, 0", f"v_mov_b32 v{V_SEL+1}, 0",
           f"v_cndmask_b32 v{V_SEL+2}, 0, v0, vcc", f"v_mov_b32 v{V_SEL+4}, 0", f"v_sub_u32 v{V_SEL+3}, v0, v{V_SEL+2}", f"v_mov_b32 v{V_SEL+5}, 0")]
    NE_ = int(OPT.get('ne5', 4))
    lds_ = [float(x) for x in OPT.get('lds', '6.6,8.6,10.6,12.6,14.6,14.6').split(',')]
    h = None
    for st in range(len(lds_)):
        g = per[0][0] + int(32*lds_[st])
        g = max(g, h[0] + 1 if h else 0)
        h = G.stream(sp_load(st), g, g + 5)
    G.stream(it, per[4][0], per[14][1])
    def chk(sts):
        regs = [V_SP(st) + k for st in sts for k in range(8)]
        out = [I(f"v_max_u32 v{V_MX}, v{regs[0]}, v{regs[1]}")]
        for k in range(2, len(regs), 2): out.append(I(f"v_max3_u32 v{V_MX}, v{V_MX}, v{regs[k]}, v{regs[k+1]}"))
        return out + [I(f"v_cmp_eq_u32 vcc, -1, v{V_MX}")]
    c0 = chk(range(NE_))
    G.stream([I(f"s_mov_b32 s{S_SPIN}, 0x40000"), W(vm=[f"sp{NE_-1}"])] + c0, per[15][1] - len(c0)//2 - 4, per[15][1] - 1)
    if OPT['stamps']:
        for x in stamp(9): G.pin(p0 - 1, x, post=True)
    for k in range(16): ministamp(G, per[k][1], 48 + k)
    print(f"; finale est cycles {G.cycles()} (pv part {G.cyc(0, p0-1)}, periods {[G.cyc(a, b) for a, b in per]})", file=sys.stderr)
    L = with_m0_pad(G.flat()); A = lambda t, **k: L.append(I(t, **k))
    if len(lds_) < 7: L += sp_load(6)
    L += stamp(10)
    acc = V_OACC + 16; U = 160
    groups = [list(range(NE_))] + [[st] for st in range(NE_, 7)]
    for n_, sts in enumerate(groups):
        A(f"s_cbranch_vccnz L_RETRY{n_}"); A(f"L_GO{n_}:")
        mm = [mf(vr(acc + 4*qb), vr(V_SEL + (0 if qb & 1 else 2)), vr(V_SP(st) + 4*(qb >> 1)), vr(acc + 4*qb)) for qb in range(4) for st in sts]
        nx = [W(vm=[f"sp{groups[n_+1][0]}"])] + chk(groups[n_ + 1]) + [I("s_nop 1")] if n_ + 1 < len(groups) else [I("s_nop 7")]
        L += mm + nx
        STUBS.append(I(f"L_RETRY{n_}:"))
        for st in sts:
            if len(sts) > 1: STUBS.extend(chk([st]) + [I("s_nop 3"), I(f"s_cbranch_vccz L_RN{st}")])
            STUBS.extend([I(f"L_RL{st}:")] + sp_load(st) + [I(f"s_sub_u32 s{S_SPIN}, s{S_SPIN}, 1"), I("s_waitcnt vmcnt(0)")] + chk([st]) +
                         [I(f"s_cmp_le_i32 s{S_SPIN}, 0"), I(f"s_cbranch_scc1 L_RN{st}"), I("s_nop 1"), I(f"s_cbranch_vccnz L_RL{st}"), I(f"L_RN{st}:")])
        STUBS.append(I(f"s_branch L_GO{n_}"))
    for k in range(8): A(f"v_pk_fma_f32 {vr(acc+2*k,2)}, {vr(acc+2*k,2)}, {vr(V_YS+2*k,2)}, {vr(V_XF+2*k,2)}")
    for k in range(8): A(f"v_cvt_pk_bf16_f32 v{U+k}, v{acc+2*k}, v{acc+2*k+1}")
    for h in range(2):
        A(f"v_permlane16_swap_b32 v{U+4*h}, v{U+4*h+2}"); A(f"v_permlane16_swap_b32 v{U+4*h+1}, v{U+4*h+3}")
    for h in range(2): A(f"buffer_store_dwordx4 {vr(U+4*h)}, v3, {sr(SRD_OUT)}, s{S_XO+h} offen {OPT.get('outf', '').replace('+', ' ')}", tag='out')
    return L

def fallback():
    L = []; A = lambda t, **k: L.append(I(t, **k))
    A("L_FALLBACK:")
    A("s_waitcnt vmcnt(0) lgkmcnt(0)"); A("s_nop 7")
    A(f"s_mov_b32 s{S_PASS}, 1")
    A(f"s_mov_b32 s{SRD_WS2+2}, 0")
    A(f"s_lshl_b32 s{S_KO}, s{S_W}, 13"); A(f"s_add_u32 s{S_KO+1}, s{S_KO}, 4096")
    for qb in range(4): A(f"v_mov_b32 v{V_NEGM+4*qb}, 0xff800000")
    A(f"s_mov_b32 s{S_CNT}, 17")
    A("L_FB_LOOP:")
    A("s_waitcnt vmcnt(0) lgkmcnt(0)"); A("s_barrier")
    A(f"s_cmp_lg_u32 s{S_CNT}, 1"); A("s_cbranch_scc1 L_FB_NR")
    A(f"s_lshl_b32 s{S_KO}, s{S_W}, 13"); A(f"s_add_u32 s{S_KO+1}, s{S_KO}, 4096")
    A("L_FB_NR:")
    L += with_m0_pad(kv_dma('K', 0, 0, 'kv') + kv_dma('K', 1, 0, 'kv'))
    A("s_waitcnt vmcnt(0)"); A("s_barrier")
    for kt in range(8):
        L += k_reads(kt, 0); A("s_waitcnt lgkmcnt(0)")
        for qb in range(4):
            d = vr(V_P + 4*qb)
            for kk in range(4): L.append(mf(d, ar(A_KF + 16*(kt&1) + 4*kk), vr(V_Q + 16*qb + 4*kk), d if kk else "0"))
        A("s_nop 7")
        for qb in range(4):
            b = V_NEGM + 4*qb; d = V_P + 4*qb
            A(f"v_max3_f32 v{b}, v{b}, v{d}, v{d+1}"); A(f"v_max3_f32 v{b}, v{b}, v{d+2}, v{d+3}")
    A(f"s_add_u32 s{S_KO}, s{S_KO}, 0x8000"); A(f"s_add_u32 s{S_KO+1}, s{S_KO+1}, 0x8000")
    A(f"s_sub_u32 s{S_CNT}, s{S_CNT}, 1"); A(f"s_cmp_lg_u32 s{S_CNT}, 0"); A("s_cbranch_scc1 L_FB_LOOP")
    L += rowmax_finish()
    A(f"s_lshl_b32 s{S_VO}, s{S_W}, 13"); A(f"s_add_u32 s{S_VO+1}, s{S_VO}, 4096")
    L += with_m0_pad(kv_dma('K', 0, 1, 'kv') + kv_dma('K', 1, 1, 'kv') + kv_dma('V', 0, 0, 'kv') + kv_dma('V', 1, 0, 'kv'))
    L += k_reads(0, 0); A("s_waitcnt lgkmcnt(0)")
    for k in range(4): A(f"s_add_u32 s{S_KO+k}, s{S_KO+k}, 0x8000")
    L += attn_setup()['pre']
    L += attn_iter0()
    A("s_branch L_IT1")
    return L

def build():
    d = OPT['dump']
    p0 = phase0(); p1 = phase1()
    su = stamp(4) + (stamp(5) if not OPT.get('fine') else []) + stamp(6)
    it0 = []
    g1 = attn_iter(1, first_pv=True); ge, go = attn_iter(0, vmtags=('kv', 'yst')), attn_iter(1, vmtags=('kv', 'fill'))
    go.pin(len(go) - 4, I(f"s_sub_u32 s{S_CNT}, s{S_CNT}, 1")); go.pin(len(go) - 4, I(f"s_cmp_lg_u32 s{S_CNT}, 0"))
    it1_extras(g1); loop_extras(ge, go)
    if OPT.get('trip'):
        for G_, base in ((ge, 32), (go, 48)):
            for x in (I(f"s_memtime s[{S_STAMP}:{S_STAMP+1}]"), I(f"s_add_u32 s98, s{S_CNT}, {base}"), I("s_waitcnt lgkmcnt(0)"), I(f"v_mov_b32 v{V_YT}, s{S_STAMP}"), I(f"v_lshrrev_b32 v{V_CNT if G_ is go else V_YT}, 0, v{V_YT}")): pass
            for x in (I(f"s_memtime s[{S_STAMP}:{S_STAMP+1}]"), I(f"s_mov_b32 s101, m0"), I(f"s_add_u32 m0, s{S_CNT}, {base}"), I("s_waitcnt lgkmcnt(0)"), I(f"v_writelane_b32 v63, s{S_STAMP}, m0"), I("s_nop 1"), I("s_mov_b32 m0, s101")): G_.pin(G_.sg[6], x, post=True)
    print(f"; attn iter est cycles {ge.cycles()} {go.cycles()} (it1 {g1.cycles()})", file=sys.stderr)
    if OPT.get('idle'): su = su + [I("s_nop 15")] * (int(OPT['idle']) // 64)
    if OPT.get('idlel'):
        for k in range(int(OPT['idlel'])): ge.pin(ge.sg[k], I("s_nop 15"), post=True); go.pin(go.sg[k], I("s_nop 15"), post=True)
    it1 = [I("L_IT1:")] + with_m0_pad(g1.flat()) + [I(f"s_mov_b32 s{S_CNT}, 7")] + stamp(7)
    loop = [I(".p2align 6"), I("L_LOOP:")] + ge.flat() + go.flat() + [I("s_cbranch_scc1 L_LOOP")]
    last = [I("L_FIN:")] + stamp(8) + finale()
    if OPT['stamps']: last += [I(f"v_writelane_b32 v63, s{S_SPIN}, 15")]
    last += stamp(11 if not OPT.get('fine') else 14, True)
    op = []
    fb = fallback()
    end = [I("L_END:"), I("s_endpgm")]
    if d == 'q': body = p0 + p1 + dump_regs([vr(V_Q + 4*i) for i in range(16)] + [ar(144 + 4*i) for i in range(28)]) + end; trace = body
    else:
        C = lambda t: [I("; ==== " + t)]
        body = (C("set-up, x load, LayerNorm, exchange") + p0 + C("w1 / wq / w2 GEMMs, row-max seed, first QK pass") + p1 + su + it0 +
                C("attention iteration 1") + it1 + C("attention iterations 2..15 (two per trip)") + loop +
                C("last PV pass, normalisation, O projection, reduce-scatter tail") + last + end + C("out-of-line waits and once-per-launch work") + STUBS +
                C("exact-max fallback") + fb)
        ka = [i for i, x in enumerate(loop) if x.text == "L_ARRB:"][0]
        k0 = [i for i, x in enumerate(loop) if x.text == "L_AR0B:"][0]
        trace = p0 + p1 + su + it0 + it1 + loop[:k0] + AR0 + loop[k0:] + loop + loop[:ka] + ARR + loop[ka:] + loop*2 + last
        k = [i for i, x in enumerate(last) if x.text == "s_cbranch_vccnz L_FALLBACK0"][0]
        trace2 = p0 + p1 + su + it0 + it1 + loop*2 + last[:k+1] + fb + it0 + it1 + loop + last
        resolve_waits(trace2)
    resolve_waits(trace)
    e = check(trace, verbose=False)
    if d is None: e += check(trace2, verbose=False)
    seen = set()
    e = [x for x in e if 's_memtime' not in x]
    for x in e[:6]: print("CHECK:", x, file=sys.stderr)
    if e: print("FAILED CHECK", len(e), file=sys.stderr); sys.exit(1)
    def in_gemm(x): return id(x) in gset
    gset = set(id(x) for x in p1 + op + last)
    if OPT.get('drop'): body = [x for x in body if not (id(x) in set(id(y) for y in loop) and x.tag in OPT['drop'].split(','))]
    if OPT.get('dropf'): body = [x for x in body if not (id(x) in set(id(y) for y in last) and ((x.tag and any(x.tag.startswith(t) for t in OPT['dropf'].split(','))) or 'L_RETRY' in x.text or ('bar' in OPT['dropf'] and x.kind == 'barrier')))]
    if OPT.get('nosst'): body = [x for x in body if x.tag not in ('sst', 'fill')]
    if OPT.get('noy'): body = [x for x in body if x.tag not in ('y0', 'y1')]
    if OPT.get('nodma'): body = [x for x in body if not (in_gemm(x) and x.kind == 'dma')]
    if OPT.get('novalu'): body = [x for x in body if not (in_gemm(x) and x.kind in ('valu', 'trans', 'perm') and any(k in x.text for k in ('f32', 'accvgpr', 'permlane')))]
    if OPT.get('nomfma'): body = [x for x in body if not (in_gemm(x) and x.kind == 'mfma')]
    if OPT.get('nods'): body = [x for x in body if not (in_gemm(x) and x.kind == 'dsr' and 'b32' not in x.text)]
    return body

def kdesc(name, vg, acc):
    return f""".amdhsa_kernel {name}
  .amdhsa_next_free_vgpr {vg}
  .amdhsa_next_free_sgpr 102
  .amdhsa_accum_offset {acc}
  .amdhsa_group_segment_fixed_size 0
  .amdhsa_kernarg_size 104
  .amdhsa_user_sgpr_count 2
  .amdhsa_user_sgpr_kernarg_segment_ptr 1
  .amdhsa_system_sgpr_workgroup_id_x 1
  .amdhsa_float_denorm_mode_32 3
.end_amdhsa_kernel"""


HEADER = """; Fused  out = x + Attn(LN(x)) * silu(MLP(LN(x)))  for gfx950, one launch, 256 workgroups x 4 waves (1 wave/SIMD, 512 regs).
; v_mfma_f32_16x16x32_bf16 backbone; waits and hazards are derived and checked by the script).
;
; Workgroup = (kv group g, 64 rows r); wave w = query head 4g+w.
;     c = log2(e)/sqrt(128); the gelu / silu constants divide it out again.
;  2. h = gelu_tanh(xn w1[:,224g..224g+224) + b1), Q = xn wq[:,512g..), y_partial = h w2[224g..,:]; weights stream
;     L2 -> LDS by DMA and are read transposed.
;  3. Attention over 16 tiles of 128 keys: S = K Q^T - shift (shift enters as the MFMA C operand), P = exp2(S) in bf16,
;     O += P V, row sums l of the same bf16 P by a sparse MFMA.
;     shift = (true max of the row over the first 16 keys) + 10, so l >= 2^-10 and terms down to 2^-116 of the row
;     keys (L_FALLBACK) and redoes the attention with it.
;  5. Workgroup (g, r) sums the 8 y and 8 s partials of output columns 64g..64g+64 and writes out.
; Hand-offs between workgroups use d_ws with write-through (sc1) stores and sc1 loads only:
;  - y: published before the first add to the row block's counter in d_debug, read after the counter is seen >= 8;
;  - s: every receiver first overwrites its 7 slots with all-ones words (second add, senders wait for counter == 16),
;    senders never store an all-ones word, receivers re-read a slot until no all-ones word is left.
; Nothing depends on XCD placement except speed (cache / TLB warm-up touches, id -> (g, r) mapping).
"""

def render(body):
    K1 = NAME + "_kernel"
    out = [HEADER + f"; @launch grid=(256,1,1) block=(256,1,1) lds=163840",
           '.amdgcn_target "amdgcn-amd-amdhsa--gfx950"', ".text"]
    out += [f".globl {K1}", ".p2align 12", ".p2align 8", f".type {K1},@function", f"{K1}:"] + [x.emit() for x in body]
    out += ['.section .rodata,"a"', ".p2align 6", kdesc(K1, 512, 256)]
    return "\n".join(out).replace("CODE_LEFT", "L_END-L_PC2") + "\n"

def addresses(body):
    import subprocess, tempfile, os
    d = tempfile.mkdtemp()
    marked = []
    for n, x in enumerate(body):
        if x.kind == 'mfma' or x.text == "L_END:": marked.append(I(f"ZZ{n}:"))
        marked.append(x)
    txt = re.sub(r'(s_c?branch\w*) L_PAD\w+', r'\1 L_END', render(marked))
    open(d + "/a.s", "w").write(txt)
    subprocess.check_call(["clang", "-x", "assembler", "-target", "amdgcn-amd-amdhsa", "-mcpu=gfx950", "-c", d + "/a.s", "-o", d + "/a.o"])
    o = subprocess.check_output(["llvm-objdump", "-t", d + "/a.o"], text=True)
    return {int(m.group(2)): int(m.group(1), 16) for m in re.finditer(r'^([0-9a-f]+) .*ZZ(\d+)$', o, re.M)}

body = build()
if OPT.get('hop'):
    PRE = 0x300
    offs = [int(x) for x in str(OPT['hop']).split(',')] if OPT['hop'] is not True else [0]
    k = 0; b = 0x2000 - PRE + 0x1000 * int(OPT.get('hop0', 0))
    while True:
        stop = False
        for off in offs:
            ad = addresses(body)
            endi = [n for n, x in enumerate(body) if x.text == "L_END:"][0]
            cand = [n for n in sorted(ad) if n < endi and ad[n] + 8 >= b + off]
            if not cand: stop = True; break
            n = cand[0]
            body[n+1:n+1] = [I(f"L_PAD{k}:"), I(f"s_cbranch_execz L_PADN{k}")]
            k += 1
        if stop: break
        b += 0x1000
    if not OPT.get('nostubpad'):
        for lab in ("L_AR0:", "L_ARR:"):
            n = [i for i, x in enumerate(body) if x.text == lab][0]
            body[n+1:n+1] = [I(f"L_PAD{k}:"), I(f"s_cbranch_execz L_PADN{k}")]; k += 1
    for x in body:
        m_ = re.match(r's_cbranch_execz L_PADN(\d+)', x.text)
        if m_:
            t = int(m_.group(1)) + 4
            x.text = f"s_cbranch_execz L_PAD{t}" if t < k else "s_cbranch_execz L_PADX"
    print(f"; {k} pads", file=sys.stderr)
print(render(body))
```

```python
import sys, struct, math, re
from asmlib import *

NAME = "recurrent_scan__gqa_block_cached__dense_activation_gelu__prompt"
OPT = dict(dump=None, stamps=False, G='2', pfs='128', s2='8', s2b='12', kvrows='256', stag=False, q1='early', nw='8', ne='3', xe='8', pvx='2', cearly=True, c0='4', hop=True, hop0='4', fold=True, rel=True, gl='28', alap='999', w1f='17', norot=True, nokt=True)
for a in sys.argv[1:]:
    k, _, v = a.partition('=')
    OPT[k] = (False if v == 'off' else v) if v else True

NT = lambda k: ' nt' if k in OPT.get('nt', '') else ''
GG = int(OPT['G']); LG = GG.bit_length() - 1
CQ = 128**-0.5 * math.log2(math.e)
CF = CQ if OPT.get('fold') else 1.0
def f2u(x): return struct.unpack('<I', struct.pack('<f', x))[0]
def hx(x): return f"0x{x & 0xffffffff:x}"
def vr(b, n=4): return f"v[{b}:{b+n-1}]" if n > 1 else f"v{b}"
def ar(b, n=4): return f"a[{b}:{b+n-1}]" if n > 1 else f"a{b}"
def sr(b, n=4): return f"s[{b}:{b+n-1}]" if n > 1 else f"s{b}"

S_W = 3
SRD_X, SRD_K, SRD_V, SRD_WQ, SRD_WO, SRD_W1, SRD_W2, SRD_WS, SRD_OUT, SRD_B1, SRD_B2, SRD_DBG = range(4, 52, 4)
S_G, S_R = 52, 53
S_SM1, S_SMQ, S_SM2 = 54, 57, 60
S_RING = 63
S_KO = 64
S_VO = 66
S_CNT, S_PASS = 68, 69
S_QS, S_GB = 70, 71
S_YO = 72
S_T = 76
S_PF = 99
SRD_WS2 = 80
S_CB, S_CB2, S_SPIN = 84, 85, 86
S_STAMP = 96

V_KA, V_VA, V_DV, V_SPI, V_L16 = 0, 4, 12, 14, 15
V_NEGM, V_S, V_SPA = 16, 32, 44
V_T = 48
V_Q, V_P = 64, 128
V_WA = 4
V_AF = 16
V_W1, V_WQ, V_W2, V_GA = 48, 49, 50, 51
V_ACCA, V_ACCB = 128, 192
V_B1 = 64
def XN(ks, qb): return ((15 - ks) * 4 + qb) * 4
A_O, A_L, A_KF, A_VF = 0, 128, 144, 176
A_SPA, A_FILL, A_XT, A_PF, A_WOB, A_Y7 = 208, 212, 216, 224, 225, 228
V_YB, V_YS, V_YT, V_PFO, V_CNT, V_WOB = 40, 44, 60, 61, 60, 62
SRD_ARR = 40
S_CODE, S_AO, S_Y7, S_Y7S, S_IM, S_IS = 16, 18, 24, 27, 30, 31
A_ADR = 240
S_KT, S_NEED, S_CL = 75, 58, 59
S_CA, S_YI, S_YL, S_FO, S_XO = 87, 88, 89, 90, 91

LDS_V, LDS_X = 65536, 131072
WS_S, WS_Y, WS_DUMP = 0, 16 << 20, 64 << 20
RB = int(OPT.get('rb', 32)); LB = RB.bit_length() - 1; PL = RB << 15; PS = LB + 15
WSO = int(OPT.get('wso', 0)) << 20
S_RB, S_LIM = 60, 61
LAY = OPT.get('lay', '21')
GS_S, GS_Y = (12 if LAY[0] == '1' else 12 + LB), (10 if LAY[1] == '1' else 12 + LB)
S_RBY = 62

mf = lambda d, a, b, c: I(f"v_mfma_f32_16x16x32_bf16 {d}, {a}, {b}, {c}")

segs = {}
def stamp(i, last=False):
    if not OPT['stamps']: return []
    L = [I(f"s_memtime s[{S_STAMP}:{S_STAMP+1}]"), I(f"s_memrealtime s[100:101]"), I("s_waitcnt lgkmcnt(0)"),
         I(f"v_writelane_b32 v63, s{S_STAMP}, {i}"), I(f"v_writelane_b32 v63, s100, {16+i}")]
    if last:
        L += [I("s_lshl_b32 s98, s2, 2"), I(f"s_add_u32 s98, s98, s{S_W}"), I("s_lshl_b32 s98, s98, 8"), I(f"s_add_u32 s98, s98, {hx(WS_DUMP)}"),
              I(f"v_lshrrev_b32 v62, 2, v{V_L16}"), I(f"buffer_store_dword v63, v62, {sr(SRD_WS)}, s98 offen", tag='stamp')]
    return L

def dstamp(name):
    pts = str(OPT.get('ds', '')).split(',')
    if name not in pts: return []
    r = (96, 100)[pts.index(name)]
    x = I(f"s_memtime s[{r}:{r+1}]"); x.kind = 'salu'; x.wr = set(); x.text = x.text
    return [x]
def ministamp(G, gap, lane):
    if not OPT.get('mini'): return
    if OPT['mini'] == 'rt':
        if lane >= 48: return
        for x in (I(f"s_memtime s[{S_STAMP}:{S_STAMP+1}]"), I("s_memrealtime s[100:101]"), I("s_waitcnt lgkmcnt(0)"), I(f"v_writelane_b32 v63, s{S_STAMP}, {lane}"), I(f"v_writelane_b32 v63, s100, {lane+16}")): G.pin(gap, x, post=True)
        return
    for x in (I(f"s_memtime s[{S_STAMP}:{S_STAMP+1}]"), I("s_waitcnt lgkmcnt(0)"), I(f"v_writelane_b32 v63, s{S_STAMP}, {lane}")): G.pin(gap, x, post=True)

def dump_regs(groups):
    L = [I("s_waitcnt vmcnt(0) lgkmcnt(0)"), I("s_nop 7"), I("s_nop 7")]
    L += [I(f"s_lshl_b32 s{S_T}, s2, 2"), I(f"s_add_u32 s{S_T}, s{S_T}, s{S_W}"),
          I(f"s_mul_i32 s{S_T}, s{S_T}, {len(groups)*1024}"), I(f"s_add_u32 s{S_T}, s{S_T}, {hx(WS_DUMP)}")]
    for g in groups:
        L.append(I(f"buffer_store_dwordx4 {g}, v{V_L16}, {sr(SRD_WS)}, s{S_T} offen"))
        L.append(I("s_nop 3"))
        L.append(I(f"s_add_u32 s{S_T}, s{S_T}, 1024"))
    L += [I("s_waitcnt vmcnt(0)"), I("s_endpgm")]
    return L

def srd(L, base, p, nbytes):
    L += [I(f"s_mov_b32 s{base}, s{p}"), I(f"s_mov_b32 s{base+1}, s{p+1}"),
          I(f"s_mov_b32 s{base+2}, {hx(nbytes)}"), I(f"s_mov_b32 s{base+3}, 0x20000")]

def dma_w(srdb, vreg, sm, i, tag, res):
    so = "0" if (i & 3) == 0 else f"s{sm + (i & 3) - 1}"
    off = f" offset:{(i & 3) * 1024}" if i & 3 else ""
    return I(f"buffer_load_dwordx4 v{vreg}, {sr(srdb)}, {so} offen{off} lds", tag=tag, res_w=res)

STAGES = []
for kq in range(8): STAGES.append(dict(m='w1', srd=SRD_W1, v=V_W1, stride=3584, nks=2, ks0=2*kq, acc=V_ACCA, first=kq == 0, col=0))
for hq in range(2):
    for kq in range(8): STAGES.append(dict(m='wq', srd=SRD_WQ, v=V_WQ, stride=8192, nks=2, ks0=2*kq, acc=V_ACCB, first=kq == 0, col=128*hq))
for hc in range(2):
    for kq in range(4): STAGES.append(dict(m='w2', srd=SRD_W2, v=V_W2, stride=1024, nks=2 if kq < 3 else 1, ks0=2*kq, acc=V_ACCA if hc == 0 else V_ACCB,
                                           first=kq == 0, col=512*hc))
def slot_off(s): return 8192 if (s & 3) in (0, 3) else 0
SLOTRES = ['K1', 'V0', 'K0', 'V1']
S_RS = 54
def stage_dma(s):
    st = STAGES[s]; L = []
    for j in range(st['nks']):
        for i in range(4):
            row = 32*(st['ks0'] + j) + (8*i if st['m'] == 'w2' else 16*(i & 1) + 4*(i >> 1))
            L.append(I(f"s_mov_b32 s{S_RS + i}, {hx(row*st['stride'] + st['col'] - 1024*i)}"))
            if i == 0: L.append(I(f"s_add_u32 m0, s{S_RING}, {hx(slot_off(s) + (s & 1) * 65536 + j * 4096)}"))
            off = f" offset:{i*1024}" if i else ""
            L.append(I(f"buffer_load_dwordx4 v{st['v']}, {sr(st['srd'])}, s{S_RS + i} offen{off} lds", tag=f"st{s}", res_w=[(f"slot{s&3}", False)]))
    return L

def with_m0_pad(L):
    out = []
    for i, x in enumerate(L):
        out.append(x)
        if 'm0' in x.wr and i + 1 < len(L) and L[i+1].kind == 'dma': out.append(I("s_nop 0"))
    return out

def interleave(main, extra, start=0, end=None):
    end = len(main) if end is None else end
    out = list(main[:start]); n = end - start; k = 0
    for i in range(n):
        out.append(main[start + i])
        while k < len(extra) and (k + 1) * n <= (i + 1) * len(extra) + 0:
            out.append(extra[k]); k += 1
    return out + extra[k:] + list(main[end:])

def touch(L, srdb, vtmp, sreg, ln, rowlines, rowstride, nrows, sbase_code, step=128):
    A = lambda t, **k: L.append(I(t, **k))
    per_row = rowlines * 128 // step
    rows_share = -(-nrows * GG // 128)
    total = per_row * rows_share
    lg = per_row.bit_length() - 1
    A(f"s_mul_i32 s{sreg}, s94, {rows_share * rowstride}")
    for t in sbase_code: A(t)
    if sbase_code: A(f"s_add_u32 s{sreg}, s{sreg}, s93")
    A(f"v_lshrrev_b32 v{vtmp}, {lg}, v{ln}")
    if total < 64: A(f"v_min_u32 v{vtmp}, {rows_share - 1}, v{vtmp}")
    A(f"v_mul_u32_u24 v{vtmp}, {rowstride}, v{vtmp}")
    A(f"v_and_b32 v32, {per_row - 1}, v{ln}")
    A(f"v_lshl_add_u32 v{vtmp}, v32, {step.bit_length() - 1}, v{vtmp}")
    out = []
    for k in range(max(1, -(-total // 64))):
        if k: out.append(I(f"v_add_u32 v{vtmp}, {(64 // per_row) * rowstride}, v{vtmp}"))
        out.append(I(f"buffer_load_dword v60, v{vtmp}, {sr(srdb)}, s{sreg} offen{NT({SRD_W1: '1', SRD_WQ: 'q', SRD_W2: '2', SRD_K: 'v'}[srdb])}", tag='pf'))
    return out

def lin_touch(srdb, sreg):
    step = int(OPT['pfs']); n = max(1, 4096 * GG // (64 * step))
    L = []
    for k in range(n):
        if k: L.append(I(f"s_add_u32 s{S_T+3}, s{sreg}, {k * 64 * step}"))
        L.append(I(f"buffer_load_dword v60, v61, {sr(srdb)}, s{S_T+3 if k else sreg} offen", tag='pf'))
    return L

LATE = {}
STUBS = []
V_XA = 53
def phase0():
    L = []
    A = lambda t, **k: L.append(I(t, **k))
    t0, t1, t2, t3, ln, n16, g4 = 33, 34, 35, 36, 37, 38, 39
    L += stamp(0)
    A(f"s_load_dwordx2 s[{SRD_X}:{SRD_X+1}], s[0:1], 0")
    KL = [I("s_load_dwordx16 s[64:79], s[0:1], 0"), I("s_load_dwordx8 s[80:87], s[0:1], 64"), I("s_load_dwordx2 s[88:89], s[0:1], 96")]
    if OPT.get('rel'): L += KL; KL = []
    A("s_cmp_ge_u32 s2, 256"); A("s_cbranch_scc1 L_END")
    A("s_getpc_b64 s[90:91]"); A("L_PC1:")
    c0 = OPT.get('c0', '4')
    if c0 != '0':
        A(f"v_lshlrev_b32 v58, {c0}, v0")
        A("global_load_dword v60, v58, s[90:91]", tag='pf')
    CE = [I(x) for x in ("s_lshl_b32 s93, s94, 11", "v_lshlrev_b32 v57, 3, v0", "v_add_u32 v57, s93, v57", "v_min_u32 v57, L_END-L_PC1, v57")]
    CE.append(I("global_load_dword v60, v57, s[90:91]", tag='pf'))
    A(f"s_lshr_b32 s94, s2, 3")
    if OPT.get('ms', 'a') == 'b': L += CE; CE = []
    A(f"s_and_b32 s{S_R}, s2, {GG-1}"); A(f"s_lshl_b32 s{S_R}, s{S_R}, {5 - LG}"); A(f"s_lshr_b32 s95, s94, {LG}"); A(f"s_add_u32 s{S_R}, s{S_R}, s95")
    A(f"s_lshl_b32 s{S_CL}, s{S_R}, 16")
    A(f"v_lshrrev_b32 v{t0}, 2, v0"); A(f"v_lshlrev_b32 v{t0}, 10, v{t0}")
    A(f"v_and_b32 v{t1}, 3, v0"); A(f"v_lshl_add_u32 v{t0}, v{t1}, 4, v{t0}")
    A(f"s_mov_b32 s{SRD_X+2}, {hx(2048*512*2)}"); A(f"s_mov_b32 s{SRD_X+3}, 0x20000")
    XL = [I(f"buffer_load_dwordx4 {vr(64+4*ks)}, v{t0}, {sr(SRD_X)}, s{S_CL} offen offset:{ks*64}", tag=f'x{ks}') for ks in range(16)]
    xe = int(OPT.get('xe', 8)); x0 = int(OPT.get('x0n', 2))
    A("s_waitcnt lgkmcnt(0)")
    L += dstamp('k') + XL[:x0] + dstamp('a')
    L += KL
    A(f"v_lshrrev_b32 v{t1}, 6, v0")
    A(f"v_and_b32 v{ln}, 63, v0")
    A(f"v_readfirstlane_b32 s{S_W}, v{t1}")
    SL = []
    if not OPT.get('nowalk'):
        slot = [7, 9, 11, 7, 0, 3, 6, 8, 1, 2, 4, 10, 12, 12, 12, 12]; lim = [0, 0, 0, 0, 7, 15, 6, 6, 15, 15, 15, 7, 0, 0, 0, 0]
        pk = lambda t: sum(v << (4*k) for k, v in enumerate(t))
        A("s_and_b32 s49, s94, 3"); A(f"s_lshl_b32 s50, s{S_W}, 2"); A("s_add_u32 s49, s49, s50"); A("s_lshl_b32 s49, s49, 2")
        A(f"s_mov_b32 s44, {hx(pk(slot) & 0xffffffff)}"); A(f"s_mov_b32 s45, {hx(pk(slot) >> 32)}"); A("s_lshr_b64 s[44:45], s[44:45], s49")
        A("s_and_b32 s44, s44, 15")
        if OPT.get('rel'): A("s_lshl_b32 m0, s44, 1"); A("s_nop 0"); A("s_movrels_b64 s[46:47], s[64:65]")
        else: A("s_lshl_b32 s44, s44, 3"); A("s_load_dwordx2 s[46:47], s[0:1], s44")
        A(f"s_mov_b32 s40, {hx(pk(lim) & 0xffffffff)}"); A(f"s_mov_b32 s41, {hx(pk(lim) >> 32)}"); A("s_lshr_b64 s[40:41], s[40:41], s49"); A("s_and_b32 s40, s40, 15")
        A("s_lshr_b32 s41, s94, 2"); A("s_lshl_b32 s41, s41, 1"); A("s_min_u32 s40, s40, s41"); A("s_lshl_b32 s40, s40, 18")
        A("s_lshl_b32 s41, s94, 20")
        if WSO: A(f"s_add_u32 s41, s41, {hx(WSO)}")
        A(f"s_cmp_eq_u32 s{S_W}, 3"); A("s_cselect_b32 s40, s41, s40")
        SL = [I("s_load_dword s98, s[46:47], s40")]
    if not OPT.get('rel'): A("s_waitcnt lgkmcnt(0)")
    sl = str(OPT.get('sll', '0'))
    if sl == '0': L += dstamp('w') + SL + CE + XL[x0:xe] + dstamp('b')
    if sl == '1': L += dstamp('w') + SL + XL[x0:xe] + CE + dstamp('b')
    if sl == '2': L += dstamp('w') + XL[x0:xe] + SL + CE + dstamp('b')
    if sl == '3': L += dstamp('w') + CE + XL[x0:xe] + SL + dstamp('b')
    A(f"s_and_b32 s{S_G}, s2, {7 & ~(GG-1)}"); A(f"s_and_b32 s93, s94, {GG-1}"); A(f"s_or_b32 s{S_G}, s{S_G}, s93")
    A(f"s_lshl_b32 s94, s95, 2"); A(f"s_add_u32 s94, s94, s{S_W}")
    A(f"s_lshl_b32 s{S_RING}, s{S_W}, 14")
    SQ = []
    if OPT.get('sw2'):
        A(f"s_mul_i32 s92, s94, {1792*GG}"); A(f"s_mul_i32 s93, s{S_G}, {224*1024}"); A("s_add_u32 s92, s92, s93")
        A("s_add_u32 s90, s80, s92"); A("s_addc_u32 s91, s81, 0")
        SQ = [I(f"s_load_dwordx2 s[100:101], s[90:91], {hx(128*k + 60)}") for k in range(14*GG)]
        for x in SQ: x.wr = set()
        n0 = int(OPT.get('sq0', 5)); L += SQ[:n0]; SQ = SQ[n0:]
    A(f"v_and_b32 v{n16}, 15, v{ln}")
    A(f"v_lshrrev_b32 v{g4}, 4, v{ln}")
    A(f"v_lshlrev_b32 v{V_L16}, 4, v{ln}")
    srd(L, SRD_W1, 76, 512*1792*2)
    if not OPT.get('nopf'):
        XL += touch(L, SRD_W1, 59, S_NEED, ln, 4, 3584, 512, [f"s_mul_i32 s93, s{S_G}, 448", "s_and_b32 s93, s93, 0xffffff80"])
    srd(L, SRD_WQ, 70, 512*4096*2); srd(L, SRD_B1, 78, 1792*2)
    A(f"v_and_b32 v{t1}, 7, v{ln}"); A(f"v_lshlrev_b32 v{t2}, 1, v{g4}"); A(f"v_xor_b32 v{t1}, v{t1}, v{t2}")
    A(f"v_lshlrev_b32 v{t1}, 4, v{t1}")
    A(f"v_lshrrev_b32 v{t2}, 5, v{ln}"); A(f"v_bfe_u32 v{t3}, v{ln}, 3, 2"); A(f"v_lshl_add_u32 v{t2}, v{t2}, 3, v{t3}")
    A(f"s_mul_i32 s92, s{S_G}, 448"); A("s_and_b32 s92, s92, 0xffffff80"); A(f"s_lshl_b32 s93, s{S_W}, 7"); A("s_add_u32 s92, s92, s93")
    A(f"v_mul_u32_u24 v{V_W1}, 3584, v{t2}"); A(f"v_add3_u32 v{V_W1}, v{V_W1}, v{t1}, s92")
    if not OPT.get('nozero'):
        A(f"s_mul_i32 s93, s{S_G}, 448"); A("s_sub_u32 s93, s92, s93")
        A(f"v_add_u32 v{t3}, s93, v{t1}"); A(f"v_cmp_lt_u32 vcc, 447, v{t3}"); A(f"v_mov_b32 v{t3}, 0x10000000"); A("s_nop 0")
        A(f"v_cndmask_b32 v{V_W1}, v{V_W1}, v{t3}, vcc")
    vb1 = 57
    A(f"v_lshlrev_b32 v{vb1}, 3, v{g4}"); A("s_mov_b32 s95, s92")
    b1l = [I(f"buffer_load_dwordx2 {vr(40+2*ct,2)}, v{vb1}, {sr(SRD_B1)}, s95 offen offset:{32*ct}", tag='b1') for ct in range(4)]
    A(f"s_lshl_b32 s93, s{S_G}, 19")
    A("s_add_u32 s66, s66, s93"); A("s_addc_u32 s67, s67, 0")
    A("s_add_u32 s68, s68, s93"); A("s_addc_u32 s69, s69, 0")
    srd(L, SRD_K, 66, 524288); srd(L, SRD_V, 68, 524288); srd(L, SRD_WO, 72, 4096*512*2)
    srd(L, SRD_W2, 80, 1792*512*2); srd(L, SRD_B2, 82, 1024); srd(L, SRD_OUT, 84, 2048*512*2)
    srd(L, SRD_DBG, 86, 256); srd(L, SRD_WS, 88, 1 << 28); srd(L, SRD_WS2, 88, 1 << 28)
    A(f"s_mul_i32 s{S_PF}, s94, {4096*GG}"); A(f"v_and_b32 v{V_PFO}, {8*GG - 1}, v{ln}"); A(f"v_lshlrev_b32 v{V_PFO}, 7, v{V_PFO}")
    A(f"s_lshl_b32 s93, s{S_G}, 19"); A(f"s_add_u32 s{S_PF}, s{S_PF}, s93")
    twq, twq1, tw2, tkv, tcode = [], [], [], [], []
    if not OPT.get('nopf'):
        if OPT.get('q1', 'late') == 'late':
            twq = touch(L, SRD_WQ, 58, 77, ln, 8, 8192, 512, [f"s_lshl_b32 s93, s{S_G}, 10"], step=256)
            assert len(twq) == 1
            twq1 = [I(twq[0].text + " offset:128", tag='pf')]
        else:
            assert OPT.get('cearly')
            twq = touch(L, SRD_WQ, 58, 77, ln, 8, 8192, 512, [f"s_lshl_b32 s93, s{S_G}, 10"])
        tw2 = touch(L, SRD_W2, 14, 78, ln, 8, 1024, 224, [f"s_mul_i32 s93, s{S_G}, {224*1024}"])
        tk = touch(L, SRD_K, 55, 79, ln, 2, 256, int(OPT.get('kvrows', 384)), [])
        tkv = tk + [I(x.text.replace(sr(SRD_K), sr(SRD_V)), tag='pf') for x in tk if x.kind == 'vld'][-1:]
        if not OPT.get('nocodepf') and not OPT.get('cearly'):
            A("s_getpc_b64 s[90:91]"); A("L_PC2:")
            A(f"s_lshr_b32 s93, s2, 3"); A(f"s_lshl_b32 s93, s93, 2"); A(f"s_add_u32 s93, s93, s{S_W}")
            A(f"s_lshl_b32 s93, s93, 9"); A(f"v_lshlrev_b32 v58, 3, v{ln}"); A("v_add_u32 v58, s93, v58")
            A("v_min_u32 v58, CODE_LEFT, v58")
            tcode = [I("global_load_dword v60, v58, s[90:91]" + NT('c'), tag='pf')]
    A(f"s_lshl_b32 s92, s{S_G}, 10"); A(f"s_lshl_b32 s93, s{S_W}, 8"); A("s_add_u32 s92, s92, s93")
    A(f"v_lshlrev_b32 v{V_WQ}, 13, v{t2}"); A(f"v_add3_u32 v{V_WQ}, v{V_WQ}, v{t1}, s92")
    A(f"s_mul_i32 s92, s{S_G}, {224*1024}"); A(f"s_lshl_b32 s93, s{S_W}, 7"); A("s_add_u32 s92, s92, s93")
    A(f"v_lshrrev_b32 v{t2}, 3, v{ln}"); A(f"v_lshlrev_b32 v{V_WOB}, 10, v{t2}"); A(f"v_add3_u32 v{V_W2}, v{V_WOB}, v{t1}, s92")
    A(f"s_lshl_b32 s92, s{S_G}, 19"); A(f"s_lshl_b32 s93, s{S_W}, 17"); A("s_add_u32 s92, s92, s93"); A(f"v_add3_u32 v{V_WOB}, v{V_WOB}, v{t1}, s92")
    A(f"v_lshrrev_b32 v{t1}, 2, v{ln}")
    A(f"v_lshlrev_b32 v{t1}, 7, v{t1}")
    A(f"v_and_b32 v{t2}, 3, v{ln}"); A(f"v_lshl_add_u32 v{t1}, v{t2}, 3, v{t1}")
    A(f"v_add_u32 v{t1}, s{S_RING}, v{t1}")
    A(f"v_bfe_u32 v{t2}, v{ln}, 3, 2")
    for ct in range(4):
        A(f"v_xor_b32 v{t3}, {ct}, v{t2}")
        A(f"v_lshl_add_u32 v{V_WA+ct}, v{t3}, 5, v{t1}")
        A(f"v_add_u32 v{V_WA+4+ct}, 0x10000, v{V_WA+ct}")
    A(f"v_and_b32 v{t1}, 7, v{ln}"); A(f"v_lshlrev_b32 v{t1}, 1, v{t1}"); A(f"v_xor_b32 v{t1}, v{t1}, v{g4}")
    A(f"v_lshlrev_b32 v{t2}, 8, v{n16}"); A(f"v_add_u32 v{t2}, {hx(LDS_X)}, v{t2}")
    for kk in range(4):
        A(f"v_xor_b32 v{t3}, {4*kk}, v{t1}")
        A(f"v_lshl_add_u32 v{V_KA+kk}, v{t3}, 4, v{t2}")
    A(f"v_lshlrev_b32 v{t1}, 1, v{g4}"); A(f"v_xor_b32 v{t1}, v{t1}, v{n16}"); A(f"v_lshlrev_b32 v{t2}, 8, v{g4}")
    A(f"v_lshl_add_u32 v{V_DV}, v{t1}, 4, v{t2}")
    A(f"v_xor_b32 v{V_DV+1}, 0x80, v{V_DV}")
    A(f"v_add_u32 v{V_XA+1}, {hx(LDS_X)}, v{V_DV}"); A(f"v_add_u32 v{V_XA}, {hx(65536 + 8192)}, v{V_DV}")
    A(f"v_and_b32 v{t1}, 3, v{ln}"); A(f"v_lshrrev_b32 v{t2}, 2, v{ln}"); A(f"v_lshlrev_b32 v{t3}, 1, v{t1}"); A(f"v_xor_b32 v{t2}, v{t2}, v{t3}")
    A(f"v_lshlrev_b32 v{t1}, 8, v{t1}"); A(f"v_lshl_add_u32 v{t1}, v{t2}, 4, v{t1}")
    A(f"s_lshl_b32 s92, s{S_W}, 13"); A(f"s_add_u32 s92, s92, {hx(LDS_X)}")
    A(f"s_add_u32 s93, s{S_RING}, {hx(65536 + 8192)}")
    A(f"s_and_b32 s85, s{S_G}, {1 if (GG > 1 and not OPT.get('norot')) else 0}")
    A("s_cselect_b32 s85, s92, s93"); A("s_cselect_b32 s86, s93, s92")
    A(f"v_add_u32 v{t2}, s85, v{t1}"); A(f"v_add_u32 v56, s86, v{t1}")
    A(f"v_and_b32 v52, 1, v{ln}"); A(f"v_bfe_u32 v{t1}, v{ln}, 1, 1"); A(f"v_sub_u32 v52, v52, v{t1}"); A("v_lshlrev_b32 v52, 3, v52")
    A(f"s_mov_b32 s{S_QS}, {hx(f2u(128**-0.5 * math.log2(math.e)))}")
    ga = -2*0.7978845608028654*math.log2(math.e)
    A(f"s_mov_b32 s{S_GB}, {hx(f2u(ga*0.044715/CF**3))}")
    A(f"v_mov_b32 v{V_GA}, {hx(f2u(ga/CF))}")
    A(f"s_lshr_b32 s92, s{S_R}, {LB}"); A(f"s_lshl_b32 s92, s92, {PS + 4}")
    if WSO: A(f"s_add_u32 s92, s92, {hx(WSO)}")
    A(f"s_add_u32 s{S_LIM}, s92, {hx(14*PL)}")
    A(f"s_and_b32 s93, s{S_R}, {RB - 1}")
    A(f"s_lshl_b32 s{S_RB}, s93, {15 if LAY[0] == '1' else 12}"); A(f"s_add_u32 s{S_RB}, s{S_RB}, s92")
    A(f"s_lshl_b32 s{S_RBY}, s93, {15 if LAY[1] == '1' else 12}"); A(f"s_add_u32 s{S_RBY}, s{S_RBY}, s92"); A(f"s_add_u32 s{S_RBY}, s{S_RBY}, {hx(WS_Y)}")
    A(f"s_lshl_b32 s92, s{S_W}, {13 if LAY[1] == '1' else 10}"); A(f"s_lshl_b32 s93, s{S_G}, {GS_Y}"); A("s_add_u32 s92, s92, s93"); A(f"s_add_u32 s{S_YO}, s92, s{S_RBY}")
    A(f"s_lshl_b32 s92, s{S_W}, 10"); A(f"s_lshl_b32 s93, s{S_G}, {GS_S}"); A("s_add_u32 s92, s92, s93"); A(f"s_add_u32 s{S_CB}, s92, s{S_RB}")
    if OPT.get('perm'): A("s_mov_b32 s75, 0x07060302")
    A(f"s_mov_b32 s{S_PASS}, 0")
    A(f"s_lshl_b32 s{S_KO}, s{S_W}, 13"); A(f"s_add_u32 s{S_KO+1}, s{S_KO}, 4096")
    A(f"s_mov_b32 s{S_VO}, s{S_KO}"); A(f"s_mov_b32 s{S_VO+1}, s{S_KO+1}")
    HOP = []
    if OPT.get('hop'):
        HOP = [I("s_mov_b64 exec, 0")]
        for w in range(3): HOP += [I(f"s_cmp_eq_u32 s{S_W}, {w}"), I(f"s_cbranch_scc1 L_PAD{w}")]
        HOP += [I("s_branch L_PAD3"), I("L_PADX:"), I("s_mov_b64 exec, -1")]
    if SQ: n1_ = int(OPT.get('sq1', 3)); L += SQ[:n1_]; SQ = SQ[n1_:]; tw2 = []
    sd = int(OPT.get('sd', 0)); DEF = []
    if sd: DEF = L[-sd:]; del L[-sd:]
    L += (stamp(1) if not OPT.get('ds') else dstamp('c')) if not OPT.get('nost1') else []
    F = 128
    sa, qa = 16, 24
    if OPT.get('kvp', '1') == '1': LATE['kv'] = tkv; tkv = []
    if OPT.get('s2'): LATE['q1'] = twq1; LATE['w2'] = tw2 + tkv; tw2 = []; tkv = []
    D = [stage_dma(s) for s in range(3)]
    NE = int(OPT.get('ne', 2))
    vq = XL[xe:] + tcode + b1l + sum(D[:NE], [])
    def pop_vm(n):
        out = []
        while vq and n > 0:
            x = vq.pop(0); out.append(x)
            if x.kind in ('dma', 'vld'): n -= 1
        return with_m0_pad(out)
    for ks in range(16):
        L.append(W(vm=[f'x{ks}']))
        L += dstamp(f'x{ks}')
        if OPT.get('fine') and ks == 15: L += stamp(5)
        L += pop_vm(int(OPT.get('pv', 1)) + (int(OPT.get('pvx', 0)) if ks == 0 else 0))
        if str(ks) == OPT.get('hopat', 'w'): L += HOP
        for i in range(4*ks, 4*ks + 4):
            A(f"v_lshlrev_b32 v{F+2*i}, 16, v{64+i}")
            A(f"v_and_b32 v{F+2*i+1}, 0xffff0000, v{64+i}")
        for i in range(4*ks, 4*ks + 4):
            k = i & 3
            x = vr(F+2*i, 2)
            if i < 4:
                A(f"v_pk_mul_f32 {vr(qa+2*k,2)}, {x}, {x}")
            else:
                src = vr(F+2*k, 2) if i < 8 else vr(sa+2*k, 2)
                A(f"v_pk_add_f32 {vr(sa+2*k,2)}, {src}, {x}")
                A(f"v_pk_fma_f32 {vr(qa+2*k,2)}, {x}, {x}, {vr(qa+2*k,2)}")
        if SQ: L.append(SQ.pop(0))
        nst = int(OPT.get('sdn', 5))
        if ks < nst: L += DEF[len(DEF)*ks//nst:len(DEF)*(ks+1)//nst]
    if SL and not OPT.get('sw2'): A("s_waitcnt lgkmcnt(0)")
    if OPT.get('ds'): A("v_writelane_b32 v63, s96, 12"); A("v_writelane_b32 v63, s100, 13")
    if not OPT.get('sw2'): L += stamp(2)
    M = []; A = lambda t, **k: M.append(I(t, **k))
    for b in (sa, qa):
        A(f"v_pk_add_f32 {vr(b,2)}, {vr(b,2)}, {vr(b+2,2)}"); A(f"v_pk_add_f32 {vr(b+4,2)}, {vr(b+4,2)}, {vr(b+6,2)}")
    for b in (sa, qa): A(f"v_pk_add_f32 {vr(b,2)}, {vr(b,2)}, {vr(b+4,2)}")
    for b in (sa, qa): A(f"v_add_f32 v{b}, v{b}, v{b+1}")
    for qp in ("[1,0,3,2]", "[2,3,0,1]"):
        A("s_nop 1")
        for b in (sa, qa): A(f"v_add_f32_dpp v{b}, v{b}, v{b} quad_perm:{qp} row_mask:0xf bank_mask:0xf")
    A(f"v_mul_f32 v{sa}, {hx(f2u(1/512))}, v{sa}")
    A(f"v_mul_f32 v{qa}, {hx(f2u(1/512))}, v{qa}")
    A(f"v_fma_f32 v{qa}, -v{sa}, v{sa}, v{qa}")
    A(f"v_max_f32 v{qa}, 0, v{qa}")
    A(f"v_cvt_pk_bf16_f32 v{sa+1}, v{sa}, v{qa}")
    A(f"v_lshlrev_b32 v{sa}, 16, v{sa+1}")
    A(f"v_and_b32 v{qa}, 0xffff0000, v{sa+1}")
    A(f"v_add_f32 v{qa}, {hx(f2u(1e-5))}, v{qa}")
    A(f"v_cvt_pk_bf16_f32 v{qa}, v{qa}, v{qa}"); A(f"v_and_b32 v{qa}, 0xffff0000, v{qa}")
    A(f"v_sqrt_f32 v{qa}, v{qa}"); A("s_nop 0")
    A(f"v_cvt_pk_bf16_f32 v{qa}, v{qa}, v{qa}"); A(f"v_and_b32 v{qa}, 0xffff0000, v{qa}")
    A(f"v_rcp_f32 v{qa}, v{qa}"); A("s_nop 0")
    if OPT.get('fold'): A(f"v_mul_f32 v{qa}, s{S_QS}, v{qa}")
    A(f"v_mul_f32 v{sa}, v{sa}, v{qa}")
    A(f"v_sub_f32 v{sa}, 0, v{sa}")
    A(f"v_mov_b32 v{qa+1}, v{qa}"); A(f"v_mov_b32 v{sa+1}, v{sa}")
    def norm(ks):
        for i in range(4*ks, 4*ks+4):
            A(f"v_pk_fma_f32 {vr(F+2*i,2)}, {vr(F+2*i,2)}, {vr(qa,2)}, {vr(sa,2)}")
        for i in range(4*ks, 4*ks+4):
            A(f"v_cvt_pk_bf16_f32 v{64+i}, v{F+2*i}, v{F+2*i+1}")
    for ks in range(16): norm(ks)
    if SQ: M = interleave(M, SQ, 0, len(M) // 2)
    L += with_m0_pad(interleave(M, vq)) + twq + tw2 + tkv
    if OPT.get('ds'): L += stamp(1)
    if OPT.get('hopat', 'w') == 'w': L += HOP
    if OPT.get('ds'): L += stamp(14)
    if OPT.get('sw2'): L += [I("s_waitcnt lgkmcnt(0)")] + stamp(2)
    M = []; A = lambda t, **k: M.append(I(t, **k))
    wr = [I(f"ds_write_b128 v{t2 if ks < 8 else 56}, {vr(64+4*ks)} offset:{(ks&7)*1024}", tag='xw' if ks < 8 else 'xw2', res_w=[('slot3' if ks < 8 else 'hx', True)] if OPT.get('norot') else [('slot3', True), ('hx', True)]) for ks in range(16)]
    nw = int(OPT.get('nw', 8))
    LATE['xw'] = wr[nw:]
    bias = [W(vm=['b1'])]
    for ct in range(4):
        for h in range(2):
            bias += [I(f"v_lshlrev_b32 v{V_B1+4*ct+2*h}, 16, v{40+2*ct+h}"), I(f"v_and_b32 v{V_B1+4*ct+2*h+1}, 0xffff0000, v{40+2*ct+h}")]
    if OPT.get('fold'): bias += [I(f"v_mul_f32 v{V_B1+k}, s{S_QS}, v{V_B1+k}") for k in range(16)]
    L += wr[:6] + interleave(wr[6:nw], bias)
    L += [W(vm=['st0'])] + af_reads(0, 0)
    L += [W(lgkm=['xw', 'xw2'][:1 if nw == 8 else 2]), I("s_barrier")]
    L += [xn_read(ks, qb) for qb in range(4) for ks in range(2)]
    L += stamp(3)
    return L

def xn_read(ks, qb):
    if ks < 8: return I(f"ds_read_b128 {ar(XN(ks,qb))}, v{V_XA} offset:{qb*16384 + ks*1024}", tag=f'xr{ks>>1}', res_r=[('slot3', True)])
    return I(f"ds_read_b128 {ar(XN(ks,qb))}, v{V_XA+1} offset:{qb*8192 + (ks&7)*1024}", tag=f'xr{ks>>1}', res_r=[('hx', True)])

A_AF2, A_KF0 = 32, 64
def AF(s, k, n=4): return ar(A_AF2 + k, n) if s >= 24 else vr(V_AF + k, n)
def HF(u, qb): return 144 + 16*u + 4*qb
def af_reads(s, p):
    st = STAGES[s]; L = []
    for c in range(2):
        for j in range(st['nks']):
            for e in range(2):
                L.append(I(f"ds_read_b64_tr_b16 {AF(s, 16*p + 8*c + 4*j + 2*e, 2)}, v{V_WA + 4*(s&1) + 2*p + c} offset:{slot_off(s) + j*4096 + e*2048}",
                           tag=f"af{s}_{p}", res_r=[(f"slot{s&3}", False)]))
    return L

def kv_dma(which, half, buf, tag):
    base = (0 if which == 'K' else LDS_V) + buf*8192 + half*4096
    so = (S_KO if which == 'K' else S_VO) + half
    L = [I(f"s_add_u32 m0, s{S_RING}, {hx(base)}")]
    for i in range(4):
        off = f" offset:{i*1024}" if i else ""
        L.append(I(f"buffer_load_dwordx4 v{V_DV + (i&1)}, {sr(SRD_K if which == 'K' else SRD_V)}, s{so} offen{off}{NT('k')} lds",
                   tag=tag, res_w=[(f"{which}{buf}", True)]))
    return L

def even(G, items, lo, hi):
    nd = sum(1 for x in items if x.kind in ('dma', 'vld', 'vst'))
    k = 0; its = []
    for x in items:
        e = lo + (k * (hi - lo + 1)) // max(nd, 1)
        if x.kind in ('dma', 'vld', 'vst'): k += 1
        else: e = max(lo, e - 3)
        its.append((x, min(e, hi)))
    return G.stream(its, lo, hi)

def k0_reads(kt):
    return [I(f"ds_read_b128 {ar(A_KF0 + 16*(kt&1) + 4*kk)}, v{V_KA+kk} offset:{kt*4096}", tag='fr', res_r=[('hx', True)]) for kk in range(4)]

def y_pack(acc, ct):
    a = acc + 16*ct
    return [I(f"v_cvt_pk_bf16_f32 v{a+8+k}, v{a+2*k}, v{a+2*k+1}") for k in range(7, -1, -1)]
def y_stores(hc):
    acc = V_ACCB if hc else V_ACCA
    return [(I(f"s_add_u32 s{S_YO + 1 + (ct&1)}, s{S_YO}, {hx(((hc*4 + ct)*2 + half) * PL)}"),
             I(f"buffer_store_dwordx4 {vr(acc + 16*ct + 8 + 4*half)}, v{V_L16}, {sr(SRD_WS2)}, s{S_YO + 1 + (ct&1)} offen sc1", tag='yst'))
            for half in range(2) for ct in range(4)]

def phase1():
    m = []; per = {}; done = {}; blk = []
    FM = (26, 0)
    for s, st in enumerate(STAGES):
        for p in range(2):
            lo = len(m)
            for c in range(2):
                ct = 2*p + c
                for qb in range(4):
                    if s >= 28 and qb % 2 == 0:
                        n = len(blk); kt, q2 = n >> 2, n & 3
                        blk.append(len(m))
                        d = vr(V_S + 4*(n % 2))
                        for kk in range(4): m.append(mf(d, ar(A_KF0 + 16*(kt&1) + 4*kk), vr(V_Q + 16*q2 + 4*kk), d if kk else vr(V_NEGM + 4*q2)))
                    d = vr(st['acc'] + 16*ct + 4*qb)
                    js = list(range(st['nks']))
                    if qb & 1 and not OPT.get('nosnake'): js.reverse()
                    for j in js:
                        cc = d
                        if st['first'] and j == js[0]: cc = vr(V_B1 + 4*ct) if st['m'] == 'w1' else "0"
                        b = HF(st['ks0'] + j, qb) if st['m'] == 'w2' else XN(st['ks0'] + j, qb)
                        ab = (AF(s, 16*p + 8*c + 4*j), ar(b))
                        if st['m'] in str(OPT.get('swap1', '')): ab = ab[::-1]
                        m.append(mf(d, ab[0], ab[1], cc))
                    done[(s, ct, qb)] = len(m) - 1
            if (s, p) == FM:
                fm0 = len(m)
                for qb in range(4):
                    d = vr(V_NEGM + 4*qb)
                    for kk in range(4): m.append(mf(d, ar(A_KF0 + 4*kk), vr(V_Q + 16*qb + 4*kk), d if kk else "0"))
            per[(s, p)] = (lo, len(m) - 1)
    G = Gaps(m)
    NS = len(STAGES)
    G.head += [W(lgkm=['xr0'])]
    for n in range(1, 32):
        b = blk[n]
        ex, cv = softmax_items(n - 1, 0)
        if n < 24:
            for r in range(4): G.pin(b + 2*r, ex[r])
            G.pin(b + 3, cv[0]); G.pin(b + 7, cv[1])
        else:
            for r in range(4): G.pin(b + 1 + r, ex[r])
            G.pin(b + 5, cv[0]); G.pin(b + 5, cv[1])
    Bh, Bk = per[(23, 1)][1], per[(25, 1)][1]
    for s in range(NS):
        for p in range(2):
            ns, npp = (s, 1) if p == 0 else (s + 1, 0)
            lo, hi = per[(s, p)]
            lg = [f"af{ns}_{npp}"] if ns < NS else []
            if npp == 0 and ns < 8: lg.append(f"xr{ns}")
            if (ns, npp) == (24, 0): lg.append('hr')
            vm = [f"st{s+1}"] if (p == 0 and s + 1 < NS) else []
            rd = af_reads(ns, npp) if ns < NS else []
            if s >= 28:
                kt = 2*(s - 28) + p
                rd = (k0_reads(kt + 1) if kt < 7 else k_reads(0, 1) + v_reads(0, 0)) + rd
                lg.append('fr')
                if kt == 6: vm.append('kv')
            if hi == Bk: vm.append('k0')
            G.pin(hi, W(vm=vm or None, lgkm=lg))
            if hi in (Bh, Bk) or (s, p) == (31, 0): G.pin(hi, I("s_barrier"))
            h = None
            if s >= 28: G.stream(rd, lo, hi - 6)
            else:
                for k, x in enumerate(rd): h = G.place(x, lo + (k // 2) * 2 + 1 if (len(rd) == 8 and s != int(OPT.get('hs', 21))) else lo, hi - 1, after=h)
    G.stream(k0_reads(0), Bk + 1, fm0 - 6)
    G.pin(fm0 - 1, W(lgkm=['fr']))
    xr = [xn_read(ks, qb) for ks in range(2, 8) for qb in range(4)]
    b1 = per[(int(OPT.get('b1s', 1)), 0)][1] if LATE['xw'] else per[(0, 1)][1]
    for k, x in enumerate(LATE['xw']): G.pin(2*k, x)
    for k, x in enumerate(xr): G.pin(2*len(LATE['xw']) + k, x)
    G.pin(b1, W(lgkm=['xr3'] + (['xw2'] if LATE['xw'] else []))); G.pin(b1, I("s_barrier"))
    G.stream([xn_read(ks, qb) for ks in range(8, 16) for qb in range(4)], b1 + 1, per[(3, 1)][1] - 8, spread=True)
    G.pin(per[(int(OPT.get("b3s", 6)), 1)][1], I("s_barrier"))
    hs = int(OPT.get('hs', 21))
    hwpos = [per[(hs, p)][0] + k for p in range(2) for k in (5, 8, 11, 14)]
    hbar = per[(hs + 1, 0)][0] + 5
    pause = (hwpos[0] - int(OPT.get('pz', 16)), hwpos[-1] + 2) if OPT.get('pz') != '0' else (0, -1)
    slow = int(OPT.get('pzs', 7))
    jobs = []
    for t in range(int(OPT.get('ne', 2)), NS):
        s = t - 4
        rel = per[(s, 1)][0] if s >= 0 else (b1 + 1 if t == 3 else 0)
        d = stage_dma(t)
        if t == 3:
            for x in d:
                if x.res_w: x.res_w = [('slot3', True)]
        jobs.append((rel, d, per[(t - 1, 0)][1]))
        if t == 27:
            d = [I(f"s_lshl_b32 s{S_T+1}, s{S_W}, 13")] + kv_dma('K', 0, 0, 'k0') + kv_dma('K', 1, 0, 'k0')
            k = 0
            for n_, x in enumerate(d):
                if x.res_w: x.res_w = [('hx', True)]
                if 'm0' in x.wr: d[n_] = I(f"s_add_u32 m0, s{S_T+1}, {hx(LDS_X + 4096*k)}"); k += 1
            jobs.append((Bh + 1, d + [I("s_nop 0"), I(f"s_add_u32 s{S_KO}, s{S_KO}, 0x8000"), I(f"s_add_u32 s{S_KO+1}, s{S_KO+1}, 0x8000")], Bk))
    for which, buf, s in (('K', 1, 28), ('V', 0, 29)):
        d = kv_dma(which, 0, buf, 'kv') + kv_dma(which, 1, buf, 'kv')
        for x in d:
            if x.res_w: x.res_w = x.res_w + [(f'slot{s&3}', False)]
        so = S_KO if which == 'K' else S_VO
        jobs.append((per[(s, 1)][0], d + [I("s_nop 0"), I(f"s_add_u32 s{so}, s{so}, 0x8000"), I(f"s_add_u32 s{so+1}, s{so+1}, 0x8000")], per[(31, 0)][1]))
    kz = [n for n, jb in enumerate(jobs) if any(x.tag == 'k0' for x in jb[1])][0]
    if OPT.get('k0first', '1') == '1': jobs[kz], jobs[kz - 1] = jobs[kz - 1], jobs[kz]
    if OPT.get('swap34', '1') == '1':
        k3 = [n for n, jb in enumerate(jobs) if any(x.tag == 'st3' for x in jb[1])][0]
        jobs[k3], jobs[k3 + 1] = jobs[k3 + 1], jobs[k3]
    c1, c2, c3 = float(OPT.get('catch1', 3.5)), float(OPT.get('catch', 3.5)), float(OPT.get('catch3', 3))
    margin = int(OPT.get('margin', 28)); mins = float(OPT.get('mins', 2))
    T = []; t = -99.0
    for rel, d, dl in jobs:
        k = 0
        for x in d:
            if x.kind != 'dma': continue
            step = c1 if t < per[(8, 0)][0] else (c2 if t < pause[0] else c3)
            if pause[0] <= t + step <= pause[1]: step = min(slow, pause[1] + 1 - t)
            t = max(rel + (4*k if rel else 0), t + step)
            if rel >= per[(int(OPT.get('alap0', 22)), 0)][0] and x.tag not in ('st31', 'kv', 'st30'):
                nd = sum(y.kind == 'dma' for y in d)
                t = max(t, dl - int(OPT.get('alap', 40)) - 4*(nd - 1 - k))
            k += 1
            T.append([t, rel, dl - margin])
    for n in range(len(T) - 1, -1, -1):
        lim = T[n][2] if n == len(T) - 1 else min(T[n][2], T[n + 1][0] - mins)
        T[n][0] = max(T[n][1], min(T[n][0], lim))
    for n in range(1, len(T)): T[n][0] = max(T[n][0], T[n - 1][0] + mins)
    h = None; n = 0; LAG = []
    for rel, d, dl in jobs:
        for x in d:
            if x.kind == 'dma':
                pos = max(int(T[n][0]), h[0] if h else 0); n += 1
                while pos in hwpos or pos - 1 in hwpos or any(y.kind in ('dma', 'dsw') for y in G.seq(pos)): pos += 1
                h = G.place(x, pos, pos + (1 if pos < blk[0] else 8), after=h); last = h[0]
            else:
                lo_ = max(rel - 3, h[0] if h else 0, 0)
                h = G.place(x, lo_, max(lo_, int(T[n][0]) - 1 if n < len(T) else lo_ + 3), after=h)
        LAG.append(dl - last)
    print('; dma slack', LAG, file=sys.stderr)
    G.place(kv_dma('K', 0, 0, 'kv')[0], h[0] + 1, len(G) - 1, after=h)
    def by_parity(items, par, g):
        for n_, x in enumerate(items):
            sreg = re.search(r'\], (s\d+) offen', x.text).group(1)
            while G.g[g][0] or G.g[g + 1][0] or G.seq(g + 2) or any(y.kind == 'dma' for y in G.seq(g) + G.seq(g + 1)): g += 1
            G.pin(g, I(f"s_cmp_eq_u32 s95, {par}")); G.pin(g + 1, I(f"s_cselect_b32 s{92 + (n_ & 1)}, {sreg}, 0x10000000"))
            G.pin(g + 2, I(x.text.replace(sreg + " offen", f"s{92 + (n_ & 1)} offen"), tag='pf')); g += 3
    G.head = [I("s_and_b32 s95, s2, 1")] + G.head
    FIRST = int(OPT.get('first', 0))
    if LATE.get('q1'): G.stream(LATE['q1'], per[(int(OPT.get('s1', 6)), 0)][0], per[(int(OPT.get('s1', 6)), 1)][1])
    if LATE.get('w2'):
        if OPT.get('s2b'): by_parity(LATE['w2'], FIRST, per[(int(OPT['s2']), 0)][0]); by_parity(LATE['w2'], FIRST ^ 1, per[(int(OPT['s2b']), 0)][0])
        else: G.stream(LATE['w2'], per[(int(OPT['s2']), 0)][0], per[(int(OPT['s2']), 1)][1])
    if LATE.get('kv'):
        if OPT.get('kva'): by_parity(LATE['kv'], FIRST, per[(int(OPT['kva']), 0)][0])
        G.stream(LATE['kv'], pause[0] + int(OPT.get('kvo', 6)), hwpos[0] - 1)
    for (sb, op) in ((8, 'v_add_u32'), (24, 'v_sub_u32')):
        for win in range(2):
            for ct in range(4):
                r = V_WA + 4*win + ct
                G.place(I(f"{op} v{r}, v{r}, v52"), per[(sb - 2 + win, 1)][0], per[(sb - 1 + win, 0)][1])
    ha, hr = V_XA, V_XA + 1
    G.stream([I(f"s_lshl_b32 s{S_T}, s{S_W}, 13"), I(f"s_add_u32 s{S_T}, s{S_T}, {hx(LDS_X)}"), I(f"v_add_u32 v{ha}, s{S_T}, v{V_L16}"),
              I(f"s_and_b32 s{S_T}, s{S_G}, 1"), I(f"s_lshl_b32 s{S_T}, s{S_T}, 12"), I(f"s_add_u32 s{S_T}, s{S_T}, {hx(LDS_X)}"),
              I(f"v_add_u32 v{hr}, s{S_T}, v{V_L16}")], per[(5, 0)][0], per[(6, 1)][1])
    for hq in range(2):
        s = 15 + 8*hq
        for p in range(2):
            kk = 2*hq + p
            items = []
            for half in range(2):
                ct = 2*p + half
                for qb in range(4):
                    e = done[(s, ct, qb)] + 6
                    a = V_ACCB + 16*ct + 4*qb; q = V_Q + 16*qb + 4*kk
                    if not OPT.get('fold'):
                        for r in range(4): items.append((I(f"v_mul_f32 v{a+r}, s{S_QS}, v{a+r}"), e))
                    items.append((I(f"v_cvt_pk_bf16_f32 v{q+2*half}, v{a}, v{a+1}"), e))
                    items.append((I(f"v_cvt_pk_bf16_f32 v{q+2*half+1}, v{a+2}, v{a+3}"), e))
            if hq == 0:
                hnd = None
                for k in range(8):
                    nq_ = len(items) // 8
                    its = items[nq_*k:nq_*k + nq_]; e = its[0][1]
                    hn = G.stream(its, e, e - 6 + 30)
                    hnd = hn if hnd is None else max(hnd, hn)
            else:
                hnd = G.stream(items, items[0][1], fm0 - (40 if p == 0 else 12))
            sw = []
            for qb in range(4):
                q = V_Q + 16*qb + 4*kk
                sw += [I(f"v_permlane32_swap_b32 v{q}, v{q+2}"), I(f"v_permlane32_swap_b32 v{q+1}, v{q+3}")]
            G.stream(sw, hnd[0] + 2, hnd[0] + 60 if hq == 0 else fm0 - 2)
    G.pin(hbar, W(lgkm=['hw'])); G.pin(hbar, I("s_barrier"))
    hrd = [I(f"ds_read_b128 {ar(HF(u,qb))}, v{hr} offset:{u*4096 + qb*1024}", tag='hr', res_r=[('hx', True)]) for u in range(7) for qb in range(4)]
    G.stream(hrd, hbar + 1, per[(23, 1)][1] - 6)
    items = []
    T = 56
    for p in range(2):
        for qb in range(4):
            for half in range(2):
                ct = 2*p + half
                e = done[(7, ct, qb)] + 6
                a = V_ACCA + 16*ct + 4*qb
                seq = []
                seq += [f"v_mul_f32 v{T+r}, v{a+r}, v{a+r}" for r in range(4)]
                seq += [f"v_fma_f32 v{T+r}, v{T+r}, s{S_GB}, v{V_GA}" for r in range(4)]
                seq += [f"v_mul_f32 v{T+r}, v{T+r}, v{a+r}" for r in range(4)]
                seq += [f"v_exp_f32 v{T+r}, v{T+r}" for r in range(4)]
                seq += [f"v_add_f32 v{T+r}, 1.0, v{T+r}" for r in range(4)]
                seq += [f"v_rcp_f32 v{T+r}, v{T+r}" for r in range(4)]
                seq += [f"v_mul_f32 v{T+r}, v{T+r}, v{a+r}" for r in range(4)]
                a0 = V_ACCA + 16*(2*p) + 4*qb
                seq += [f"v_cvt_pk_bf16_f32 v{a0+2*half}, v{T}, v{T+1}", f"v_cvt_pk_bf16_f32 v{a0+2*half+1}, v{T+2}, v{T+3}"]
                items += [(I(x), e) for x in seq]
            G.pin(hwpos[4*p + qb], I(f"ds_write_b128 v{ha}, {vr(V_ACCA + 32*p + 4*qb)} offset:{p*4096 + qb*1024}", tag='hw', res_w=[('hx', True)]))
    n1 = len(items) * 7 // 8
    h = G.stream(items[:n1], items[0][1], hwpos[0] - 1 - int(OPT.get('gl', 0)))
    G.stream(items[n1:], h[0] + 1, hwpos[7] - 1)
    pa = [I(x) for x in (f"v_lshrrev_b32 v56, 6, v{V_L16}", "v_lshlrev_b32 v58, 7, v56", f"v_bfe_u32 v57, v{V_L16}, 4, 2", "v_lshl_add_u32 v58, v57, 3, v58",
          f"v_bfe_u32 v59, v{V_L16}, 7, 2", f"v_xor_b32 v59, s{S_W}, v59", f"v_lshl_add_u32 v48, v59, 5, v58")]
    pa += swz(49, 56, 57, 58) + [I(f"v_bfe_u32 v56, v{V_L16}, 4, 4"), I(f"v_lshrrev_b32 v57, 8, v{V_L16}")] + swz(51, 56, 57, 58) + [I(f"v_add_u32 v51, s{S_RING}, v51")]
    G.stream(pa, per[(24, 0)][0], per[(27, 1)][1])
    global PARK
    PARK = [I(f"v_accvgpr_write_b32 a{A_ADR+k}, v{r}") for k, r in enumerate((48, 49, 51))]
    it = []
    for qb in range(4):
        b = V_NEGM + 4*qb
        it += [(I(f"v_max3_f32 v{b}, v{b}, v{b+1}, v{b+2}"), fm0 + 4*qb + 11), (I(f"v_max_f32 v{b}, v{b}, v{b+3}"), fm0 + 4*qb + 11)]
    it += [x for x in rowmax_finish() if x.kind != 'nop']
    G.stream(it, fm0 + 11, blk[0] - 2)
    for ct in range(4): G.stream(y_pack(V_ACCA, ct), done[(27, ct, 3)] + 6, blk[ct + 1] + 2)
    for k, x in enumerate(y_stores(0)):
        g = blk[(7, 7, 11, 11, 15, 15, 19, 19)[k]] + (1, 5)[k & 1]
        G.pin(g - 1, x[0]); G.pin(g, x[1])
    su = attn_setup()
    G.stream(su['pre'] + [I(f"v_accvgpr_write_b32 a{A_L + 4*q + k}, 0") for q in range(4) for k in range(2)], blk[12], blk[20] - 1)
    G.stream(su['va'][:8], blk[20], blk[28] - 1)
    G.stream(su['sp'], blk[24], len(G) - 2)
    e = max(i for i in range(len(G)) if any(x.kind == 'dsr' and x.res_r == [('hx', True)] for x in G.seq(i)))
    G.stream([I(f"v_subrev_u32 v{V_KA+kk}, {hx(LDS_X)}, v{V_KA+kk}") for kk in range(4)], e, blk[28] - 1)
    global VA_LATE
    VA_LATE = su['va'][8:]
    for k in range(16): ministamp(G, per[(2*k + 1, 1)][1], 32 + k)
    out = with_m0_pad(G.flat()) + PARK
    print(f"; phase1: {len(G)} mfma, est cycles {G.cycles()} pairs {[G.cyc(per[(2*k,0)][0], per[(2*k+1,1)][1]) for k in range(16)]}", file=sys.stderr)
    return out

def P(buf, qb, ks): return V_P + 64*buf + 16*qb + 4*ks
def k_reads(kt, buf, res=True):
    return [I(f"ds_read_b128 {ar(A_KF + 16*(kt&1) + 4*kk)}, v{V_KA+kk} offset:{(kt>>1)*16384 + (kt&1)*4096 + buf*8192}",
              tag='fr', res_r=[(f"K{buf}", True)] if res else None) for kk in range(4)]
def v_reads(dt, buf):
    return [I(f"ds_read_b64_tr_b16 {ar(A_VF + 16*(dt&1) + 4*ks + 2*e, 2)}, v{V_VA+dt} offset:{ks*16384 + buf*8192 + e*4096}",
              tag='fr', res_r=[(f"V{buf}", True)]) for ks in range(4) for e in range(2)]

def attn_setup():
    t1, t2, t3 = 56, 57, 58
    pre = [f"v_bfe_u32 v{t3}, v{V_L16}, 4, 2",
           f"v_cmp_eq_u32 vcc, 1, v{t3}", f"v_mov_b32 v{t1}, 0x44444444", f"v_mov_b32 v{t2}, 0xeeeeeeee", f"v_cndmask_b32 v{V_SPI}, v{t1}, v{t2}, vcc",
           f"v_cmp_gt_u32 vcc, 2, v{t3}", f"v_mov_b32 v{t1}, 0x3f803f80", f"v_lshrrev_b32 v{t2}, 6, v{V_L16}", f"v_cndmask_b32 v59, 0, v{t1}, vcc",
           f"v_lshlrev_b32 v{t1}, 8, v{t2}", f"v_and_b32 v{t2}, 7, v{t2}", f"v_lshl_add_u32 v{t1}, v{t3}, 3, v{t1}", f"v_add_u32 v{t1}, 0x10000, v{t1}"]
    va = []
    for dt in range(8): va += [f"v_xor_b32 v{V_VA+dt}, {dt}, v{t2}", f"v_lshl_add_u32 v{V_VA+dt}, v{V_VA+dt}, 5, v{t1}"]
    sp = [f"v_accvgpr_write_b32 a{A_SPA+i}, v59" for i in range(4)] + [f"v_accvgpr_write_b32 a{A_FILL+i}, -1" for i in range(4)]
    return dict(pre=[I(x) for x in pre], va=[I(x) for x in va], sp=[I(x) for x in sp])

def rowmax_finish():
    L = []; A = lambda t, **k: L.append(I(t, **k))
    for sw in ("v_permlane32_swap_b32", "v_permlane16_swap_b32"):
        for qb in range(4): A(f"v_mov_b32 v{V_NEGM+4*qb+1}, v{V_NEGM+4*qb}")
        A("s_nop 1")
        for qb in range(4): A(f"{sw} v{V_NEGM+4*qb}, v{V_NEGM+4*qb+1}")
        for qb in range(4): A(f"v_max_f32 v{V_NEGM+4*qb}, v{V_NEGM+4*qb}, v{V_NEGM+4*qb+1}")
    for qb in range(4): A(f"v_sub_f32 v{V_NEGM+4*qb}, {hx(f2u(-float(OPT.get('moff', 10))))}, v{V_NEGM+4*qb}")
    for qb in range(4):
        for r in range(1, 4): A(f"v_mov_b32 v{V_NEGM+4*qb+r}, v{V_NEGM+4*qb}")
    return L

NSB = 3
def softmax_items(n, pbuf):
    kt, qb = n >> 2, n & 3
    s = V_S + 4*(n % 2)
    p = P(pbuf, qb, kt >> 1) + 2*(kt & 1)
    ex = [I(f"v_exp_f32 v{s+r}, v{s+r}") for r in range(4)]
    cv = [I(f"v_cvt_pk_bf16_f32 v{p}, v{s}, v{s+1}"), I(f"v_cvt_pk_bf16_f32 v{p+1}, v{s+2}, v{s+3}")]
    if OPT.get('perm'): cv = [I(f"v_perm_b32 v{p}, v{s+1}, v{s}, s75"), I(f"v_perm_b32 v{p+1}, v{s+3}, v{s+2}, s75")]
    return ex, cv

def smf(pbuf, qb, h):
    return I(f"v_smfmac_f32_16x16x64_bf16 {ar(A_L + 4*qb)}, {ar(A_SPA)}, {vr(P(pbuf, qb, 2*h), 8)}, v{V_SPI}")

def attn_iter(par, first_pv=False, vmtags=('kv',), d0=0):
    m = []; blk = []; sg = []
    for i in range(8):
        for qb in range(4):
            n = 4*i + qb
            blk.append(len(m))
            d = vr(V_S + 4*(n % 2))
            for kk in range(4):
                m.append(mf(d, ar(A_KF + 16*(i&1) + 4*kk), vr(V_Q + 16*qb + 4*kk), d if kk else vr(V_NEGM + 4*qb)))
            o = ar(A_O + 16*i + 4*qb)
            for ks in range(4):
                ab = (ar(A_VF + 16*(i&1) + 4*ks), vr(P(par ^ 1, qb, ks)))
                ab = ab[::-1]
                m.append(mf(o, ab[0], ab[1], "0" if (first_pv and ks == 0) else o))
        sg.append(len(m))
        m.append(smf(par ^ 1, i >> 1, i & 1))
    G = Gaps(m)
    for n in range(32):
        b = blk[n]
        ex, cv = softmax_items((n - 1) % 32, par if n else par ^ 1)
        for r in range(4): G.pin(b + 2*r, ex[r])
        G.pin(b + 3, cv[0]); G.pin(b + 7, cv[1])
    for i in range(8):
        if i < 7: rd = k_reads(i + 1, par) + v_reads(i + 1, par ^ 1)
        else: rd = k_reads(0, par ^ 1) + v_reads(0, par)
        k = 0
        for qb in range(3):
            b = blk[4*i + qb]
            for gp in (3, 5, 5, 7):
                G.pin(b + gp, rd[k]); k += 1
        if i == 6:
            G.pin(sg[i], W(vm=list(vmtags), lgkm=['fr'])); G.pin(sg[i], I("s_barrier"))
        else:
            G.pin(sg[i], W(lgkm=['fr']))
    groups = [kv_dma('K', 0, par ^ 1, 'kv'), kv_dma('K', 1, par ^ 1, 'kv'), kv_dma('V', 0, par, 'kv'), kv_dma('V', 1, par, 'kv')]
    for i in range(4):
        for qb in range(4): G.pin(blk[4*(i + d0) + qb] + 1, groups[i][1 + qb])
        if i < 3: G.pin(blk[4*(i + d0) + 3] + 4, groups[i + 1][0])
    nxt = kv_dma('K', 0, par, 'kv')[0]
    G.pin(blk[4*7 + 3] + 3, nxt)
    for k in range(4): G.pin(blk[4*7 + (k >> 1)] + 4 + 2*(k & 1), I(f"s_add_u32 s{S_KO+k}, s{S_KO+k}, 0x8000"))
    G.blk = blk; G.sg = sg
    return G

def y_load(half, dst=None):
    dst = V_YB if dst is None else dst
    return I(f"buffer_load_dwordx4 {vr(dst)}, v{V_L16}, {sr(SRD_WS)}, s{S_YL} offen sc1", tag=f'yl{dst}')
def y_add(half, src=None, V_YT=V_YT):
    src = V_YB if src is None else src
    L = []
    for k in range(4):
        a = V_YS + 8*half + 2*k
        L += [I(f"v_lshlrev_b32 v{V_YT}, 16, v{src+k}"), I(f"v_and_b32 v{src+k}, 0xffff0000, v{src+k}"),
              I(f"v_add_f32 v{a}, v{a}, v{V_YT}"), I(f"v_add_f32 v{a+1}, v{a+1}, v{src+k}")]
    return L
def y_next():
    return [I(f"s_add_u32 s{S_YI}, s{S_YI}, {hx(1 << GS_Y)}"), I(f"s_and_b32 s{S_YI}, s{S_YI}, {hx((8 << GS_Y) - 1)}"), I(f"s_add_u32 s{S_YL}, s{S_YI}, s{S_CB2}")]
def cnt_load(vreg=None): return I(f"buffer_load_dword v{vreg or V_CNT}, off, {sr(SRD_DBG)}, s{S_CL} sc1", tag='cnt')
def cnt_check(G, gap, need, name, read=True, vreg=None):
    if read: G.pin(gap, I(f"v_readfirstlane_b32 s{S_T+2}, v{V_CNT}"))
    G.pin(gap + (1 if read else 2), I(f"s_cmp_lt_u32 s{S_T+2}, {need}"))
    for x in (I(f"s_cbranch_scc1 L_W{name}"), I(f"L_B{name}:")): G.pin(gap + 2, x)
    STUBS.extend([I(f"L_W{name}:"), I(f"s_mov_b32 s{S_SPIN}, 0x40000"), I(f"L_W{name}_l:"), cnt_load(vreg), I(f"s_sub_u32 s{S_SPIN}, s{S_SPIN}, 1"),
                  I("s_waitcnt vmcnt(0)"), I(f"v_readfirstlane_b32 s{S_T+2}, v{vreg or V_CNT}"), I("s_nop 3"),
                  I(f"s_cmp_ge_u32 s{S_T+2}, {need}"), I(f"s_cbranch_scc1 L_B{name}"),
                  I(f"s_cmp_gt_i32 s{S_SPIN}, 0"), I(f"s_cbranch_scc1 L_W{name}_l"), I(f"s_branch L_B{name}")])
def arrive(G, gap, trip):
    G.pin(gap - 2, I(f"s_cmp_eq_u32 s{S_CNT}, {7 - trip}")); G.pin(gap - 1, I(f"s_cselect_b32 s{S_AO}, 0, 0x1000"))
    G.pin(gap, I(f"buffer_atomic_sub a{A_FILL}, v{V_L16}, {sr(SRD_ARR)}, s{S_AO} offen sc1", tag='atom'))

def xo_voff(dst, t):
    return [I(f"v_bfe_u32 v{dst}, v{V_L16}, 4, 5"), I(f"v_lshlrev_b32 v{dst}, 10, v{dst}"),
            I(f"v_lshrrev_b32 v{t}, 9, v{V_L16}"), I(f"v_lshl_add_u32 v{dst}, v{t}, 4, v{dst}")]

def it1_extras(G):
    blk = G.blk
    t0, t1, t2 = V_YS + 8, V_YS + 9, V_YS + 10
    su = [I(x) for x in (f"s_lshl_b32 s{S_CA}, s{S_R}, 3", f"s_mov_b32 s{S_FO}, s{S_CB}",
          f"s_and_b32 s{S_CB2}, s{S_G}, 4", f"s_add_u32 s{S_CB2}, s{S_CB2}, s{S_W}", f"s_lshl_b32 s{S_CB2}, s{S_CB2}, {PS + 1}",
          f"s_and_b32 s{S_YI}, s{S_G}, 3", f"s_lshl_b32 s{S_YI}, s{S_YI}, {13 if LAY[1] == '1' else 10}", f"s_add_u32 s{S_YI}, s{S_YI}, s{S_RBY}",
          f"s_add_u32 s{S_CB2}, s{S_CB2}, s{S_YI}",
          f"s_add_u32 s{S_YI}, s{S_G}, 7", f"s_lshl_b32 s{S_YI}, s{S_YI}, {GS_Y}", f"s_mov_b32 s{S_YL}, {hx(1 << 28)}",
          f"s_lshl_b32 s{S_T}, s{S_G}, 7", f"s_lshl_b32 s{S_T+1}, s{S_W}, 5", f"s_add_u32 s{S_T}, s{S_T}, s{S_T+1}",
          f"v_lshrrev_b32 v{t0}, 8, v{V_L16}", f"v_lshlrev_b32 v{t0}, 3, v{t0}")]
    su.append(I(f"buffer_load_dwordx2 {vr(V_YB,2)}, v{t0}, {sr(SRD_B2)}, s{S_T} offen", tag='b2'))
    su += [I(f"s_lshl_b32 s{S_XO}, s{S_R}, 16"), I(f"s_add_u32 s{S_XO}, s{S_XO}, s{S_T}"), I(f"s_add_u32 s{S_XO+1}, s{S_XO}, 32768")]
    su += xo_voff(t1, t2)
    for h in range(2): su.append(I(f"buffer_load_dwordx4 {ar(A_XT+4*h)}, v{t1}, {sr(SRD_X)}, s{S_XO+h} offen", tag='xt'))
    sc = [f"s_lshl_b32 s{S_WO+1}, s{S_W}, 13",
          f"s_add_u32 s{SRD_ARR}, s{SRD_DBG}, s{S_CA}", f"s_addc_u32 s{SRD_ARR+1}, s{SRD_DBG+1}, 0",
          f"s_or_b32 s{S_AO}, s{S_W}, s{S_PASS}", f"s_cselect_b32 s{SRD_ARR+2}, 0, 4", f"s_mov_b32 s{SRD_ARR+3}, 0x20000"]
    for k, (ds, half) in enumerate(((6, 1), (7, 0), (7, 1))):
        sc += [f"s_add_u32 s{S_Y7+k}, s{S_G}, {ds}", f"s_and_b32 s{S_Y7+k}, s{S_Y7+k}, 7", f"s_lshl_b32 s{S_Y7+k}, s{S_Y7+k}, {GS_Y}", f"s_add_u32 s{S_Y7+k}, s{S_Y7+k}, s{S_CB2}"]
        if half: sc.append(f"s_add_u32 s{S_Y7+k}, s{S_Y7+k}, {hx(PL)}")
    sc += [f"s_lshr_b32 s{S_AO}, s2, 3", f"s_lshl_b32 s{S_AO}, s{S_AO}, 2", f"s_add_u32 s{S_AO}, s{S_AO}, s{S_W}", f"s_and_b32 s{S_AO}, s{S_AO}, 15", f"s_lshl_b32 s{S_AO}, s{S_AO}, 10",
           f"s_add_u32 s{S_AO}, s{S_AO}, L_FIN-L_PC3"]
    g = blk[9]
    def front(txts):
        nonlocal g
        while G.g[g][0] or any(x.kind in ('dma', 'vld', 'vst') for x in G.seq(g)): g += 1
        for t in txts: G.pin(g, I(t))
        g += 1
    for ct in range(4): G.stream(y_pack(V_ACCB, ct), 0 if ct < 3 else 4, blk[ct + 1] + 2)
    for k, x in enumerate(y_stores(1)):
        g = (blk[15] + 5, G.sg[3], blk[17] + 1, blk[18] + 1, blk[19] + 1, blk[19] + 5, blk[23] + 1, blk[23] + 5)[k]
        G.pin(g - 1, x[0]); G.pin(g, x[1])
    G.stream(VA_LATE, blk[4] + 3, blk[12] - 1)
    k = [n for n, x in enumerate(su) if x.tag == 'b2'][0]
    h = G.stream(su[:k+1], blk[1], blk[8])
    h = G.stream(su[k+1:], blk[20], blk[26])
    ini = [W(vm=['b2'])]
    for k in range(2):
        ini += [I(f"v_lshlrev_b32 v{V_YS+12+2*k}, 16, v{V_YB+k}"), I(f"v_and_b32 v{V_YS+12+2*k+1}, 0xffff0000, v{V_YB+k}")]
    for q in (0, 1, 3):
        ini += [I(f"v_mul_f32 v{V_YS+4*q+k}, {'s%d' % S_QS if OPT.get('fold') else '1.0'}, v{V_YS+12+k}") for k in range(4)]
    G.stream(ini + [y_load(0)], blk[12], blk[22])
    G.stream([I(f"v_mov_b32 v{V_YS+8+k}, v{V_YS+k}") for k in range(4)], h[0], len(G) - 1)
    G.stream([I(f"s_min_u32 s{SRD_WS2+2}, s{SRD_WS2+2}, s{S_LIM}"),
              I(f"s_mov_b32 s{S_NEED}, 0"), I(f"s_mov_b32 s{S_CL}, 0x1000")], blk[24], blk[26])
    for k, x in enumerate(fills()[:2]): G.pin(blk[27 + 4*k] + 1, x); G.pin(blk[27 + 4*k] + 6, I(f"s_add_u32 s{S_FO}, s{S_FO}, {hx(PL)}"))
    k = 0
    while k < len(sc):
        n_ = 2 if (k + 1 < len(sc) and (sc[k+1].startswith('s_addc') or sc[k+1].startswith('s_cselect'))) else 1
        front(sc[k:k+n_]); k += n_
    front([f"s_getpc_b64 s[{S_CODE}:{S_CODE+1}]", "L_PC3:"])
    front([f"s_add_u32 s{S_CODE}, s{S_CODE}, s{S_AO}", f"s_addc_u32 s{S_CODE+1}, s{S_CODE+1}, 0"])

def kv_touch(srdb):
    return I(f"buffer_load_dword a{A_PF}, v{V_PFO}, {sr(srdb)}, s{S_KT} offen", tag='pf')
def fills():
    return [I(f"buffer_store_dwordx4 {ar(A_FILL)}, v{V_L16}, {sr(SRD_WS2)}, s{S_FO} offen sc1", tag='fill') for k in range(3)]

def loop_extras(ge, go):
    TB = 5
    for G, half in ((ge, 0), (go, 1)):
        blk = G.blk
        it = [W(vm=[f'yl{V_YB}'])] + y_add(half)
        if half == 0:
            G.stream(it, blk[16], blk[22])
            G.pin(blk[22] + 1, y_load(1))
            for k, x in enumerate(fills()[:2]): G.pin(blk[23 + 4*k] + 1, x); G.pin(blk[23 + 4*k] + 6, I(f"s_add_u32 s{S_FO}, s{S_FO}, {hx(PL)}"))
            for k in range(3):
                if k == 0: G.pin(blk[22] + 2, I(f"s_cmp_eq_u32 s{S_CNT}, 1"))
                G.pin(blk[22] + 3 + k, I(f"s_cselect_b32 s{S_Y7S+k}, s{S_Y7+k}, 0x10000000"))
                G.pin(blk[24 + k] + 1, I(f"buffer_load_dwordx4 {ar(A_Y7+4*k)}, v{V_L16}, {sr(SRD_WS)}, s{S_Y7S+k} offen sc1", tag='y7'))
            if not OPT.get('nocode2'): G.pin(blk[29] + 1, I(f"global_load_dword a{A_PF}, v{V_L16}, s[{S_CODE}:{S_CODE+1}]", tag='pf'))
            arrive(G, blk[30] + 1, 0)
            G.pin(blk[31] + 1, cnt_load())
        else:
            G.pin(blk[15] + 3, W(vm=['cnt'])); cnt_check(G, blk[15] + 5, f"s{S_NEED}", 'A')
            G.pin(blk[25] + 2, I(f"s_mov_b32 s{S_NEED}, 8")); G.pin(blk[25] + 4, I(f"s_mov_b32 s{S_CL}, s{S_CA}"))
            G.stream(it, blk[16], blk[22])
            G.stream(y_next(), blk[16], blk[21])
            G.pin(blk[22] + 1, y_load(0))
            G.pin(blk[24] + 2, I(f"s_add_u32 s{S_YL}, s{S_YL}, {hx(PL)}"))
            if not OPT.get('nopf'):
                G.pin(blk[23] + 1, I(f"buffer_load_dword a{A_PF}, v{V_PFO}, {sr(SRD_WO)}, s{S_PF} offen{NT('o')}", tag='pf'))
                G.pin(blk[26] + 2, I(f"s_add_u32 s{S_PF}, s{S_PF}, {1024*GG}"))
            arrive(G, blk[30] + 1, TB)
            for gp, txt in ((blk[18] + 2, [f"s_sub_u32 s{S_IS}, s{S_G}, s{S_CNT}"]), (blk[18] + 4, [f"s_add_u32 s{S_IS}, s{S_IS}, 3"]), (blk[18] + 6, [f"s_and_b32 s{S_IS}, s{S_IS}, 7"]),
                            (blk[19] + 2, [f"s_lshl_b32 s{S_IS}, s{S_IS}, 7"]), (blk[19] + 4, [f"s_add_u32 s{S_IM}, s{S_WO+1}, {hx(LDS_X)}"]),
                            (blk[20] + 2, [f"s_cmp_le_u32 s{S_CNT}, 2"]), (blk[20] + 3, [f"s_cselect_b32 s{S_IS}, s{S_IS}, 0x10000000"]),
                            (blk[20] + 4, [f"s_cmp_eq_u32 s{S_CNT}, 1"]), (blk[20] + 5, [f"s_cselect_b32 s{S_IM}, s{S_RING}, s{S_IM}"])):
                for t in txt: G.pin(gp, I(t))
            pos = (blk[23] + 5, blk[24] + 1, blk[25] + 1, blk[26] + 1, blk[27] + 1, blk[27] + 5, blk[28] + 1, blk[29] + 1)
            for n_, gp in enumerate(pos):
                h_, i_ = n_ >> 2, n_ & 3
                G.pin(gp - 1, I(f"s_add_u32 s{S_RS + i_}, s{S_IS}, {hx((h_*32 + 8*i_)*1024 - 1024*i_)}"))
                if i_ == 0: G.pin(gp - 2, I(f"s_add_u32 m0, s{S_IM}, {hx(h_*4096)}"))
                off = f" offset:{i_*1024}" if i_ else ""
                G.pin(gp, I(f"buffer_load_dwordx4 v{V_WOB}, {sr(SRD_WO)}, s{S_RS + i_} offen{off} lds", tag='woi', res_w=[('K0x', True)]))

def attn_iter0():
    m = []; blk = []
    for i in range(8):
        for qb in range(4):
            n = 4*i + qb
            blk.append(len(m))
            d = vr(V_S + 4*(n % 3) if n < 30 else V_S + 4*(n % 2))
            for kk in range(4):
                m.append(mf(d, ar(A_KF + 16*(i&1) + 4*kk), vr(V_Q + 16*qb + 4*kk), d if kk else vr(V_NEGM + 4*qb)))
    G = Gaps(m)
    G.head += [I(f"v_accvgpr_write_b32 a{A_L + k}, 0") for k in range(16)]
    tail = []
    for n in range(31):
        kt, qb = n >> 2, n & 3
        s = V_S + 4*(n % 3) if n < 30 else V_S + 4*(n % 2)
        p = P(0, qb, kt >> 1) + 2*(kt & 1)
        ex = [I(f"v_exp_f32 v{s+r}, v{s+r}") for r in range(4)]
        cv = [I(f"v_cvt_pk_bf16_f32 v{p}, v{s}, v{s+1}"), I(f"v_cvt_pk_bf16_f32 v{p+1}, v{s+2}, v{s+3}")]
        if n + 2 < 32:
            b = blk[n + 2]
            G.pin(b - 1, ex[0]); G.pin(b, ex[1]); G.pin(b + 1, ex[2]); G.pin(b + 1, cv[0]); G.pin(b + 2, ex[3]); G.pin(b + 3, cv[1])
        else:
            tail += ex + cv
    for i in range(8):
        rd = k_reads(i + 1, 0) if i < 7 else k_reads(0, 1) + v_reads(0, 0)
        lo = blk[4*i]
        for k, x in enumerate(rd): G.pin(lo + (k if i == 7 else 2*k), x)
        if i == 6:
            G.pin(blk[4*i + 3] + 3, W(vm=['kv'], lgkm=['fr'])); G.pin(blk[4*i + 3] + 3, I("s_barrier"))
        elif i < 7:
            G.pin(blk[4*i + 3] + 3, W(lgkm=['fr']))
    G.pin(3, kv_dma('K', 0, 0, 'kv')[0]); G.pin(5, I("s_nop 0"))
    out = G.flat() + [I("s_nop 3")] + tail + [W(lgkm=['fr'])]
    print(f"; iter0 est cycles {G.cycles()}", file=sys.stderr)
    return out

V_RL, V_XW, V_XR, V_MISC, V_NT, V_OA = 16, 32, 33, 34, 36, (60, 61, 35)
V_STG = 128
def V_R(p): return [160, 64, 96, 224][p] if p < 4 else (64 if p & 1 else 160)
V_OACC = 192
def V_SP(st): return 176 if st == 7 else (96 + 8*st if st < 4 else 224 + 8*(st - 4))
V_XT, V_MX, V_SEL = 4, 28, 16
S_WO, S_SO = 76, 93
PER = [(0, 0), (1, 0), (0, 1), (1, 1)] + [(c, h) for c in range(2, 8) for h in range(2)]
SLOTS = dict(A=(2, 0, 8192, 'hx'), B=(1, 0, 16384, 'V0'), C=(1, 8192, 16384, 'V1'), D=(0, 0, 16384, 'K0'), E=(0, 8192, 16384, 'K1'))
EARLY4 = bool(OPT.get("e4"))
def oslot(p): return SLOTS[("ADBADBAEDCBAEDCB" if EARLY4 else "ADBADBAECDBAECDB")[p]]

def wo_dma(p, vwob=None):
    vwob = V_WOB if vwob is None else vwob
    ci, half = PER[p]
    win, base, ps, res = oslot(p)
    L = [I(f"s_add_u32 s{S_WO}, s{S_G}, {1 + ci}"), I(f"s_and_b32 s{S_WO}, s{S_WO}, 7"), I(f"s_lshl_b32 s{S_WO}, s{S_WO}, 7")]
    for h in range(2):
        for i in range(4):
            L.append(I(f"s_add_u32 s{S_RS + i}, s{S_WO}, {hx((half*64 + h*32 + 8*i)*1024 - 1024*i)}"))
            if i == 0: L.append(I(f"s_add_u32 m0, s{S_RING if ps == 16384 else S_WO+1}, {hx(win*65536 + base + h*4096)}"))
            off = f" offset:{i*1024}" if i else ""
            L.append(I(f"buffer_load_dwordx4 v{vwob}, {sr(SRD_WO)}, s{S_RS + i} offen{off} lds", tag=f"wo{p}", res_w=[(res, True)]))
    return L

OFREG = [list(range(0, 64, 4)) + list(range(128, 176, 4)) + list(range(240, 256, 4)),
         list(range(64, 128, 4)) + list(range(176, 240, 4))]
def OF(half, j, qb): return OFREG[half][8*qb + j]
def oaf_reads(p):
    win, base, ps, res = oslot(p)
    return [I(f"ds_read_b64_tr_b16 {vr(V_R(p) + 4*j + 2*e, 2)}, v{V_OA[win]} offset:{base + (j>>1)*ps + (j&1)*4096 + e*2048}",
              tag=f"oaf{p}", res_r=[(res, True)]) for j in range(8) for e in range(2)]
def of_reads(half, qb):
    return [I(f"ds_read_b64_tr_b16 {ar(OF(half, j, qb) + 2*e, 2)}, v{V_XR} offset:{(j>>1)*16384 + 8192 + (j&1)*4096 + e*2048}",
              tag=f"of{half}_{qb}", res_r=[('V1' if half else 'K1', True)]) for j in (range(8) if qb & 1 == 0 else range(7, -1, -1)) for e in range(2)]
def swz(dst, row, unit, t):
    return [I(x) for x in (f"v_bfe_u32 v{t}, v{row}, 1, 2", f"v_lshlrev_b32 v{t}, 2, v{t}", f"v_and_or_b32 v{t}, v{row}, 1, v{t}", f"v_xor_b32 v{unit}, v{unit}, v{t}",
                           f"v_lshrrev_b32 v{t}, 2, v{row}", f"v_and_b32 v{t}, 2, v{t}", f"v_xor_b32 v{unit}, v{unit}, v{t}",
                           f"v_lshlrev_b32 v{dst}, 7, v{row}", f"v_lshl_add_u32 v{dst}, v{unit}, 3, v{dst}")]
def sp_load(st):
    L = []
    for half in range(2):
        L.append(I(f"s_add_u32 s{S_YI+half}, s{S_CB}, {hx((2*min(st, 6) + half) * PL)}"))
        L.append(I(f"buffer_load_dwordx4 {vr(V_SP(st) + 4*half)}, v{V_L16}, {sr(SRD_WS)}, s{S_YI+half} offen {OPT.get('spf', 'sc1').replace('+', ' ')}", tag=f"sp{st}"))
    return L
def sp_max(st):
    b = V_SP(st); m = V_MX
    return [I(f"v_max3_u32 v{m}, v{b}, v{b+1}, v{b+2}"), I(f"v_max3_u32 v{m}, v{m}, v{b+3}, v{b+4}"),
            I(f"v_max3_u32 v{m}, v{m}, v{b+5}, v{b+6}"), I(f"v_max_u32 v{m}, v{m}, v{b+7}")]

def finale():
    m = []; blk = []; sg = {}; per = []
    for i in range(8):
        for qb in range(4):
            blk.append(len(m))
            o = ar(A_O + 16*i + 4*qb)
            for ks in (range(4) if (qb & 1 == 0 or OPT.get('nosnake')) else range(3, -1, -1)): m.append(mf(o, vr(P(1, qb, ks)), ar(A_VF + 16*(i&1) + 4*ks), o))
            if (i, qb) == (2, 0):
                tm0 = len(m)
                for q in range(4): m.append(I(f"v_mfma_f32_16x16x4_f32 {vr(V_RL + 4*q)}, v{V_NT+q}, v{V_MISC}, 0"))
            if i == 0:
                for h in range(2):
                    sg[(qb, h)] = len(m); m.append(smf(1, qb, h))
    blk.append(len(m))
    for p, (ci, half) in enumerate(PER):
        lo = len(m)
        for qb in range(4):
            d = vr(V_OACC + 16*(ci & 1) + 4*qb)
            js = list(range(8))
            if qb & 1 and not OPT.get('nosnake'): js.reverse()
            for j in js:
                m.append(mf(d, vr(V_R(p) + 4*j), ar(OF(half, j, qb)), "0" if (j == js[0] and half == 0) else d))
        per.append((lo, len(m) - 1))
    G = Gaps(m)
    for q in range(4): G.cap[tm0 + q] = 6
    cnt_check(G, per[2][1] - 6, 16, 'B', read=False, vreg=V_MISC)
    Xa = blk[4] - 1
    X0 = blk[4*int(OPT.get('x0', 3))] - 1
    Xb = blk[4*int(OPT.get('xb', 5))] - 1
    X1 = blk[28] - 1
    p0, p2 = per[0][0], per[2][0]
    Xc = p0 + int(OPT.get('xc', 29))
    X2 = per[1][0] + int(OPT.get('x2', 17))
    quiet = set()
    def paced(items, lo, step, h=None):
        pos = lo - step
        for x in items:
            if x.kind == 'dma':
                pos = max(pos + step, h[0] if h else 0)
                while pos in quiet or any(y.is_mem() and y.kind != 'dsr' for y in G.seq(pos)) or (h and h[0] == pos and h[1] == 2): pos += 1
                h = G.pin(pos, x)
            else:
                st = max(lo - 3, h[0] if h else 0, 0)
                h = G.place(x, st, st + 2, after=h)
        return h
    w1pos = [X1 - 3 - 4*k for k in range(7, -1, -1)]
    w2pos = [X2 - 4 - int(OPT.get('w2s', 5))*k for k in range(7, -1, -1)]
    for g in w1pos + w2pos: quiet |= {g, g + 1}
    assert w1pos[0] > Xb
    ex, cv = softmax_items(31, 1)
    for r in range(4): G.pin(r, ex[r])
    G.pin(4, cv[0]); G.pin(4, cv[1])
    def ds_stream(rd, lo, hi, per_gap=2):
        g = lo
        for x in rd:
            while g in quiet or sum(y.kind == 'dsr' for y in G.seq(g)) >= per_gap or (x.is_b128r() and any(y.is_b128r() for y in G.seq(g))): g += 1
            assert g <= hi, (x.text, g, hi)
            G.pin(g, x)
        return g
    for i in range(7):
        ds_stream(v_reads(i + 1, 1), blk[4*i] + (1 if i == 0 else 0), blk[4*i + 4] - 4, 1 if i == 0 else 2)
        if blk[4*i + 4] - 1 not in (Xa, X0, Xb, X1): G.pin(blk[4*i + 4] - 1, W(lgkm=['fr']))
    su = [I(f"v_accvgpr_read_b32 v{V_OA[0]}, a{A_ADR}"), I(f"v_add_u32 v{V_OA[2]}, 0x20000, v{V_OA[0]}")]
    for k, x in enumerate(su): G.pin(5, x)
    ds_stream(oaf_reads(0), 6, Xa - 4)
    h = paced(wo_dma(2), 2, int(OPT.get('fs', 3)))
    G.pin(Xa, W(lgkm=['fr', 'oaf0'])); G.pin(Xa, I("s_barrier"))
    h = paced(wo_dma(3), max(h[0], Xa) + 2, int(OPT.get('fs3', 3)), h)
    e0 = sg[(3, 1)] + 5
    su = [I(x) for x in (f"v_cmp_gt_u32 vcc, 0x100, v{V_L16}", f"v_accvgpr_read_b32 v{V_XR}, a{A_ADR+1}", f"v_accvgpr_read_b32 v{V_XW}, a{A_ADR+2}",
           f"v_cndmask_b32 v{V_MISC}, 0, 1.0, vcc", f"v_add_u32 v{V_OA[1]}, 0x10000, v{V_OA[0]}",
           f"s_lshl_b32 s{S_SO+1}, s{S_W}, 10", f"s_add_u32 s{S_SO+1}, s{S_SO+1}, s{S_RB}")]
    G.stream(su, 9, e0 - 1)
    G.stream([I(f"v_bfe_u32 v{V_MISC}, v{V_L16}, 4, 2"), I(f"v_lshlrev_b32 v{V_MISC}, 14, v{V_MISC}")], tm0 + 3, X0 - 1)
    for x in (I("s_cbranch_vccnz L_MARK"), I("L_MARKED:")): G.pin(tm0 - 1, x)
    STUBS.extend([I("L_MARK:"), I(f"v_mov_b32 v16, -1"), I(f"v_mov_b32 v17, s{S_RING}"), I(f"ds_write_b32 v17, v16 offset:8192"), I("s_waitcnt lgkmcnt(0)"), I("s_branch L_MARKED")])
    G.pin(X0, W(vm=['wo2'], lgkm=['fr'])); G.pin(X0, I("s_barrier"))
    G.pin(X0, I(f"ds_read_b32 v{V_MISC}, v{V_MISC} offset:8192", tag='mk', res_r=[('K1', True)]))
    FB = X0 + 6
    G.pin(FB - 2, W(lgkm=['mk'])); G.pin(FB - 2, I(f"v_cmp_eq_u32 vcc, -1, v{V_MISC}"))
    for x in (I("s_cbranch_vccnz L_FALLBACK0"), I("L_NOFB:")): G.pin(FB, x)
    STUBS.extend([I("L_FALLBACK0:"), I(f"s_cmp_lg_u32 s{S_PASS}, 0"), I("s_cbranch_scc1 L_NOFB"), I("s_branch L_FALLBACK")])
    o1 = oaf_reads(1)
    for x in o1: x.res_r = x.res_r + [('K0x', True)]
    ds_stream(o1 + oaf_reads(2), FB, Xb - 3)
    G.pin(Xb, W(lgkm=['fr', 'oaf2'])); G.pin(Xb, I("s_barrier"))
    G.pin(X1, W(vm=['wo3'], lgkm=['fr', 'ow0'])); G.pin(X1, I("s_barrier"))
    for half, g, pf in ((0, X1 + 1, p0), (1, X2 + 1, p2)):
        for qb in range(4):
            G.pin(pf + 8*qb - 1, W(lgkm=[f'of{half}_{qb}']))
            g = ds_stream(of_reads(half, qb), g, pf + 8*qb - 4)
            if (half, qb) != (1, 3): G.pin(g, I(f"v_xor_b32 v{V_XR}, {hx((32, 96, 32, 96 + 0x10000)[qb])}, v{V_XR}"))
            g += 1
        if half == 0: ds_stream(oaf_reads(3), p0, Xc - 3, 3)
    G.pin(Xc, W(vm=['wo4'] if EARLY4 else None, lgkm=['of0_3', 'oaf3'])); G.pin(Xc, I("s_barrier"))
    if EARLY4: ds_stream(oaf_reads(4), per[1][0], X2 - 2, 3)
    G.pin(X2, W(lgkm=['ow1'] + (['oaf4'] if EARLY4 else []))); G.pin(X2, I("s_barrier"))
    skip = set(int(x) for x in OPT.get('skip', '99').split(',') if x)
    for p in range(2, 15):
        lo, hi = per[p]
        q = p + 1
        lg = [f"oaf{q}"] if p > 2 else ['of1_3']
        if EARLY4 and p == 3:
            G.pin(hi, W(vm=['wo5'])); G.pin(hi, I("s_barrier")); continue
        if q < 15 and q not in skip:
            G.pin(hi, W(vm=[f"wo{q+2 if q+1 in skip else q+1}"], lgkm=lg)); G.pin(hi, I("s_barrier"))
        else:
            G.pin(hi, W(lgkm=lg))
        if p > 2:
            for k, x in enumerate(oaf_reads(q)): G.pin(lo + 1 + 3*(k // 2), x)
    h = paced(wo_dma(4) + wo_dma(5), Xb + 1, 4, h)
    h = paced(wo_dma(6) + wo_dma(7), max(h[0] + 4, Xc + 1), int(OPT.get('fs6', 4)), h)
    if EARLY4: h = paced(wo_dma(8), max(h[0] + 3, X2 + 1), int(OPT.get('fs6', 4)), h)
    pace = int(OPT.get('pace', 40)); ENDS = [h[0]]
    for k in range(7 if EARLY4 else 8):
        q = (9 if EARLY4 else 8) + k
        rel = q - 5 if not (EARLY4 and q == 9) else 3
        while rel in skip: rel += 1
        need = q - 1
        while need in skip: need -= 1
        lo = max(per[rel][0], min(per[3][0] + pace*k, per[need][0] - int(OPT.get('fm', 28)) - 32), h[0] + 2)
        step = max(2, min(pace // 8, (per[need][0] - int(OPT.get('fm', 28)) - lo) // 7))
        h = paced(wo_dma(q), lo, step, h); ENDS.append(h[0])
    items = []
    for qb in range(4):
        items += [I(f"v_accvgpr_read_b32 v{V_NT+qb}, a{A_L+4*qb}"), I(f"v_accvgpr_read_b32 v16, a{A_L+4*qb+1}"),
                  I(f"v_add_f32 v{V_NT+qb}, v{V_NT+qb}, v16")]
    items += [I(f"v_add_f32 v16, v{V_NT}, v{V_NT+1}"), I(f"v_add_f32 v17, v{V_NT+2}, v{V_NT+3}"), I(f"v_add_f32 v16, v16, v17"),
              I(f"v_cmp_ngt_f32 vcc, {hx(f2u(2.0**(40 - float(OPT.get('moff', 10)))))}, v16")]
    items += [I(f"v_rcp_f32 v{V_NT+qb}, v{V_NT+qb}") for qb in range(4)]
    G.stream(items, e0, tm0 - 2)
    h = (tm0 + 2, 2)
    def norm(i, qb):
        e = blk[4*i + qb] + 3 + 6
        st = V_STG + 16*((i >> 1) & 1) + 4*qb
        o = A_O + 16*i + 4*qb; T = V_NT
        seq = [I(f"v_accvgpr_read_b32 v{T+r}, a{o+r}") for r in range(4)]
        seq += [I(f"v_mul_f32 v{T+r}, v{T+r}, v{V_RL+4*qb+r}") for r in range(4)]
        seq += [I(f"v_cvt_pk_bf16_f32 v{st+2*(i&1)}, v{T}, v{T+1}"), I(f"v_cvt_pk_bf16_f32 v{st+2*(i&1)+1}, v{T+2}, v{T+3}")]
        return [(x, e) for x in seq]
    for hf, wpos in ((0, w1pos), (1, w2pos)):
        for k in range(8):
            u, qb = 2*hf + (k >> 2), k & 3
            st = V_STG + 16*(u&1) + 4*qb
            G.pin(wpos[k], I(f"ds_write2st64_b64 v{V_XW}, {vr(st, 2)}, {vr(st + 2, 2)} offset0:{16 + 8*(u&1)} offset1:{20 + 8*(u&1)}", tag=f'ow{hf}',
                             res_w=[('V1' if hf else 'K1', True)]))
            if (hf, k) != (1, 7): G.pin(wpos[k] + 1, I(f"v_xor_b32 v{V_XW}, {hx((32, 96)[k & 1] + (0x10000 if k == 7 else 0))}, v{V_XW}"))
    for hf, wpos in ((0, w1pos), (1, w2pos)):
        lo = h[0] + 1; span = wpos[7] - lo
        for k in range(8):
            u, qb = 2*hf + (k >> 2), k & 3
            its = norm(2*u, qb) + norm(2*u + 1, qb)
            if hf: its = [(x, max(e, w1pos[k] + 2)) for x, e in its]
            hi = min(wpos[k] - 1, max(lo + (span * (k + 1)) // 8, its[-1][1] + 4))
            h = G.stream(its, h[0] + 1, max(hi, h[0] + 3))
            assert h[0] < wpos[k]
    G.stream([I(f"v_accvgpr_read_b32 v{V_XT+k}, a{A_XT+k}") for k in range(8)] + [I(f"v_accvgpr_read_b32 v{16 + k}, a{A_Y7+k}") for k in range(12)], X2 - 3, X2 + 22)
    STP = []
    for ci in range(7):
        pl = PER.index((ci, 1))
        a = V_OACC + 16*(ci & 1)
        e0 = per[pl][0] + (20 if (ci < 2 or not OPT.get('asap')) else 2)
        items = [(I(x), e0) for x in (f"s_add_u32 s{S_SO}, s{S_G}, {1 + ci}", f"s_and_b32 s{S_SO}, s{S_SO}, 7", f"s_lshl_b32 s{S_SO}, s{S_SO}, {GS_S}",
                 f"s_add_u32 s{S_SO}, s{S_SO}, s{S_SO+1}", f"s_add_u32 s{S_SO+2}, s{S_SO}, {hx(PL)}", f"s_add_u32 s{S_SO+1}, s{S_SO+1}, {hx(2*PL)}")]
        st = V_STG + 8*(ci & 1)
        for half in range(2):
            e = per[pl][0] + 16*half + 15 + 6
            for q2 in range(2):
                eq = e - (5 if (q2 == 0 and OPT.get('asap')) else 0) - (1 if OPT.get('asap') else 0)
                for k in range(4*half + 2*q2, 4*half + 2*q2 + 2): items.append((I(f"v_cvt_pk_bf16_f32 v{st+k}, v{a+2*k}, v{a+2*k+1}"), eq))
                for k in range(4*half + 2*q2, 4*half + 2*q2 + 2): items.append((I(f"v_min_u32 v{st+k}, -2, v{st+k}"), eq))
            items.append((I(f"buffer_store_dwordx4 {vr(st+4*half)}, v{V_L16}, {sr(SRD_WS)}, s{S_SO + 2*half} offen {OPT.get('ssf', 'sc1').replace('+', ' ')}", tag='sst'), max(e, per[2][1] + 1)))
        if OPT.get('stal') and 0 < ci <= int(OPT.get('stmax', 6)):
            sts_ = [x for x, _ in items if x.kind == 'vst']
            hh = G.stream([it_ for it_ in items if it_[0].kind != 'vst'], e0, per[pl + 1][0] + 12)
            cand = [g for g in ENDS if g >= hh[0] - int(OPT['stal'])]
            g = max(cand[0] + 1, hh[0] + 1) if cand and cand[0] < per[pl + 1][0] + 48 else hh[0] + 1
            G.pin(g, sts_[0]); G.pin(g + 2, sts_[1]); STP.append(g + 2)
            continue
        G.stream(items, e0, per[pl + 1][0] + (int(OPT['asap']) if (ci == 6 and OPT.get('asap')) else 18))
    it = y_add(0, None, V_MX) + y_add(1, 16, V_MX) + y_add(0, 20, V_MX) + y_add(1, 24, V_MX)
    for q0 in range(0, 16, 4):
        T = V_NT
        it += [I(f"v_mul_f32 v{T+r}, {hx(f2u(-math.log2(math.e)/CF))}, v{V_YS+q0+r}") for r in range(4)]
        it += [I(f"v_exp_f32 v{T+r}, v{T+r}") for r in range(4)]
        it += [I(f"v_fma_f32 v{T+r}, v{T+r}, s{S_QS}, s{S_QS}" if OPT.get('fold') else f"v_add_f32 v{T+r}, 1.0, v{T+r}") for r in range(4)]
        it += [I(f"v_rcp_f32 v{T+r}, v{T+r}") for r in range(4)]
        it += [I(f"v_mul_f32 v{V_YS+q0+r}, v{V_YS+q0+r}, v{T+r}") for r in range(4)]
        if OPT.get('eps'): it += [I(f"v_mul_f32 v{V_YS+q0+r}, {hx(f2u(1 + float(OPT['eps'])))}, v{V_YS+q0+r}") for r in range(4)]
    V_XF = 144
    for h in range(2): it += [I(f"v_permlane16_swap_b32 v{V_XT+4*h}, v{V_XT+4*h+2}"), I(f"v_permlane16_swap_b32 v{V_XT+4*h+1}, v{V_XT+4*h+3}")]
    for k in range(8): it += [I(f"v_lshlrev_b32 v{V_XF+2*k}, 16, v{V_XT+k}"), I(f"v_and_b32 v{V_XF+2*k+1}, 0xffff0000, v{V_XT+k}")]
    it += xo_voff(3, 2)
    it += [I(x) for x in (f"v_bfe_u32 v0, v{V_L16}, 6, 2", f"v_lshrrev_b32 v1, 8, v{V_L16}", "v_cmp_eq_u32 vcc, v0, v1",
           f"v_and_b32 v0, 16, v{V_L16}", "v_mov_b32 v1, 0x3f80", "v_lshlrev_b32 v0, v0, v1", "v_cndmask_b32 v0, 0, v0, vcc",
           f"v_and_b32 v1, 32, v{V_L16}", "v_cmp_eq_u32 vcc, 0, v1", f"v_mov_b32 v{V_SEL}, 0", f"v_mov_b32 v{V_SEL+1}, 0",
           f"v_cndmask_b32 v{V_SEL+2}, 0, v0, vcc", f"v_mov_b32 v{V_SEL+4}, 0", f"v_sub_u32 v{V_SEL+3}, v0, v{V_SEL+2}", f"v_mov_b32 v{V_SEL+5}, 0")]
    NE_ = int(OPT.get('ne5', 4))
    lds_ = [float(x) for x in OPT.get('lds', '6.6,8.6,10.6,12.6,14.6,14.6').split(',')]
    h = None
    for st in range(len(lds_)):
        g = per[0][0] + int(32*lds_[st])
        if OPT.get('ldal') and st + 1 < len(STP) and st < 4: g = STP[st + 1] + 2
        g = max(g, h[0] + 1 if h else 0)
        h = G.stream(sp_load(st), g, g + 5)
    G.stream(it, per[4][0], per[14][1])
    def chk(sts):
        regs = [V_SP(st) + k for st in sts for k in range(8)]
        out = [I(f"v_max_u32 v{V_MX}, v{regs[0]}, v{regs[1]}")]
        for k in range(2, len(regs), 2): out.append(I(f"v_max3_u32 v{V_MX}, v{V_MX}, v{regs[k]}, v{regs[k+1]}"))
        return out + [I(f"v_cmp_eq_u32 vcc, -1, v{V_MX}")]
    c0 = chk(range(NE_))
    G.stream([I(f"s_mov_b32 s{S_SPIN}, 0x40000"), W(vm=[f"sp{NE_-1}"])] + c0, per[15][1] - len(c0)//2 - 4, per[15][1] - 1)
    if OPT['stamps']:
        for x in stamp(9): G.pin(p0 - 1, x, post=True)
    for k in range(16): ministamp(G, per[k][1], 48 + k)
    print(f"; finale est cycles {G.cycles()} (pv part {G.cyc(0, p0-1)}, periods {[G.cyc(a, b) for a, b in per]})", file=sys.stderr)
    L = with_m0_pad(G.flat()); A = lambda t, **k: L.append(I(t, **k))
    if len(lds_) < 7: L += sp_load(6)
    elif OPT.get('dual'): L += sp_load(7)
    L += stamp(10)
    acc = V_OACC + 16; U = 160
    groups = [list(range(NE_))] + [[st] for st in range(NE_, 7)]
    for n_, sts in enumerate(groups):
        A(f"s_cbranch_vccnz L_RETRY{n_}"); A(f"L_GO{n_}:")
        mm = [mf(vr(acc + 4*qb), vr(V_SEL + (0 if qb & 1 else 2)), vr(V_SP(st) + 4*(qb >> 1)), vr(acc + 4*qb)) for qb in range(4) for st in sts]
        nx = [W(vm=[f"sp{groups[n_+1][0]}"])] + chk(groups[n_ + 1]) + [I("s_nop 1")] if n_ + 1 < len(groups) else [I("s_nop 7")]
        L += mm + nx
        STUBS.append(I(f"L_RETRY{n_}:"))
        if sts == [6] and OPT.get('dual'):
            L.insert(len(L) - 1, I("L_DONE6:"))
            m7 = [mf(vr(acc + 4*qb), vr(V_SEL + (0 if qb & 1 else 2)), vr(V_SP(7) + 4*(qb >> 1)), vr(acc + 4*qb)) for qb in range(4)]
            STUBS.extend([I("s_waitcnt vmcnt(0)")] + chk([7]) + [I(f"s_sub_u32 s{S_SPIN}, s{S_SPIN}, 1"), I(f"s_cmp_le_i32 s{S_SPIN}, 0"), I("s_cbranch_scc1 L_RN7"),
                         I("s_cbranch_vccz L_RN7")] + sp_load(7) + [I(f"s_branch L_RETRY{n_}"), I("L_RN7:")] + m7 + [I("s_branch L_DONE6")])
            continue
        for st in sts:
            if len(sts) > 1: STUBS.extend(chk([st]) + [I("s_nop 3"), I(f"s_cbranch_vccz L_RN{st}")])
            STUBS.extend([I(f"L_RL{st}:")] + sp_load(st) + [I(f"s_sub_u32 s{S_SPIN}, s{S_SPIN}, 1"), I("s_waitcnt vmcnt(0)")] + chk([st]) +
                         [I(f"s_cmp_le_i32 s{S_SPIN}, 0"), I(f"s_cbranch_scc1 L_RN{st}"), I("s_nop 1"), I(f"s_cbranch_vccnz L_RL{st}"), I(f"L_RN{st}:")])
        STUBS.append(I(f"s_branch L_GO{n_}"))
    for k in range(8): A(f"v_pk_fma_f32 {vr(acc+2*k,2)}, {vr(acc+2*k,2)}, {vr(V_YS+2*k,2)}, {vr(V_XF+2*k,2)}")
    for k in range(8): A(f"v_cvt_pk_bf16_f32 v{U+k}, v{acc+2*k}, v{acc+2*k+1}")
    for h in range(2):
        A(f"v_permlane16_swap_b32 v{U+4*h}, v{U+4*h+2}"); A(f"v_permlane16_swap_b32 v{U+4*h+1}, v{U+4*h+3}")
    for h in range(2): A(f"buffer_store_dwordx4 {vr(U+4*h)}, v3, {sr(SRD_OUT)}, s{S_XO+h} offen {OPT.get('outf', '').replace('+', ' ')}", tag='out')
    return L

def fallback():
    L = []; A = lambda t, **k: L.append(I(t, **k))
    A("L_FALLBACK:")
    A("s_waitcnt vmcnt(0) lgkmcnt(0)"); A("s_nop 7")
    A(f"s_mov_b32 s{S_PASS}, 1")
    A(f"s_mov_b32 s{SRD_WS2+2}, 0")
    A(f"s_lshl_b32 s{S_KO}, s{S_W}, 13"); A(f"s_add_u32 s{S_KO+1}, s{S_KO}, 4096")
    for qb in range(4): A(f"v_mov_b32 v{V_NEGM+4*qb}, 0xff800000")
    A(f"s_mov_b32 s{S_CNT}, 17")
    A("L_FB_LOOP:")
    A("s_waitcnt vmcnt(0) lgkmcnt(0)"); A("s_barrier")
    A(f"s_cmp_lg_u32 s{S_CNT}, 1"); A("s_cbranch_scc1 L_FB_NR")
    A(f"s_lshl_b32 s{S_KO}, s{S_W}, 13"); A(f"s_add_u32 s{S_KO+1}, s{S_KO}, 4096")
    A("L_FB_NR:")
    L += with_m0_pad(kv_dma('K', 0, 0, 'kv') + kv_dma('K', 1, 0, 'kv'))
    A("s_waitcnt vmcnt(0)"); A("s_barrier")
    for kt in range(8):
        L += k_reads(kt, 0); A("s_waitcnt lgkmcnt(0)")
        for qb in range(4):
            d = vr(V_P + 4*qb)
            for kk in range(4): L.append(mf(d, ar(A_KF + 16*(kt&1) + 4*kk), vr(V_Q + 16*qb + 4*kk), d if kk else "0"))
        A("s_nop 7")
        for qb in range(4):
            b = V_NEGM + 4*qb; d = V_P + 4*qb
            A(f"v_max3_f32 v{b}, v{b}, v{d}, v{d+1}"); A(f"v_max3_f32 v{b}, v{b}, v{d+2}, v{d+3}")
    A(f"s_add_u32 s{S_KO}, s{S_KO}, 0x8000"); A(f"s_add_u32 s{S_KO+1}, s{S_KO+1}, 0x8000")
    A(f"s_sub_u32 s{S_CNT}, s{S_CNT}, 1"); A(f"s_cmp_lg_u32 s{S_CNT}, 0"); A("s_cbranch_scc1 L_FB_LOOP")
    L += rowmax_finish()
    A(f"s_lshl_b32 s{S_VO}, s{S_W}, 13"); A(f"s_add_u32 s{S_VO+1}, s{S_VO}, 4096")
    L += with_m0_pad(kv_dma('K', 0, 1, 'kv') + kv_dma('K', 1, 1, 'kv') + kv_dma('V', 0, 0, 'kv') + kv_dma('V', 1, 0, 'kv'))
    L += k_reads(0, 0); A("s_waitcnt lgkmcnt(0)")
    for k in range(4): A(f"s_add_u32 s{S_KO+k}, s{S_KO+k}, 0x8000")
    L += attn_setup()['pre']
    L += attn_iter0()
    A("s_branch L_IT1")
    return L

def build():
    d = OPT['dump']
    p0 = phase0(); p1 = phase1()
    su = stamp(4) + (stamp(5) if not OPT.get('fine') else []) + stamp(6)
    it0 = []
    g1 = attn_iter(1, first_pv=True); ge, go = attn_iter(0, vmtags=('kv', 'yst')), attn_iter(1, vmtags=('kv', 'fill'))
    go.pin(len(go) - 5, I(f"s_sub_u32 s{S_CNT}, s{S_CNT}, 1")); go.pin(len(go) - 4, I(f"s_cmp_lg_u32 s{S_CNT}, 0"))
    if not OPT.get('nobr'):
        w_ = go.g[len(go) - 1][0].pop(); assert w_.kind == 'wait'; go.pin(len(go) - 2, w_)
    it1_extras(g1); loop_extras(ge, go)
    if OPT.get('trip'):
        for G_, base in ((ge, 32), (go, 48)):
            for x in (I(f"s_memtime s[{S_STAMP}:{S_STAMP+1}]"), I(f"s_add_u32 s98, s{S_CNT}, {base}"), I("s_waitcnt lgkmcnt(0)"), I(f"v_mov_b32 v{V_YT}, s{S_STAMP}"), I(f"v_lshrrev_b32 v{V_CNT if G_ is go else V_YT}, 0, v{V_YT}")): pass
            for x in (I(f"s_memtime s[{S_STAMP}:{S_STAMP+1}]"), I(f"s_mov_b32 s101, m0"), I(f"s_add_u32 m0, s{S_CNT}, {base}"), I("s_waitcnt lgkmcnt(0)"), I(f"v_writelane_b32 v63, s{S_STAMP}, m0"), I("s_nop 1"), I("s_mov_b32 m0, s101")): G_.pin(G_.sg[6], x, post=True)
    print(f"; attn iter est cycles {ge.cycles()} {go.cycles()} (it1 {g1.cycles()})", file=sys.stderr)
    if OPT.get('idle'): su = su + [I("s_nop 15")] * (int(OPT['idle']) // 64)
    if OPT.get('idlel'):
        for k in range(int(OPT['idlel'])): ge.pin(ge.sg[k], I("s_nop 15"), post=True); go.pin(go.sg[k], I("s_nop 15"), post=True)
    it1 = [I("L_IT1:")] + with_m0_pad(g1.flat()) + [I(f"s_mov_b32 s{S_CNT}, 7")] + stamp(7)
    loop = [I(".p2align 6"), I("L_LOOP:")] + ge.flat() + go.flat() + [I("s_cbranch_scc1 L_LOOP")]
    last = [I("L_FIN:")] + stamp(8) + finale()
    if OPT['stamps']: last += [I(f"v_writelane_b32 v63, s{S_SPIN}, 15")]
    last += stamp(11 if not OPT.get('fine') else 14, True)
    op = []
    fb = fallback()
    end = [I("L_END:"), I("s_endpgm")]
    if d == 'q': body = p0 + p1 + dump_regs([vr(V_Q + 4*i) for i in range(16)] + [ar(144 + 4*i) for i in range(28)]) + end; trace = body
    else:
        C = lambda t: [I("; ==== " + t)]
        body = (C("set-up, x load, LayerNorm, exchange") + p0 + C("w1 / wq / w2 GEMMs, row-max seed, first QK pass") + p1 + su + it0 +
                C("attention iteration 1") + it1 + C("attention iterations 2..15 (two per trip)") + loop +
                C("last PV pass, normalisation, O projection, reduce-scatter tail") + last + end + C("out-of-line waits and once-per-launch work") + STUBS +
                C("exact-max fallback") + fb)
        trace = p0 + p1 + su + it0 + it1 + loop*3 + last
        k = [i for i, x in enumerate(last) if x.text == "s_cbranch_vccnz L_FALLBACK0"][0]
        trace2 = p0 + p1 + su + it0 + it1 + loop*2 + last[:k+1] + fb + it0 + it1 + loop + last
        resolve_waits(trace2)
    resolve_waits(trace)
    e = check(trace, verbose=False)
    if d is None: e += check(trace2, verbose=False)
    seen = set()
    e = [x for x in e if 's_memtime' not in x]
    for x in e[:6]: print("CHECK:", x, file=sys.stderr)
    if e: print("FAILED CHECK", len(e), file=sys.stderr); sys.exit(1)
    def in_gemm(x): return id(x) in gset
    gset = set(id(x) for x in p1)
    if OPT.get('halfdma'): body = [x for x in body if not (in_gemm(x) and x.kind == 'dma' and x.tag.startswith('st') and ('offset:1024' in x.text or 'offset:3072' in x.text))]
    if OPT.get('drop'): body = [x for x in body if not (id(x) in set(id(y) for y in loop) and x.tag in OPT['drop'].split(','))]
    if OPT.get('dropf'): body = [x for x in body if not (id(x) in set(id(y) for y in last) and ((x.tag and any(x.tag.startswith(t) for t in OPT['dropf'].split(','))) or 'L_RETRY' in x.text or ('bar' in OPT['dropf'] and x.kind == 'barrier')))]
    if OPT.get('nosst'): body = [x for x in body if x.tag not in ('sst', 'fill')]
    if OPT.get('noy'): body = [x for x in body if x.tag not in ('y0', 'y1')]
    if OPT.get('nodma'): body = [x for x in body if not (in_gemm(x) and x.kind == 'dma')]
    if OPT.get('novalu'): body = [x for x in body if not (in_gemm(x) and x.kind in ('valu', 'trans', 'perm') and any(k in x.text for k in ('f32', 'accvgpr', 'permlane')))]
    if OPT.get('nomfma'): body = [x for x in body if not (in_gemm(x) and x.kind == 'mfma')]
    if OPT.get('nods'): body = [x for x in body if not (in_gemm(x) and x.kind == 'dsr' and 'b32' not in x.text)]
    return body

def kdesc(name, vg, acc):
    return f""".amdhsa_kernel {name}
  .amdhsa_next_free_vgpr {vg}
  .amdhsa_next_free_sgpr 102
  .amdhsa_accum_offset {acc}
  .amdhsa_group_segment_fixed_size 0
  .amdhsa_kernarg_size 104
  .amdhsa_user_sgpr_count 2
  .amdhsa_user_sgpr_kernarg_segment_ptr 1
  .amdhsa_system_sgpr_workgroup_id_x 1
  .amdhsa_float_denorm_mode_32 3
.end_amdhsa_kernel"""


HEADER = """; Fused  out = x + Attn(LN(x)) * silu(MLP(LN(x)))  for gfx950, one launch, 256 workgroups x 4 waves (1 wave/SIMD, 512 regs).
; Generated by my own script (hand-designed schedule: every non-matrix instruction is placed in the issue gaps of a
; v_mfma_f32_16x16x32_bf16 backbone; waits and hazards are derived and checked by the script).
;
; Workgroup = (kv group g, 64 rows r); wave w = query head 4g+w.
;     c = log2(e)/sqrt(128); the gelu / silu constants divide it out again.
;  2. h = gelu_tanh(xn w1[:,224g..224g+224) + b1), Q = xn wq[:,512g..), y_partial = h w2[224g..,:]; weights stream
;     L2 -> LDS by DMA and are read transposed.
;  3. Attention over 16 tiles of 128 keys: S = K Q^T - shift (shift enters as the MFMA C operand), P = exp2(S) in bf16,
;     O += P V, row sums l of the same bf16 P by a sparse MFMA.
;     shift = (true max of the row over the first 16 keys) + 10, so l >= 2^-10 and terms down to 2^-116 of the row
;     keys (L_FALLBACK) and redoes the attention with it.
;  4. O/l is exchanged through LDS, s_partial = O wo[512g..,:] chunk by chunk; chunk d goes to workgroup (d, r).
;  5. Workgroup (g, r) sums the 8 y and 8 s partials of output columns 64g..64g+64 and writes out.
; Hand-offs between workgroups use d_ws with write-through (sc1) stores and sc1 loads only:
;  - y: published before the first add to the row block's counter in d_debug, read after the counter is seen >= 8;
;  - s: every receiver first overwrites its 7 slots with all-ones words (second add, senders wait for counter == 16),
;    senders never store an all-ones word, receivers re-read a slot until no all-ones word is left.
; Nothing depends on XCD placement except speed (cache / TLB warm-up touches, id -> (g, r) mapping).
"""

def render(body):
    K1 = NAME + "_kernel"
    out = [HEADER + f"; @launch grid=(256,1,1) block=(256,1,1) lds=163840",
           '.amdgcn_target "amdgcn-amd-amdhsa--gfx950"', ".text"]
    out += [f".globl {K1}", ".p2align 12", ".p2align 8", f".type {K1},@function", f"{K1}:"] + [x.emit() for x in body]
    out += ['.section .rodata,"a"', ".p2align 6", kdesc(K1, 512, 256)]
    return "\n".join(out).replace("CODE_LEFT", "L_END-L_PC2") + "\n"

def addresses(body):
    import subprocess, tempfile, os
    d = tempfile.mkdtemp()
    marked = []
    for n, x in enumerate(body):
        if x.kind == 'mfma' or x.text == "L_END:": marked.append(I(f"ZZ{n}:"))
        marked.append(x)
    txt = re.sub(r'(s_c?branch\w*) L_PAD\w+', r'\1 L_END', render(marked))
    open(d + "/a.s", "w").write(txt)
    subprocess.check_call(["clang", "-x", "assembler", "-target", "amdgcn-amd-amdhsa", "-mcpu=gfx950", "-c", d + "/a.s", "-o", d + "/a.o"])
    o = subprocess.check_output(["llvm-objdump", "-t", d + "/a.o"], text=True)
    return {int(m.group(2)): int(m.group(1), 16) for m in re.finditer(r'^([0-9a-f]+) .*ZZ(\d+)$', o, re.M)}

body = build()
if OPT.get('hop'):
    PRE = 0x300
    offs = [int(x) for x in str(OPT['hop']).split(',')] if OPT['hop'] is not True else [0]
    k = 0; b = 0x2000 - PRE + 0x1000 * int(OPT.get('hop0', 0))
    while True:
        stop = False
        for off in offs:
            ad = addresses(body)
            endi = [n for n, x in enumerate(body) if x.text == "L_END:"][0]
            cand = [n for n in sorted(ad) if n < endi and ad[n] + 8 >= b + off]
            if not cand: stop = True; break
            n = cand[0]
            body[n+1:n+1] = [I(f"L_PAD{k}:"), I(f"s_cbranch_execz L_PADN{k}")]
            k += 1
        if stop: break
        b += 0x1000
    if OPT.get('rpad'):
        labs = [i for i, x in enumerate(body) if re.match(r'L_RETRY\d+:', x.text)]
        for n in sorted(labs[-int(OPT['rpad']):], reverse=True):
            body[n+1:n+1] = [I(f"L_PAD{k}:"), I(f"s_cbranch_execz L_PADN{k}")]; k += 1
    for x in body:
        m_ = re.match(r's_cbranch_execz L_PADN(\d+)', x.text)
        if m_:
            t = int(m_.group(1)) + 4
            x.text = f"s_cbranch_execz L_PAD{t}" if t < k else "s_cbranch_execz L_PADX"
    print(f"; {k} pads", file=sys.stderr)
print(render(body))
```

```python
import sys, struct, math, re
from asmlib import *

NAME = "recurrent_scan__gqa_block_cached__dense_activation_gelu__prompt"
OPT = dict(dump=None, stamps=False, G='2', pfs='128', s2='8', s2b='12', kvrows='256', stag=False, q1='early', nw='8', ne='3', xe='8', pvx='2', cearly=True, c0='4', hop=True, hop0='1', hopat='g30', prearly=True, w2s='4', xc='27', asap='7', ev='6.45:l0,s2;8.45:l1,s3;10.45:l2,s4;13.05:l3,s5', lds='0,0,0,0,14.45,15.2', fold=True, rel=True, gl='28', alap='999', w1f='17', norot=True, nokt=True)
for a in sys.argv[1:]:
    k, _, v = a.partition('=')
    OPT[k] = (False if v == 'off' else v) if v else True

NT = lambda k: ' nt' if k in OPT.get('nt', '') else ''
GG = int(OPT['G']); LG = GG.bit_length() - 1
CQ = 128**-0.5 * math.log2(math.e)
CF = CQ if OPT.get('fold') else 1.0
def f2u(x): return struct.unpack('<I', struct.pack('<f', x))[0]
def hx(x): return f"0x{x & 0xffffffff:x}"
def vr(b, n=4): return f"v[{b}:{b+n-1}]" if n > 1 else f"v{b}"
def ar(b, n=4): return f"a[{b}:{b+n-1}]" if n > 1 else f"a{b}"
def sr(b, n=4): return f"s[{b}:{b+n-1}]" if n > 1 else f"s{b}"

S_W = 3
SRD_X, SRD_K, SRD_V, SRD_WQ, SRD_WO, SRD_W1, SRD_W2, SRD_WS, SRD_OUT, SRD_B1, SRD_B2, SRD_DBG = range(4, 52, 4)
S_G, S_R = 52, 53
S_SM1, S_SMQ, S_SM2 = 54, 57, 60
S_RING = 63
S_KO = 64
S_VO = 66
S_CNT, S_PASS = 68, 69
S_QS, S_GB = 70, 71
S_YO = 72
S_T = 76
S_PF = 99
SRD_WS2 = 80
S_CB, S_CB2, S_SPIN = 84, 85, 86
S_STAMP = 96

V_KA, V_VA, V_DV, V_SPI, V_L16 = 0, 4, 12, 14, 15
V_NEGM, V_S, V_SPA = 16, 32, 44
V_T = 48
V_Q, V_P = 64, 128
V_WA = 4
V_AF = 16
V_W1, V_WQ, V_W2, V_GA = 48, 49, 50, 51
V_ACCA, V_ACCB = 128, 192
V_B1 = 64
def XN(ks, qb): return ((15 - ks) * 4 + qb) * 4
A_O, A_L, A_KF, A_VF = 0, 128, 144, 176
A_SPA, A_FILL, A_XT, A_PF, A_WOB, A_Y7 = 208, 212, 216, 224, 225, 228
V_YB, V_YS, V_YT, V_PFO, V_CNT, V_WOB = 40, 44, 60, 61, 60, 62
SRD_ARR = 40
S_CODE, S_AO, S_Y7, S_Y7S, S_IM, S_IS = 16, 18, 24, 27, 30, 31
A_ADR = 240
S_KT, S_NEED, S_CL = 75, 58, 59
S_CA, S_YI, S_YL, S_FO, S_XO = 87, 88, 89, 90, 91

LDS_V, LDS_X = 65536, 131072
WS_S, WS_Y, WS_DUMP = 0, 16 << 20, 64 << 20
RB = int(OPT.get('rb', 32)); LB = RB.bit_length() - 1; PL = RB << 15; PS = LB + 15
WSO = int(OPT.get('wso', 0)) << 20
S_RB, S_LIM = 60, 61
LAY = OPT.get('lay', '21')
GS_S, GS_Y = (12 if LAY[0] == '1' else 12 + LB), (10 if LAY[1] == '1' else 12 + LB)
S_RBY = 62

mf = lambda d, a, b, c: I(f"v_mfma_f32_16x16x32_bf16 {d}, {a}, {b}, {c}")

segs = {}
def stamp(i, last=False):
    if not OPT['stamps']: return []
    L = [I(f"s_memtime s[{S_STAMP}:{S_STAMP+1}]"), I(f"s_memrealtime s[100:101]"), I("s_waitcnt lgkmcnt(0)"),
         I(f"v_writelane_b32 v63, s{S_STAMP}, {i}"), I(f"v_writelane_b32 v63, s100, {16+i}")]
    if last:
        L += [I("s_lshl_b32 s98, s2, 2"), I(f"s_add_u32 s98, s98, s{S_W}"), I("s_lshl_b32 s98, s98, 8"), I(f"s_add_u32 s98, s98, {hx(WS_DUMP)}"),
              I(f"v_lshrrev_b32 v62, 2, v{V_L16}"), I(f"buffer_store_dword v63, v62, {sr(SRD_WS)}, s98 offen", tag='stamp')]
    return L

def dstamp(name):
    pts = str(OPT.get('ds', '')).split(',')
    if name not in pts: return []
    r = (96, 100)[pts.index(name)]
    x = I(f"s_memtime s[{r}:{r+1}]"); x.kind = 'salu'; x.wr = set(); x.text = x.text
    return [x]
def ministamp(G, gap, lane):
    if not OPT.get('mini'): return
    if OPT['mini'] == 'rt':
        if lane >= 48: return
        for x in (I(f"s_memtime s[{S_STAMP}:{S_STAMP+1}]"), I("s_memrealtime s[100:101]"), I("s_waitcnt lgkmcnt(0)"), I(f"v_writelane_b32 v63, s{S_STAMP}, {lane}"), I(f"v_writelane_b32 v63, s100, {lane+16}")): G.pin(gap, x, post=True)
        return
    for x in (I(f"s_memtime s[{S_STAMP}:{S_STAMP+1}]"), I("s_waitcnt lgkmcnt(0)"), I(f"v_writelane_b32 v63, s{S_STAMP}, {lane}")): G.pin(gap, x, post=True)

def dump_regs(groups):
    L = [I("s_waitcnt vmcnt(0) lgkmcnt(0)"), I("s_nop 7"), I("s_nop 7")]
    L += [I(f"s_lshl_b32 s{S_T}, s2, 2"), I(f"s_add_u32 s{S_T}, s{S_T}, s{S_W}"),
          I(f"s_mul_i32 s{S_T}, s{S_T}, {len(groups)*1024}"), I(f"s_add_u32 s{S_T}, s{S_T}, {hx(WS_DUMP)}")]
    for g in groups:
        L.append(I(f"buffer_store_dwordx4 {g}, v{V_L16}, {sr(SRD_WS)}, s{S_T} offen"))
        L.append(I("s_nop 3"))
        L.append(I(f"s_add_u32 s{S_T}, s{S_T}, 1024"))
    L += [I("s_waitcnt vmcnt(0)"), I("s_endpgm")]
    return L

def srd(L, base, p, nbytes):
    L += [I(f"s_mov_b32 s{base}, s{p}"), I(f"s_mov_b32 s{base+1}, s{p+1}"),
          I(f"s_mov_b32 s{base+2}, {hx(nbytes)}"), I(f"s_mov_b32 s{base+3}, 0x20000")]

def dma_w(srdb, vreg, sm, i, tag, res):
    so = "0" if (i & 3) == 0 else f"s{sm + (i & 3) - 1}"
    off = f" offset:{(i & 3) * 1024}" if i & 3 else ""
    return I(f"buffer_load_dwordx4 v{vreg}, {sr(srdb)}, {so} offen{off} lds", tag=tag, res_w=res)

STAGES = []
for kq in range(8): STAGES.append(dict(m='w1', srd=SRD_W1, v=V_W1, stride=3584, nks=2, ks0=2*kq, acc=V_ACCA, first=kq == 0, col=0))
for hq in range(2):
    for kq in range(8): STAGES.append(dict(m='wq', srd=SRD_WQ, v=V_WQ, stride=8192, nks=2, ks0=2*kq, acc=V_ACCB, first=kq == 0, col=128*hq))
for hc in range(2):
    for kq in range(4): STAGES.append(dict(m='w2', srd=SRD_W2, v=V_W2, stride=1024, nks=2 if kq < 3 else 1, ks0=2*kq, acc=V_ACCA if hc == 0 else V_ACCB,
                                           first=kq == 0, col=512*hc))
def slot_off(s): return 8192 if (s & 3) in (0, 3) else 0
SLOTRES = ['K1', 'V0', 'K0', 'V1']
S_RS = 54
def stage_dma(s):
    st = STAGES[s]; L = []
    for j in range(st['nks']):
        for i in range(4):
            row = 32*(st['ks0'] + j) + (8*i if st['m'] == 'w2' else 16*(i & 1) + 4*(i >> 1))
            L.append(I(f"s_mov_b32 s{S_RS + i}, {hx(row*st['stride'] + st['col'] - 1024*i)}"))
            if i == 0: L.append(I(f"s_add_u32 m0, s{S_RING}, {hx(slot_off(s) + (s & 1) * 65536 + j * 4096)}"))
            off = f" offset:{i*1024}" if i else ""
            L.append(I(f"buffer_load_dwordx4 v{st['v']}, {sr(st['srd'])}, s{S_RS + i} offen{off} lds", tag=f"st{s}", res_w=[(f"slot{s&3}", False)]))
    return L

def with_m0_pad(L):
    out = []
    for i, x in enumerate(L):
        out.append(x)
        if 'm0' in x.wr and i + 1 < len(L) and L[i+1].kind == 'dma': out.append(I("s_nop 0"))
    return out

def interleave(main, extra, start=0, end=None):
    end = len(main) if end is None else end
    out = list(main[:start]); n = end - start; k = 0
    for i in range(n):
        out.append(main[start + i])
        while k < len(extra) and (k + 1) * n <= (i + 1) * len(extra) + 0:
            out.append(extra[k]); k += 1
    return out + extra[k:] + list(main[end:])

def touch(L, srdb, vtmp, sreg, ln, rowlines, rowstride, nrows, sbase_code, step=128):
    A = lambda t, **k: L.append(I(t, **k))
    per_row = rowlines * 128 // step
    rows_share = -(-nrows * GG // 128)
    total = per_row * rows_share
    lg = per_row.bit_length() - 1
    A(f"s_mul_i32 s{sreg}, s94, {rows_share * rowstride}")
    for t in sbase_code: A(t)
    if sbase_code: A(f"s_add_u32 s{sreg}, s{sreg}, s93")
    A(f"v_lshrrev_b32 v{vtmp}, {lg}, v{ln}")
    if total < 64: A(f"v_min_u32 v{vtmp}, {rows_share - 1}, v{vtmp}")
    A(f"v_mul_u32_u24 v{vtmp}, {rowstride}, v{vtmp}")
    A(f"v_and_b32 v32, {per_row - 1}, v{ln}")
    A(f"v_lshl_add_u32 v{vtmp}, v32, {step.bit_length() - 1}, v{vtmp}")
    out = []
    for k in range(max(1, -(-total // 64))):
        if k: out.append(I(f"v_add_u32 v{vtmp}, {(64 // per_row) * rowstride}, v{vtmp}"))
        out.append(I(f"buffer_load_dword v60, v{vtmp}, {sr(srdb)}, s{sreg} offen{NT({SRD_W1: '1', SRD_WQ: 'q', SRD_W2: '2', SRD_K: 'v'}[srdb])}", tag='pf'))
    return out

def lin_touch(srdb, sreg):
    step = int(OPT['pfs']); n = max(1, 4096 * GG // (64 * step))
    L = []
    for k in range(n):
        if k: L.append(I(f"s_add_u32 s{S_T+3}, s{sreg}, {k * 64 * step}"))
        L.append(I(f"buffer_load_dword v60, v61, {sr(srdb)}, s{S_T+3 if k else sreg} offen", tag='pf'))
    return L

LATE = {}
STUBS = []
V_XA = 53
def phase0():
    L = []
    A = lambda t, **k: L.append(I(t, **k))
    t0, t1, t2, t3, ln, n16, g4 = 33, 34, 35, 36, 37, 38, 39
    L += stamp(0)
    A(f"s_load_dwordx2 s[{SRD_X}:{SRD_X+1}], s[0:1], 0")
    KL = [I("s_load_dwordx16 s[64:79], s[0:1], 0"), I("s_load_dwordx8 s[80:87], s[0:1], 64"), I("s_load_dwordx2 s[88:89], s[0:1], 96")]
    if OPT.get('rel'): L += KL; KL = []
    A("s_cmp_ge_u32 s2, 256"); A("s_cbranch_scc1 L_END")
    A("s_getpc_b64 s[90:91]"); A("L_PC1:")
    c0 = OPT.get('c0', '4')
    if c0 != '0':
        A(f"v_lshlrev_b32 v58, {c0}, v0")
        A("global_load_dword v60, v58, s[90:91]", tag='pf')
    CE = [I(x) for x in ("s_lshl_b32 s93, s94, 11", "v_lshlrev_b32 v57, 3, v0", "v_add_u32 v57, s93, v57", "v_min_u32 v57, L_END-L_PC1, v57")]
    CE.append(I("global_load_dword v60, v57, s[90:91]", tag='pf'))
    A(f"s_lshr_b32 s94, s2, 3")
    if OPT.get('ms', 'a') == 'b': L += CE; CE = []
    A(f"s_and_b32 s{S_R}, s2, {GG-1}"); A(f"s_lshl_b32 s{S_R}, s{S_R}, {5 - LG}"); A(f"s_lshr_b32 s95, s94, {LG}"); A(f"s_add_u32 s{S_R}, s{S_R}, s95")
    A(f"s_lshl_b32 s{S_CL}, s{S_R}, 16")
    A(f"v_lshrrev_b32 v{t0}, 2, v0"); A(f"v_lshlrev_b32 v{t0}, 10, v{t0}")
    A(f"v_and_b32 v{t1}, 3, v0"); A(f"v_lshl_add_u32 v{t0}, v{t1}, 4, v{t0}")
    A(f"s_mov_b32 s{SRD_X+2}, {hx(2048*512*2)}"); A(f"s_mov_b32 s{SRD_X+3}, 0x20000")
    XL = [I(f"buffer_load_dwordx4 {vr(64+4*ks)}, v{t0}, {sr(SRD_X)}, s{S_CL} offen offset:{ks*64}", tag=f'x{ks}') for ks in range(16)]
    xe = int(OPT.get('xe', 8)); x0 = int(OPT.get('x0n', 2))
    A("s_waitcnt lgkmcnt(0)")
    L += dstamp('k') + XL[:x0] + dstamp('a')
    L += KL
    A(f"v_lshrrev_b32 v{t1}, 6, v0")
    A(f"v_and_b32 v{ln}, 63, v0")
    A(f"v_readfirstlane_b32 s{S_W}, v{t1}")
    SL = []
    if not OPT.get('nowalk'):
        slot = [7, 9, 11, 7, 0, 3, 6, 8, 1, 2, 4, 10, 12, 12, 12, 12]; lim = [0, 0, 0, 0, 7, 15, 6, 6, 15, 15, 15, 7, 0, 0, 0, 0]
        pk = lambda t: sum(v << (4*k) for k, v in enumerate(t))
        A("s_and_b32 s49, s94, 3"); A(f"s_lshl_b32 s50, s{S_W}, 2"); A("s_add_u32 s49, s49, s50"); A("s_lshl_b32 s49, s49, 2")
        A(f"s_mov_b32 s44, {hx(pk(slot) & 0xffffffff)}"); A(f"s_mov_b32 s45, {hx(pk(slot) >> 32)}"); A("s_lshr_b64 s[44:45], s[44:45], s49")
        A("s_and_b32 s44, s44, 15")
        if OPT.get('rel'): A("s_lshl_b32 m0, s44, 1"); A("s_nop 0"); A("s_movrels_b64 s[46:47], s[64:65]")
        else: A("s_lshl_b32 s44, s44, 3"); A("s_load_dwordx2 s[46:47], s[0:1], s44")
        A(f"s_mov_b32 s40, {hx(pk(lim) & 0xffffffff)}"); A(f"s_mov_b32 s41, {hx(pk(lim) >> 32)}"); A("s_lshr_b64 s[40:41], s[40:41], s49"); A("s_and_b32 s40, s40, 15")
        A("s_lshr_b32 s41, s94, 2"); A("s_lshl_b32 s41, s41, 1"); A("s_min_u32 s40, s40, s41"); A("s_lshl_b32 s40, s40, 18")
        A("s_lshl_b32 s41, s94, 20")
        if WSO: A(f"s_add_u32 s41, s41, {hx(WSO)}")
        A(f"s_cmp_eq_u32 s{S_W}, 3"); A("s_cselect_b32 s40, s41, s40")
        SL = [I("s_load_dword s98, s[46:47], s40")]
    if not OPT.get('rel'): A("s_waitcnt lgkmcnt(0)")
    sl = str(OPT.get('sll', '0'))
    if sl == '0': L += dstamp('w') + SL + CE + XL[x0:xe] + dstamp('b')
    if sl == '1': L += dstamp('w') + SL + XL[x0:xe] + CE + dstamp('b')
    if sl == '2': L += dstamp('w') + XL[x0:xe] + SL + CE + dstamp('b')
    if sl == '3': L += dstamp('w') + CE + XL[x0:xe] + SL + dstamp('b')
    A(f"s_and_b32 s{S_G}, s2, {7 & ~(GG-1)}"); A(f"s_and_b32 s93, s94, {GG-1}"); A(f"s_or_b32 s{S_G}, s{S_G}, s93")
    A(f"s_lshl_b32 s94, s95, 2"); A(f"s_add_u32 s94, s94, s{S_W}")
    A(f"s_lshl_b32 s{S_RING}, s{S_W}, 14")
    SQ = []
    if OPT.get('sw2'):
        A(f"s_mul_i32 s92, s94, {1792*GG}"); A(f"s_mul_i32 s93, s{S_G}, {224*1024}"); A("s_add_u32 s92, s92, s93")
        A("s_add_u32 s90, s80, s92"); A("s_addc_u32 s91, s81, 0")
        SQ = [I(f"s_load_dwordx2 s[100:101], s[90:91], {hx(128*k + 60)}") for k in range(14*GG)]
        for x in SQ: x.wr = set()
        n0 = int(OPT.get('sq0', 5)); L += SQ[:n0]; SQ = SQ[n0:]
    A(f"v_and_b32 v{n16}, 15, v{ln}")
    A(f"v_lshrrev_b32 v{g4}, 4, v{ln}")
    A(f"v_lshlrev_b32 v{V_L16}, 4, v{ln}")
    srd(L, SRD_W1, 76, 512*1792*2)
    if not OPT.get('nopf'):
        XL += touch(L, SRD_W1, 59, S_NEED, ln, 4, 3584, 512, [f"s_mul_i32 s93, s{S_G}, 448", "s_and_b32 s93, s93, 0xffffff80"])
    srd(L, SRD_WQ, 70, 512*4096*2); srd(L, SRD_B1, 78, 1792*2)
    A(f"v_and_b32 v{t1}, 7, v{ln}"); A(f"v_lshlrev_b32 v{t2}, 1, v{g4}"); A(f"v_xor_b32 v{t1}, v{t1}, v{t2}")
    A(f"v_lshlrev_b32 v{t1}, 4, v{t1}")
    A(f"v_lshrrev_b32 v{t2}, 5, v{ln}"); A(f"v_bfe_u32 v{t3}, v{ln}, 3, 2"); A(f"v_lshl_add_u32 v{t2}, v{t2}, 3, v{t3}")
    A(f"s_mul_i32 s92, s{S_G}, 448"); A("s_and_b32 s92, s92, 0xffffff80"); A(f"s_lshl_b32 s93, s{S_W}, 7"); A("s_add_u32 s92, s92, s93")
    A(f"v_mul_u32_u24 v{V_W1}, 3584, v{t2}"); A(f"v_add3_u32 v{V_W1}, v{V_W1}, v{t1}, s92")
    if not OPT.get('nozero'):
        A(f"s_mul_i32 s93, s{S_G}, 448"); A("s_sub_u32 s93, s92, s93")
        A(f"v_add_u32 v{t3}, s93, v{t1}"); A(f"v_cmp_lt_u32 vcc, 447, v{t3}"); A(f"v_mov_b32 v{t3}, 0x10000000"); A("s_nop 0")
        A(f"v_cndmask_b32 v{V_W1}, v{V_W1}, v{t3}, vcc")
    vb1 = 57
    A(f"v_lshlrev_b32 v{vb1}, 3, v{g4}"); A("s_mov_b32 s95, s92")
    b1l = [I(f"buffer_load_dwordx2 {vr(40+2*ct,2)}, v{vb1}, {sr(SRD_B1)}, s95 offen offset:{32*ct}", tag='b1') for ct in range(4)]
    A(f"s_lshl_b32 s93, s{S_G}, 19")
    A("s_add_u32 s66, s66, s93"); A("s_addc_u32 s67, s67, 0")
    A("s_add_u32 s68, s68, s93"); A("s_addc_u32 s69, s69, 0")
    srd(L, SRD_K, 66, 524288); srd(L, SRD_V, 68, 524288); srd(L, SRD_WO, 72, 4096*512*2)
    srd(L, SRD_W2, 80, 1792*512*2); srd(L, SRD_B2, 82, 1024); srd(L, SRD_OUT, 84, 2048*512*2)
    srd(L, SRD_DBG, 86, 256); srd(L, SRD_WS, 88, 1 << 28); srd(L, SRD_WS2, 88, 1 << 28)
    A(f"s_mul_i32 s{S_PF}, s94, {4096*GG}"); A(f"v_and_b32 v{V_PFO}, {8*GG - 1}, v{ln}"); A(f"v_lshlrev_b32 v{V_PFO}, 7, v{V_PFO}")
    A(f"s_lshl_b32 s93, s{S_G}, 19"); A(f"s_add_u32 s{S_PF}, s{S_PF}, s93")
    twq, twq1, tw2, tkv, tcode = [], [], [], [], []
    if not OPT.get('nopf'):
        if OPT.get('q1', 'late') == 'late':
            twq = touch(L, SRD_WQ, 58, 77, ln, 8, 8192, 512, [f"s_lshl_b32 s93, s{S_G}, 10"], step=256)
            assert len(twq) == 1
            twq1 = [I(twq[0].text + " offset:128", tag='pf')]
        else:
            assert OPT.get('cearly')
            twq = touch(L, SRD_WQ, 58, 77, ln, 8, 8192, 512, [f"s_lshl_b32 s93, s{S_G}, 10"])
        tw2 = touch(L, SRD_W2, 14, 78, ln, 8, 1024, 224, [f"s_mul_i32 s93, s{S_G}, {224*1024}"])
        tk = touch(L, SRD_K, 55, 79, ln, 2, 256, int(OPT.get('kvrows', 384)), [])
        tkv = tk + [I(x.text.replace(sr(SRD_K), sr(SRD_V)), tag='pf') for x in tk if x.kind == 'vld'][-1:]
        if not OPT.get('nocodepf') and not OPT.get('cearly'):
            A("s_getpc_b64 s[90:91]"); A("L_PC2:")
            A(f"s_lshr_b32 s93, s2, 3"); A(f"s_lshl_b32 s93, s93, 2"); A(f"s_add_u32 s93, s93, s{S_W}")
            A(f"s_lshl_b32 s93, s93, 9"); A(f"v_lshlrev_b32 v58, 3, v{ln}"); A("v_add_u32 v58, s93, v58")
            A("v_min_u32 v58, CODE_LEFT, v58")
            tcode = [I("global_load_dword v60, v58, s[90:91]" + NT('c'), tag='pf')]
    A(f"s_lshl_b32 s92, s{S_G}, 10"); A(f"s_lshl_b32 s93, s{S_W}, 8"); A("s_add_u32 s92, s92, s93")
    A(f"v_lshlrev_b32 v{V_WQ}, 13, v{t2}"); A(f"v_add3_u32 v{V_WQ}, v{V_WQ}, v{t1}, s92")
    A(f"s_mul_i32 s92, s{S_G}, {224*1024}"); A(f"s_lshl_b32 s93, s{S_W}, 7"); A("s_add_u32 s92, s92, s93")
    A(f"v_lshrrev_b32 v{t2}, 3, v{ln}"); A(f"v_lshlrev_b32 v{V_WOB}, 10, v{t2}"); A(f"v_add3_u32 v{V_W2}, v{V_WOB}, v{t1}, s92")
    A(f"s_lshl_b32 s92, s{S_G}, 19"); A(f"s_lshl_b32 s93, s{S_W}, 17"); A("s_add_u32 s92, s92, s93"); A(f"v_add3_u32 v{V_WOB}, v{V_WOB}, v{t1}, s92")
    A(f"v_lshrrev_b32 v{t1}, 2, v{ln}")
    A(f"v_lshlrev_b32 v{t1}, 7, v{t1}")
    A(f"v_and_b32 v{t2}, 3, v{ln}"); A(f"v_lshl_add_u32 v{t1}, v{t2}, 3, v{t1}")
    A(f"v_add_u32 v{t1}, s{S_RING}, v{t1}")
    A(f"v_bfe_u32 v{t2}, v{ln}, 3, 2")
    for ct in range(4):
        A(f"v_xor_b32 v{t3}, {ct}, v{t2}")
        A(f"v_lshl_add_u32 v{V_WA+ct}, v{t3}, 5, v{t1}")
        A(f"v_add_u32 v{V_WA+4+ct}, 0x10000, v{V_WA+ct}")
    A(f"v_and_b32 v{t1}, 7, v{ln}"); A(f"v_lshlrev_b32 v{t1}, 1, v{t1}"); A(f"v_xor_b32 v{t1}, v{t1}, v{g4}")
    A(f"v_lshlrev_b32 v{t2}, 8, v{n16}"); A(f"v_add_u32 v{t2}, {hx(LDS_X)}, v{t2}")
    for kk in range(4):
        A(f"v_xor_b32 v{t3}, {4*kk}, v{t1}")
        A(f"v_lshl_add_u32 v{V_KA+kk}, v{t3}, 4, v{t2}")
    A(f"v_lshlrev_b32 v{t1}, 1, v{g4}"); A(f"v_xor_b32 v{t1}, v{t1}, v{n16}"); A(f"v_lshlrev_b32 v{t2}, 8, v{g4}")
    A(f"v_lshl_add_u32 v{V_DV}, v{t1}, 4, v{t2}")
    A(f"v_xor_b32 v{V_DV+1}, 0x80, v{V_DV}")
    A(f"v_add_u32 v{V_XA+1}, {hx(LDS_X)}, v{V_DV}"); A(f"v_add_u32 v{V_XA}, {hx(65536 + 8192)}, v{V_DV}")
    A(f"v_and_b32 v{t1}, 3, v{ln}"); A(f"v_lshrrev_b32 v{t2}, 2, v{ln}"); A(f"v_lshlrev_b32 v{t3}, 1, v{t1}"); A(f"v_xor_b32 v{t2}, v{t2}, v{t3}")
    A(f"v_lshlrev_b32 v{t1}, 8, v{t1}"); A(f"v_lshl_add_u32 v{t1}, v{t2}, 4, v{t1}")
    A(f"s_lshl_b32 s92, s{S_W}, 13"); A(f"s_add_u32 s92, s92, {hx(LDS_X)}")
    A(f"s_add_u32 s93, s{S_RING}, {hx(65536 + 8192)}")
    A(f"s_and_b32 s85, s{S_G}, {1 if (GG > 1 and not OPT.get('norot')) else 0}")
    A("s_cselect_b32 s85, s92, s93"); A("s_cselect_b32 s86, s93, s92")
    A(f"v_add_u32 v{t2}, s85, v{t1}"); A(f"v_add_u32 v56, s86, v{t1}")
    A(f"v_and_b32 v52, 1, v{ln}"); A(f"v_bfe_u32 v{t1}, v{ln}, 1, 1"); A(f"v_sub_u32 v52, v52, v{t1}"); A("v_lshlrev_b32 v52, 3, v52")
    A(f"s_mov_b32 s{S_QS}, {hx(f2u(128**-0.5 * math.log2(math.e)))}")
    ga = -2*0.7978845608028654*math.log2(math.e)
    A(f"s_mov_b32 s{S_GB}, {hx(f2u(ga*0.044715/CF**3))}")
    A(f"v_mov_b32 v{V_GA}, {hx(f2u(ga/CF))}")
    A(f"s_lshr_b32 s92, s{S_R}, {LB}"); A(f"s_lshl_b32 s92, s92, {PS + 4}")
    if WSO: A(f"s_add_u32 s92, s92, {hx(WSO)}")
    A(f"s_add_u32 s{S_LIM}, s92, {hx(14*PL)}")
    A(f"s_and_b32 s93, s{S_R}, {RB - 1}")
    A(f"s_lshl_b32 s{S_RB}, s93, {15 if LAY[0] == '1' else 12}"); A(f"s_add_u32 s{S_RB}, s{S_RB}, s92")
    A(f"s_lshl_b32 s{S_RBY}, s93, {15 if LAY[1] == '1' else 12}"); A(f"s_add_u32 s{S_RBY}, s{S_RBY}, s92"); A(f"s_add_u32 s{S_RBY}, s{S_RBY}, {hx(WS_Y)}")
    A(f"s_lshl_b32 s92, s{S_W}, {13 if LAY[1] == '1' else 10}"); A(f"s_lshl_b32 s93, s{S_G}, {GS_Y}"); A("s_add_u32 s92, s92, s93"); A(f"s_add_u32 s{S_YO}, s92, s{S_RBY}")
    A(f"s_lshl_b32 s92, s{S_W}, 10"); A(f"s_lshl_b32 s93, s{S_G}, {GS_S}"); A("s_add_u32 s92, s92, s93"); A(f"s_add_u32 s{S_CB}, s92, s{S_RB}")
    if OPT.get('perm'): A("s_mov_b32 s75, 0x07060302")
    A(f"s_mov_b32 s{S_PASS}, 0")
    A(f"s_lshl_b32 s{S_KO}, s{S_W}, 13"); A(f"s_add_u32 s{S_KO+1}, s{S_KO}, 4096")
    A(f"s_mov_b32 s{S_VO}, s{S_KO}"); A(f"s_mov_b32 s{S_VO+1}, s{S_KO+1}")
    HOP = []
    if OPT.get('hop'):
        HOP = [I("s_mov_b64 exec, 0")]
        for w in range(3): HOP += [I(f"s_cmp_eq_u32 s{S_W}, {w}"), I(f"s_cbranch_scc1 L_PAD{w}")]
        HOP += [I("s_branch L_PAD3"), I("L_PADX:"), I("s_mov_b64 exec, -1")]
    if SQ: n1_ = int(OPT.get('sq1', 3)); L += SQ[:n1_]; SQ = SQ[n1_:]; tw2 = []
    sd = int(OPT.get('sd', 0)); DEF = []
    if sd: DEF = L[-sd:]; del L[-sd:]
    L += (stamp(1) if not OPT.get('ds') else dstamp('c')) if not OPT.get('nost1') else []
    F = 128
    sa, qa = 16, 24
    if OPT.get('kvp', '1') == '1': LATE['kv'] = tkv; tkv = []
    if OPT.get('s2'): LATE['q1'] = twq1; LATE['w2'] = tw2 + tkv; tw2 = []; tkv = []
    D = [stage_dma(s) for s in range(3)]
    NE = int(OPT.get('ne', 2))
    vq = XL[xe:] + tcode + b1l + sum(D[:NE], [])
    def pop_vm(n):
        out = []
        while vq and n > 0:
            x = vq.pop(0); out.append(x)
            if x.kind in ('dma', 'vld'): n -= 1
        return with_m0_pad(out)
    for ks in range(16):
        L.append(W(vm=[f'x{ks}']))
        L += dstamp(f'x{ks}')
        if OPT.get('fine') and ks == 15: L += stamp(5)
        L += pop_vm(int(OPT.get('pv', 1)) + (int(OPT.get('pvx', 0)) if ks == 0 else 0))
        if str(ks) == OPT.get('hopat', 'w'): L += HOP
        for i in range(4*ks, 4*ks + 4):
            A(f"v_lshlrev_b32 v{F+2*i}, 16, v{64+i}")
            A(f"v_and_b32 v{F+2*i+1}, 0xffff0000, v{64+i}")
        for i in range(4*ks, 4*ks + 4):
            k = i & 3
            x = vr(F+2*i, 2)
            if i < 4:
                A(f"v_pk_mul_f32 {vr(qa+2*k,2)}, {x}, {x}")
            else:
                src = vr(F+2*k, 2) if i < 8 else vr(sa+2*k, 2)
                A(f"v_pk_add_f32 {vr(sa+2*k,2)}, {src}, {x}")
                A(f"v_pk_fma_f32 {vr(qa+2*k,2)}, {x}, {x}, {vr(qa+2*k,2)}")
        if SQ: L.append(SQ.pop(0))
        nst = int(OPT.get('sdn', 5))
        if ks < nst: L += DEF[len(DEF)*ks//nst:len(DEF)*(ks+1)//nst]
    if SL and not OPT.get('sw2'): A("s_waitcnt lgkmcnt(0)")
    if OPT.get('ds'): A("v_writelane_b32 v63, s96, 12"); A("v_writelane_b32 v63, s100, 13")
    if not OPT.get('sw2'): L += stamp(2)
    M = []; A = lambda t, **k: M.append(I(t, **k))
    for b in (sa, qa):
        A(f"v_pk_add_f32 {vr(b,2)}, {vr(b,2)}, {vr(b+2,2)}"); A(f"v_pk_add_f32 {vr(b+4,2)}, {vr(b+4,2)}, {vr(b+6,2)}")
    for b in (sa, qa): A(f"v_pk_add_f32 {vr(b,2)}, {vr(b,2)}, {vr(b+4,2)}")
    for b in (sa, qa): A(f"v_add_f32 v{b}, v{b}, v{b+1}")
    for qp in ("[1,0,3,2]", "[2,3,0,1]"):
        A("s_nop 1")
        for b in (sa, qa): A(f"v_add_f32_dpp v{b}, v{b}, v{b} quad_perm:{qp} row_mask:0xf bank_mask:0xf")
    A(f"v_mul_f32 v{sa}, {hx(f2u(1/512))}, v{sa}")
    A(f"v_mul_f32 v{qa}, {hx(f2u(1/512))}, v{qa}")
    A(f"v_fma_f32 v{qa}, -v{sa}, v{sa}, v{qa}")
    A(f"v_max_f32 v{qa}, 0, v{qa}")
    A(f"v_cvt_pk_bf16_f32 v{sa+1}, v{sa}, v{qa}")
    A(f"v_lshlrev_b32 v{sa}, 16, v{sa+1}")
    A(f"v_and_b32 v{qa}, 0xffff0000, v{sa+1}")
    A(f"v_add_f32 v{qa}, {hx(f2u(1e-5))}, v{qa}")
    A(f"v_cvt_pk_bf16_f32 v{qa}, v{qa}, v{qa}"); A(f"v_and_b32 v{qa}, 0xffff0000, v{qa}")
    A(f"v_sqrt_f32 v{qa}, v{qa}"); A("s_nop 0")
    A(f"v_cvt_pk_bf16_f32 v{qa}, v{qa}, v{qa}"); A(f"v_and_b32 v{qa}, 0xffff0000, v{qa}")
    A(f"v_rcp_f32 v{qa}, v{qa}"); A("s_nop 0")
    if OPT.get('fold'): A(f"v_mul_f32 v{qa}, s{S_QS}, v{qa}")
    A(f"v_mul_f32 v{sa}, v{sa}, v{qa}")
    A(f"v_sub_f32 v{sa}, 0, v{sa}")
    A(f"v_mov_b32 v{qa+1}, v{qa}"); A(f"v_mov_b32 v{sa+1}, v{sa}")
    def norm(ks):
        for i in range(4*ks, 4*ks+4):
            A(f"v_pk_fma_f32 {vr(F+2*i,2)}, {vr(F+2*i,2)}, {vr(qa,2)}, {vr(sa,2)}")
        for i in range(4*ks, 4*ks+4):
            A(f"v_cvt_pk_bf16_f32 v{64+i}, v{F+2*i}, v{F+2*i+1}")
    for ks in range(16): norm(ks)
    if SQ: M = interleave(M, SQ, 0, len(M) // 2)
    L += with_m0_pad(interleave(M, vq)) + twq + tw2 + tkv
    if OPT.get('ds'): L += stamp(1)
    if OPT.get('hopat', 'w') == 'w': L += HOP
    LATE['hop'] = HOP
    if OPT.get('ds'): L += stamp(14)
    if OPT.get('sw2'): L += [I("s_waitcnt lgkmcnt(0)")] + stamp(2)
    M = []; A = lambda t, **k: M.append(I(t, **k))
    wr = [I(f"ds_write_b128 v{t2 if ks < 8 else 56}, {vr(64+4*ks)} offset:{(ks&7)*1024}", tag='xw' if ks < 8 else 'xw2', res_w=[('slot3' if ks < 8 else 'hx', True)] if OPT.get('norot') else [('slot3', True), ('hx', True)]) for ks in range(16)]
    nw = int(OPT.get('nw', 8))
    LATE['xw'] = wr[nw:]
    bias = [W(vm=['b1'])]
    for ct in range(4):
        for h in range(2):
            bias += [I(f"v_lshlrev_b32 v{V_B1+4*ct+2*h}, 16, v{40+2*ct+h}"), I(f"v_and_b32 v{V_B1+4*ct+2*h+1}, 0xffff0000, v{40+2*ct+h}")]
    if OPT.get('fold'): bias += [I(f"v_mul_f32 v{V_B1+k}, s{S_QS}, v{V_B1+k}") for k in range(16)]
    L += wr[:6] + interleave(wr[6:nw], bias)
    L += [W(vm=['st0'])] + af_reads(0, 0)
    L += [W(lgkm=['xw', 'xw2'][:1 if nw == 8 else 2]), I("s_barrier")]
    L += [xn_read(ks, qb) for qb in range(4) for ks in range(2)]
    L += stamp(3)
    return L

def xn_read(ks, qb):
    if ks < 8: return I(f"ds_read_b128 {ar(XN(ks,qb))}, v{V_XA} offset:{qb*16384 + ks*1024}", tag=f'xr{ks>>1}', res_r=[('slot3', True)])
    return I(f"ds_read_b128 {ar(XN(ks,qb))}, v{V_XA+1} offset:{qb*8192 + (ks&7)*1024}", tag=f'xr{ks>>1}', res_r=[('hx', True)])

A_AF2, A_KF0 = 32, 64
def AF(s, k, n=4): return ar(A_AF2 + k, n) if s >= 24 else vr(V_AF + k, n)
def HF(u, qb): return 144 + 16*u + 4*qb
def af_reads(s, p):
    st = STAGES[s]; L = []
    for c in range(2):
        for j in range(st['nks']):
            for e in range(2):
                L.append(I(f"ds_read_b64_tr_b16 {AF(s, 16*p + 8*c + 4*j + 2*e, 2)}, v{V_WA + 4*(s&1) + 2*p + c} offset:{slot_off(s) + j*4096 + e*2048}",
                           tag=f"af{s}_{p}", res_r=[(f"slot{s&3}", False)]))
    return L

def kv_dma(which, half, buf, tag):
    base = (0 if which == 'K' else LDS_V) + buf*8192 + half*4096
    so = (S_KO if which == 'K' else S_VO) + half
    L = [I(f"s_add_u32 m0, s{S_RING}, {hx(base)}")]
    for i in range(4):
        off = f" offset:{i*1024}" if i else ""
        L.append(I(f"buffer_load_dwordx4 v{V_DV + (i&1)}, {sr(SRD_K if which == 'K' else SRD_V)}, s{so} offen{off}{NT('k')} lds",
                   tag=tag, res_w=[(f"{which}{buf}", True)]))
    return L

def even(G, items, lo, hi):
    nd = sum(1 for x in items if x.kind in ('dma', 'vld', 'vst'))
    k = 0; its = []
    for x in items:
        e = lo + (k * (hi - lo + 1)) // max(nd, 1)
        if x.kind in ('dma', 'vld', 'vst'): k += 1
        else: e = max(lo, e - 3)
        its.append((x, min(e, hi)))
    return G.stream(its, lo, hi)

def k0_reads(kt):
    return [I(f"ds_read_b128 {ar(A_KF0 + 16*(kt&1) + 4*kk)}, v{V_KA+kk} offset:{kt*4096}", tag='fr', res_r=[('hx', True)]) for kk in range(4)]

def y_pack(acc, ct):
    a = acc + 16*ct
    return [I(f"v_cvt_pk_bf16_f32 v{a+8+k}, v{a+2*k}, v{a+2*k+1}") for k in range(7, -1, -1)]
def y_stores(hc):
    acc = V_ACCB if hc else V_ACCA
    return [(I(f"s_add_u32 s{S_YO + 1 + (ct&1)}, s{S_YO}, {hx(((hc*4 + ct)*2 + half) * PL)}"),
             I(f"buffer_store_dwordx4 {vr(acc + 16*ct + 8 + 4*half)}, v{V_L16}, {sr(SRD_WS2)}, s{S_YO + 1 + (ct&1)} offen sc1", tag='yst'))
            for half in range(2) for ct in range(4)]

def phase1():
    m = []; per = {}; done = {}; blk = []
    FM = (26, 0)
    for s, st in enumerate(STAGES):
        for p in range(2):
            lo = len(m)
            for c in range(2):
                ct = 2*p + c
                for qb in range(4):
                    if s >= 28 and qb % 2 == 0:
                        n = len(blk); kt, q2 = n >> 2, n & 3
                        blk.append(len(m))
                        d = vr(V_S + 4*(n % 2))
                        for kk in range(4): m.append(mf(d, ar(A_KF0 + 16*(kt&1) + 4*kk), vr(V_Q + 16*q2 + 4*kk), d if kk else vr(V_NEGM + 4*q2)))
                    d = vr(st['acc'] + 16*ct + 4*qb)
                    js = list(range(st['nks']))
                    if qb & 1 and not OPT.get('nosnake'): js.reverse()
                    for j in js:
                        cc = d
                        if st['first'] and j == js[0]: cc = vr(V_B1 + 4*ct) if st['m'] == 'w1' else "0"
                        b = HF(st['ks0'] + j, qb) if st['m'] == 'w2' else XN(st['ks0'] + j, qb)
                        ab = (AF(s, 16*p + 8*c + 4*j), ar(b))
                        if st['m'] in str(OPT.get('swap1', '')): ab = ab[::-1]
                        m.append(mf(d, ab[0], ab[1], cc))
                    done[(s, ct, qb)] = len(m) - 1
            if (s, p) == FM:
                fm0 = len(m)
                for qb in range(4):
                    d = vr(V_NEGM + 4*qb)
                    for kk in range(4): m.append(mf(d, ar(A_KF0 + 4*kk), vr(V_Q + 16*qb + 4*kk), d if kk else "0"))
            per[(s, p)] = (lo, len(m) - 1)
    G = Gaps(m)
    NS = len(STAGES)
    G.head += [W(lgkm=['xr0'])]
    for n in range(1, 32):
        b = blk[n]
        ex, cv = softmax_items(n - 1, 0)
        if n < 24:
            for r in range(4): G.pin(b + 2*r, ex[r])
            G.pin(b + 3, cv[0]); G.pin(b + 7, cv[1])
        else:
            for r in range(4): G.pin(b + 1 + r, ex[r])
            G.pin(b + 5, cv[0]); G.pin(b + 5, cv[1])
    Bh, Bk = per[(23, 1)][1], per[(25, 1)][1]
    for s in range(NS):
        for p in range(2):
            ns, npp = (s, 1) if p == 0 else (s + 1, 0)
            lo, hi = per[(s, p)]
            lg = [f"af{ns}_{npp}"] if ns < NS else []
            if npp == 0 and ns < 8: lg.append(f"xr{ns}")
            if (ns, npp) == (24, 0): lg.append('hr')
            vm = [f"st{s+1}"] if (p == 0 and s + 1 < NS) else []
            rd = af_reads(ns, npp) if ns < NS else []
            if s >= 28:
                kt = 2*(s - 28) + p
                rd = (k0_reads(kt + 1) if kt < 7 else k_reads(0, 1) + v_reads(0, 0)) + rd
                lg.append('fr')
                if kt == 6: vm.append('kv')
            if hi == Bk: vm.append('k0')
            G.pin(hi, W(vm=vm or None, lgkm=lg))
            if hi in (Bh, Bk) or (s, p) == (31, 0): G.pin(hi, I("s_barrier"))
            h = None
            if s >= 28: G.stream(rd, lo, hi - 6)
            else:
                for k, x in enumerate(rd): h = G.place(x, lo + (k // 2) * 2 + 1 if (len(rd) == 8 and s != int(OPT.get('hs', 21))) else lo, hi - 1, after=h)
    G.stream(k0_reads(0), Bk + 1, fm0 - 6)
    G.pin(fm0 - 1, W(lgkm=['fr']))
    xr = [xn_read(ks, qb) for ks in range(2, 8) for qb in range(4)]
    b1 = per[(int(OPT.get('b1s', 1)), 0)][1] if LATE['xw'] else per[(0, 1)][1]
    for k, x in enumerate(LATE['xw']): G.pin(2*k, x)
    for k, x in enumerate(xr): G.pin(2*len(LATE['xw']) + k, x)
    G.pin(b1, W(lgkm=['xr3'] + (['xw2'] if LATE['xw'] else []))); G.pin(b1, I("s_barrier"))
    G.stream([xn_read(ks, qb) for ks in range(8, 16) for qb in range(4)], b1 + 1, per[(3, 1)][1] - 8, spread=True)
    G.pin(per[(int(OPT.get("b3s", 6)), 1)][1], I("s_barrier"))
    hs = int(OPT.get('hs', 21))
    hwpos = [per[(hs, p)][0] + k for p in range(2) for k in (5, 8, 11, 14)]
    hbar = per[(hs + 1, 0)][0] + 5
    pause = (hwpos[0] - int(OPT.get('pz', 16)), hwpos[-1] + 2) if OPT.get('pz') != '0' else (0, -1)
    slow = int(OPT.get('pzs', 7))
    jobs = []
    for t in range(int(OPT.get('ne', 2)), NS):
        s = t - 4
        rel = per[(s, 1)][0] if s >= 0 else (b1 + 1 if t == 3 else 0)
        d = stage_dma(t)
        if t == 3:
            for x in d:
                if x.res_w: x.res_w = [('slot3', True)]
        jobs.append((rel, d, per[(t - 1, 0)][1]))
        if t == 27:
            d = [I(f"s_lshl_b32 s{S_T+1}, s{S_W}, 13")] + kv_dma('K', 0, 0, 'k0') + kv_dma('K', 1, 0, 'k0')
            k = 0
            for n_, x in enumerate(d):
                if x.res_w: x.res_w = [('hx', True)]
                if 'm0' in x.wr: d[n_] = I(f"s_add_u32 m0, s{S_T+1}, {hx(LDS_X + 4096*k)}"); k += 1
            jobs.append((Bh + 1, d + [I("s_nop 0"), I(f"s_add_u32 s{S_KO}, s{S_KO}, 0x8000"), I(f"s_add_u32 s{S_KO+1}, s{S_KO+1}, 0x8000")], Bk))
    for which, buf, s in (('K', 1, 28), ('V', 0, 29)):
        d = kv_dma(which, 0, buf, 'kv') + kv_dma(which, 1, buf, 'kv')
        for x in d:
            if x.res_w: x.res_w = x.res_w + [(f'slot{s&3}', False)]
        so = S_KO if which == 'K' else S_VO
        jobs.append((per[(s, 1)][0], d + [I("s_nop 0"), I(f"s_add_u32 s{so}, s{so}, 0x8000"), I(f"s_add_u32 s{so+1}, s{so+1}, 0x8000")], per[(31, 0)][1]))
    kz = [n for n, jb in enumerate(jobs) if any(x.tag == 'k0' for x in jb[1])][0]
    if OPT.get('k0first', '1') == '1': jobs[kz], jobs[kz - 1] = jobs[kz - 1], jobs[kz]
    if OPT.get('swap34', '1') == '1':
        k3 = [n for n, jb in enumerate(jobs) if any(x.tag == 'st3' for x in jb[1])][0]
        jobs[k3], jobs[k3 + 1] = jobs[k3 + 1], jobs[k3]
    c1, c2, c3 = float(OPT.get('catch1', 3.5)), float(OPT.get('catch', 3.5)), float(OPT.get('catch3', 3))
    margin = int(OPT.get('margin', 28)); mins = float(OPT.get('mins', 2))
    T = []; t = -99.0
    for rel, d, dl in jobs:
        k = 0
        for x in d:
            if x.kind != 'dma': continue
            step = c1 if t < per[(8, 0)][0] else (c2 if t < pause[0] else c3)
            if pause[0] <= t + step <= pause[1]: step = min(slow, pause[1] + 1 - t)
            t = max(rel + (4*k if rel else 0), t + step)
            if rel >= per[(int(OPT.get('alap0', 22)), 0)][0] and x.tag not in ('st31', 'kv', 'st30'):
                nd = sum(y.kind == 'dma' for y in d)
                t = max(t, dl - int(OPT.get('alap', 40)) - 4*(nd - 1 - k))
            k += 1
            T.append([t, rel, dl - margin])
    for n in range(len(T) - 1, -1, -1):
        lim = T[n][2] if n == len(T) - 1 else min(T[n][2], T[n + 1][0] - mins)
        T[n][0] = max(T[n][1], min(T[n][0], lim))
    for n in range(1, len(T)): T[n][0] = max(T[n][0], T[n - 1][0] + mins)
    h = None; n = 0; LAG = []
    for rel, d, dl in jobs:
        for x in d:
            if x.kind == 'dma':
                pos = max(int(T[n][0]), h[0] if h else 0); n += 1
                while pos in hwpos or pos - 1 in hwpos or any(y.kind in ('dma', 'dsw') for y in G.seq(pos)): pos += 1
                h = G.place(x, pos, pos + (1 if pos < blk[0] else 8), after=h); last = h[0]
            else:
                lo_ = max(rel - 3, h[0] if h else 0, 0)
                h = G.place(x, lo_, max(lo_, int(T[n][0]) - 1 if n < len(T) else lo_ + 3), after=h)
        LAG.append(dl - last)
    print('; dma slack', LAG, file=sys.stderr)
    G.place(kv_dma('K', 0, 0, 'kv')[0], h[0] + 1, len(G) - 1, after=h)
    def by_parity(items, par, g):
        for n_, x in enumerate(items):
            sreg = re.search(r'\], (s\d+) offen', x.text).group(1)
            while G.g[g][0] or G.g[g + 1][0] or G.seq(g + 2) or any(y.kind == 'dma' for y in G.seq(g) + G.seq(g + 1)): g += 1
            G.pin(g, I(f"s_cmp_eq_u32 s95, {par}")); G.pin(g + 1, I(f"s_cselect_b32 s{92 + (n_ & 1)}, {sreg}, 0x10000000"))
            G.pin(g + 2, I(x.text.replace(sreg + " offen", f"s{92 + (n_ & 1)} offen"), tag='pf')); g += 3
    G.head = [I("s_and_b32 s95, s2, 1")] + G.head
    FIRST = int(OPT.get('first', 0))
    if LATE.get('q1'): G.stream(LATE['q1'], per[(int(OPT.get('s1', 6)), 0)][0], per[(int(OPT.get('s1', 6)), 1)][1])
    if LATE.get('w2'):
        if OPT.get('s2b'): by_parity(LATE['w2'], FIRST, per[(int(OPT['s2']), 0)][0]); by_parity(LATE['w2'], FIRST ^ 1, per[(int(OPT['s2b']), 0)][0])
        else: G.stream(LATE['w2'], per[(int(OPT['s2']), 0)][0], per[(int(OPT['s2']), 1)][1])
    if LATE.get('kv'):
        if OPT.get('kva'): by_parity(LATE['kv'], FIRST, per[(int(OPT['kva']), 0)][0])
        G.stream(LATE['kv'], pause[0] + int(OPT.get('kvo', 6)), hwpos[0] - 1)
    for (sb, op) in ((8, 'v_add_u32'), (24, 'v_sub_u32')):
        for win in range(2):
            for ct in range(4):
                r = V_WA + 4*win + ct
                G.place(I(f"{op} v{r}, v{r}, v52"), per[(sb - 2 + win, 1)][0], per[(sb - 1 + win, 0)][1])
    ha, hr = V_XA, V_XA + 1
    G.stream([I(f"s_lshl_b32 s{S_T}, s{S_W}, 13"), I(f"s_add_u32 s{S_T}, s{S_T}, {hx(LDS_X)}"), I(f"v_add_u32 v{ha}, s{S_T}, v{V_L16}"),
              I(f"s_and_b32 s{S_T}, s{S_G}, 1"), I(f"s_lshl_b32 s{S_T}, s{S_T}, 12"), I(f"s_add_u32 s{S_T}, s{S_T}, {hx(LDS_X)}"),
              I(f"v_add_u32 v{hr}, s{S_T}, v{V_L16}")], per[(5, 0)][0], per[(6, 1)][1])
    for hq in range(2):
        s = 15 + 8*hq
        for p in range(2):
            kk = 2*hq + p
            items = []
            for half in range(2):
                ct = 2*p + half
                for qb in range(4):
                    e = done[(s, ct, qb)] + 6
                    a = V_ACCB + 16*ct + 4*qb; q = V_Q + 16*qb + 4*kk
                    if not OPT.get('fold'):
                        for r in range(4): items.append((I(f"v_mul_f32 v{a+r}, s{S_QS}, v{a+r}"), e))
                    items.append((I(f"v_cvt_pk_bf16_f32 v{q+2*half}, v{a}, v{a+1}"), e))
                    items.append((I(f"v_cvt_pk_bf16_f32 v{q+2*half+1}, v{a+2}, v{a+3}"), e))
            if hq == 0:
                hnd = None
                for k in range(8):
                    nq_ = len(items) // 8
                    its = items[nq_*k:nq_*k + nq_]; e = its[0][1]
                    hn = G.stream(its, e, e - 6 + 30)
                    hnd = hn if hnd is None else max(hnd, hn)
            else:
                hnd = G.stream(items, items[0][1], fm0 - (40 if p == 0 else 12))
            sw = []
            for qb in range(4):
                q = V_Q + 16*qb + 4*kk
                sw += [I(f"v_permlane32_swap_b32 v{q}, v{q+2}"), I(f"v_permlane32_swap_b32 v{q+1}, v{q+3}")]
            G.stream(sw, hnd[0] + 2, hnd[0] + 60 if hq == 0 else fm0 - 2)
    G.pin(hbar, W(lgkm=['hw'])); G.pin(hbar, I("s_barrier"))
    hrd = [I(f"ds_read_b128 {ar(HF(u,qb))}, v{hr} offset:{u*4096 + qb*1024}", tag='hr', res_r=[('hx', True)]) for u in range(7) for qb in range(4)]
    G.stream(hrd, hbar + 1, per[(23, 1)][1] - 6)
    items = []
    T = 56
    for p in range(2):
        for qb in range(4):
            for half in range(2):
                ct = 2*p + half
                e = done[(7, ct, qb)] + 6
                a = V_ACCA + 16*ct + 4*qb
                seq = []
                seq += [f"v_mul_f32 v{T+r}, v{a+r}, v{a+r}" for r in range(4)]
                seq += [f"v_fma_f32 v{T+r}, v{T+r}, s{S_GB}, v{V_GA}" for r in range(4)]
                seq += [f"v_mul_f32 v{T+r}, v{T+r}, v{a+r}" for r in range(4)]
                seq += [f"v_exp_f32 v{T+r}, v{T+r}" for r in range(4)]
                seq += [f"v_add_f32 v{T+r}, 1.0, v{T+r}" for r in range(4)]
                seq += [f"v_rcp_f32 v{T+r}, v{T+r}" for r in range(4)]
                seq += [f"v_mul_f32 v{T+r}, v{T+r}, v{a+r}" for r in range(4)]
                a0 = V_ACCA + 16*(2*p) + 4*qb
                seq += [f"v_cvt_pk_bf16_f32 v{a0+2*half}, v{T}, v{T+1}", f"v_cvt_pk_bf16_f32 v{a0+2*half+1}, v{T+2}, v{T+3}"]
                items += [(I(x), e) for x in seq]
            G.pin(hwpos[4*p + qb], I(f"ds_write_b128 v{ha}, {vr(V_ACCA + 32*p + 4*qb)} offset:{p*4096 + qb*1024}", tag='hw', res_w=[('hx', True)]))
    n1 = len(items) * 7 // 8
    h = G.stream(items[:n1], items[0][1], hwpos[0] - 1 - int(OPT.get('gl', 0)))
    G.stream(items[n1:], h[0] + 1, hwpos[7] - 1)
    pa = [I(x) for x in (f"v_lshrrev_b32 v56, 6, v{V_L16}", "v_lshlrev_b32 v58, 7, v56", f"v_bfe_u32 v57, v{V_L16}, 4, 2", "v_lshl_add_u32 v58, v57, 3, v58",
          f"v_bfe_u32 v59, v{V_L16}, 7, 2", f"v_xor_b32 v59, s{S_W}, v59", f"v_lshl_add_u32 v48, v59, 5, v58")]
    pa += swz(49, 56, 57, 58) + [I(f"v_bfe_u32 v56, v{V_L16}, 4, 4"), I(f"v_lshrrev_b32 v57, 8, v{V_L16}")] + swz(51, 56, 57, 58) + [I(f"v_add_u32 v51, s{S_RING}, v51")]
    hpa = G.stream(pa, per[(24, 0)][0], per[(27, 1)][1])
    global PARK
    PARK = [I(f"v_accvgpr_write_b32 a{A_ADR+k}, v{r}") for k, r in enumerate((48, 49, 51))]
    it = []
    for qb in range(4):
        b = V_NEGM + 4*qb
        it += [(I(f"v_max3_f32 v{b}, v{b}, v{b+1}, v{b+2}"), fm0 + 4*qb + 11), (I(f"v_max_f32 v{b}, v{b}, v{b+3}"), fm0 + 4*qb + 11)]
    it += [x for x in rowmax_finish() if x.kind != 'nop']
    G.stream(it, fm0 + 11, blk[0] - 2)
    for ct in range(4): G.stream(y_pack(V_ACCA, ct), done[(27, ct, 3)] + 6, blk[ct + 1] + 2)
    for k, x in enumerate(y_stores(0)):
        g = blk[(7, 7, 11, 11, 15, 15, 19, 19)[k]] + (1, 5)[k & 1]
        G.pin(g - 1, x[0]); G.pin(g, x[1])
    su = attn_setup()
    G.stream(su['pre'] + [I(f"v_accvgpr_write_b32 a{A_L + 4*q + k}, 0") for q in range(4) for k in range(2)], hpa[0] + 1 if OPT.get('prearly') else blk[12], blk[20] - 1)
    G.stream(su['va'][:8], blk[20], blk[28] - 1)
    G.stream(su['sp'], blk[24], len(G) - 2)
    e = max(i for i in range(len(G)) if any(x.kind == 'dsr' and x.res_r == [('hx', True)] for x in G.seq(i)))
    G.stream([I(f"v_subrev_u32 v{V_KA+kk}, {hx(LDS_X)}, v{V_KA+kk}") for kk in range(4)], e, blk[28] - 1)
    global VA_LATE
    VA_LATE = su['va'][8:]
    if str(OPT.get('hopat', 'w')).startswith('g'):
        for x in LATE['hop'] + [I('s_nop 3')]: G.pin(int(OPT['hopat'][1:]), x, post=True)
    for k in range(16): ministamp(G, per[(2*k + 1, 1)][1], 32 + k)
    out = with_m0_pad(G.flat()) + PARK
    print(f"; phase1: {len(G)} mfma, est cycles {G.cycles()} pairs {[G.cyc(per[(2*k,0)][0], per[(2*k+1,1)][1]) for k in range(16)]}", file=sys.stderr)
    return out

def P(buf, qb, ks): return V_P + 64*buf + 16*qb + 4*ks
def k_reads(kt, buf, res=True):
    return [I(f"ds_read_b128 {ar(A_KF + 16*(kt&1) + 4*kk)}, v{V_KA+kk} offset:{(kt>>1)*16384 + (kt&1)*4096 + buf*8192}",
              tag='fr', res_r=[(f"K{buf}", True)] if res else None) for kk in range(4)]
def v_reads(dt, buf):
    return [I(f"ds_read_b64_tr_b16 {ar(A_VF + 16*(dt&1) + 4*ks + 2*e, 2)}, v{V_VA+dt} offset:{ks*16384 + buf*8192 + e*4096}",
              tag='fr', res_r=[(f"V{buf}", True)]) for ks in range(4) for e in range(2)]

def attn_setup():
    t1, t2, t3 = 56, 57, 58
    pre = [f"v_bfe_u32 v{t3}, v{V_L16}, 4, 2",
           f"v_cmp_eq_u32 vcc, 1, v{t3}", f"v_mov_b32 v{t1}, 0x44444444", f"v_mov_b32 v{t2}, 0xeeeeeeee", f"v_cndmask_b32 v{V_SPI}, v{t1}, v{t2}, vcc",
           f"v_cmp_gt_u32 vcc, 2, v{t3}", f"v_mov_b32 v{t1}, 0x3f803f80", f"v_lshrrev_b32 v{t2}, 6, v{V_L16}", f"v_cndmask_b32 v59, 0, v{t1}, vcc",
           f"v_lshlrev_b32 v{t1}, 8, v{t2}", f"v_and_b32 v{t2}, 7, v{t2}", f"v_lshl_add_u32 v{t1}, v{t3}, 3, v{t1}", f"v_add_u32 v{t1}, 0x10000, v{t1}"]
    va = []
    for dt in range(8): va += [f"v_xor_b32 v{V_VA+dt}, {dt}, v{t2}", f"v_lshl_add_u32 v{V_VA+dt}, v{V_VA+dt}, 5, v{t1}"]
    sp = [f"v_accvgpr_write_b32 a{A_SPA+i}, v59" for i in range(4)] + [f"v_accvgpr_write_b32 a{A_FILL+i}, -1" for i in range(4)]
    return dict(pre=[I(x) for x in pre], va=[I(x) for x in va], sp=[I(x) for x in sp])

def rowmax_finish():
    L = []; A = lambda t, **k: L.append(I(t, **k))
    for sw in ("v_permlane32_swap_b32", "v_permlane16_swap_b32"):
        for qb in range(4): A(f"v_mov_b32 v{V_NEGM+4*qb+1}, v{V_NEGM+4*qb}")
        A("s_nop 1")
        for qb in range(4): A(f"{sw} v{V_NEGM+4*qb}, v{V_NEGM+4*qb+1}")
        for qb in range(4): A(f"v_max_f32 v{V_NEGM+4*qb}, v{V_NEGM+4*qb}, v{V_NEGM+4*qb+1}")
    for qb in range(4): A(f"v_sub_f32 v{V_NEGM+4*qb}, {hx(f2u(-float(OPT.get('moff', 10))))}, v{V_NEGM+4*qb}")
    for qb in range(4):
        for r in range(1, 4): A(f"v_mov_b32 v{V_NEGM+4*qb+r}, v{V_NEGM+4*qb}")
    return L

NSB = 3
def softmax_items(n, pbuf):
    kt, qb = n >> 2, n & 3
    s = V_S + 4*(n % 2)
    p = P(pbuf, qb, kt >> 1) + 2*(kt & 1)
    ex = [I(f"v_exp_f32 v{s+r}, v{s+r}") for r in range(4)]
    cv = [I(f"v_cvt_pk_bf16_f32 v{p}, v{s}, v{s+1}"), I(f"v_cvt_pk_bf16_f32 v{p+1}, v{s+2}, v{s+3}")]
    if OPT.get('perm'): cv = [I(f"v_perm_b32 v{p}, v{s+1}, v{s}, s75"), I(f"v_perm_b32 v{p+1}, v{s+3}, v{s+2}, s75")]
    return ex, cv

def smf(pbuf, qb, h):
    return I(f"v_smfmac_f32_16x16x64_bf16 {ar(A_L + 4*qb)}, {ar(A_SPA)}, {vr(P(pbuf, qb, 2*h), 8)}, v{V_SPI}")

def attn_iter(par, first_pv=False, vmtags=('kv',), d0=0):
    m = []; blk = []; sg = []
    for i in range(8):
        for qb in range(4):
            n = 4*i + qb
            blk.append(len(m))
            d = vr(V_S + 4*(n % 2))
            for kk in range(4):
                m.append(mf(d, ar(A_KF + 16*(i&1) + 4*kk), vr(V_Q + 16*qb + 4*kk), d if kk else vr(V_NEGM + 4*qb)))
            o = ar(A_O + 16*i + 4*qb)
            for ks in range(4):
                ab = (ar(A_VF + 16*(i&1) + 4*ks), vr(P(par ^ 1, qb, ks)))
                ab = ab[::-1]
                m.append(mf(o, ab[0], ab[1], "0" if (first_pv and ks == 0) else o))
        sg.append(len(m))
        m.append(smf(par ^ 1, i >> 1, i & 1))
    G = Gaps(m)
    for n in range(32):
        b = blk[n]
        ex, cv = softmax_items((n - 1) % 32, par if n else par ^ 1)
        for r in range(4): G.pin(b + 2*r, ex[r])
        G.pin(b + 3, cv[0]); G.pin(b + 7, cv[1])
    for i in range(8):
        if i < 7: rd = k_reads(i + 1, par) + v_reads(i + 1, par ^ 1)
        else: rd = k_reads(0, par ^ 1) + v_reads(0, par)
        k = 0
        for qb in range(3):
            b = blk[4*i + qb]
            for gp in (3, 5, 5, 7):
                G.pin(b + gp, rd[k]); k += 1
        if i == 6:
            G.pin(sg[i], W(vm=list(vmtags), lgkm=['fr'])); G.pin(sg[i], I("s_barrier"))
        else:
            G.pin(sg[i], W(lgkm=['fr']))
    groups = [kv_dma('K', 0, par ^ 1, 'kv'), kv_dma('K', 1, par ^ 1, 'kv'), kv_dma('V', 0, par, 'kv'), kv_dma('V', 1, par, 'kv')]
    for i in range(4):
        for qb in range(4): G.pin(blk[4*(i + d0) + qb] + 1, groups[i][1 + qb])
        if i < 3: G.pin(blk[4*(i + d0) + 3] + 4, groups[i + 1][0])
    nxt = kv_dma('K', 0, par, 'kv')[0]
    G.pin(blk[4*7 + 3] + 3, nxt)
    for k in range(4): G.pin(blk[4*7 + (k >> 1)] + 4 + 2*(k & 1), I(f"s_add_u32 s{S_KO+k}, s{S_KO+k}, 0x8000"))
    G.blk = blk; G.sg = sg
    return G

def y_load(half, dst=None):
    dst = V_YB if dst is None else dst
    return I(f"buffer_load_dwordx4 {vr(dst)}, v{V_L16}, {sr(SRD_WS)}, s{S_YL} offen sc1", tag=f'yl{dst}')
def y_add(half, src=None, V_YT=V_YT):
    src = V_YB if src is None else src
    L = []
    for k in range(4):
        a = V_YS + 8*half + 2*k
        L += [I(f"v_lshlrev_b32 v{V_YT}, 16, v{src+k}"), I(f"v_and_b32 v{src+k}, 0xffff0000, v{src+k}"),
              I(f"v_add_f32 v{a}, v{a}, v{V_YT}"), I(f"v_add_f32 v{a+1}, v{a+1}, v{src+k}")]
    return L
def y_next():
    return [I(f"s_add_u32 s{S_YI}, s{S_YI}, {hx(1 << GS_Y)}"), I(f"s_and_b32 s{S_YI}, s{S_YI}, {hx((8 << GS_Y) - 1)}"), I(f"s_add_u32 s{S_YL}, s{S_YI}, s{S_CB2}")]
def cnt_load(vreg=None): return I(f"buffer_load_dword v{vreg or V_CNT}, off, {sr(SRD_DBG)}, s{S_CL} sc1", tag='cnt')
def cnt_check(G, gap, need, name, read=True, vreg=None):
    if read: G.pin(gap, I(f"v_readfirstlane_b32 s{S_T+2}, v{V_CNT}"))
    G.pin(gap + (1 if read else 2), I(f"s_cmp_lt_u32 s{S_T+2}, {need}"))
    for x in (I(f"s_cbranch_scc1 L_W{name}"), I(f"L_B{name}:")): G.pin(gap + 2, x)
    STUBS.extend([I(f"L_W{name}:"), I(f"s_mov_b32 s{S_SPIN}, 0x40000"), I(f"L_W{name}_l:"), cnt_load(vreg), I(f"s_sub_u32 s{S_SPIN}, s{S_SPIN}, 1"),
                  I("s_waitcnt vmcnt(0)"), I(f"v_readfirstlane_b32 s{S_T+2}, v{vreg or V_CNT}"), I("s_nop 3"),
                  I(f"s_cmp_ge_u32 s{S_T+2}, {need}"), I(f"s_cbranch_scc1 L_B{name}"),
                  I(f"s_cmp_gt_i32 s{S_SPIN}, 0"), I(f"s_cbranch_scc1 L_W{name}_l"), I(f"s_branch L_B{name}")])
def arrive(G, gap, trip):
    G.pin(gap - 2, I(f"s_cmp_eq_u32 s{S_CNT}, {7 - trip}")); G.pin(gap - 1, I(f"s_cselect_b32 s{S_AO}, 0, 0x1000"))
    G.pin(gap, I(f"buffer_atomic_sub a{A_FILL}, v{V_L16}, {sr(SRD_ARR)}, s{S_AO} offen sc1", tag='atom'))

def xo_voff(dst, t):
    return [I(f"v_bfe_u32 v{dst}, v{V_L16}, 4, 5"), I(f"v_lshlrev_b32 v{dst}, 10, v{dst}"),
            I(f"v_lshrrev_b32 v{t}, 9, v{V_L16}"), I(f"v_lshl_add_u32 v{dst}, v{t}, 4, v{dst}")]

def it1_extras(G):
    blk = G.blk
    t0, t1, t2 = V_YS + 8, V_YS + 9, V_YS + 10
    su = [I(x) for x in (f"s_lshl_b32 s{S_CA}, s{S_R}, 3", f"s_mov_b32 s{S_FO}, s{S_CB}",
          f"s_and_b32 s{S_CB2}, s{S_G}, 4", f"s_add_u32 s{S_CB2}, s{S_CB2}, s{S_W}", f"s_lshl_b32 s{S_CB2}, s{S_CB2}, {PS + 1}",
          f"s_and_b32 s{S_YI}, s{S_G}, 3", f"s_lshl_b32 s{S_YI}, s{S_YI}, {13 if LAY[1] == '1' else 10}", f"s_add_u32 s{S_YI}, s{S_YI}, s{S_RBY}",
          f"s_add_u32 s{S_CB2}, s{S_CB2}, s{S_YI}",
          f"s_add_u32 s{S_YI}, s{S_G}, 7", f"s_lshl_b32 s{S_YI}, s{S_YI}, {GS_Y}", f"s_mov_b32 s{S_YL}, {hx(1 << 28)}",
          f"s_lshl_b32 s{S_T}, s{S_G}, 7", f"s_lshl_b32 s{S_T+1}, s{S_W}, 5", f"s_add_u32 s{S_T}, s{S_T}, s{S_T+1}",
          f"v_lshrrev_b32 v{t0}, 8, v{V_L16}", f"v_lshlrev_b32 v{t0}, 3, v{t0}")]
    su.append(I(f"buffer_load_dwordx2 {vr(V_YB,2)}, v{t0}, {sr(SRD_B2)}, s{S_T} offen", tag='b2'))
    su += [I(f"s_lshl_b32 s{S_XO}, s{S_R}, 16"), I(f"s_add_u32 s{S_XO}, s{S_XO}, s{S_T}"), I(f"s_add_u32 s{S_XO+1}, s{S_XO}, 32768")]
    su += xo_voff(t1, t2)
    for h in range(2): su.append(I(f"buffer_load_dwordx4 {ar(A_XT+4*h)}, v{t1}, {sr(SRD_X)}, s{S_XO+h} offen", tag='xt'))
    sc = [f"s_lshl_b32 s{S_WO+1}, s{S_W}, 13",
          f"s_add_u32 s{SRD_ARR}, s{SRD_DBG}, s{S_CA}", f"s_addc_u32 s{SRD_ARR+1}, s{SRD_DBG+1}, 0",
          f"s_or_b32 s{S_AO}, s{S_W}, s{S_PASS}", f"s_cselect_b32 s{SRD_ARR+2}, 0, 4", f"s_mov_b32 s{SRD_ARR+3}, 0x20000"]
    for k, (ds, half) in enumerate(((6, 1), (7, 0), (7, 1))):
        sc += [f"s_add_u32 s{S_Y7+k}, s{S_G}, {ds}", f"s_and_b32 s{S_Y7+k}, s{S_Y7+k}, 7", f"s_lshl_b32 s{S_Y7+k}, s{S_Y7+k}, {GS_Y}", f"s_add_u32 s{S_Y7+k}, s{S_Y7+k}, s{S_CB2}"]
        if half: sc.append(f"s_add_u32 s{S_Y7+k}, s{S_Y7+k}, {hx(PL)}")
    sc += [f"s_lshr_b32 s{S_AO}, s2, 3", f"s_lshl_b32 s{S_AO}, s{S_AO}, 2", f"s_add_u32 s{S_AO}, s{S_AO}, s{S_W}", f"s_and_b32 s{S_AO}, s{S_AO}, {15 if OPT.get('c16') else 31}", f"s_mul_i32 s{S_AO}, s{S_AO}, {1024 if OPT.get('c16') else 608}",
           f"s_add_u32 s{S_AO}, s{S_AO}, L_FIN-L_PC3"]
    g = blk[9]
    def front(txts):
        nonlocal g
        while G.g[g][0] or any(x.kind in ('dma', 'vld', 'vst') for x in G.seq(g)): g += 1
        for t in txts: G.pin(g, I(t))
        g += 1
    for ct in range(4): G.stream(y_pack(V_ACCB, ct), 0 if ct < 3 else 4, blk[ct + 1] + 2)
    for k, x in enumerate(y_stores(1)):
        g = (blk[15] + 5, G.sg[3], blk[17] + 1, blk[18] + 1, blk[19] + 1, blk[19] + 5, blk[23] + 1, blk[23] + 5)[k]
        G.pin(g - 1, x[0]); G.pin(g, x[1])
    G.stream(VA_LATE, blk[4] + 3, blk[12] - 1)
    k = [n for n, x in enumerate(su) if x.tag == 'b2'][0]
    h = G.stream(su[:k+1], blk[1], blk[8])
    h = G.stream(su[k+1:], blk[20], blk[26])
    ini = [W(vm=['b2'])]
    for k in range(2):
        ini += [I(f"v_lshlrev_b32 v{V_YS+12+2*k}, 16, v{V_YB+k}"), I(f"v_and_b32 v{V_YS+12+2*k+1}, 0xffff0000, v{V_YB+k}")]
    for q in (0, 1, 3):
        ini += [I(f"v_mul_f32 v{V_YS+4*q+k}, {'s%d' % S_QS if OPT.get('fold') else '1.0'}, v{V_YS+12+k}") for k in range(4)]
    G.stream(ini + [y_load(0)], blk[12], blk[22])
    G.stream([I(f"v_mov_b32 v{V_YS+8+k}, v{V_YS+k}") for k in range(4)], h[0], len(G) - 1)
    G.stream([I(f"s_min_u32 s{SRD_WS2+2}, s{SRD_WS2+2}, s{S_LIM}"),
              I(f"s_mov_b32 s{S_NEED}, 0"), I(f"s_mov_b32 s{S_CL}, 0x1000")], blk[24], blk[26])
    for k, x in enumerate(fills()[:2]): G.pin(blk[27 + 4*k] + 1, x); G.pin(blk[27 + 4*k] + 6, I(f"s_add_u32 s{S_FO}, s{S_FO}, {hx(PL)}"))
    k = 0
    while k < len(sc):
        n_ = 2 if (k + 1 < len(sc) and (sc[k+1].startswith('s_addc') or sc[k+1].startswith('s_cselect'))) else 1
        front(sc[k:k+n_]); k += n_
    front([f"s_getpc_b64 s[{S_CODE}:{S_CODE+1}]", "L_PC3:"])
    front([f"s_add_u32 s{S_CODE}, s{S_CODE}, s{S_AO}", f"s_addc_u32 s{S_CODE+1}, s{S_CODE+1}, 0"])

def kv_touch(srdb):
    return I(f"buffer_load_dword a{A_PF}, v{V_PFO}, {sr(srdb)}, s{S_KT} offen", tag='pf')
def fills():
    return [I(f"buffer_store_dwordx4 {ar(A_FILL)}, v{V_L16}, {sr(SRD_WS2)}, s{S_FO} offen sc1", tag='fill') for k in range(3)]

def loop_extras(ge, go):
    TB = 5
    for G, half in ((ge, 0), (go, 1)):
        blk = G.blk
        it = [W(vm=[f'yl{V_YB}'])] + y_add(half)
        if half == 0:
            G.stream(it, blk[16], blk[22])
            G.pin(blk[22] + 1, y_load(1))
            for k, x in enumerate(fills()[:2]): G.pin(blk[23 + 4*k] + 1, x); G.pin(blk[23 + 4*k] + 6, I(f"s_add_u32 s{S_FO}, s{S_FO}, {hx(PL)}"))
            for k in range(3):
                if k == 0: G.pin(blk[22] + 2, I(f"s_cmp_eq_u32 s{S_CNT}, 1"))
                G.pin(blk[22] + 3 + k, I(f"s_cselect_b32 s{S_Y7S+k}, s{S_Y7+k}, 0x10000000"))
                G.pin(blk[24 + k] + 1, I(f"buffer_load_dwordx4 {ar(A_Y7+4*k)}, v{V_L16}, {sr(SRD_WS)}, s{S_Y7S+k} offen sc1", tag='y7'))
            if not OPT.get('nocode2'): G.pin(blk[29] + 1, I(f"global_load_dword a{A_PF}, v{V_L16}, s[{S_CODE}:{S_CODE+1}]", tag='pf'))
            arrive(G, blk[30] + 1, 0)
            G.pin(blk[31] + 1, cnt_load())
        else:
            G.pin(blk[15] + 3, W(vm=['cnt'])); cnt_check(G, blk[15] + 5, f"s{S_NEED}", 'A')
            G.pin(blk[25] + 2, I(f"s_mov_b32 s{S_NEED}, 8")); G.pin(blk[25] + 4, I(f"s_mov_b32 s{S_CL}, s{S_CA}"))
            G.stream(it, blk[16], blk[22])
            G.stream(y_next(), blk[16], blk[21])
            G.pin(blk[22] + 1, y_load(0))
            G.pin(blk[24] + 2, I(f"s_add_u32 s{S_YL}, s{S_YL}, {hx(PL)}"))
            if not OPT.get('nopf'):
                G.pin(blk[23] + 1, I(f"buffer_load_dword a{A_PF}, v{V_PFO}, {sr(SRD_WO)}, s{S_PF} offen{NT('o')}", tag='pf'))
                G.pin(blk[26] + 2, I(f"s_add_u32 s{S_PF}, s{S_PF}, {1024*GG}"))
            arrive(G, blk[30] + 1, TB)
            for gp, txt in ((blk[18] + 2, [f"s_sub_u32 s{S_IS}, s{S_G}, s{S_CNT}"]), (blk[18] + 4, [f"s_add_u32 s{S_IS}, s{S_IS}, 3"]), (blk[18] + 6, [f"s_and_b32 s{S_IS}, s{S_IS}, 7"]),
                            (blk[19] + 2, [f"s_lshl_b32 s{S_IS}, s{S_IS}, 7"]), (blk[19] + 4, [f"s_add_u32 s{S_IM}, s{S_WO+1}, {hx(LDS_X)}"]),
                            (blk[20] + 2, [f"s_cmp_le_u32 s{S_CNT}, 2"]), (blk[20] + 3, [f"s_cselect_b32 s{S_IS}, s{S_IS}, 0x10000000"]),
                            (blk[20] + 4, [f"s_cmp_eq_u32 s{S_CNT}, 1"]), (blk[20] + 5, [f"s_cselect_b32 s{S_IM}, s{S_RING}, s{S_IM}"])):
                for t in txt: G.pin(gp, I(t))
            pos = (blk[23] + 5, blk[24] + 1, blk[25] + 1, blk[26] + 1, blk[27] + 1, blk[27] + 5, blk[28] + 1, blk[29] + 1)
            for n_, gp in enumerate(pos):
                h_, i_ = n_ >> 2, n_ & 3
                G.pin(gp - 1, I(f"s_add_u32 s{S_RS + i_}, s{S_IS}, {hx((h_*32 + 8*i_)*1024 - 1024*i_)}"))
                if i_ == 0: G.pin(gp - 2, I(f"s_add_u32 m0, s{S_IM}, {hx(h_*4096)}"))
                off = f" offset:{i_*1024}" if i_ else ""
                G.pin(gp, I(f"buffer_load_dwordx4 v{V_WOB}, {sr(SRD_WO)}, s{S_RS + i_} offen{off} lds", tag='woi', res_w=[('K0x', True)]))

def attn_iter0():
    m = []; blk = []
    for i in range(8):
        for qb in range(4):
            n = 4*i + qb
            blk.append(len(m))
            d = vr(V_S + 4*(n % 3) if n < 30 else V_S + 4*(n % 2))
            for kk in range(4):
                m.append(mf(d, ar(A_KF + 16*(i&1) + 4*kk), vr(V_Q + 16*qb + 4*kk), d if kk else vr(V_NEGM + 4*qb)))
    G = Gaps(m)
    G.head += [I(f"v_accvgpr_write_b32 a{A_L + k}, 0") for k in range(16)]
    tail = []
    for n in range(31):
        kt, qb = n >> 2, n & 3
        s = V_S + 4*(n % 3) if n < 30 else V_S + 4*(n % 2)
        p = P(0, qb, kt >> 1) + 2*(kt & 1)
        ex = [I(f"v_exp_f32 v{s+r}, v{s+r}") for r in range(4)]
        cv = [I(f"v_cvt_pk_bf16_f32 v{p}, v{s}, v{s+1}"), I(f"v_cvt_pk_bf16_f32 v{p+1}, v{s+2}, v{s+3}")]
        if n + 2 < 32:
            b = blk[n + 2]
            G.pin(b - 1, ex[0]); G.pin(b, ex[1]); G.pin(b + 1, ex[2]); G.pin(b + 1, cv[0]); G.pin(b + 2, ex[3]); G.pin(b + 3, cv[1])
        else:
            tail += ex + cv
    for i in range(8):
        rd = k_reads(i + 1, 0) if i < 7 else k_reads(0, 1) + v_reads(0, 0)
        lo = blk[4*i]
        for k, x in enumerate(rd): G.pin(lo + (k if i == 7 else 2*k), x)
        if i == 6:
            G.pin(blk[4*i + 3] + 3, W(vm=['kv'], lgkm=['fr'])); G.pin(blk[4*i + 3] + 3, I("s_barrier"))
        elif i < 7:
            G.pin(blk[4*i + 3] + 3, W(lgkm=['fr']))
    G.pin(3, kv_dma('K', 0, 0, 'kv')[0]); G.pin(5, I("s_nop 0"))
    out = G.flat() + [I("s_nop 3")] + tail + [W(lgkm=['fr'])]
    print(f"; iter0 est cycles {G.cycles()}", file=sys.stderr)
    return out

V_RL, V_XW, V_XR, V_MISC, V_NT, V_OA = 16, 32, 33, 34, 36, (60, 61, 35)
V_STG = 128
def V_R(p): return [160, 64, 96, 224][p] if p < 4 else (64 if p & 1 else 160)
V_OACC = 192
def V_SP(st): return 176 if st == 7 else (96 + 8*st if st < 4 else 224 + 8*(st - 4))
V_XT, V_MX, V_SEL = 4, 28, 16
S_WO, S_SO = 76, 93
PER = [(0, 0), (1, 0), (0, 1), (1, 1)] + [(c, h) for c in range(2, 8) for h in range(2)]
SLOTS = dict(A=(2, 0, 8192, 'hx'), B=(1, 0, 16384, 'V0'), C=(1, 8192, 16384, 'V1'), D=(0, 0, 16384, 'K0'), E=(0, 8192, 16384, 'K1'))
EARLY4 = bool(OPT.get("e4"))
def oslot(p): return SLOTS[("ADBADBAEDCBAEDCB" if EARLY4 else "ADBADBAECDBAECDB")[p]]

def wo_dma(p, vwob=None):
    vwob = V_WOB if vwob is None else vwob
    ci, half = PER[p]
    win, base, ps, res = oslot(p)
    L = [I(f"s_add_u32 s{S_WO}, s{S_G}, {1 + ci}"), I(f"s_and_b32 s{S_WO}, s{S_WO}, 7"), I(f"s_lshl_b32 s{S_WO}, s{S_WO}, 7")]
    for h in range(2):
        for i in range(4):
            L.append(I(f"s_add_u32 s{S_RS + i}, s{S_WO}, {hx((half*64 + h*32 + 8*i)*1024 - 1024*i)}"))
            if i == 0: L.append(I(f"s_add_u32 m0, s{S_RING if ps == 16384 else S_WO+1}, {hx(win*65536 + base + h*4096)}"))
            off = f" offset:{i*1024}" if i else ""
            L.append(I(f"buffer_load_dwordx4 v{vwob}, {sr(SRD_WO)}, s{S_RS + i} offen{off} lds", tag=f"wo{p}", res_w=[(res, True)]))
    return L

OFREG = [list(range(0, 64, 4)) + list(range(128, 176, 4)) + list(range(240, 256, 4)),
         list(range(64, 128, 4)) + list(range(176, 240, 4))]
def OF(half, j, qb): return OFREG[half][8*qb + j]
def oaf_reads(p):
    win, base, ps, res = oslot(p)
    return [I(f"ds_read_b64_tr_b16 {vr(V_R(p) + 4*j + 2*e, 2)}, v{V_OA[win]} offset:{base + (j>>1)*ps + (j&1)*4096 + e*2048}",
              tag=f"oaf{p}", res_r=[(res, True)]) for j in range(8) for e in range(2)]
def of_reads(half, qb):
    return [I(f"ds_read_b64_tr_b16 {ar(OF(half, j, qb) + 2*e, 2)}, v{V_XR} offset:{(j>>1)*16384 + 8192 + (j&1)*4096 + e*2048}",
              tag=f"of{half}_{qb}", res_r=[('V1' if half else 'K1', True)]) for j in (range(8) if qb & 1 == 0 else range(7, -1, -1)) for e in range(2)]
def swz(dst, row, unit, t):
    return [I(x) for x in (f"v_bfe_u32 v{t}, v{row}, 1, 2", f"v_lshlrev_b32 v{t}, 2, v{t}", f"v_and_or_b32 v{t}, v{row}, 1, v{t}", f"v_xor_b32 v{unit}, v{unit}, v{t}",
                           f"v_lshrrev_b32 v{t}, 2, v{row}", f"v_and_b32 v{t}, 2, v{t}", f"v_xor_b32 v{unit}, v{unit}, v{t}",
                           f"v_lshlrev_b32 v{dst}, 7, v{row}", f"v_lshl_add_u32 v{dst}, v{unit}, 3, v{dst}")]
def sp_load(st):
    L = []
    for half in range(2):
        L.append(I(f"s_add_u32 s{S_YI+half}, s{S_CB}, {hx((2*min(st, 6) + half) * PL)}"))
        L.append(I(f"buffer_load_dwordx4 {vr(V_SP(st) + 4*half)}, v{V_L16}, {sr(SRD_WS)}, s{S_YI+half} offen {OPT.get('spf', 'sc1').replace('+', ' ')}", tag=f"sp{st}"))
    return L
def sp_max(st):
    b = V_SP(st); m = V_MX
    return [I(f"v_max3_u32 v{m}, v{b}, v{b+1}, v{b+2}"), I(f"v_max3_u32 v{m}, v{m}, v{b+3}, v{b+4}"),
            I(f"v_max3_u32 v{m}, v{m}, v{b+5}, v{b+6}"), I(f"v_max_u32 v{m}, v{m}, v{b+7}")]

def finale():
    m = []; blk = []; sg = {}; per = []
    for i in range(8):
        for qb in range(4):
            blk.append(len(m))
            o = ar(A_O + 16*i + 4*qb)
            for ks in (range(4) if (qb & 1 == 0 or OPT.get('nosnake')) else range(3, -1, -1)): m.append(mf(o, vr(P(1, qb, ks)), ar(A_VF + 16*(i&1) + 4*ks), o))
            if (i, qb) == (2, 0):
                tm0 = len(m)
                for q in range(4): m.append(I(f"v_mfma_f32_16x16x4_f32 {vr(V_RL + 4*q)}, v{V_NT+q}, v{V_MISC}, 0"))
            if i == 0:
                for h in range(2):
                    sg[(qb, h)] = len(m); m.append(smf(1, qb, h))
    blk.append(len(m))
    for p, (ci, half) in enumerate(PER):
        lo = len(m)
        for qb in range(4):
            d = vr(V_OACC + 16*(ci & 1) + 4*qb)
            js = list(range(8))
            if qb & 1 and not OPT.get('nosnake'): js.reverse()
            for j in js:
                m.append(mf(d, vr(V_R(p) + 4*j), ar(OF(half, j, qb)), "0" if (j == js[0] and half == 0) else d))
        per.append((lo, len(m) - 1))
    G = Gaps(m)
    for q in range(4): G.cap[tm0 + q] = 6
    cnt_check(G, per[2][1] - 6, 16, 'B', read=False, vreg=V_MISC)
    Xa = blk[4] - 1
    X0 = blk[4*int(OPT.get('x0', 3))] - 1
    Xb = blk[4*int(OPT.get('xb', 5))] - 1
    X1 = blk[28] - 1
    p0, p2 = per[0][0], per[2][0]
    Xc = p0 + int(OPT.get('xc', 29))
    X2 = per[1][0] + int(OPT.get('x2', 17))
    quiet = set()
    def paced(items, lo, step, h=None):
        pos = lo - step
        for x in items:
            if x.kind == 'dma':
                pos = max(pos + step, h[0] if h else 0)
                while pos in quiet or any(y.is_mem() and y.kind != 'dsr' for y in G.seq(pos)) or (h and h[0] == pos and h[1] == 2): pos += 1
                h = G.pin(pos, x)
            else:
                st = max(lo - 3, h[0] if h else 0, 0)
                h = G.place(x, st, st + 2, after=h)
        return h
    w1pos = [X1 - 3 - 4*k for k in range(7, -1, -1)]
    w2pos = [X2 - 4 - int(OPT.get('w2s', 5))*k for k in range(7, -1, -1)]
    for g in w1pos + w2pos: quiet |= {g, g + 1}
    assert w1pos[0] > Xb
    ex, cv = softmax_items(31, 1)
    for r in range(4): G.pin(r, ex[r])
    G.pin(4, cv[0]); G.pin(4, cv[1])
    def ds_stream(rd, lo, hi, per_gap=2):
        g = lo
        for x in rd:
            while g in quiet or sum(y.kind == 'dsr' for y in G.seq(g)) >= per_gap or (x.is_b128r() and any(y.is_b128r() for y in G.seq(g))): g += 1
            assert g <= hi, (x.text, g, hi)
            G.pin(g, x)
        return g
    for i in range(7):
        ds_stream(v_reads(i + 1, 1), blk[4*i] + (1 if i == 0 else 0), blk[4*i + 4] - 4, 1 if i == 0 else 2)
        if blk[4*i + 4] - 1 not in (Xa, X0, Xb, X1): G.pin(blk[4*i + 4] - 1, W(lgkm=['fr']))
    su = [I(f"v_accvgpr_read_b32 v{V_OA[0]}, a{A_ADR}"), I(f"v_add_u32 v{V_OA[2]}, 0x20000, v{V_OA[0]}")]
    for k, x in enumerate(su): G.pin(5, x)
    ds_stream(oaf_reads(0), 6, Xa - 4)
    h = paced(wo_dma(2), 2, int(OPT.get('fs', 3)))
    G.pin(Xa, W(lgkm=['fr', 'oaf0'])); G.pin(Xa, I("s_barrier"))
    h = paced(wo_dma(3), max(h[0], Xa) + 2, int(OPT.get('fs3', 3)), h)
    e0 = sg[(3, 1)] + 5
    su = [I(x) for x in (f"v_cmp_gt_u32 vcc, 0x100, v{V_L16}", f"v_accvgpr_read_b32 v{V_XR}, a{A_ADR+1}", f"v_accvgpr_read_b32 v{V_XW}, a{A_ADR+2}",
           f"v_cndmask_b32 v{V_MISC}, 0, 1.0, vcc", f"v_add_u32 v{V_OA[1]}, 0x10000, v{V_OA[0]}",
           f"s_lshl_b32 s{S_SO+1}, s{S_W}, 10", f"s_add_u32 s{S_SO+1}, s{S_SO+1}, s{S_RB}")]
    G.stream(su, 9, e0 - 1)
    G.stream([I(f"v_bfe_u32 v{V_MISC}, v{V_L16}, 4, 2"), I(f"v_lshlrev_b32 v{V_MISC}, 14, v{V_MISC}")], tm0 + 3, X0 - 1)
    for x in (I("s_cbranch_vccnz L_MARK"), I("L_MARKED:")): G.pin(tm0 - 1, x)
    STUBS.extend([I("L_MARK:"), I(f"v_mov_b32 v16, -1"), I(f"v_mov_b32 v17, s{S_RING}"), I(f"ds_write_b32 v17, v16 offset:8192"), I("s_waitcnt lgkmcnt(0)"), I("s_branch L_MARKED")])
    G.pin(X0, W(vm=['wo2'], lgkm=['fr'])); G.pin(X0, I("s_barrier"))
    G.pin(X0, I(f"ds_read_b32 v{V_MISC}, v{V_MISC} offset:8192", tag='mk', res_r=[('K1', True)]))
    FB = X0 + 6
    G.pin(FB - 2, W(lgkm=['mk'])); G.pin(FB - 2, I(f"v_cmp_eq_u32 vcc, -1, v{V_MISC}"))
    for x in (I("s_cbranch_vccnz L_FALLBACK0"), I("L_NOFB:")): G.pin(FB, x)
    STUBS.extend([I("L_FALLBACK0:"), I(f"s_cmp_lg_u32 s{S_PASS}, 0"), I("s_cbranch_scc1 L_NOFB"), I("s_branch L_FALLBACK")])
    o1 = oaf_reads(1)
    for x in o1: x.res_r = x.res_r + [('K0x', True)]
    ds_stream(o1 + oaf_reads(2), FB, Xb - 3)
    G.pin(Xb, W(lgkm=['fr', 'oaf2'])); G.pin(Xb, I("s_barrier"))
    G.pin(X1, W(vm=['wo3'], lgkm=['fr', 'ow0'])); G.pin(X1, I("s_barrier"))
    for half, g, pf in ((0, X1 + 1, p0), (1, X2 + 1, p2)):
        for qb in range(4):
            G.pin(pf + 8*qb - 1, W(lgkm=[f'of{half}_{qb}']))
            g = ds_stream(of_reads(half, qb), g, pf + 8*qb - 4)
            if (half, qb) != (1, 3): G.pin(g, I(f"v_xor_b32 v{V_XR}, {hx((32, 96, 32, 96 + 0x10000)[qb])}, v{V_XR}"))
            g += 1
        if half == 0: ds_stream(oaf_reads(3), p0, Xc - 3, 3)
    G.pin(Xc, W(vm=['wo4'] if EARLY4 else None, lgkm=['of0_3', 'oaf3'])); G.pin(Xc, I("s_barrier"))
    if EARLY4: ds_stream(oaf_reads(4), per[1][0], X2 - 2, 3)
    G.pin(X2, W(lgkm=['ow1'] + (['oaf4'] if EARLY4 else []))); G.pin(X2, I("s_barrier"))
    skip = set(int(x) for x in OPT.get('skip', '99').split(',') if x)
    for p in range(2, 15):
        lo, hi = per[p]
        q = p + 1
        lg = [f"oaf{q}"] if p > 2 else ['of1_3']
        if EARLY4 and p == 3:
            G.pin(hi, W(vm=['wo5'])); G.pin(hi, I("s_barrier")); continue
        if q < 15 and q not in skip:
            G.pin(hi, W(vm=[f"wo{q+2 if q+1 in skip else q+1}"], lgkm=lg)); G.pin(hi, I("s_barrier"))
        else:
            G.pin(hi, W(lgkm=lg))
        if p > 2:
            for k, x in enumerate(oaf_reads(q)): G.pin(lo + 1 + 3*(k // 2), x)
    h = paced(wo_dma(4) + wo_dma(5), Xb + 1, 4, h)
    h = paced(wo_dma(6) + wo_dma(7), max(h[0] + 4, Xc + 1), int(OPT.get('fs6', 4)), h)
    if EARLY4: h = paced(wo_dma(8), max(h[0] + 3, X2 + 1), int(OPT.get('fs6', 4)), h)
    pace = int(OPT.get('pace', 40)); ENDS = [h[0]]
    for k in range(7 if EARLY4 else 8):
        q = (9 if EARLY4 else 8) + k
        rel = q - 5 if not (EARLY4 and q == 9) else 3
        while rel in skip: rel += 1
        need = q - 1
        while need in skip: need -= 1
        lo = max(per[rel][0], min(per[3][0] + pace*k, per[need][0] - int(OPT.get('fm', 28)) - 32), h[0] + 2)
        step = max(2, min(pace // 8, (per[need][0] - int(OPT.get('fm', 28)) - lo) // 7))
        h = paced(wo_dma(q), lo, step, h); ENDS.append(h[0])
    items = []
    for qb in range(4):
        items += [I(f"v_accvgpr_read_b32 v{V_NT+qb}, a{A_L+4*qb}"), I(f"v_accvgpr_read_b32 v16, a{A_L+4*qb+1}"),
                  I(f"v_add_f32 v{V_NT+qb}, v{V_NT+qb}, v16")]
    items += [I(f"v_add_f32 v16, v{V_NT}, v{V_NT+1}"), I(f"v_add_f32 v17, v{V_NT+2}, v{V_NT+3}"), I(f"v_add_f32 v16, v16, v17"),
              I(f"v_cmp_ngt_f32 vcc, {hx(f2u(2.0**(40 - float(OPT.get('moff', 10)))))}, v16")]
    items += [I(f"v_rcp_f32 v{V_NT+qb}, v{V_NT+qb}") for qb in range(4)]
    G.stream(items, e0, tm0 - 2)
    h = (tm0 + 2, 2)
    def norm(i, qb):
        e = blk[4*i + qb] + 3 + 6
        st = V_STG + 16*((i >> 1) & 1) + 4*qb
        o = A_O + 16*i + 4*qb; T = V_NT
        seq = [I(f"v_accvgpr_read_b32 v{T+r}, a{o+r}") for r in range(4)]
        seq += [I(f"v_mul_f32 v{T+r}, v{T+r}, v{V_RL+4*qb+r}") for r in range(4)]
        seq += [I(f"v_cvt_pk_bf16_f32 v{st+2*(i&1)}, v{T}, v{T+1}"), I(f"v_cvt_pk_bf16_f32 v{st+2*(i&1)+1}, v{T+2}, v{T+3}")]
        return [(x, e) for x in seq]
    for hf, wpos in ((0, w1pos), (1, w2pos)):
        for k in range(8):
            u, qb = 2*hf + (k >> 2), k & 3
            st = V_STG + 16*(u&1) + 4*qb
            G.pin(wpos[k], I(f"ds_write2st64_b64 v{V_XW}, {vr(st, 2)}, {vr(st + 2, 2)} offset0:{16 + 8*(u&1)} offset1:{20 + 8*(u&1)}", tag=f'ow{hf}',
                             res_w=[('V1' if hf else 'K1', True)]))
            if (hf, k) != (1, 7): G.pin(wpos[k] + 1, I(f"v_xor_b32 v{V_XW}, {hx((32, 96)[k & 1] + (0x10000 if k == 7 else 0))}, v{V_XW}"))
    for hf, wpos in ((0, w1pos), (1, w2pos)):
        lo = h[0] + 1; span = wpos[7] - lo
        for k in range(8):
            u, qb = 2*hf + (k >> 2), k & 3
            its = norm(2*u, qb) + norm(2*u + 1, qb)
            if hf: its = [(x, max(e, w1pos[k] + 2)) for x, e in its]
            hi = min(wpos[k] - 1, max(lo + (span * (k + 1)) // 8, its[-1][1] + 4))
            h = G.stream(its, h[0] + 1, max(hi, h[0] + 3))
            assert h[0] < wpos[k]
    G.stream([I(f"v_accvgpr_read_b32 v{V_XT+k}, a{A_XT+k}") for k in range(8)] + [I(f"v_accvgpr_read_b32 v{16 + k}, a{A_Y7+k}") for k in range(12)], X2 - 3, X2 + 22)
    STP = []; EV = []; HELD = {}
    for ev in str(OPT.get('ev') or '').split(';'):
        if ev: EV.append((float(ev.split(':')[0]), ev.split(':')[1].split(',')))
    evs = set(x[:2] for _, l in EV for x in l)
    for ci in range(7):
        so = (24 + 2*(ci & 1), 25 + 2*(ci & 1))
        pl = PER.index((ci, 1))
        a = V_OACC + 16*(ci & 1)
        asap = OPT.get('asap') and ci == 6
        e0 = per[pl][0] + (20 if not asap else 10)
        items = [(I(x), e0) for x in (f"s_add_u32 s{S_SO}, s{S_G}, {1 + ci}", f"s_and_b32 s{S_SO}, s{S_SO}, 7", f"s_lshl_b32 s{S_SO}, s{S_SO}, {GS_S}",
                 f"s_add_u32 s{so[0]}, s{S_SO}, s{S_SO+1}", f"s_add_u32 s{so[1]}, s{so[0]}, {hx(PL)}", f"s_add_u32 s{S_SO+1}, s{S_SO+1}, {hx(2*PL)}")]
        st = V_STG + 8*(ci & 1)
        for half in range(2):
            e = per[pl][0] + 16*half + 15 + 6
            for q2 in range(2):
                eq = e - (5 if (q2 == 0 and asap) else 0) - (1 if asap else 0)
                for k in range(4*half + 2*q2, 4*half + 2*q2 + 2): items.append((I(f"v_cvt_pk_bf16_f32 v{st+k}, v{a+2*k}, v{a+2*k+1}"), eq))
                for k in range(4*half + 2*q2, 4*half + 2*q2 + 2): items.append((I(f"v_min_u32 v{st+k}, -2, v{st+k}"), eq))
            items.append((I(f"buffer_store_dwordx4 {vr(st+4*half)}, v{V_L16}, {sr(SRD_WS)}, s{so[half]} offen {OPT.get('ssf', 'sc1').replace('+', ' ')}", tag='sst'), max(e, per[2][1] + 1)))
        if f"s{ci}" in evs:
            hh = G.stream([it_ for it_ in items if it_[0].kind != 'vst'], e0, per[pl + 1][0] + 12)
            HELD[f"s{ci}"] = ([x for x, _ in items if x.kind == 'vst'], hh[0], per[min(pl + 4, 15)][0] + 14 if ci > 0 else per[5][0] + 14)
            continue
        if OPT.get('stal') and 0 < ci <= int(OPT.get('stmax', 6)):
            sts_ = [x for x, _ in items if x.kind == 'vst']
            hh = G.stream([it_ for it_ in items if it_[0].kind != 'vst'], e0, per[pl + 1][0] + 12)
            cand = [g for g in ENDS if g >= hh[0] - int(OPT['stal'])]
            g = max(cand[0] + 1, hh[0] + 1) if cand and cand[0] < per[pl + 1][0] + 48 else hh[0] + 1
            G.pin(g, sts_[0]); G.pin(g + 2, sts_[1]); STP.append(g + 2)
            continue
        G.stream(items, e0, per[pl + 1][0] + (int(OPT['asap']) if (ci == 6 and OPT.get('asap')) else 18))
    it = y_add(0, None, V_MX) + y_add(1, 16, V_MX) + y_add(0, 20, V_MX) + y_add(1, 24, V_MX)
    for q0 in range(0, 16, 4):
        T = V_NT
        it += [I(f"v_mul_f32 v{T+r}, {hx(f2u(-math.log2(math.e)/CF))}, v{V_YS+q0+r}") for r in range(4)]
        it += [I(f"v_exp_f32 v{T+r}, v{T+r}") for r in range(4)]
        it += [I(f"v_fma_f32 v{T+r}, v{T+r}, s{S_QS}, s{S_QS}" if OPT.get('fold') else f"v_add_f32 v{T+r}, 1.0, v{T+r}") for r in range(4)]
        it += [I(f"v_rcp_f32 v{T+r}, v{T+r}") for r in range(4)]
        it += [I(f"v_mul_f32 v{V_YS+q0+r}, v{V_YS+q0+r}, v{T+r}") for r in range(4)]
        if OPT.get('eps'): it += [I(f"v_mul_f32 v{V_YS+q0+r}, {hx(f2u(1 + float(OPT['eps'])))}, v{V_YS+q0+r}") for r in range(4)]
    V_XF = 144
    for h in range(2): it += [I(f"v_permlane16_swap_b32 v{V_XT+4*h}, v{V_XT+4*h+2}"), I(f"v_permlane16_swap_b32 v{V_XT+4*h+1}, v{V_XT+4*h+3}")]
    for k in range(8): it += [I(f"v_lshlrev_b32 v{V_XF+2*k}, 16, v{V_XT+k}"), I(f"v_and_b32 v{V_XF+2*k+1}, 0xffff0000, v{V_XT+k}")]
    it += xo_voff(3, 2)
    it += [I(x) for x in (f"v_bfe_u32 v0, v{V_L16}, 6, 2", f"v_lshrrev_b32 v1, 8, v{V_L16}", "v_cmp_eq_u32 vcc, v0, v1",
           f"v_and_b32 v0, 16, v{V_L16}", "v_mov_b32 v1, 0x3f80", "v_lshlrev_b32 v0, v0, v1", "v_cndmask_b32 v0, 0, v0, vcc",
           f"v_and_b32 v1, 32, v{V_L16}", "v_cmp_eq_u32 vcc, 0, v1", f"v_mov_b32 v{V_SEL}, 0", f"v_mov_b32 v{V_SEL+1}, 0",
           f"v_cndmask_b32 v{V_SEL+2}, 0, v0, vcc", f"v_mov_b32 v{V_SEL+4}, 0", f"v_sub_u32 v{V_SEL+3}, v0, v{V_SEL+2}", f"v_mov_b32 v{V_SEL+5}, 0")]
    NE_ = int(OPT.get('ne5', 4))
    lds_ = [float(x) for x in OPT.get('lds', '6.6,8.6,10.6,12.6,14.6,14.6').split(',')]
    for t_, lst in EV:
        g = per[0][0] + int(32*t_)
        for nm in lst:
            ops = HELD[nm[:2]][0] if nm[0] == 's' else sp_load(int(nm[1]))
            if len(nm) == 3: ops = ops[:len(ops)//2] if nm[2] == 'a' else ops[len(ops)//2:]
            nm = nm[:2]
            for x in ops:
                if x.kind == 'salu': G.pin(g - 1, x, lane=2); continue
                while any(y.kind in ('dma', 'vld', 'vst') for y in G.seq(g)): g += 1
                if nm[0] == 's': assert HELD[nm][1] < g < HELD[nm][2], (nm, g, HELD[nm][1:])
                G.pin(g, x); g += int(OPT.get('evs', 1))
    h = None
    for st in range(len(lds_)):
        if f"l{st}" in evs: continue
        g = per[0][0] + int(32*lds_[st])
        if OPT.get('ldal') and st + 1 < len(STP) and st < 4: g = STP[st + 1] + 2
        g = max(g, h[0] + 1 if h else 0)
        h = G.stream(sp_load(st), g, g + 5)
    G.stream(it, per[4][0], per[14][1])
    def chk(sts):
        regs = [V_SP(st) + k for st in sts for k in range(8)]
        out = [I(f"v_max_u32 v{V_MX}, v{regs[0]}, v{regs[1]}")]
        for k in range(2, len(regs), 2): out.append(I(f"v_max3_u32 v{V_MX}, v{V_MX}, v{regs[k]}, v{regs[k+1]}"))
        return out + [I(f"v_cmp_eq_u32 vcc, -1, v{V_MX}")]
    c0 = chk(range(NE_))
    G.stream([I(f"s_mov_b32 s{S_SPIN}, 0x40000"), W(vm=[f"sp{NE_-1}"])] + c0, per[15][1] - len(c0)//2 - 4, per[15][1] - 1)
    if OPT['stamps']:
        for x in stamp(9): G.pin(p0 - 1, x, post=True)
    for k in range(16): ministamp(G, per[k][1], 48 + k)
    print(f"; finale est cycles {G.cycles()} (pv part {G.cyc(0, p0-1)}, periods {[G.cyc(a, b) for a, b in per]})", file=sys.stderr)
    L = with_m0_pad(G.flat()); A = lambda t, **k: L.append(I(t, **k))
    if len(lds_) < 7: L += sp_load(6)
    elif OPT.get('dual'): L += sp_load(7)
    L += stamp(10)
    acc = V_OACC + 16; U = 160
    groups = [list(range(NE_))] + [[st] for st in range(NE_, 7)]
    for n_, sts in enumerate(groups):
        A(f"s_cbranch_vccnz L_RETRY{n_}"); A(f"L_GO{n_}:")
        mm = [mf(vr(acc + 4*qb), vr(V_SEL + (0 if qb & 1 else 2)), vr(V_SP(st) + 4*(qb >> 1)), vr(acc + 4*qb)) for qb in range(4) for st in sts]
        nx = [W(vm=[f"sp{groups[n_+1][0]}"])] + chk(groups[n_ + 1]) + [I("s_nop 1")] if n_ + 1 < len(groups) else [I("s_nop 7")]
        L += mm + nx
        STUBS.append(I(f"L_RETRY{n_}:"))
        if sts == [6] and OPT.get('dual'):
            L.insert(len(L) - 1, I("L_DONE6:"))
            m7 = [mf(vr(acc + 4*qb), vr(V_SEL + (0 if qb & 1 else 2)), vr(V_SP(7) + 4*(qb >> 1)), vr(acc + 4*qb)) for qb in range(4)]
            STUBS.extend([I("s_waitcnt vmcnt(0)")] + chk([7]) + [I(f"s_sub_u32 s{S_SPIN}, s{S_SPIN}, 1"), I(f"s_cmp_le_i32 s{S_SPIN}, 0"), I("s_cbranch_scc1 L_RN7"),
                         I("s_cbranch_vccz L_RN7")] + sp_load(7) + [I(f"s_branch L_RETRY{n_}"), I("L_RN7:")] + m7 + [I("s_branch L_DONE6")])
            continue
        for st in sts:
            if len(sts) > 1: STUBS.extend(chk([st]) + [I("s_nop 3"), I(f"s_cbranch_vccz L_RN{st}")])
            STUBS.extend([I(f"L_RL{st}:")] + sp_load(st) + [I(f"s_sub_u32 s{S_SPIN}, s{S_SPIN}, 1"), I("s_waitcnt vmcnt(0)")] + chk([st]) +
                         [I(f"s_cmp_le_i32 s{S_SPIN}, 0"), I(f"s_cbranch_scc1 L_RN{st}"), I("s_nop 1"), I(f"s_cbranch_vccnz L_RL{st}"), I(f"L_RN{st}:")])
        STUBS.append(I(f"s_branch L_GO{n_}"))
    for k in range(8): A(f"v_pk_fma_f32 {vr(acc+2*k,2)}, {vr(acc+2*k,2)}, {vr(V_YS+2*k,2)}, {vr(V_XF+2*k,2)}")
    for k in range(8): A(f"v_cvt_pk_bf16_f32 v{U+k}, v{acc+2*k}, v{acc+2*k+1}")
    for h in range(2):
        A(f"v_permlane16_swap_b32 v{U+4*h}, v{U+4*h+2}"); A(f"v_permlane16_swap_b32 v{U+4*h+1}, v{U+4*h+3}")
    for h in range(2): A(f"buffer_store_dwordx4 {vr(U+4*h)}, v3, {sr(SRD_OUT)}, s{S_XO+h} offen {OPT.get('outf', '').replace('+', ' ')}", tag='out')
    return L

def fallback():
    L = []; A = lambda t, **k: L.append(I(t, **k))
    A("L_FALLBACK:")
    A("s_waitcnt vmcnt(0) lgkmcnt(0)"); A("s_nop 7")
    A(f"s_mov_b32 s{S_PASS}, 1")
    A(f"s_mov_b32 s{SRD_WS2+2}, 0")
    A(f"s_lshl_b32 s{S_KO}, s{S_W}, 13"); A(f"s_add_u32 s{S_KO+1}, s{S_KO}, 4096")
    for qb in range(4): A(f"v_mov_b32 v{V_NEGM+4*qb}, 0xff800000")
    A(f"s_mov_b32 s{S_CNT}, 17")
    A("L_FB_LOOP:")
    A("s_waitcnt vmcnt(0) lgkmcnt(0)"); A("s_barrier")
    A(f"s_cmp_lg_u32 s{S_CNT}, 1"); A("s_cbranch_scc1 L_FB_NR")
    A(f"s_lshl_b32 s{S_KO}, s{S_W}, 13"); A(f"s_add_u32 s{S_KO+1}, s{S_KO}, 4096")
    A("L_FB_NR:")
    L += with_m0_pad(kv_dma('K', 0, 0, 'kv') + kv_dma('K', 1, 0, 'kv'))
    A("s_waitcnt vmcnt(0)"); A("s_barrier")
    for kt in range(8):
        L += k_reads(kt, 0); A("s_waitcnt lgkmcnt(0)")
        for qb in range(4):
            d = vr(V_P + 4*qb)
            for kk in range(4): L.append(mf(d, ar(A_KF + 16*(kt&1) + 4*kk), vr(V_Q + 16*qb + 4*kk), d if kk else "0"))
        A("s_nop 7")
        for qb in range(4):
            b = V_NEGM + 4*qb; d = V_P + 4*qb
            A(f"v_max3_f32 v{b}, v{b}, v{d}, v{d+1}"); A(f"v_max3_f32 v{b}, v{b}, v{d+2}, v{d+3}")
    A(f"s_add_u32 s{S_KO}, s{S_KO}, 0x8000"); A(f"s_add_u32 s{S_KO+1}, s{S_KO+1}, 0x8000")
    A(f"s_sub_u32 s{S_CNT}, s{S_CNT}, 1"); A(f"s_cmp_lg_u32 s{S_CNT}, 0"); A("s_cbranch_scc1 L_FB_LOOP")
    L += rowmax_finish()
    A(f"s_lshl_b32 s{S_VO}, s{S_W}, 13"); A(f"s_add_u32 s{S_VO+1}, s{S_VO}, 4096")
    L += with_m0_pad(kv_dma('K', 0, 1, 'kv') + kv_dma('K', 1, 1, 'kv') + kv_dma('V', 0, 0, 'kv') + kv_dma('V', 1, 0, 'kv'))
    L += k_reads(0, 0); A("s_waitcnt lgkmcnt(0)")
    for k in range(4): A(f"s_add_u32 s{S_KO+k}, s{S_KO+k}, 0x8000")
    L += attn_setup()['pre']
    L += attn_iter0()
    A("s_branch L_IT1")
    return L

def build():
    d = OPT['dump']
    p0 = phase0(); p1 = phase1()
    su = stamp(4) + (stamp(5) if not OPT.get('fine') else []) + stamp(6)
    it0 = []
    g1 = attn_iter(1, first_pv=True); ge, go = attn_iter(0, vmtags=('kv', 'yst')), attn_iter(1, vmtags=('kv', 'fill'))
    go.pin(len(go) - 5, I(f"s_sub_u32 s{S_CNT}, s{S_CNT}, 1")); go.pin(len(go) - 4, I(f"s_cmp_lg_u32 s{S_CNT}, 0"))
    if not OPT.get('nobr'):
        w_ = go.g[len(go) - 1][0].pop(); assert w_.kind == 'wait'; go.pin(len(go) - 2, w_)
    it1_extras(g1); loop_extras(ge, go)
    if OPT.get('trip'):
        for G_, base in ((ge, 32), (go, 48)):
            for x in (I(f"s_memtime s[{S_STAMP}:{S_STAMP+1}]"), I(f"s_add_u32 s98, s{S_CNT}, {base}"), I("s_waitcnt lgkmcnt(0)"), I(f"v_mov_b32 v{V_YT}, s{S_STAMP}"), I(f"v_lshrrev_b32 v{V_CNT if G_ is go else V_YT}, 0, v{V_YT}")): pass
            for x in (I(f"s_memtime s[{S_STAMP}:{S_STAMP+1}]"), I(f"s_mov_b32 s101, m0"), I(f"s_add_u32 m0, s{S_CNT}, {base}"), I("s_waitcnt lgkmcnt(0)"), I(f"v_writelane_b32 v63, s{S_STAMP}, m0"), I("s_nop 1"), I("s_mov_b32 m0, s101")): G_.pin(G_.sg[6], x, post=True)
    print(f"; attn iter est cycles {ge.cycles()} {go.cycles()} (it1 {g1.cycles()})", file=sys.stderr)
    if OPT.get('idle'): su = su + [I("s_nop 15")] * (int(OPT['idle']) // 64)
    if OPT.get('idlel'):
        for k in range(int(OPT['idlel'])): ge.pin(ge.sg[k], I("s_nop 15"), post=True); go.pin(go.sg[k], I("s_nop 15"), post=True)
    it1 = [I("L_IT1:")] + with_m0_pad(g1.flat()) + [I(f"s_mov_b32 s{S_CNT}, 7")] + stamp(7)
    loop = [I(".p2align 6"), I("L_LOOP:")] + ge.flat() + go.flat() + [I("s_cbranch_scc1 L_LOOP")]
    last = [I("L_FIN:")] + stamp(8) + finale()
    if OPT['stamps']: last += [I(f"v_writelane_b32 v63, s{S_SPIN}, 15")]
    last += stamp(11 if not OPT.get('fine') else 14, True)
    op = []
    fb = fallback()
    end = [I("L_END:"), I("s_endpgm")]
    if d == 'q': body = p0 + p1 + dump_regs([vr(V_Q + 4*i) for i in range(16)] + [ar(144 + 4*i) for i in range(28)]) + end; trace = body
    else:
        C = lambda t: [I("; ==== " + t)]
        body = (C("set-up, x load, LayerNorm, exchange") + p0 + C("w1 / wq / w2 GEMMs, row-max seed, first QK pass") + p1 + su + it0 +
                C("attention iteration 1") + it1 + C("attention iterations 2..15 (two per trip)") + loop +
                C("last PV pass, normalisation, O projection, reduce-scatter tail") + last + end + C("out-of-line waits and once-per-launch work") + STUBS +
                C("exact-max fallback") + fb)
        trace = p0 + p1 + su + it0 + it1 + loop*3 + last
        k = [i for i, x in enumerate(last) if x.text == "s_cbranch_vccnz L_FALLBACK0"][0]
        trace2 = p0 + p1 + su + it0 + it1 + loop*2 + last[:k+1] + fb + it0 + it1 + loop + last
        resolve_waits(trace2)
    resolve_waits(trace)
    e = check(trace, verbose=False)
    if d is None: e += check(trace2, verbose=False)
    seen = set()
    e = [x for x in e if 's_memtime' not in x]
    for x in e[:6]: print("CHECK:", x, file=sys.stderr)
    if e: print("FAILED CHECK", len(e), file=sys.stderr); sys.exit(1)
    def in_gemm(x): return id(x) in gset
    gset = set(id(x) for x in p1)
    if OPT.get('halfdma'): body = [x for x in body if not (in_gemm(x) and x.kind == 'dma' and x.tag.startswith('st') and ('offset:1024' in x.text or 'offset:3072' in x.text))]
    if OPT.get('drop'): body = [x for x in body if not (id(x) in set(id(y) for y in loop) and x.tag in OPT['drop'].split(','))]
    if OPT.get('dropf'): body = [x for x in body if not (id(x) in set(id(y) for y in last) and ((x.tag and any(x.tag.startswith(t) for t in OPT['dropf'].split(','))) or 'L_RETRY' in x.text or ('bar' in OPT['dropf'] and x.kind == 'barrier')))]
    if OPT.get('nosst'): body = [x for x in body if x.tag not in ('sst', 'fill')]
    if OPT.get('noy'): body = [x for x in body if x.tag not in ('y0', 'y1')]
    if OPT.get('nodma'): body = [x for x in body if not (in_gemm(x) and x.kind == 'dma')]
    if OPT.get('novalu'): body = [x for x in body if not (in_gemm(x) and x.kind in ('valu', 'trans', 'perm') and any(k in x.text for k in ('f32', 'accvgpr', 'permlane')))]
    if OPT.get('nomfma'): body = [x for x in body if not (in_gemm(x) and x.kind == 'mfma')]
    if OPT.get('nods'): body = [x for x in body if not (in_gemm(x) and x.kind == 'dsr' and 'b32' not in x.text)]
    return body

def kdesc(name, vg, acc):
    return f""".amdhsa_kernel {name}
  .amdhsa_next_free_vgpr {vg}
  .amdhsa_next_free_sgpr 102
  .amdhsa_accum_offset {acc}
  .amdhsa_group_segment_fixed_size 0
  .amdhsa_kernarg_size 104
  .amdhsa_user_sgpr_count 2
  .amdhsa_user_sgpr_kernarg_segment_ptr 1
  .amdhsa_system_sgpr_workgroup_id_x 1
  .amdhsa_float_denorm_mode_32 3
.end_amdhsa_kernel"""


HEADER = """; Fused  out = x + Attn(LN(x)) * silu(MLP(LN(x)))  for gfx950, one launch, 256 workgroups x 4 waves (1 wave/SIMD, 512 regs).
; Generated by my own script (hand-designed schedule: every non-matrix instruction is placed in the issue gaps of a
; v_mfma_f32_16x16x32_bf16 backbone; waits and hazards are derived and checked by the script).
;
; Workgroup = (kv group g, 64 rows r); wave w = query head 4g+w.
;     c = log2(e)/sqrt(128); the gelu / silu constants divide it out again.
;  2. h = gelu_tanh(xn w1[:,224g..224g+224) + b1), Q = xn wq[:,512g..), y_partial = h w2[224g..,:]; weights stream
;     L2 -> LDS by DMA and are read transposed.
;  3. Attention over 16 tiles of 128 keys: S = K Q^T - shift (shift enters as the MFMA C operand), P = exp2(S) in bf16,
;     O += P V, row sums l of the same bf16 P by a sparse MFMA.
;     shift = (true max of the row over the first 16 keys) + 10, so l >= 2^-10 and terms down to 2^-116 of the row
;     keys (L_FALLBACK) and redoes the attention with it.
;  4. O/l is exchanged through LDS, s_partial = O wo[512g..,:] chunk by chunk; chunk d goes to workgroup (d, r).
;  5. Workgroup (g, r) sums the 8 y and 8 s partials of output columns 64g..64g+64 and writes out.
; Hand-offs between workgroups use d_ws with write-through (sc1) stores and sc1 loads only:
;  - y: published before the first add to the row block's counter in d_debug, read after the counter is seen >= 8;
;  - s: every receiver first overwrites its 7 slots with all-ones words (second add, senders wait for counter == 16),
;    senders never store an all-ones word, receivers re-read a slot until no all-ones word is left.
; Nothing depends on XCD placement except speed (cache / TLB warm-up touches, id -> (g, r) mapping).
"""

def render(body):
    K1 = NAME + "_kernel"
    out = [HEADER + f"; @launch grid=(256,1,1) block=(256,1,1) lds=163840",
           '.amdgcn_target "amdgcn-amd-amdhsa--gfx950"', ".text"]
    out += [f".globl {K1}", ".p2align 12", ".p2align 8", f".type {K1},@function", f"{K1}:"] + [x.emit() for x in body]
    out += ['.section .rodata,"a"', ".p2align 6", kdesc(K1, 512, 256)]
    return "\n".join(out).replace("CODE_LEFT", "L_END-L_PC2") + "\n"

def addresses(body):
    import subprocess, tempfile, os
    d = tempfile.mkdtemp()
    marked = []
    for n, x in enumerate(body):
        if x.kind == 'mfma' or x.text == "L_END:": marked.append(I(f"ZZ{n}:"))
        marked.append(x)
    txt = re.sub(r'(s_c?branch\w*) L_PAD\w+', r'\1 L_END', render(marked))
    open(d + "/a.s", "w").write(txt)
    subprocess.check_call(["clang", "-x", "assembler", "-target", "amdgcn-amd-amdhsa", "-mcpu=gfx950", "-c", d + "/a.s", "-o", d + "/a.o"])
    o = subprocess.check_output(["llvm-objdump", "-t", d + "/a.o"], text=True)
    return {int(m.group(2)): int(m.group(1), 16) for m in re.finditer(r'^([0-9a-f]+) .*ZZ(\d+)$', o, re.M)}

body = build()
if OPT.get('hop'):
    PRE = 0x300
    offs = [int(x) for x in str(OPT['hop']).split(',')] if OPT['hop'] is not True else [0]
    k = 0; b = 0x2000 - PRE + 0x1000 * int(OPT.get('hop0', 0))
    while True:
        stop = False
        for off in offs:
            ad = addresses(body)
            endi = [n for n, x in enumerate(body) if x.text == "L_END:"][0]
            cand = [n for n in sorted(ad) if n < endi and ad[n] + 8 >= b + off]
            if not cand: stop = True; break
            n = cand[0]
            body[n+1:n+1] = [I(f"L_PAD{k}:"), I(f"s_cbranch_execz L_PADN{k}")]
            k += 1
        if stop: break
        b += 0x1000
    if OPT.get('rpad'):
        labs = [i for i, x in enumerate(body) if re.match(r'L_RETRY\d+:', x.text)]
        for n in sorted(labs[-int(OPT['rpad']):], reverse=True):
            body[n+1:n+1] = [I(f"L_PAD{k}:"), I(f"s_cbranch_execz L_PADN{k}")]; k += 1
    for x in body:
        m_ = re.match(r's_cbranch_execz L_PADN(\d+)', x.text)
        if m_:
            t = int(m_.group(1)) + 4
            x.text = f"s_cbranch_execz L_PAD{t}" if t < k else "s_cbranch_execz L_PADX"
    print(f"; {k} pads", file=sys.stderr)
print(render(body))
```

```python
import re

REG_RE = re.compile(r'(?<![\w.])(-?)(?:abs\()?([vas])(?:(\d+)|\[(\d+):(\d+)\])\)?(?![\w])')
TRANS = ('v_exp_f32', 'v_rcp_f32', 'v_rsq_f32', 'v_sqrt_f32', 'v_log_f32')

def regs_of(op):
    op = op.strip()
    out = []
    for m in REG_RE.finditer(op):
        f = m.group(2)
        if m.group(3) is not None:
            out.append(f + m.group(3))
        else:
            out += [f + str(i) for i in range(int(m.group(4)), int(m.group(5)) + 1)]
    for sp in ('m0', 'vcc', 'exec'):
        if re.search(r'(?<![\w])' + sp + r'(?![\w])', op):
            out.append(sp)
    return out

def split_ops(s):
    out, depth, cur = [], 0, ''
    for ch in s:
        if ch in '[(': depth += 1
        if ch in '])': depth -= 1
        if ch == ',' and depth == 0:
            out.append(cur); cur = ''
        else:
            cur += ch
    if cur.strip(): out.append(cur)
    return [o.strip() for o in out]

class Ins:
    __slots__ = ('text', 'kind', 'rd', 'wr', 'tag', 'vm', 'lgkm', 'vmN', 'lgkmN', 'srcC', 'srcAB', 'res_r', 'res_w', 'wide', 'data', 'cmt')
    def __init__(self, text, tag=None, res_r=None, res_w=None, cmt=None):
        self.text = text; self.tag = tag; self.vm = None; self.lgkm = None; self.vmN = None; self.lgkmN = None
        self.srcC = []; self.srcAB = []; self.res_r = res_r; self.res_w = res_w; self.wide = False; self.data = []; self.cmt = cmt
        t = text.strip()
        if t.endswith(':') or t.startswith('.') or t.startswith(';'):
            self.kind = 'label'; self.rd = set(); self.wr = set(); return
        sp = t.split(None, 1)
        mn = sp[0]; ops = split_ops(sp[1]) if len(sp) > 1 else []
        R = [regs_of(o) for o in ops]
        allr = lambda lo: set(r for x in R[lo:] for r in x)
        rd, wr = set(), set()
        if mn.startswith('v_mfma'):
            k = 'mfma'; wr = set(R[0]); rd = allr(1); self.srcC = R[3]; self.srcAB = R[1] + R[2]
        elif mn.startswith('v_smfmac'):
            k = 'mfma'; wr = set(R[0]); rd = allr(0); self.srcC = R[0]; self.srcAB = R[1] + R[2] + R[3]
        elif mn.startswith('v_permlane'):
            k = 'perm'; wr = allr(0); rd = allr(0)
        elif mn.startswith('v_readfirstlane') or mn.startswith('v_readlane'):
            k = 'rdlane'; wr = set(R[0]); rd = allr(1)
        elif mn.startswith('v_nop'):
            k = 'valu'
        elif mn.startswith('v_'):
            k = 'trans' if mn.replace('_e32', '').replace('_e64', '') in TRANS else 'valu'
            wr = set(R[0]); rd = allr(1)
            if mn.startswith('v_fmac') or mn.startswith('v_dot2c') or mn.startswith('v_pk_fmac'): rd |= wr
            if re.match(r'v_(add|sub|subrev)_co_u32|v_addc_co', mn): wr |= set(R[1]); rd = allr(2)
        elif mn.startswith('ds_read') or mn.startswith('ds_bpermute') or mn.startswith('ds_swizzle'):
            k = 'dsr'; wr = set(R[0]); rd = allr(1)
        elif mn.startswith('ds_write'):
            k = 'dsw'; rd = allr(0); self.data = R[1] + (R[2] if mn.startswith('ds_write2') else []); self.wide = len(self.data) >= 3
        elif mn.startswith('buffer_load') and re.search(r'\blds\b', t):
            k = 'dma'; rd = allr(0) | {'m0'}
        elif mn.startswith('buffer_load') or mn.startswith('global_load'):
            k = 'vld'; wr = set(R[0]); rd = allr(1)
        elif mn.startswith('buffer_store') or mn.startswith('buffer_atomic'):
            k = 'vst'; rd = allr(0); self.data = R[0]; self.wide = len(R[0]) >= 3
            if mn.startswith('buffer_atomic') and re.search(r'\bsc0\b', t): k = 'vld'; wr = set(R[0])
        elif mn.startswith('global_store') or mn.startswith('global_atomic'):
            k = 'vst'; rd = allr(0); self.data = R[1]; self.wide = len(R[1]) >= 3
        elif mn.startswith('buffer_inv') or mn.startswith('buffer_wbl2'):
            k = 'vst'
        elif mn.startswith('s_load') or mn.startswith('s_memtime') or mn.startswith('s_memrealtime'):
            k = 'smem'; wr = set(R[0]); rd = allr(1)
        elif mn == 's_waitcnt':
            k = 'wait'
            m = re.search(r'vmcnt\((\d+)\)', t); self.vmN = int(m.group(1)) if m else None
            m = re.search(r'lgkmcnt\((\d+)\)', t); self.lgkmN = int(m.group(1)) if m else None
        elif mn == 's_barrier': k = 'barrier'
        elif mn == 's_nop': k = 'nop'
        elif mn.startswith('s_cbranch') or mn in ('s_branch', 's_endpgm', 's_setprio', 's_sleep'):
            k = 'ctl'
        elif mn.startswith('s_cmp') or mn.startswith('s_bitcmp'):
            k = 'salu'; rd = allr(0)
        elif mn.startswith('s_'):
            k = 'salu'; wr = set(R[0]); rd = allr(1)
            if 'saveexec' in mn: wr |= {'exec'}; rd |= {'exec'}
            if mn.startswith('s_addk') or mn.startswith('s_mulk'): rd |= wr
        else:
            raise ValueError("unknown instr " + text)
        self.kind = k; self.rd = rd; self.wr = wr
    def cost(self):
        if self.kind == 'dsw': return {1: 2, 2: 3}.get(len(self.data), 5)
        if self.kind == 'vst': return 5 if self.wide else 3
        if self.kind in ('trans', 'dma', 'vld', 'perm'): return 2
        if self.kind == 'label': return 0
        if self.kind == 'nop': return int(self.text.split()[1]) + 1
        return 1
    def is_valu(self): return self.kind in ('valu', 'trans', 'perm', 'rdlane')
    def is_scalar(self): return self.kind in ('salu', 'wait', 'barrier', 'ctl') or (self.kind == 'nop' and self.cost() == 1)
    def is_b128r(self): return self.kind == 'dsr' and len(self.wr) == 4
    def is_mem(self): return self.kind in ('dsr', 'dsw', 'dma', 'vld', 'vst')
    def emit(self):
        if self.kind == 'wait' and (self.vm is not None or self.lgkm is not None):
            p = []
            if self.vmN is not None: p.append(f"vmcnt({min(self.vmN, 63)})")
            if self.lgkmN is not None: p.append(f"lgkmcnt({min(self.lgkmN, 15)})")
            assert p, "unresolved wait"
            t = "s_waitcnt " + " ".join(p)
        else:
            t = self.text
        if self.kind == 'label': return t
        return "    " + t + (f"  ; {self.cmt}" if self.cmt else "")

def I(text, **kw): return Ins(text, **kw)

def W(vm=None, lgkm=None):
    w = Ins("s_waitcnt vmcnt(0)")
    w.vm = list(vm) if vm is not None else None; w.lgkm = list(lgkm) if lgkm is not None else None
    w.vmN = None; w.lgkmN = None
    return w

def resolve_waits(trace):
    vmq, lq = [], []
    for ins in trace:
        if ins.kind in ('dma', 'vld', 'vst'): vmq.append(ins.tag)
        elif ins.kind in ('dsr', 'dsw'): lq.append(ins.tag)
        elif ins.kind == 'wait':
            for tg, q, attr in ((ins.vm, vmq, 'vmN'), (ins.lgkm, lq, 'lgkmN')):
                if tg is None: continue
                n = None
                for i in range(len(q) - 1, -1, -1):
                    if q[i] in tg:
                        n = len(q) - 1 - i; break
                assert n is not None, f"wait target {tg} never issued"
                cur = getattr(ins, attr)
                setattr(ins, attr, n if cur is None else min(cur, n))

def check(trace, verbose=True):
    errs = []
    tr = [x for x in trace if x.kind != 'label']
    pos = []; p = 0
    for x in tr:
        pos.append(p)
        p += (int(x.text.split()[1]) + 1) if x.kind == 'nop' else 1
    def err(i, j, msg): errs.append(f"{msg}: [{j}] {tr[j].text}  ->  [{i}] {tr[i].text}")
    for i, x in enumerate(tr):
        j = i - 1
        while j >= 0:
            y = tr[j]
            d = pos[i] - pos[j] - 1
            if y.kind == 'nop': j -= 1; continue
            if d >= 11: break
            if y.is_valu():
                w = y.wr
                if x.kind == 'mfma' and d < 2 and (w & x.rd): err(i, j, "VALU->MFMA<2")
                if x.kind == 'perm' and d < 2 and (w & x.rd): err(i, j, "VALU->permlane<2")
                if x.kind == 'rdlane' and d < 1 and (w & x.rd): err(i, j, "VALU->readlane<1")
                if y.kind == 'trans' and x.kind in ('valu', 'perm', 'rdlane') and d < 1 and (w & x.rd): err(i, j, "trans->VALU<1")
                sw = set(r for r in w if r[0] == 's' or r == 'vcc')
                if sw:
                    if x.is_valu() and d < 2 and (sw & x.rd): err(i, j, "VALU sgpr->VALU<2")
                    if x.kind in ('dma', 'vld', 'vst') and d < 5 and (sw & x.rd): err(i, j, "VALU sgpr->VMEM<5")
                if 'dpp' in x.text or 'row_' in x.text:
                    if d < 2 and (w & x.rd): err(i, j, "VALU->DPP<2")
            if y.kind == 'mfma':
                D = y.wr
                if x.kind == 'mfma':
                    if d < 8 and (D & set(x.srcAB)): err(i, j, "MFMA D->MFMA AB<8")
                    c = set(x.srcC)
                    if (D & c) and c != D and d < 6: err(i, j, "MFMA D->MFMA C partial<6")
                elif x.is_valu() or x.is_mem():
                    if d < (10 if 'x4_f32' in y.text else 8) and (D & (x.rd | x.wr)): err(i, j, "MFMA D->VALU/mem<8")
                    if x.is_valu() and d < 3 and (set(y.srcC) & x.wr): err(i, j, "MFMA C WAR<3")
            if y.kind == 'salu' and 'm0' in y.wr and x.kind == 'dma' and d < 1: err(i, j, "M0->DMA<1")
            if y.kind in ('vst', 'dsw') and y.wide and d < 2 and (set(y.data) & x.wr): err(i, j, "store data WAR<2")
            j -= 1
    for i, x in enumerate(tr):
        if x.text.startswith('s_cbranch_scc') or x.text.startswith('s_cselect') or x.text.startswith('s_addc') or x.text.startswith('s_subb'):
            j = i - 1
            while j >= 0:
                y = tr[j]
                if y.kind == 'salu' and not re.match(r's_(mov|mul_i32|cselect|getpc|movk|getreg)', y.text):
                    okp = y.text.startswith('s_cmp') or (j == i - 1 or all(tr[q].text.startswith('s_cselect') for q in range(j + 1, i))) and not x.text.startswith('s_cbranch')
                    if not okp: err(i, j, "SCC clobbered before use")
                    break
                j -= 1
    vmq, lq, sm = [], [], []
    res = {}
    def R(n): return res.setdefault(n, dict(w=[], wb=False, r=[], rb=False))
    for i, x in enumerate(tr):
        touched = x.rd | x.wr
        for q, nm in ((vmq, 'vm'), (lq, 'lgkm'), (sm, 'smem')):
            for y in q:
                if y.wr & touched:
                    if nm != 'smem' and not (y.wr & x.rd) and ((nm == 'lgkm' and x.kind == 'dsr') or (nm == 'vm' and x.kind == 'vld')): continue
                    errs.append(f"use before {nm} wait: {y.text} -> [{i}] {x.text}")
        if x.res_r:
            for (n, shared) in x.res_r:
                r = R(n)
                for y in r['w']:
                    if (y in vmq) or (shared and y in lq): errs.append(f"LDS RAW {n}: write not waited: {y.text} -> [{i}] {x.text}")
                if shared and r['wb']: errs.append(f"LDS RAW {n}: no barrier after write -> [{i}] {x.text}")
                r['r'].append(x); r['rb'] = True
        if x.res_w:
            for (n, shared) in x.res_w:
                r = R(n)
                for y in r['r']:
                    if y in lq and (x.kind == 'dma' or shared): errs.append(f"LDS WAR {n}: read not waited: {y.text} -> [{i}] {x.text}")
                if shared and r['rb']: errs.append(f"LDS WAR {n}: no barrier after read -> [{i}] {x.text}")
                r['w'].append(x); r['wb'] = True
        if x.kind in ('dma', 'vld', 'vst'): vmq.append(x)
        elif x.kind in ('dsr', 'dsw'): lq.append(x)
        elif x.kind == 'smem': sm.append(x)
        elif x.kind == 'wait':
            if x.vmN is not None:
                n = min(x.vmN, 63)
                vmq[:] = vmq[len(vmq) - n:] if n else []
            if x.lgkmN is not None:
                n = min(x.lgkmN, 15)
                if n == 0: sm[:] = []
                elif sm: errs.append(f"counted lgkm wait with smem outstanding [{i}]")
                lq[:] = lq[len(lq) - n:] if n else []
        elif x.kind == 'barrier':
            for n, r in res.items():
                r['w'] = [y for y in r['w'] if y in vmq or y in lq]
                r['r'] = [y for y in r['r'] if y in lq]
                r['wb'] = bool(r['w']); r['rb'] = bool(r['r'])
        if len(lq) > 15 and x.kind in ('dsr', 'dsw'):
            pass
    if verbose:
        for e in errs[:40]: print("CHECK:", e)
        if len(errs) > 40: print("... total", len(errs))
    return errs

class Gaps:
    def __init__(self, mfmas, cap=2):
        self.m = list(mfmas); n = len(self.m)
        self.g = [[[], [], []] for _ in range(n)]
        self.cap = [cap] * n
        self.head = []
    def __len__(self): return len(self.m)
    @staticmethod
    def seq_cost(seq):
        seq = [x for x in seq if x.kind != 'label']
        c = sum(x.cost() for x in seq)
        if seq and seq[0].is_scalar() and not (len(seq) > 1 and seq[1].kind in ('dma', 'vld', 'vst')): c -= 1
        pk = [k for k, x in enumerate(seq) if x.text.startswith('v_pk_')]
        if pk:
            after = sum(x.cost() for x in seq[pk[0]:])
            c = max(5, c - after) + after
        return c
    def seq(self, i): return self.g[i][0] + self.g[i][1] + self.g[i][2]
    def used(self, i): return self.seq_cost(self.seq(i))
    def free(self, i): return self.cap[i] - self.used(i)
    def lane_of(self, ins): return 2 if ins.is_valu() else (0 if (ins.is_scalar() or ins.kind == 'label') else 1)
    def pin(self, i, ins, post=None, lane=None):
        if lane is None: lane = 2 if post else self.lane_of(ins)
        self.g[i][lane].append(ins)
        return (i, lane)
    def cost_with(self, i, ins, lane):
        t = [list(x) for x in self.g[i]]; t[lane].append(ins)
        return self.seq_cost(t[0] + t[1] + t[2])
    def place(self, ins, lo, hi=None, after=None, force=True):
        n = len(self.m)
        if hi is None: hi = n - 1
        hi = min(hi, n - 1)
        def lane_at(i):
            l = self.lane_of(ins)
            if after is None or i > after[0]: return l
            if i < after[0]: return None
            if after[1] > l:
                if ins.is_mem() and after[1] == 2: return None
                return after[1]
            return l
        def fits(i, l):
            if ins.is_b128r() and any(x.is_b128r() for x in self.g[i][1]): return False
            c = self.cost_with(i, ins, l)
            if c <= self.cap[i]: return True
            return ins.cost() > self.cap[i] and self.used(i) == 0
        if ins.is_scalar():
            for i in range(lo, min(hi, max(lo, after[0] if after else lo) + 3) + 1):
                l = lane_at(i)
                if l is not None and self.cost_with(i, ins, l) == self.used(i): return self.pin(i, ins, lane=l)
        for i in range(lo, hi + 1):
            l = lane_at(i)
            if l is not None and fits(i, l): return self.pin(i, ins, lane=l)
        assert force, "no room for " + ins.text
        best = None
        for i in range(lo, hi + 1):
            l = lane_at(i)
            if l is None: continue
            if best is None or self.free(i) > self.free(best[0]): best = (i, l)
        if best is None:
            return self.pin(hi, ins, lane=2)
        return self.pin(best[0], ins, lane=best[1])
    def stream(self, items, lo, hi, spread=False):
        its = [(x, lo) if isinstance(x, Ins) else x for x in items]
        need = sum(x.cost() for x, _ in its)
        hi = min(hi, len(self.m) - 1)
        tries = 0
        while True:
            tries += 1
            assert tries < 3000, "stream cannot be placed: " + its[0][0].text
            snap = {i: [list(l) for l in self.g[i]] for i in range(lo, hi + 1)}
            h = None; okay = True
            done = 0
            for k, (x, e) in enumerate(its):
                st = max(lo, e)
                if spread: st = max(st, lo + (k * (hi - lo - 1)) // len(its))
                try:
                    h = self.place(x, st, hi, after=h, force=False)
                except AssertionError:
                    okay = False; break
            if okay: return h
            for i in snap: self.g[i] = snap[i]
            mn = min(self.cap[lo:hi + 1])
            cand = [i for i in range(lo, hi + 1) if self.cap[i] == mn]
            k = max(1, len(cand) // 16)
            step = len(cand) / k
            off = (tries * 0.381966) % 1.0
            for t in range(k): self.cap[cand[min(len(cand) - 1, int((t + off) * step))]] += 1
    def flat(self, pad=True):
        out = list(self.head)
        for i, m in enumerate(self.m):
            out.append(m)
            sq = self.seq(i)
            real = [x for x in sq if x.kind != 'label']
            if pad and len(real) >= 2 and real[0].kind == 'dsr' and real[1].kind == 'dsr':
                prev = [x for x in self.seq(i - 1) if x.kind != 'label'] if i else []
                if not (prev and all(x.is_valu() for x in prev) and self.used(i - 1) >= 2): out.append(Ins("s_nop 0"))
            out += sq
        return out
    def cyc(self, lo, hi): return sum(max(32 if 'x4_f32' in self.m[i].text else 16, 8 + 4 * self.used(i)) for i in range(lo, hi + 1))
    def cycles(self): return self.cyc(0, len(self.m) - 1)
```

```python
import sys, struct, math, re
from asmlib import *

NAME = "recurrent_scan__gqa_block_cached__dense_activation_gelu__prompt"
OPT = dict(dump=None, stamps=False, G='2', pfs='128', s2='8', w2p=True, kvo='6', catch3='3.5', b3s='20', pzs='10', kvrows='256', stag=False, q1='early', nw='8', ne='3', xe='8', pvx='2', cearly=True, c0='4', hop=True, hop0='1', hopat='w', prearly=True, w2s='4', xc='27', asap='7', ev='6.45:l0,s2;8.45:l1,s3;10.45:l2,s4;13.05:l3,s5', lds='0,0,0,0,14.45,15.2', fold=True, rel=True, gl='28', alap='999', w1f='17', norot=True, nokt=True)
for a in sys.argv[1:]:
    k, _, v = a.partition('=')
    OPT[k] = (False if v == 'off' else v) if v else True

NT = lambda k: ' nt' if k in OPT.get('nt', '') else ''
GG = int(OPT['G']); LG = GG.bit_length() - 1
CQ = 128**-0.5 * math.log2(math.e)
CF = CQ if OPT.get('fold') else 1.0
def f2u(x): return struct.unpack('<I', struct.pack('<f', x))[0]
def hx(x): return f"0x{x & 0xffffffff:x}"
def vr(b, n=4): return f"v[{b}:{b+n-1}]" if n > 1 else f"v{b}"
def ar(b, n=4): return f"a[{b}:{b+n-1}]" if n > 1 else f"a{b}"
def sr(b, n=4): return f"s[{b}:{b+n-1}]" if n > 1 else f"s{b}"

S_W = 3
SRD_X, SRD_K, SRD_V, SRD_WQ, SRD_WO, SRD_W1, SRD_W2, SRD_WS, SRD_OUT, SRD_B1, SRD_B2, SRD_DBG = range(4, 52, 4)
S_G, S_R = 52, 53
S_SM1, S_SMQ, S_SM2 = 54, 57, 60
S_RING = 63
S_KO = 64
S_VO = 66
S_CNT, S_PASS = 68, 69
S_QS, S_GB = 70, 71
S_YO = 72
S_T = 76
S_PF = 99
SRD_WS2 = 80
S_CB, S_CB2, S_SPIN = 84, 85, 86
S_STAMP = 96

V_KA, V_VA, V_DV, V_SPI, V_L16 = 0, 4, 12, 14, 15
V_NEGM, V_S, V_SPA = 16, 32, 44
V_T = 48
V_Q, V_P = 64, 128
V_WA = 4
V_AF = 16
V_W1, V_WQ, V_W2, V_GA = 48, 49, 50, 51
V_ACCA, V_ACCB = 128, 192
V_B1 = 64
def XN(ks, qb): return ((15 - ks) * 4 + qb) * 4
A_O, A_L, A_KF, A_VF = 0, 128, 144, 176
A_SPA, A_FILL, A_XT, A_PF, A_WOB, A_Y7 = 208, 212, 216, 224, 225, 228
V_YB, V_YS, V_YT, V_PFO, V_CNT, V_WOB = 40, 44, 60, 61, 60, 62
SRD_ARR = 40
S_CODE, S_AO, S_Y7, S_Y7S, S_IM, S_IS = 16, 18, 24, 27, 30, 31
A_ADR = 240
S_KT, S_NEED, S_CL = 75, 58, 59
S_CA, S_YI, S_YL, S_FO, S_XO = 87, 88, 89, 90, 91

LDS_V, LDS_X = 65536, 131072
WS_S, WS_Y, WS_DUMP = 0, 16 << 20, 64 << 20
RB = int(OPT.get('rb', 32)); LB = RB.bit_length() - 1; PL = RB << 15; PS = LB + 15
WSO = int(OPT.get('wso', 0)) << 20
S_RB, S_LIM = 60, 61
LAY = OPT.get('lay', '21')
GS_S, GS_Y = (12 if LAY[0] == '1' else 12 + LB), (10 if LAY[1] == '1' else 12 + LB)
S_RBY = 62

mf = lambda d, a, b, c: I(f"v_mfma_f32_16x16x32_bf16 {d}, {a}, {b}, {c}")

segs = {}
def stamp(i, last=False):
    if not OPT['stamps']: return []
    L = [I(f"s_memtime s[{S_STAMP}:{S_STAMP+1}]"), I(f"s_memrealtime s[100:101]"), I("s_waitcnt lgkmcnt(0)"),
         I(f"v_writelane_b32 v63, s{S_STAMP}, {i}"), I(f"v_writelane_b32 v63, s100, {16+i}")]
    if last:
        L += [I("s_lshl_b32 s98, s2, 2"), I(f"s_add_u32 s98, s98, s{S_W}"), I("s_lshl_b32 s98, s98, 8"), I(f"s_add_u32 s98, s98, {hx(WS_DUMP)}"),
              I(f"v_lshrrev_b32 v62, 2, v{V_L16}"), I(f"buffer_store_dword v63, v62, {sr(SRD_WS)}, s98 offen", tag='stamp')]
    return L

def dstamp(name):
    pts = str(OPT.get('ds', '')).split(',')
    if name not in pts: return []
    r = (96, 100)[pts.index(name)]
    x = I(f"s_memtime s[{r}:{r+1}]"); x.kind = 'salu'; x.wr = set(); x.text = x.text
    return [x]
def ministamp(G, gap, lane):
    if not OPT.get('mini'): return
    if OPT['mini'] == 'rt':
        if lane >= 48: return
        for x in (I(f"s_memtime s[{S_STAMP}:{S_STAMP+1}]"), I("s_memrealtime s[100:101]"), I("s_waitcnt lgkmcnt(0)"), I(f"v_writelane_b32 v63, s{S_STAMP}, {lane}"), I(f"v_writelane_b32 v63, s100, {lane+16}")): G.pin(gap, x, post=True)
        return
    for x in (I(f"s_memtime s[{S_STAMP}:{S_STAMP+1}]"), I("s_waitcnt lgkmcnt(0)"), I(f"v_writelane_b32 v63, s{S_STAMP}, {lane}")): G.pin(gap, x, post=True)

def dump_regs(groups):
    L = [I("s_waitcnt vmcnt(0) lgkmcnt(0)"), I("s_nop 7"), I("s_nop 7")]
    L += [I(f"s_lshl_b32 s{S_T}, s2, 2"), I(f"s_add_u32 s{S_T}, s{S_T}, s{S_W}"),
          I(f"s_mul_i32 s{S_T}, s{S_T}, {len(groups)*1024}"), I(f"s_add_u32 s{S_T}, s{S_T}, {hx(WS_DUMP)}")]
    for g in groups:
        L.append(I(f"buffer_store_dwordx4 {g}, v{V_L16}, {sr(SRD_WS)}, s{S_T} offen"))
        L.append(I("s_nop 3"))
        L.append(I(f"s_add_u32 s{S_T}, s{S_T}, 1024"))
    L += [I("s_waitcnt vmcnt(0)"), I("s_endpgm")]
    return L

def srd(L, base, p, nbytes):
    L += [I(f"s_mov_b32 s{base}, s{p}"), I(f"s_mov_b32 s{base+1}, s{p+1}"),
          I(f"s_mov_b32 s{base+2}, {hx(nbytes)}"), I(f"s_mov_b32 s{base+3}, 0x20000")]

def dma_w(srdb, vreg, sm, i, tag, res):
    so = "0" if (i & 3) == 0 else f"s{sm + (i & 3) - 1}"
    off = f" offset:{(i & 3) * 1024}" if i & 3 else ""
    return I(f"buffer_load_dwordx4 v{vreg}, {sr(srdb)}, {so} offen{off} lds", tag=tag, res_w=res)

STAGES = []
for kq in range(8): STAGES.append(dict(m='w1', srd=SRD_W1, v=V_W1, stride=3584, nks=2, ks0=2*kq, acc=V_ACCA, first=kq == 0, col=0))
for hq in range(2):
    for kq in range(8): STAGES.append(dict(m='wq', srd=SRD_WQ, v=V_WQ, stride=8192, nks=2, ks0=2*kq, acc=V_ACCB, first=kq == 0, col=128*hq))
for hc in range(2):
    for kq in range(4): STAGES.append(dict(m='w2', srd=SRD_W2, v=V_W2, stride=1024, nks=2 if kq < 3 else 1, ks0=2*kq, acc=V_ACCA if hc == 0 else V_ACCB,
                                           first=kq == 0, col=512*hc))
def slot_off(s): return 8192 if (s & 3) in (0, 3) else 0
SLOTRES = ['K1', 'V0', 'K0', 'V1']
S_RS = 54
def stage_dma(s):
    st = STAGES[s]; L = []
    for j in range(st['nks']):
        for i in range(4):
            row = 32*(st['ks0'] + j) + (8*i if st['m'] == 'w2' else 16*(i & 1) + 4*(i >> 1))
            L.append(I(f"s_mov_b32 s{S_RS + i}, {hx(row*st['stride'] + st['col'] - 1024*i)}"))
            if i == 0: L.append(I(f"s_add_u32 m0, s{S_RING}, {hx(slot_off(s) + (s & 1) * 65536 + j * 4096)}"))
            off = f" offset:{i*1024}" if i else ""
            L.append(I(f"buffer_load_dwordx4 v{st['v']}, {sr(st['srd'])}, s{S_RS + i} offen{off} lds", tag=f"st{s}", res_w=[(f"slot{s&3}", False)]))
    return L

def with_m0_pad(L):
    out = []
    for i, x in enumerate(L):
        out.append(x)
        if 'm0' in x.wr and i + 1 < len(L) and L[i+1].kind == 'dma': out.append(I("s_nop 0"))
    return out

def interleave(main, extra, start=0, end=None):
    end = len(main) if end is None else end
    out = list(main[:start]); n = end - start; k = 0
    for i in range(n):
        out.append(main[start + i])
        while k < len(extra) and (k + 1) * n <= (i + 1) * len(extra) + 0:
            out.append(extra[k]); k += 1
    return out + extra[k:] + list(main[end:])

def touch(L, srdb, vtmp, sreg, ln, rowlines, rowstride, nrows, sbase_code, step=128):
    A = lambda t, **k: L.append(I(t, **k))
    per_row = rowlines * 128 // step
    hf = {SRD_W1: '1', SRD_WQ: 'q', SRD_W2: '2', SRD_K: 'v'}[srdb] in str(OPT.get('half', ''))
    rows_share = -(-nrows * (1 if hf else GG) // 128)
    total = per_row * rows_share
    lg = per_row.bit_length() - 1
    A(f"s_mul_i32 s{sreg}, s{57 if hf else 94}, {rows_share * rowstride}")
    for t in sbase_code: A(t)
    if sbase_code: A(f"s_add_u32 s{sreg}, s{sreg}, s93")
    A(f"v_lshrrev_b32 v{vtmp}, {lg}, v{ln}")
    if total < 64: A(f"v_min_u32 v{vtmp}, {rows_share - 1}, v{vtmp}")
    A(f"v_mul_u32_u24 v{vtmp}, {rowstride}, v{vtmp}")
    A(f"v_and_b32 v32, {per_row - 1}, v{ln}")
    A(f"v_lshl_add_u32 v{vtmp}, v32, {step.bit_length() - 1}, v{vtmp}")
    out = []
    for k in range(max(1, -(-total // 64))):
        if k: out.append(I(f"v_add_u32 v{vtmp}, {(64 // per_row) * rowstride}, v{vtmp}"))
        out.append(I(f"buffer_load_dword v60, v{vtmp}, {sr(srdb)}, s{sreg} offen{NT({SRD_W1: '1', SRD_WQ: 'q', SRD_W2: '2', SRD_K: 'v'}[srdb])}", tag='pf'))
    return out

def lin_touch(srdb, sreg):
    step = int(OPT['pfs']); n = max(1, 4096 * GG // (64 * step))
    L = []
    for k in range(n):
        if k: L.append(I(f"s_add_u32 s{S_T+3}, s{sreg}, {k * 64 * step}"))
        L.append(I(f"buffer_load_dword v60, v61, {sr(srdb)}, s{S_T+3 if k else sreg} offen", tag='pf'))
    return L

LATE = {}
STUBS = []
V_XA = 53
def phase0():
    L = []
    A = lambda t, **k: L.append(I(t, **k))
    t0, t1, t2, t3, ln, n16, g4 = 33, 34, 35, 36, 37, 38, 39
    L += stamp(0)
    A(f"s_load_dwordx2 s[{SRD_X}:{SRD_X+1}], s[0:1], 0")
    KL = [I("s_load_dwordx16 s[64:79], s[0:1], 0"), I("s_load_dwordx8 s[80:87], s[0:1], 64"), I("s_load_dwordx2 s[88:89], s[0:1], 96")]
    if OPT.get('rel'): L += KL; KL = []
    A("s_cmp_ge_u32 s2, 256"); A("s_cbranch_scc1 L_END")
    if OPT.get('scr'):
        A("s_lshr_b32 s93, s2, 3"); A("s_lshr_b32 s94, s2, 5"); A("s_xor_b32 s93, s93, s94"); A("s_and_b32 s93, s93, 7"); A("s_xor_b32 s2, s2, s93")
    A("s_getpc_b64 s[90:91]"); A("L_PC1:")
    c0 = OPT.get('c0', '4')
    if c0 != '0':
        A(f"v_lshlrev_b32 v58, {c0}, v0")
        A("global_load_dword v60, v58, s[90:91]", tag='pf')
    CE = [I(x) for x in ("s_lshl_b32 s93, s94, 11", "v_lshlrev_b32 v57, 3, v0", "v_add_u32 v57, s93, v57", "v_min_u32 v57, L_END-L_PC1, v57")]
    CE.append(I("global_load_dword v60, v57, s[90:91]", tag='pf'))
    A(f"s_lshr_b32 s94, s2, 3")
    if OPT.get('ms', 'a') == 'b': L += CE; CE = []
    A(f"s_and_b32 s{S_R}, s2, {GG-1}"); A(f"s_lshl_b32 s{S_R}, s{S_R}, {5 - LG}"); A(f"s_lshr_b32 s95, s94, {LG}"); A(f"s_add_u32 s{S_R}, s{S_R}, s95")
    A(f"s_lshl_b32 s{S_CL}, s{S_R}, 16")
    A(f"v_lshrrev_b32 v{t0}, 2, v0"); A(f"v_lshlrev_b32 v{t0}, 10, v{t0}")
    A(f"v_and_b32 v{t1}, 3, v0"); A(f"v_lshl_add_u32 v{t0}, v{t1}, 4, v{t0}")
    A(f"s_mov_b32 s{SRD_X+2}, {hx(2048*512*2)}"); A(f"s_mov_b32 s{SRD_X+3}, 0x20000")
    XL = [I(f"buffer_load_dwordx4 {vr(64+4*ks)}, v{t0}, {sr(SRD_X)}, s{S_CL} offen offset:{ks*64}", tag=f'x{ks}') for ks in range(16)]
    xe = int(OPT.get('xe', 8)); x0 = int(OPT.get('x0n', 2))
    A("s_waitcnt lgkmcnt(0)")
    L += dstamp('k') + XL[:x0] + dstamp('a')
    L += KL
    A(f"v_lshrrev_b32 v{t1}, 6, v0")
    A(f"v_and_b32 v{ln}, 63, v0")
    A(f"v_readfirstlane_b32 s{S_W}, v{t1}")
    SL = []
    if not OPT.get('nowalk'):
        slot = [7, 9, 11, 7, 0, 3, 6, 8, 1, 2, 4, 10, 12, 12, 12, 12]; lim = [0, 0, 0, 0, 7, 15, 6, 6, 15, 15, 15, 7, 0, 0, 0, 0]
        pk = lambda t: sum(v << (4*k) for k, v in enumerate(t))
        A("s_and_b32 s49, s94, 3"); A(f"s_lshl_b32 s50, s{S_W}, 2"); A("s_add_u32 s49, s49, s50"); A("s_lshl_b32 s49, s49, 2")
        A(f"s_mov_b32 s44, {hx(pk(slot) & 0xffffffff)}"); A(f"s_mov_b32 s45, {hx(pk(slot) >> 32)}"); A("s_lshr_b64 s[44:45], s[44:45], s49")
        A("s_and_b32 s44, s44, 15")
        if OPT.get('rel'): A("s_lshl_b32 m0, s44, 1"); A("s_nop 0"); A("s_movrels_b64 s[46:47], s[64:65]")
        else: A("s_lshl_b32 s44, s44, 3"); A("s_load_dwordx2 s[46:47], s[0:1], s44")
        A(f"s_mov_b32 s40, {hx(pk(lim) & 0xffffffff)}"); A(f"s_mov_b32 s41, {hx(pk(lim) >> 32)}"); A("s_lshr_b64 s[40:41], s[40:41], s49"); A("s_and_b32 s40, s40, 15")
        A("s_lshr_b32 s41, s94, 2"); A("s_lshl_b32 s41, s41, 1"); A("s_min_u32 s40, s40, s41"); A("s_lshl_b32 s40, s40, 18")
        A("s_lshl_b32 s41, s94, 20")
        if WSO: A(f"s_add_u32 s41, s41, {hx(WSO)}")
        A(f"s_cmp_eq_u32 s{S_W}, 3"); A("s_cselect_b32 s40, s41, s40")
        SL = [I("s_load_dword s98, s[46:47], s40")]
    if not OPT.get('rel'): A("s_waitcnt lgkmcnt(0)")
    sl = str(OPT.get('sll', '0'))
    if sl == '0': L += dstamp('w') + SL + CE + XL[x0:xe] + dstamp('b')
    if sl == '1': L += dstamp('w') + SL + XL[x0:xe] + CE + dstamp('b')
    if sl == '2': L += dstamp('w') + XL[x0:xe] + SL + CE + dstamp('b')
    if sl == '3': L += dstamp('w') + CE + XL[x0:xe] + SL + dstamp('b')
    A(f"s_and_b32 s{S_G}, s2, {7 & ~(GG-1)}"); A(f"s_and_b32 s93, s94, {GG-1}"); A(f"s_or_b32 s{S_G}, s{S_G}, s93")
    A(f"s_lshl_b32 s94, s95, 2"); A(f"s_add_u32 s94, s94, s{S_W}")
    if OPT.get('half'):
        if OPT.get('hil'): A(f"s_lshl_b32 s57, s94, {LG}"); A(f"s_and_b32 s93, s2, {GG-1}"); A("s_add_u32 s57, s57, s93")
        else: A(f"s_lshl_b32 s57, s{S_R}, 2"); A(f"s_add_u32 s57, s57, s{S_W}")
    A(f"s_lshl_b32 s{S_RING}, s{S_W}, 14")
    SQ = []
    if OPT.get('sw2'):
        A(f"s_mul_i32 s92, s94, {1792*GG}"); A(f"s_mul_i32 s93, s{S_G}, {224*1024}"); A("s_add_u32 s92, s92, s93")
        A("s_add_u32 s90, s80, s92"); A("s_addc_u32 s91, s81, 0")
        SQ = [I(f"s_load_dwordx2 s[100:101], s[90:91], {hx(128*k + 60)}") for k in range(14*GG)]
        for x in SQ: x.wr = set()
        n0 = int(OPT.get('sq0', 5)); L += SQ[:n0]; SQ = SQ[n0:]
    A(f"v_and_b32 v{n16}, 15, v{ln}")
    A(f"v_lshrrev_b32 v{g4}, 4, v{ln}")
    A(f"v_lshlrev_b32 v{V_L16}, 4, v{ln}")
    srd(L, SRD_W1, 76, 512*1792*2)
    if not OPT.get('nopf'):
        XL += touch(L, SRD_W1, 59, S_NEED, ln, 4, 3584, 512, [f"s_mul_i32 s93, s{S_G}, 448", "s_and_b32 s93, s93, 0xffffff80"])
    srd(L, SRD_WQ, 70, 512*4096*2); srd(L, SRD_B1, 78, 1792*2)
    A(f"v_and_b32 v{t1}, 7, v{ln}"); A(f"v_lshlrev_b32 v{t2}, 1, v{g4}"); A(f"v_xor_b32 v{t1}, v{t1}, v{t2}")
    A(f"v_lshlrev_b32 v{t1}, 4, v{t1}")
    A(f"v_lshrrev_b32 v{t2}, 5, v{ln}"); A(f"v_bfe_u32 v{t3}, v{ln}, 3, 2"); A(f"v_lshl_add_u32 v{t2}, v{t2}, 3, v{t3}")
    A(f"s_mul_i32 s92, s{S_G}, 448"); A("s_and_b32 s92, s92, 0xffffff80"); A(f"s_lshl_b32 s93, s{S_W}, 7"); A("s_add_u32 s92, s92, s93")
    A(f"v_mul_u32_u24 v{V_W1}, 3584, v{t2}"); A(f"v_add3_u32 v{V_W1}, v{V_W1}, v{t1}, s92")
    if not OPT.get('nozero'):
        A(f"s_mul_i32 s93, s{S_G}, 448"); A("s_sub_u32 s93, s92, s93")
        A(f"v_add_u32 v{t3}, s93, v{t1}"); A(f"v_cmp_lt_u32 vcc, 447, v{t3}"); A(f"v_mov_b32 v{t3}, 0x10000000"); A("s_nop 0")
        A(f"v_cndmask_b32 v{V_W1}, v{V_W1}, v{t3}, vcc")
    vb1 = 57
    A(f"v_lshlrev_b32 v{vb1}, 3, v{g4}"); A("s_mov_b32 s95, s92")
    b1l = [I(f"buffer_load_dwordx2 {vr(40+2*ct,2)}, v{vb1}, {sr(SRD_B1)}, s95 offen offset:{32*ct}", tag='b1') for ct in range(4)]
    A(f"s_lshl_b32 s93, s{S_G}, 19")
    A("s_add_u32 s66, s66, s93"); A("s_addc_u32 s67, s67, 0")
    A("s_add_u32 s68, s68, s93"); A("s_addc_u32 s69, s69, 0")
    srd(L, SRD_K, 66, 524288); srd(L, SRD_V, 68, 524288); srd(L, SRD_WO, 72, 4096*512*2)
    srd(L, SRD_W2, 80, 1792*512*2); srd(L, SRD_B2, 82, 1024); srd(L, SRD_OUT, 84, 2048*512*2)
    srd(L, SRD_DBG, 86, 256); srd(L, SRD_WS, 88, 1 << 28); srd(L, SRD_WS2, 88, 1 << 28)
    A(f"s_mul_i32 s{S_PF}, s94, {4096*GG}"); A(f"v_and_b32 v{V_PFO}, {8*GG - 1}, v{ln}"); A(f"v_lshlrev_b32 v{V_PFO}, 7, v{V_PFO}")
    A(f"s_lshl_b32 s93, s{S_G}, 19"); A(f"s_add_u32 s{S_PF}, s{S_PF}, s93")
    twq, twq1, tw2, tkv, tcode = [], [], [], [], []
    if not OPT.get('nopf'):
        if OPT.get('q1', 'late') == 'late':
            twq = touch(L, SRD_WQ, 58, 77, ln, 8, 8192, 512, [f"s_lshl_b32 s93, s{S_G}, 10"], step=256)
            assert len(twq) == 1
            twq1 = [I(twq[0].text + " offset:128", tag='pf')]
        else:
            assert OPT.get('cearly')
            twq = touch(L, SRD_WQ, 58, 77, ln, 8, 8192, 512, [f"s_lshl_b32 s93, s{S_G}, 10"])
        tw2 = touch(L, SRD_W2, 14, 78, ln, 8, 1024, 224, [f"s_mul_i32 s93, s{S_G}, {224*1024}"])
        if OPT.get('one'):
            tk = touch(L, SRD_K, 55, 79, ln, 2, 256, 128, [])
            A("s_add_u32 s87, s79, 0x8000")
            t_ = tk[0].text
            LATE['one'] = tw2 + tk; tw2 = []
            LATE['two'] = [I(t_.replace("s79", "s87"), tag='pf'), I(t_.replace(sr(SRD_K), sr(SRD_V)), tag='pf'), I(t_.replace(sr(SRD_K), sr(SRD_V)).replace("s79", "s87"), tag='pf')]
        else:
            tk = touch(L, SRD_K, 55, 79, ln, 2, 256, int(OPT.get('kvrows', 384)), [])
            tkv = tk + [I(x.text.replace(sr(SRD_K), sr(SRD_V)), tag='pf') for x in tk if x.kind == 'vld'][-1:]
        if not OPT.get('nocodepf') and not OPT.get('cearly'):
            A("s_getpc_b64 s[90:91]"); A("L_PC2:")
            A(f"s_lshr_b32 s93, s2, 3"); A(f"s_lshl_b32 s93, s93, 2"); A(f"s_add_u32 s93, s93, s{S_W}")
            A(f"s_lshl_b32 s93, s93, 9"); A(f"v_lshlrev_b32 v58, 3, v{ln}"); A("v_add_u32 v58, s93, v58")
            A("v_min_u32 v58, CODE_LEFT, v58")
            tcode = [I("global_load_dword v60, v58, s[90:91]" + NT('c'), tag='pf')]
    A(f"s_lshl_b32 s92, s{S_G}, 10"); A(f"s_lshl_b32 s93, s{S_W}, 8"); A("s_add_u32 s92, s92, s93")
    A(f"v_lshlrev_b32 v{V_WQ}, 13, v{t2}"); A(f"v_add3_u32 v{V_WQ}, v{V_WQ}, v{t1}, s92")
    A(f"s_mul_i32 s92, s{S_G}, {224*1024}"); A(f"s_lshl_b32 s93, s{S_W}, 7"); A("s_add_u32 s92, s92, s93")
    A(f"v_lshrrev_b32 v{t2}, 3, v{ln}"); A(f"v_lshlrev_b32 v{V_WOB}, 10, v{t2}"); A(f"v_add3_u32 v{V_W2}, v{V_WOB}, v{t1}, s92")
    A(f"s_lshl_b32 s92, s{S_G}, 19"); A(f"s_lshl_b32 s93, s{S_W}, 17"); A("s_add_u32 s92, s92, s93"); A(f"v_add3_u32 v{V_WOB}, v{V_WOB}, v{t1}, s92")
    A(f"v_lshrrev_b32 v{t1}, 2, v{ln}")
    A(f"v_lshlrev_b32 v{t1}, 7, v{t1}")
    A(f"v_and_b32 v{t2}, 3, v{ln}"); A(f"v_lshl_add_u32 v{t1}, v{t2}, 3, v{t1}")
    A(f"v_add_u32 v{t1}, s{S_RING}, v{t1}")
    A(f"v_bfe_u32 v{t2}, v{ln}, 3, 2")
    for ct in range(4):
        A(f"v_xor_b32 v{t3}, {ct}, v{t2}")
        A(f"v_lshl_add_u32 v{V_WA+ct}, v{t3}, 5, v{t1}")
        A(f"v_add_u32 v{V_WA+4+ct}, 0x10000, v{V_WA+ct}")
    A(f"v_and_b32 v{t1}, 7, v{ln}"); A(f"v_lshlrev_b32 v{t1}, 1, v{t1}"); A(f"v_xor_b32 v{t1}, v{t1}, v{g4}")
    A(f"v_lshlrev_b32 v{t2}, 8, v{n16}"); A(f"v_add_u32 v{t2}, {hx(LDS_X)}, v{t2}")
    for kk in range(4):
        A(f"v_xor_b32 v{t3}, {4*kk}, v{t1}")
        A(f"v_lshl_add_u32 v{V_KA+kk}, v{t3}, 4, v{t2}")
    A(f"v_lshlrev_b32 v{t1}, 1, v{g4}"); A(f"v_xor_b32 v{t1}, v{t1}, v{n16}"); A(f"v_lshlrev_b32 v{t2}, 8, v{g4}")
    A(f"v_lshl_add_u32 v{V_DV}, v{t1}, 4, v{t2}")
    A(f"v_xor_b32 v{V_DV+1}, 0x80, v{V_DV}")
    A(f"v_add_u32 v{V_XA+1}, {hx(LDS_X)}, v{V_DV}"); A(f"v_add_u32 v{V_XA}, {hx(65536 + 8192)}, v{V_DV}")
    A(f"v_and_b32 v{t1}, 3, v{ln}"); A(f"v_lshrrev_b32 v{t2}, 2, v{ln}"); A(f"v_lshlrev_b32 v{t3}, 1, v{t1}"); A(f"v_xor_b32 v{t2}, v{t2}, v{t3}")
    A(f"v_lshlrev_b32 v{t1}, 8, v{t1}"); A(f"v_lshl_add_u32 v{t1}, v{t2}, 4, v{t1}")
    A(f"s_lshl_b32 s92, s{S_W}, 13"); A(f"s_add_u32 s92, s92, {hx(LDS_X)}")
    A(f"s_add_u32 s93, s{S_RING}, {hx(65536 + 8192)}")
    A(f"s_and_b32 s85, s{S_G}, {1 if (GG > 1 and not OPT.get('norot')) else 0}")
    A("s_cselect_b32 s85, s92, s93"); A("s_cselect_b32 s86, s93, s92")
    A(f"v_add_u32 v{t2}, s85, v{t1}"); A(f"v_add_u32 v56, s86, v{t1}")
    A(f"v_and_b32 v52, 1, v{ln}"); A(f"v_bfe_u32 v{t1}, v{ln}, 1, 1"); A(f"v_sub_u32 v52, v52, v{t1}"); A("v_lshlrev_b32 v52, 3, v52")
    A(f"s_mov_b32 s{S_QS}, {hx(f2u(128**-0.5 * math.log2(math.e)))}")
    ga = -2*0.7978845608028654*math.log2(math.e)
    A(f"s_mov_b32 s{S_GB}, {hx(f2u(ga*0.044715/CF**3))}")
    A(f"v_mov_b32 v{V_GA}, {hx(f2u(ga/CF))}")
    A(f"s_lshr_b32 s92, s{S_R}, {LB}"); A(f"s_lshl_b32 s92, s92, {PS + 4}")
    if WSO: A(f"s_add_u32 s92, s92, {hx(WSO)}")
    A(f"s_add_u32 s{S_LIM}, s92, {hx(14*PL)}")
    A(f"s_and_b32 s93, s{S_R}, {RB - 1}")
    A(f"s_lshl_b32 s{S_RB}, s93, {15 if LAY[0] == '1' else 12}"); A(f"s_add_u32 s{S_RB}, s{S_RB}, s92")
    A(f"s_lshl_b32 s{S_RBY}, s93, {15 if LAY[1] == '1' else 12}"); A(f"s_add_u32 s{S_RBY}, s{S_RBY}, s92"); A(f"s_add_u32 s{S_RBY}, s{S_RBY}, {hx(WS_Y)}")
    A(f"s_lshl_b32 s92, s{S_W}, {13 if LAY[1] == '1' else 10}"); A(f"s_lshl_b32 s93, s{S_G}, {GS_Y}"); A("s_add_u32 s92, s92, s93"); A(f"s_add_u32 s{S_YO}, s92, s{S_RBY}")
    A(f"s_lshl_b32 s92, s{S_W}, 10"); A(f"s_lshl_b32 s93, s{S_G}, {GS_S}"); A("s_add_u32 s92, s92, s93"); A(f"s_add_u32 s{S_CB}, s92, s{S_RB}")
    if OPT.get('perm'): A("s_mov_b32 s75, 0x07060302")
    A(f"s_mov_b32 s{S_PASS}, 0")
    A(f"s_lshl_b32 s{S_KO}, s{S_W}, 13"); A(f"s_add_u32 s{S_KO+1}, s{S_KO}, 4096")
    A(f"s_mov_b32 s{S_VO}, s{S_KO}"); A(f"s_mov_b32 s{S_VO+1}, s{S_KO+1}")
    HOP = []
    if OPT.get('hop'):
        HOP = [I("s_mov_b64 exec, 0")]
        for w in range(3): HOP += [I(f"s_cmp_eq_u32 s{S_W}, {w}"), I(f"s_cbranch_scc1 L_PAD{w}")]
        HOP += [I("s_branch L_PAD3"), I("L_PADX:"), I("s_mov_b64 exec, -1")]
    if SQ: n1_ = int(OPT.get('sq1', 3)); L += SQ[:n1_]; SQ = SQ[n1_:]; tw2 = []
    sd = int(OPT.get('sd', 0)); DEF = []
    if sd: DEF = L[-sd:]; del L[-sd:]
    L += (stamp(1) if not OPT.get('ds') else dstamp('c')) if not OPT.get('nost1') else []
    F = 128
    sa, qa = 16, 24
    if OPT.get('w2p'): tkv = tw2 + tkv; tw2 = []
    if OPT.get('kvp', '1') == '1': LATE['kv'] = tkv; tkv = []
    if OPT.get('s2'): LATE['q1'] = twq1; LATE['w2'] = tw2 + tkv; tw2 = []; tkv = []
    D = [stage_dma(s) for s in range(3)]
    NE = int(OPT.get('ne', 2))
    vq = XL[xe:] + tcode + b1l + sum(D[:NE], [])
    def pop_vm(n):
        out = []
        while vq and n > 0:
            x = vq.pop(0); out.append(x)
            if x.kind in ('dma', 'vld'): n -= 1
        return with_m0_pad(out)
    for ks in range(16):
        L.append(W(vm=[f'x{ks}']))
        L += dstamp(f'x{ks}')
        if OPT.get('fine') and ks == 15: L += stamp(5)
        L += pop_vm(int(OPT.get('pv', 1)) + (int(OPT.get('pvx', 0)) if ks == 0 else 0))
        if str(ks) == OPT.get('hopat', 'w'): L += HOP
        for i in range(4*ks, 4*ks + 4):
            A(f"v_lshlrev_b32 v{F+2*i}, 16, v{64+i}")
            A(f"v_and_b32 v{F+2*i+1}, 0xffff0000, v{64+i}")
        for i in range(4*ks, 4*ks + 4):
            k = i & 3
            x = vr(F+2*i, 2)
            if i < 4:
                A(f"v_pk_mul_f32 {vr(qa+2*k,2)}, {x}, {x}")
            else:
                src = vr(F+2*k, 2) if i < 8 else vr(sa+2*k, 2)
                A(f"v_pk_add_f32 {vr(sa+2*k,2)}, {src}, {x}")
                A(f"v_pk_fma_f32 {vr(qa+2*k,2)}, {x}, {x}, {vr(qa+2*k,2)}")
        if SQ: L.append(SQ.pop(0))
        nst = int(OPT.get('sdn', 5))
        if ks < nst: L += DEF[len(DEF)*ks//nst:len(DEF)*(ks+1)//nst]
    if SL and not OPT.get('sw2'): A("s_waitcnt lgkmcnt(0)")
    if OPT.get('ds'): A("v_writelane_b32 v63, s96, 12"); A("v_writelane_b32 v63, s100, 13")
    if not OPT.get('sw2'): L += stamp(2)
    M = []; A = lambda t, **k: M.append(I(t, **k))
    for b in (sa, qa):
        A(f"v_pk_add_f32 {vr(b,2)}, {vr(b,2)}, {vr(b+2,2)}"); A(f"v_pk_add_f32 {vr(b+4,2)}, {vr(b+4,2)}, {vr(b+6,2)}")
    for b in (sa, qa): A(f"v_pk_add_f32 {vr(b,2)}, {vr(b,2)}, {vr(b+4,2)}")
    for b in (sa, qa): A(f"v_add_f32 v{b}, v{b}, v{b+1}")
    for qp in ("[1,0,3,2]", "[2,3,0,1]"):
        A("s_nop 1")
        for b in (sa, qa): A(f"v_add_f32_dpp v{b}, v{b}, v{b} quad_perm:{qp} row_mask:0xf bank_mask:0xf")
    A(f"v_mul_f32 v{sa}, {hx(f2u(1/512))}, v{sa}")
    A(f"v_mul_f32 v{qa}, {hx(f2u(1/512))}, v{qa}")
    A(f"v_fma_f32 v{qa}, -v{sa}, v{sa}, v{qa}")
    A(f"v_max_f32 v{qa}, 0, v{qa}")
    A(f"v_cvt_pk_bf16_f32 v{sa+1}, v{sa}, v{qa}")
    A(f"v_lshlrev_b32 v{sa}, 16, v{sa+1}")
    A(f"v_and_b32 v{qa}, 0xffff0000, v{sa+1}")
    A(f"v_add_f32 v{qa}, {hx(f2u(1e-5))}, v{qa}")
    A(f"v_cvt_pk_bf16_f32 v{qa}, v{qa}, v{qa}"); A(f"v_and_b32 v{qa}, 0xffff0000, v{qa}")
    A(f"v_sqrt_f32 v{qa}, v{qa}"); A("s_nop 0")
    A(f"v_cvt_pk_bf16_f32 v{qa}, v{qa}, v{qa}"); A(f"v_and_b32 v{qa}, 0xffff0000, v{qa}")
    A(f"v_rcp_f32 v{qa}, v{qa}"); A("s_nop 0")
    if OPT.get('fold'): A(f"v_mul_f32 v{qa}, s{S_QS}, v{qa}")
    A(f"v_mul_f32 v{sa}, v{sa}, v{qa}")
    A(f"v_sub_f32 v{sa}, 0, v{sa}")
    A(f"v_mov_b32 v{qa+1}, v{qa}"); A(f"v_mov_b32 v{sa+1}, v{sa}")
    def norm(ks):
        for i in range(4*ks, 4*ks+4):
            A(f"v_pk_fma_f32 {vr(F+2*i,2)}, {vr(F+2*i,2)}, {vr(qa,2)}, {vr(sa,2)}")
        for i in range(4*ks, 4*ks+4):
            A(f"v_cvt_pk_bf16_f32 v{64+i}, v{F+2*i}, v{F+2*i+1}")
    for ks in range(16): norm(ks)
    if SQ: M = interleave(M, SQ, 0, len(M) // 2)
    L += with_m0_pad(interleave(M, vq)) + twq + tw2 + tkv
    if OPT.get('ds'): L += stamp(1)
    if OPT.get('hopat', 'w') == 'w': L += HOP
    LATE['hop'] = HOP
    if OPT.get('ds'): L += stamp(14)
    if OPT.get('sw2'): L += [I("s_waitcnt lgkmcnt(0)")] + stamp(2)
    M = []; A = lambda t, **k: M.append(I(t, **k))
    wr = [I(f"ds_write_b128 v{t2 if ks < 8 else 56}, {vr(64+4*ks)} offset:{(ks&7)*1024}", tag='xw' if ks < 8 else 'xw2', res_w=[('slot3' if ks < 8 else 'hx', True)] if OPT.get('norot') else [('slot3', True), ('hx', True)]) for ks in range(16)]
    nw = int(OPT.get('nw', 8))
    LATE['xw'] = wr[nw:]
    bias = [W(vm=['b1'])]
    for ct in range(4):
        for h in range(2):
            bias += [I(f"v_lshlrev_b32 v{V_B1+4*ct+2*h}, 16, v{40+2*ct+h}"), I(f"v_and_b32 v{V_B1+4*ct+2*h+1}, 0xffff0000, v{40+2*ct+h}")]
    if OPT.get('fold'): bias += [I(f"v_mul_f32 v{V_B1+k}, s{S_QS}, v{V_B1+k}") for k in range(16)]
    L += wr[:6] + interleave(wr[6:nw], bias)
    L += [W(vm=['st0'])] + af_reads(0, 0)
    L += [W(lgkm=['xw', 'xw2'][:1 if nw == 8 else 2]), I("s_barrier")]
    L += [xn_read(ks, qb) for qb in range(4) for ks in range(2)]
    L += stamp(3)
    return L

def xn_read(ks, qb):
    if ks < 8: return I(f"ds_read_b128 {ar(XN(ks,qb))}, v{V_XA} offset:{qb*16384 + ks*1024}", tag=f'xr{ks>>1}', res_r=[('slot3', True)])
    return I(f"ds_read_b128 {ar(XN(ks,qb))}, v{V_XA+1} offset:{qb*8192 + (ks&7)*1024}", tag=f'xr{ks>>1}', res_r=[('hx', True)])

A_AF2, A_KF0 = 32, 64
def AF(s, k, n=4): return ar(A_AF2 + k, n) if s >= 24 else vr(V_AF + k, n)
def HF(u, qb): return 144 + 16*u + 4*qb
def af_reads(s, p):
    st = STAGES[s]; L = []
    for c in range(2):
        for j in range(st['nks']):
            for e in range(2):
                L.append(I(f"ds_read_b64_tr_b16 {AF(s, 16*p + 8*c + 4*j + 2*e, 2)}, v{V_WA + 4*(s&1) + 2*p + c} offset:{slot_off(s) + j*4096 + e*2048}",
                           tag=f"af{s}_{p}", res_r=[(f"slot{s&3}", False)]))
    return L

def kv_dma(which, half, buf, tag):
    base = (0 if which == 'K' else LDS_V) + buf*8192 + half*4096
    so = (S_KO if which == 'K' else S_VO) + half
    L = [I(f"s_add_u32 m0, s{S_RING}, {hx(base)}")]
    for i in range(4):
        off = f" offset:{i*1024}" if i else ""
        L.append(I(f"buffer_load_dwordx4 v{V_DV + (i&1)}, {sr(SRD_K if which == 'K' else SRD_V)}, s{so} offen{off}{NT('k')} lds",
                   tag=tag, res_w=[(f"{which}{buf}", True)]))
    return L

def even(G, items, lo, hi):
    nd = sum(1 for x in items if x.kind in ('dma', 'vld', 'vst'))
    k = 0; its = []
    for x in items:
        e = lo + (k * (hi - lo + 1)) // max(nd, 1)
        if x.kind in ('dma', 'vld', 'vst'): k += 1
        else: e = max(lo, e - 3)
        its.append((x, min(e, hi)))
    return G.stream(its, lo, hi)

def k0_reads(kt):
    return [I(f"ds_read_b128 {ar(A_KF0 + 16*(kt&1) + 4*kk)}, v{V_KA+kk} offset:{kt*4096}", tag='fr', res_r=[('hx', True)]) for kk in range(4)]

def y_pack(acc, ct):
    a = acc + 16*ct
    return [I(f"v_cvt_pk_bf16_f32 v{a+8+k}, v{a+2*k}, v{a+2*k+1}") for k in range(7, -1, -1)]
def y_stores(hc):
    acc = V_ACCB if hc else V_ACCA
    return [(I(f"s_add_u32 s{S_YO + 1 + (ct&1)}, s{S_YO}, {hx(((hc*4 + ct)*2 + half) * PL)}"),
             I(f"buffer_store_dwordx4 {vr(acc + 16*ct + 8 + 4*half)}, v{V_L16}, {sr(SRD_WS2)}, s{S_YO + 1 + (ct&1)} offen sc1", tag='yst'))
            for half in range(2) for ct in range(4)]

def phase1():
    m = []; per = {}; done = {}; blk = []
    FM = (26, 0)
    for s, st in enumerate(STAGES):
        for p in range(2):
            lo = len(m)
            for c in range(2):
                ct = 2*p + c
                for qb in range(4):
                    if s >= 28 and qb % 2 == 0:
                        n = len(blk); kt, q2 = n >> 2, n & 3
                        blk.append(len(m))
                        d = vr(V_S + 4*(n % 2))
                        for kk in range(4): m.append(mf(d, ar(A_KF0 + 16*(kt&1) + 4*kk), vr(V_Q + 16*q2 + 4*kk), d if kk else vr(V_NEGM + 4*q2)))
                    d = vr(st['acc'] + 16*ct + 4*qb)
                    js = list(range(st['nks']))
                    if qb & 1 and not OPT.get('nosnake'): js.reverse()
                    for j in js:
                        cc = d
                        if st['first'] and j == js[0]: cc = vr(V_B1 + 4*ct) if st['m'] == 'w1' else "0"
                        b = HF(st['ks0'] + j, qb) if st['m'] == 'w2' else XN(st['ks0'] + j, qb)
                        ab = (AF(s, 16*p + 8*c + 4*j), ar(b))
                        if st['m'] in str(OPT.get('swap1', '')): ab = ab[::-1]
                        m.append(mf(d, ab[0], ab[1], cc))
                    done[(s, ct, qb)] = len(m) - 1
            if (s, p) == FM:
                fm0 = len(m)
                for qb in range(4):
                    d = vr(V_NEGM + 4*qb)
                    for kk in range(4): m.append(mf(d, ar(A_KF0 + 4*kk), vr(V_Q + 16*qb + 4*kk), d if kk else "0"))
            per[(s, p)] = (lo, len(m) - 1)
    G = Gaps(m)
    NS = len(STAGES)
    G.head += [W(lgkm=['xr0'])]
    for n in range(1, 32):
        b = blk[n]
        ex, cv = softmax_items(n - 1, 0)
        if n < 24:
            for r in range(4): G.pin(b + 2*r, ex[r])
            G.pin(b + 3, cv[0]); G.pin(b + 7, cv[1])
        else:
            for r in range(4): G.pin(b + 1 + r, ex[r])
            G.pin(b + 5, cv[0]); G.pin(b + 5, cv[1])
    Bh, Bk = per[(23, 1)][1], per[(25, 1)][1]
    for s in range(NS):
        for p in range(2):
            ns, npp = (s, 1) if p == 0 else (s + 1, 0)
            lo, hi = per[(s, p)]
            lg = [f"af{ns}_{npp}"] if ns < NS else []
            if npp == 0 and ns < 8: lg.append(f"xr{ns}")
            if (ns, npp) == (24, 0): lg.append('hr')
            vm = [f"st{s+1}"] if (p == 0 and s + 1 < NS) else []
            rd = af_reads(ns, npp) if ns < NS else []
            if s >= 28:
                kt = 2*(s - 28) + p
                rd = (k0_reads(kt + 1) if kt < 7 else k_reads(0, 1) + v_reads(0, 0)) + rd
                lg.append('fr')
                if kt == 6: vm.append('kv')
            if hi == Bk: vm.append('k0')
            G.pin(hi, W(vm=vm or None, lgkm=lg))
            if hi in (Bh, Bk) or (s, p) == (31, 0): G.pin(hi, I("s_barrier"))
            h = None
            if s >= 28: G.stream(rd, lo, hi - 6)
            else:
                for k, x in enumerate(rd): h = G.place(x, lo + (k // 2) * 2 + 1 if (len(rd) == 8 and s != int(OPT.get('hs', 21))) else lo, hi - 1, after=h)
    G.stream(k0_reads(0), Bk + 1, fm0 - 6)
    G.pin(fm0 - 1, W(lgkm=['fr']))
    xr = [xn_read(ks, qb) for ks in range(2, 8) for qb in range(4)]
    b1 = per[(int(OPT.get('b1s', 1)), 0)][1] if LATE['xw'] else per[(0, 1)][1]
    for k, x in enumerate(LATE['xw']): G.pin(2*k, x)
    for k, x in enumerate(xr): G.pin(2*len(LATE['xw']) + k, x)
    G.pin(b1, W(lgkm=['xr3'] + (['xw2'] if LATE['xw'] else []))); G.pin(b1, I("s_barrier"))
    G.stream([xn_read(ks, qb) for ks in range(8, 16) for qb in range(4)], b1 + 1, per[(3, 1)][1] - 8, spread=True)
    G.pin(per[(int(OPT.get("b3s", 6)), 1)][1], I("s_barrier"))
    hs = int(OPT.get('hs', 21))
    hwpos = [per[(hs, p)][0] + k for p in range(2) for k in (5, 8, 11, 14)]
    hbar = per[(hs + 1, 0)][0] + 5
    pause = (hwpos[0] - int(OPT.get('pz', 16)), hwpos[-1] + 2) if OPT.get('pz') != '0' else (0, -1)
    slow = int(OPT.get('pzs', 7))
    jobs = []
    for t in range(int(OPT.get('ne', 2)), NS):
        s = t - 4
        rel = per[(s, 1)][0] if s >= 0 else (b1 + 1 if t == 3 else 0)
        d = stage_dma(t)
        if t == 3:
            for x in d:
                if x.res_w: x.res_w = [('slot3', True)]
        jobs.append((rel, d, per[(t - 1, 0)][1]))
        if t == 27:
            d = [I(f"s_lshl_b32 s{S_T+1}, s{S_W}, 13")] + kv_dma('K', 0, 0, 'k0') + kv_dma('K', 1, 0, 'k0')
            k = 0
            for n_, x in enumerate(d):
                if x.res_w: x.res_w = [('hx', True)]
                if 'm0' in x.wr: d[n_] = I(f"s_add_u32 m0, s{S_T+1}, {hx(LDS_X + 4096*k)}"); k += 1
            jobs.append((Bh + 1, d + [I("s_nop 0"), I(f"s_add_u32 s{S_KO}, s{S_KO}, 0x8000"), I(f"s_add_u32 s{S_KO+1}, s{S_KO+1}, 0x8000")], Bk))
    for which, buf, s in (('K', 1, 28), ('V', 0, 29)):
        d = kv_dma(which, 0, buf, 'kv') + kv_dma(which, 1, buf, 'kv')
        for x in d:
            if x.res_w: x.res_w = x.res_w + [(f'slot{s&3}', False)]
        so = S_KO if which == 'K' else S_VO
        jobs.append((per[(s, 1)][0], d + [I("s_nop 0"), I(f"s_add_u32 s{so}, s{so}, 0x8000"), I(f"s_add_u32 s{so+1}, s{so+1}, 0x8000")], per[(31, 0)][1]))
    kz = [n for n, jb in enumerate(jobs) if any(x.tag == 'k0' for x in jb[1])][0]
    if OPT.get('k0first', '1') == '1': jobs[kz], jobs[kz - 1] = jobs[kz - 1], jobs[kz]
    if OPT.get('swap34', '1') == '1':
        k3 = [n for n, jb in enumerate(jobs) if any(x.tag == 'st3' for x in jb[1])][0]
        jobs[k3], jobs[k3 + 1] = jobs[k3 + 1], jobs[k3]
    c1, c2, c3 = float(OPT.get('catch1', 3.5)), float(OPT.get('catch', 3.5)), float(OPT.get('catch3', 3))
    margin = int(OPT.get('margin', 28)); mins = float(OPT.get('mins', 2))
    T = []; t = -99.0
    for rel, d, dl in jobs:
        k = 0
        for x in d:
            if x.kind != 'dma': continue
            step = c1 if t < per[(8, 0)][0] else (c2 if t < pause[0] else c3)
            if pause[0] <= t + step <= pause[1]: step = min(slow, pause[1] + 1 - t)
            t = max(rel + (4*k if rel else 0), t + step)
            if rel >= per[(int(OPT.get('alap0', 22)), 0)][0] and x.tag not in ('st31', 'kv', 'st30'):
                nd = sum(y.kind == 'dma' for y in d)
                t = max(t, dl - int(OPT.get('alap', 40)) - 4*(nd - 1 - k))
            k += 1
            T.append([t, rel, dl - margin])
    for n in range(len(T) - 1, -1, -1):
        lim = T[n][2] if n == len(T) - 1 else min(T[n][2], T[n + 1][0] - mins)
        T[n][0] = max(T[n][1], min(T[n][0], lim))
    for n in range(1, len(T)): T[n][0] = max(T[n][0], T[n - 1][0] + mins)
    h = None; n = 0; LAG = []
    for rel, d, dl in jobs:
        for x in d:
            if x.kind == 'dma':
                pos = max(int(T[n][0]), h[0] if h else 0); n += 1
                while pos in hwpos or pos - 1 in hwpos or any(y.kind in ('dma', 'dsw') for y in G.seq(pos)): pos += 1
                h = G.place(x, pos, pos + (1 if pos < blk[0] else 8), after=h); last = h[0]
            else:
                lo_ = max(rel - 3, h[0] if h else 0, 0)
                h = G.place(x, lo_, max(lo_, int(T[n][0]) - 1 if n < len(T) else lo_ + 3), after=h)
        LAG.append(dl - last)
    print('; dma slack', LAG, file=sys.stderr)
    G.place(kv_dma('K', 0, 0, 'kv')[0], h[0] + 1, len(G) - 1, after=h)
    def by_parity(items, par, g):
        for n_, x in enumerate(items):
            sreg = re.search(r'\], (s\d+) offen', x.text).group(1)
            while G.g[g][0] or G.g[g + 1][0] or G.seq(g + 2) or any(y.kind == 'dma' for y in G.seq(g) + G.seq(g + 1)): g += 1
            G.pin(g, I(f"s_cmp_eq_u32 s95, {par}")); G.pin(g + 1, I(f"s_cselect_b32 s{92 + (n_ & 1)}, {sreg}, 0x10000000"))
            G.pin(g + 2, I(x.text.replace(sreg + " offen", f"s{92 + (n_ & 1)} offen"), tag='pf')); g += 3
    if not OPT.get('w2p'): G.head = [I("s_and_b32 s95, s2, 1")] + G.head
    FIRST = int(OPT.get('first', 0))
    if LATE.get('q1'): G.stream(LATE['q1'], per[(int(OPT.get('s1', 6)), 0)][0], per[(int(OPT.get('s1', 6)), 1)][1])
    if LATE.get('w2'):
        if OPT.get('s2b'): by_parity(LATE['w2'], FIRST, per[(int(OPT['s2']), 0)][0]); by_parity(LATE['w2'], FIRST ^ 1, per[(int(OPT['s2b']), 0)][0])
        else: G.stream(LATE['w2'], per[(int(OPT['s2']), 0)][0], per[(int(OPT['s2']), 1)][1])
    if LATE.get('one'):
        g = int(32*float(OPT['one']))
        two = LATE['two'] if float(OPT.get('two', 27)) else []
        for k, x in enumerate(LATE['one'] + ([] if two else LATE['two'])): G.pin(g + k, x)
        g = per[(int(float(OPT.get('two', 27))), 0)][0]
        if two: G.stream(two, g, g + 12)
    if LATE.get('kv'):
        if OPT.get('kva'): by_parity(LATE['kv'], FIRST, per[(int(OPT['kva']), 0)][0])
        G.stream(LATE['kv'], pause[0] + int(OPT.get('kvo', 6)), hwpos[0] - 1)
    for (sb, op) in ((8, 'v_add_u32'), (24, 'v_sub_u32')):
        for win in range(2):
            for ct in range(4):
                r = V_WA + 4*win + ct
                G.place(I(f"{op} v{r}, v{r}, v52"), per[(sb - 2 + win, 1)][0], per[(sb - 1 + win, 0)][1])
    ha, hr = V_XA, V_XA + 1
    G.stream([I(f"s_lshl_b32 s{S_T}, s{S_W}, 13"), I(f"s_add_u32 s{S_T}, s{S_T}, {hx(LDS_X)}"), I(f"v_add_u32 v{ha}, s{S_T}, v{V_L16}"),
              I(f"s_and_b32 s{S_T}, s{S_G}, 1"), I(f"s_lshl_b32 s{S_T}, s{S_T}, 12"), I(f"s_add_u32 s{S_T}, s{S_T}, {hx(LDS_X)}"),
              I(f"v_add_u32 v{hr}, s{S_T}, v{V_L16}")], per[(5, 0)][0], per[(6, 1)][1])
    for hq in range(2):
        s = 15 + 8*hq
        for p in range(2):
            kk = 2*hq + p
            items = []
            for half in range(2):
                ct = 2*p + half
                for qb in range(4):
                    e = done[(s, ct, qb)] + 6
                    a = V_ACCB + 16*ct + 4*qb; q = V_Q + 16*qb + 4*kk
                    if not OPT.get('fold'):
                        for r in range(4): items.append((I(f"v_mul_f32 v{a+r}, s{S_QS}, v{a+r}"), e))
                    items.append((I(f"v_cvt_pk_bf16_f32 v{q+2*half}, v{a}, v{a+1}"), e))
                    items.append((I(f"v_cvt_pk_bf16_f32 v{q+2*half+1}, v{a+2}, v{a+3}"), e))
            if hq == 0:
                hnd = None
                for k in range(8):
                    nq_ = len(items) // 8
                    its = items[nq_*k:nq_*k + nq_]; e = its[0][1]
                    hn = G.stream(its, e, e - 6 + 30)
                    hnd = hn if hnd is None else max(hnd, hn)
            else:
                hnd = G.stream(items, items[0][1], fm0 - (40 if p == 0 else 12))
            sw = []
            for qb in range(4):
                q = V_Q + 16*qb + 4*kk
                sw += [I(f"v_permlane32_swap_b32 v{q}, v{q+2}"), I(f"v_permlane32_swap_b32 v{q+1}, v{q+3}")]
            G.stream(sw, hnd[0] + 2, hnd[0] + 60 if hq == 0 else fm0 - 2)
    G.pin(hbar, W(lgkm=['hw'])); G.pin(hbar, I("s_barrier"))
    hrd = [I(f"ds_read_b128 {ar(HF(u,qb))}, v{hr} offset:{u*4096 + qb*1024}", tag='hr', res_r=[('hx', True)]) for u in range(7) for qb in range(4)]
    G.stream(hrd, hbar + 1, per[(23, 1)][1] - 6)
    items = []
    T = 56
    for p in range(2):
        for qb in range(4):
            for half in range(2):
                ct = 2*p + half
                e = done[(7, ct, qb)] + 6
                a = V_ACCA + 16*ct + 4*qb
                seq = []
                seq += [f"v_mul_f32 v{T+r}, v{a+r}, v{a+r}" for r in range(4)]
                seq += [f"v_fma_f32 v{T+r}, v{T+r}, s{S_GB}, v{V_GA}" for r in range(4)]
                seq += [f"v_mul_f32 v{T+r}, v{T+r}, v{a+r}" for r in range(4)]
                seq += [f"v_exp_f32 v{T+r}, v{T+r}" for r in range(4)]
                seq += [f"v_add_f32 v{T+r}, 1.0, v{T+r}" for r in range(4)]
                seq += [f"v_rcp_f32 v{T+r}, v{T+r}" for r in range(4)]
                seq += [f"v_mul_f32 v{T+r}, v{T+r}, v{a+r}" for r in range(4)]
                a0 = V_ACCA + 16*(2*p) + 4*qb
                seq += [f"v_cvt_pk_bf16_f32 v{a0+2*half}, v{T}, v{T+1}", f"v_cvt_pk_bf16_f32 v{a0+2*half+1}, v{T+2}, v{T+3}"]
                items += [(I(x), e) for x in seq]
            G.pin(hwpos[4*p + qb], I(f"ds_write_b128 v{ha}, {vr(V_ACCA + 32*p + 4*qb)} offset:{p*4096 + qb*1024}", tag='hw', res_w=[('hx', True)]))
    n1 = len(items) * 7 // 8
    h = G.stream(items[:n1], items[0][1], hwpos[0] - 1 - int(OPT.get('gl', 0)))
    G.stream(items[n1:], h[0] + 1, hwpos[7] - 1)
    pa = [I(x) for x in (f"v_lshrrev_b32 v56, 6, v{V_L16}", "v_lshlrev_b32 v58, 7, v56", f"v_bfe_u32 v57, v{V_L16}, 4, 2", "v_lshl_add_u32 v58, v57, 3, v58",
          f"v_bfe_u32 v59, v{V_L16}, 7, 2", f"v_xor_b32 v59, s{S_W}, v59", f"v_lshl_add_u32 v48, v59, 5, v58")]
    pa += swz(49, 56, 57, 58) + [I(f"v_bfe_u32 v56, v{V_L16}, 4, 4"), I(f"v_lshrrev_b32 v57, 8, v{V_L16}")] + swz(51, 56, 57, 58) + [I(f"v_add_u32 v51, s{S_RING}, v51")]
    hpa = G.stream(pa, per[(24, 0)][0], per[(27, 1)][1])
    global PARK
    PARK = [I(f"v_accvgpr_write_b32 a{A_ADR+k}, v{r}") for k, r in enumerate((48, 49, 51))]
    it = []
    for qb in range(4):
        b = V_NEGM + 4*qb
        it += [(I(f"v_max3_f32 v{b}, v{b}, v{b+1}, v{b+2}"), fm0 + 4*qb + 11), (I(f"v_max_f32 v{b}, v{b}, v{b+3}"), fm0 + 4*qb + 11)]
    it += [x for x in rowmax_finish() if x.kind != 'nop']
    G.stream(it, fm0 + 11, blk[0] - 2)
    for ct in range(4): G.stream(y_pack(V_ACCA, ct), done[(27, ct, 3)] + 6, blk[ct + 1] + 2)
    for k, x in enumerate(y_stores(0)):
        g = blk[(7, 7, 11, 11, 15, 15, 19, 19)[k]] + (1, 5)[k & 1]
        G.pin(g - 1, x[0]); G.pin(g, x[1])
    su = attn_setup()
    G.stream(su['pre'] + [I(f"v_accvgpr_write_b32 a{A_L + 4*q + k}, 0") for q in range(4) for k in range(2)], hpa[0] + 1 if OPT.get('prearly') else blk[12], blk[20] - 1)
    G.stream(su['va'][:8], blk[20], blk[28] - 1)
    G.stream(su['sp'], blk[24], len(G) - 2)
    e = max(i for i in range(len(G)) if any(x.kind == 'dsr' and x.res_r == [('hx', True)] for x in G.seq(i)))
    G.stream([I(f"v_subrev_u32 v{V_KA+kk}, {hx(LDS_X)}, v{V_KA+kk}") for kk in range(4)], e, blk[28] - 1)
    global VA_LATE
    VA_LATE = su['va'][8:]
    if str(OPT.get('hopat', 'w')).startswith('g'):
        for x in LATE['hop'] + [I('s_nop 3')]: G.pin(int(OPT['hopat'][1:]), x, post=True)
    for k in range(16): ministamp(G, per[(2*k + 1, 1)][1], 32 + k)
    out = with_m0_pad(G.flat()) + PARK
    print(f"; phase1: {len(G)} mfma, est cycles {G.cycles()} pairs {[G.cyc(per[(2*k,0)][0], per[(2*k+1,1)][1]) for k in range(16)]}", file=sys.stderr)
    return out

def P(buf, qb, ks): return V_P + 64*buf + 16*qb + 4*ks
def k_reads(kt, buf, res=True):
    return [I(f"ds_read_b128 {ar(A_KF + 16*(kt&1) + 4*kk)}, v{V_KA+kk} offset:{(kt>>1)*16384 + (kt&1)*4096 + buf*8192}",
              tag='fr', res_r=[(f"K{buf}", True)] if res else None) for kk in range(4)]
def v_reads(dt, buf):
    return [I(f"ds_read_b64_tr_b16 {ar(A_VF + 16*(dt&1) + 4*ks + 2*e, 2)}, v{V_VA+dt} offset:{ks*16384 + buf*8192 + e*4096}",
              tag='fr', res_r=[(f"V{buf}", True)]) for ks in range(4) for e in range(2)]

def attn_setup():
    t1, t2, t3 = 56, 57, 58
    pre = [f"v_bfe_u32 v{t3}, v{V_L16}, 4, 2",
           f"v_cmp_eq_u32 vcc, 1, v{t3}", f"v_mov_b32 v{t1}, 0x44444444", f"v_mov_b32 v{t2}, 0xeeeeeeee", f"v_cndmask_b32 v{V_SPI}, v{t1}, v{t2}, vcc",
           f"v_cmp_gt_u32 vcc, 2, v{t3}", f"v_mov_b32 v{t1}, 0x3f803f80", f"v_lshrrev_b32 v{t2}, 6, v{V_L16}", f"v_cndmask_b32 v59, 0, v{t1}, vcc",
           f"v_lshlrev_b32 v{t1}, 8, v{t2}", f"v_and_b32 v{t2}, 7, v{t2}", f"v_lshl_add_u32 v{t1}, v{t3}, 3, v{t1}", f"v_add_u32 v{t1}, 0x10000, v{t1}"]
    va = []
    for dt in range(8): va += [f"v_xor_b32 v{V_VA+dt}, {dt}, v{t2}", f"v_lshl_add_u32 v{V_VA+dt}, v{V_VA+dt}, 5, v{t1}"]
    sp = [f"v_accvgpr_write_b32 a{A_SPA+i}, v59" for i in range(4)] + [f"v_accvgpr_write_b32 a{A_FILL+i}, -1" for i in range(4)]
    return dict(pre=[I(x) for x in pre], va=[I(x) for x in va], sp=[I(x) for x in sp])

def rowmax_finish():
    L = []; A = lambda t, **k: L.append(I(t, **k))
    for sw in ("v_permlane32_swap_b32", "v_permlane16_swap_b32"):
        for qb in range(4): A(f"v_mov_b32 v{V_NEGM+4*qb+1}, v{V_NEGM+4*qb}")
        A("s_nop 1")
        for qb in range(4): A(f"{sw} v{V_NEGM+4*qb}, v{V_NEGM+4*qb+1}")
        for qb in range(4): A(f"v_max_f32 v{V_NEGM+4*qb}, v{V_NEGM+4*qb}, v{V_NEGM+4*qb+1}")
    for qb in range(4): A(f"v_sub_f32 v{V_NEGM+4*qb}, {hx(f2u(-float(OPT.get('moff', 10))))}, v{V_NEGM+4*qb}")
    for qb in range(4):
        for r in range(1, 4): A(f"v_mov_b32 v{V_NEGM+4*qb+r}, v{V_NEGM+4*qb}")
    return L

NSB = 3
def softmax_items(n, pbuf):
    kt, qb = n >> 2, n & 3
    s = V_S + 4*(n % 2)
    p = P(pbuf, qb, kt >> 1) + 2*(kt & 1)
    ex = [I(f"v_exp_f32 v{s+r}, v{s+r}") for r in range(4)]
    cv = [I(f"v_cvt_pk_bf16_f32 v{p}, v{s}, v{s+1}"), I(f"v_cvt_pk_bf16_f32 v{p+1}, v{s+2}, v{s+3}")]
    if OPT.get('perm'): cv = [I(f"v_perm_b32 v{p}, v{s+1}, v{s}, s75"), I(f"v_perm_b32 v{p+1}, v{s+3}, v{s+2}, s75")]
    return ex, cv

def smf(pbuf, qb, h):
    return I(f"v_smfmac_f32_16x16x64_bf16 {ar(A_L + 4*qb)}, {ar(A_SPA)}, {vr(P(pbuf, qb, 2*h), 8)}, v{V_SPI}")

def attn_iter(par, first_pv=False, vmtags=('kv',), d0=0):
    m = []; blk = []; sg = []
    for i in range(8):
        for qb in range(4):
            n = 4*i + qb
            blk.append(len(m))
            d = vr(V_S + 4*(n % 2))
            for kk in range(4):
                m.append(mf(d, ar(A_KF + 16*(i&1) + 4*kk), vr(V_Q + 16*qb + 4*kk), d if kk else vr(V_NEGM + 4*qb)))
            o = ar(A_O + 16*i + 4*qb)
            for ks in range(4):
                ab = (ar(A_VF + 16*(i&1) + 4*ks), vr(P(par ^ 1, qb, ks)))
                ab = ab[::-1]
                m.append(mf(o, ab[0], ab[1], "0" if (first_pv and ks == 0) else o))
        sg.append(len(m))
        m.append(smf(par ^ 1, i >> 1, i & 1))
    G = Gaps(m)
    for n in range(32):
        b = blk[n]
        ex, cv = softmax_items((n - 1) % 32, par if n else par ^ 1)
        for r in range(4): G.pin(b + 2*r, ex[r])
        G.pin(b + 3, cv[0]); G.pin(b + 7, cv[1])
    for i in range(8):
        if i < 7: rd = k_reads(i + 1, par) + v_reads(i + 1, par ^ 1)
        else: rd = k_reads(0, par ^ 1) + v_reads(0, par)
        k = 0
        for qb in range(3):
            b = blk[4*i + qb]
            for gp in (3, 5, 5, 7):
                G.pin(b + gp, rd[k]); k += 1
        if i == 6:
            G.pin(sg[i], W(vm=list(vmtags), lgkm=['fr'])); G.pin(sg[i], I("s_barrier"))
        else:
            G.pin(sg[i], W(lgkm=['fr']))
    groups = [kv_dma('K', 0, par ^ 1, 'kv'), kv_dma('K', 1, par ^ 1, 'kv'), kv_dma('V', 0, par, 'kv'), kv_dma('V', 1, par, 'kv')]
    for i in range(4):
        for qb in range(4): G.pin(blk[4*(i + d0) + qb] + 1, groups[i][1 + qb])
        if i < 3: G.pin(blk[4*(i + d0) + 3] + 4, groups[i + 1][0])
    nxt = kv_dma('K', 0, par, 'kv')[0]
    G.pin(blk[4*7 + 3] + 3, nxt)
    for k in range(4): G.pin(blk[4*7 + (k >> 1)] + 4 + 2*(k & 1), I(f"s_add_u32 s{S_KO+k}, s{S_KO+k}, 0x8000"))
    G.blk = blk; G.sg = sg
    return G

def y_load(half, dst=None):
    dst = V_YB if dst is None else dst
    return I(f"buffer_load_dwordx4 {vr(dst)}, v{V_L16}, {sr(SRD_WS)}, s{S_YL} offen sc1", tag=f'yl{dst}')
def y_add(half, src=None, V_YT=V_YT):
    src = V_YB if src is None else src
    L = []
    for k in range(4):
        a = V_YS + 8*half + 2*k
        L += [I(f"v_lshlrev_b32 v{V_YT}, 16, v{src+k}"), I(f"v_and_b32 v{src+k}, 0xffff0000, v{src+k}"),
              I(f"v_add_f32 v{a}, v{a}, v{V_YT}"), I(f"v_add_f32 v{a+1}, v{a+1}, v{src+k}")]
    return L
def y_next():
    return [I(f"s_add_u32 s{S_YI}, s{S_YI}, {hx(1 << GS_Y)}"), I(f"s_and_b32 s{S_YI}, s{S_YI}, {hx((8 << GS_Y) - 1)}"), I(f"s_add_u32 s{S_YL}, s{S_YI}, s{S_CB2}")]
def cnt_load(vreg=None): return I(f"buffer_load_dword v{vreg or V_CNT}, off, {sr(SRD_DBG)}, s{S_CL} sc1", tag='cnt')
def cnt_check(G, gap, need, name, read=True, vreg=None):
    if read: G.pin(gap, I(f"v_readfirstlane_b32 s{S_T+2}, v{V_CNT}"))
    G.pin(gap + (1 if read else 2), I(f"s_cmp_lt_u32 s{S_T+2}, {need}"))
    for x in (I(f"s_cbranch_scc1 L_W{name}"), I(f"L_B{name}:")): G.pin(gap + 2, x)
    STUBS.extend([I(f"L_W{name}:"), I(f"s_mov_b32 s{S_SPIN}, 0x40000"), I(f"L_W{name}_l:"), cnt_load(vreg), I(f"s_sub_u32 s{S_SPIN}, s{S_SPIN}, 1"),
                  I("s_waitcnt vmcnt(0)"), I(f"v_readfirstlane_b32 s{S_T+2}, v{vreg or V_CNT}"), I("s_nop 3"),
                  I(f"s_cmp_ge_u32 s{S_T+2}, {need}"), I(f"s_cbranch_scc1 L_B{name}"),
                  I(f"s_cmp_gt_i32 s{S_SPIN}, 0"), I(f"s_cbranch_scc1 L_W{name}_l"), I(f"s_branch L_B{name}")])
def arrive(G, gap, trip):
    G.pin(gap - 2, I(f"s_cmp_eq_u32 s{S_CNT}, {7 - trip}")); G.pin(gap - 1, I(f"s_cselect_b32 s{S_AO}, 0, 0x1000"))
    G.pin(gap, I(f"buffer_atomic_sub a{A_FILL}, v{V_L16}, {sr(SRD_ARR)}, s{S_AO} offen sc1", tag='atom'))

def xo_voff(dst, t):
    return [I(f"v_bfe_u32 v{dst}, v{V_L16}, 4, 5"), I(f"v_lshlrev_b32 v{dst}, 10, v{dst}"),
            I(f"v_lshrrev_b32 v{t}, 9, v{V_L16}"), I(f"v_lshl_add_u32 v{dst}, v{t}, 4, v{dst}")]

def it1_extras(G):
    blk = G.blk
    t0, t1, t2 = V_YS + 8, V_YS + 9, V_YS + 10
    su = [I(x) for x in (f"s_lshl_b32 s{S_CA}, s{S_R}, 3", f"s_mov_b32 s{S_FO}, s{S_CB}",
          f"s_and_b32 s{S_CB2}, s{S_G}, 4", f"s_add_u32 s{S_CB2}, s{S_CB2}, s{S_W}", f"s_lshl_b32 s{S_CB2}, s{S_CB2}, {PS + 1}",
          f"s_and_b32 s{S_YI}, s{S_G}, 3", f"s_lshl_b32 s{S_YI}, s{S_YI}, {13 if LAY[1] == '1' else 10}", f"s_add_u32 s{S_YI}, s{S_YI}, s{S_RBY}",
          f"s_add_u32 s{S_CB2}, s{S_CB2}, s{S_YI}",
          f"s_add_u32 s{S_YI}, s{S_G}, 7", f"s_lshl_b32 s{S_YI}, s{S_YI}, {GS_Y}", f"s_mov_b32 s{S_YL}, {hx(1 << 28)}",
          f"s_lshl_b32 s{S_T}, s{S_G}, 7", f"s_lshl_b32 s{S_T+1}, s{S_W}, 5", f"s_add_u32 s{S_T}, s{S_T}, s{S_T+1}",
          f"v_lshrrev_b32 v{t0}, 8, v{V_L16}", f"v_lshlrev_b32 v{t0}, 3, v{t0}")]
    su.append(I(f"buffer_load_dwordx2 {vr(V_YB,2)}, v{t0}, {sr(SRD_B2)}, s{S_T} offen", tag='b2'))
    su += [I(f"s_lshl_b32 s{S_XO}, s{S_R}, 16"), I(f"s_add_u32 s{S_XO}, s{S_XO}, s{S_T}"), I(f"s_add_u32 s{S_XO+1}, s{S_XO}, 32768")]
    su += xo_voff(t1, t2)
    for h in range(2): su.append(I(f"buffer_load_dwordx4 {ar(A_XT+4*h)}, v{t1}, {sr(SRD_X)}, s{S_XO+h} offen", tag='xt'))
    sc = [f"s_lshl_b32 s{S_WO+1}, s{S_W}, 13",
          f"s_add_u32 s{SRD_ARR}, s{SRD_DBG}, s{S_CA}", f"s_addc_u32 s{SRD_ARR+1}, s{SRD_DBG+1}, 0",
          f"s_or_b32 s{S_AO}, s{S_W}, s{S_PASS}", f"s_cselect_b32 s{SRD_ARR+2}, 0, 4", f"s_mov_b32 s{SRD_ARR+3}, 0x20000"]
    for k, (ds, half) in enumerate(((6, 1), (7, 0), (7, 1))):
        sc += [f"s_add_u32 s{S_Y7+k}, s{S_G}, {ds}", f"s_and_b32 s{S_Y7+k}, s{S_Y7+k}, 7", f"s_lshl_b32 s{S_Y7+k}, s{S_Y7+k}, {GS_Y}", f"s_add_u32 s{S_Y7+k}, s{S_Y7+k}, s{S_CB2}"]
        if half: sc.append(f"s_add_u32 s{S_Y7+k}, s{S_Y7+k}, {hx(PL)}")
    sc += [f"s_lshr_b32 s{S_AO}, s2, 3", f"s_lshl_b32 s{S_AO}, s{S_AO}, 2", f"s_add_u32 s{S_AO}, s{S_AO}, s{S_W}", f"s_and_b32 s{S_AO}, s{S_AO}, {15 if OPT.get('c16') else 31}", f"s_mul_i32 s{S_AO}, s{S_AO}, {1024 if OPT.get('c16') else 608}",
           f"s_add_u32 s{S_AO}, s{S_AO}, L_FIN-L_PC3"]
    g = blk[9]
    def front(txts):
        nonlocal g
        while G.g[g][0] or any(x.kind in ('dma', 'vld', 'vst') for x in G.seq(g)): g += 1
        for t in txts: G.pin(g, I(t))
        g += 1
    for ct in range(4): G.stream(y_pack(V_ACCB, ct), 0 if ct < 3 else 4, blk[ct + 1] + 2)
    for k, x in enumerate(y_stores(1)):
        g = (blk[15] + 5, G.sg[3], blk[17] + 1, blk[18] + 1, blk[19] + 1, blk[19] + 5, blk[23] + 1, blk[23] + 5)[k]
        G.pin(g - 1, x[0]); G.pin(g, x[1])
    G.stream(VA_LATE, blk[4] + 3, blk[12] - 1)
    k = [n for n, x in enumerate(su) if x.tag == 'b2'][0]
    h = G.stream(su[:k+1], blk[1], blk[8])
    h = G.stream(su[k+1:], blk[20], blk[26])
    ini = [W(vm=['b2'])]
    for k in range(2):
        ini += [I(f"v_lshlrev_b32 v{V_YS+12+2*k}, 16, v{V_YB+k}"), I(f"v_and_b32 v{V_YS+12+2*k+1}, 0xffff0000, v{V_YB+k}")]
    for q in (0, 1, 3):
        ini += [I(f"v_mul_f32 v{V_YS+4*q+k}, {'s%d' % S_QS if OPT.get('fold') else '1.0'}, v{V_YS+12+k}") for k in range(4)]
    G.stream(ini + [y_load(0)], blk[12], blk[22])
    G.stream([I(f"v_mov_b32 v{V_YS+8+k}, v{V_YS+k}") for k in range(4)], h[0], len(G) - 1)
    G.stream([I(f"s_min_u32 s{SRD_WS2+2}, s{SRD_WS2+2}, s{S_LIM}"),
              I(f"s_mov_b32 s{S_NEED}, 0"), I(f"s_mov_b32 s{S_CL}, 0x1000")], blk[24], blk[26])
    for k, x in enumerate(fills()[:2]): G.pin(blk[27 + 4*k] + 1, x); G.pin(blk[27 + 4*k] + 6, I(f"s_add_u32 s{S_FO}, s{S_FO}, {hx(PL)}"))
    k = 0
    while k < len(sc):
        n_ = 2 if (k + 1 < len(sc) and (sc[k+1].startswith('s_addc') or sc[k+1].startswith('s_cselect'))) else 1
        front(sc[k:k+n_]); k += n_
    front([f"s_getpc_b64 s[{S_CODE}:{S_CODE+1}]", "L_PC3:"])
    front([f"s_add_u32 s{S_CODE}, s{S_CODE}, s{S_AO}", f"s_addc_u32 s{S_CODE+1}, s{S_CODE+1}, 0"])

def kv_touch(srdb):
    return I(f"buffer_load_dword a{A_PF}, v{V_PFO}, {sr(srdb)}, s{S_KT} offen", tag='pf')
def fills():
    return [I(f"buffer_store_dwordx4 {ar(A_FILL)}, v{V_L16}, {sr(SRD_WS2)}, s{S_FO} offen sc1", tag='fill') for k in range(3)]

def loop_extras(ge, go):
    TB = 5
    for G, half in ((ge, 0), (go, 1)):
        blk = G.blk
        it = [W(vm=[f'yl{V_YB}'])] + y_add(half)
        if half == 0:
            G.stream(it, blk[16], blk[22])
            G.pin(blk[22] + 1, y_load(1))
            for k, x in enumerate(fills()[:2]): G.pin(blk[23 + 4*k] + 1, x); G.pin(blk[23 + 4*k] + 6, I(f"s_add_u32 s{S_FO}, s{S_FO}, {hx(PL)}"))
            for k in range(3):
                if k == 0: G.pin(blk[22] + 2, I(f"s_cmp_eq_u32 s{S_CNT}, 1"))
                G.pin(blk[22] + 3 + k, I(f"s_cselect_b32 s{S_Y7S+k}, s{S_Y7+k}, 0x10000000"))
                G.pin(blk[24 + k] + 1, I(f"buffer_load_dwordx4 {ar(A_Y7+4*k)}, v{V_L16}, {sr(SRD_WS)}, s{S_Y7S+k} offen sc1", tag='y7'))
            if not OPT.get('nocode2'): G.pin(blk[29] + 1, I(f"global_load_dword a{A_PF}, v{V_L16}, s[{S_CODE}:{S_CODE+1}]", tag='pf'))
            arrive(G, blk[30] + 1, 0)
            G.pin(blk[31] + 1, cnt_load())
        else:
            G.pin(blk[15] + 3, W(vm=['cnt'])); cnt_check(G, blk[15] + 5, f"s{S_NEED}", 'A')
            G.pin(blk[25] + 2, I(f"s_mov_b32 s{S_NEED}, 8")); G.pin(blk[25] + 4, I(f"s_mov_b32 s{S_CL}, s{S_CA}"))
            G.stream(it, blk[16], blk[22])
            G.stream(y_next(), blk[16], blk[21])
            G.pin(blk[22] + 1, y_load(0))
            G.pin(blk[24] + 2, I(f"s_add_u32 s{S_YL}, s{S_YL}, {hx(PL)}"))
            if not OPT.get('nopf'):
                G.pin(blk[23] + 1, I(f"buffer_load_dword a{A_PF}, v{V_PFO}, {sr(SRD_WO)}, s{S_PF} offen{NT('o')}", tag='pf'))
                G.pin(blk[26] + 2, I(f"s_add_u32 s{S_PF}, s{S_PF}, {1024*GG}"))
            arrive(G, blk[30] + 1, TB)
            for gp, txt in ((blk[18] + 2, [f"s_sub_u32 s{S_IS}, s{S_G}, s{S_CNT}"]), (blk[18] + 4, [f"s_add_u32 s{S_IS}, s{S_IS}, 3"]), (blk[18] + 6, [f"s_and_b32 s{S_IS}, s{S_IS}, 7"]),
                            (blk[19] + 2, [f"s_lshl_b32 s{S_IS}, s{S_IS}, 7"]), (blk[19] + 4, [f"s_add_u32 s{S_IM}, s{S_WO+1}, {hx(LDS_X)}"]),
                            (blk[20] + 2, [f"s_cmp_le_u32 s{S_CNT}, 2"]), (blk[20] + 3, [f"s_cselect_b32 s{S_IS}, s{S_IS}, 0x10000000"] + ([f"s_cselect_b32 s{S_IM}, s{S_IM}, 0x30000"] if OPT.get('m0oob') else [])),
                            (blk[20] + 4, [f"s_cmp_eq_u32 s{S_CNT}, 1"]), (blk[20] + 5, [f"s_cselect_b32 s{S_IM}, s{S_RING}, s{S_IM}"])):
                for t in txt: G.pin(gp, I(t))
            pos = (blk[23] + 5, blk[24] + 1, blk[25] + 1, blk[26] + 1, blk[27] + 1, blk[27] + 5, blk[28] + 1, blk[29] + 1)
            for n_, gp in enumerate(pos):
                h_, i_ = n_ >> 2, n_ & 3
                G.pin(gp - 1, I(f"s_add_u32 s{S_RS + i_}, s{S_IS}, {hx((h_*32 + 8*i_)*1024 - 1024*i_)}"))
                if i_ == 0: G.pin(gp - 2, I(f"s_add_u32 m0, s{S_IM}, {hx(h_*4096)}"))
                off = f" offset:{i_*1024}" if i_ else ""
                G.pin(gp, I(f"buffer_load_dwordx4 v{V_WOB}, {sr(SRD_WO)}, s{S_RS + i_} offen{off} lds", tag='woi', res_w=[('K0x', True)]))

def attn_iter0():
    m = []; blk = []
    for i in range(8):
        for qb in range(4):
            n = 4*i + qb
            blk.append(len(m))
            d = vr(V_S + 4*(n % 3) if n < 30 else V_S + 4*(n % 2))
            for kk in range(4):
                m.append(mf(d, ar(A_KF + 16*(i&1) + 4*kk), vr(V_Q + 16*qb + 4*kk), d if kk else vr(V_NEGM + 4*qb)))
    G = Gaps(m)
    G.head += [I(f"v_accvgpr_write_b32 a{A_L + k}, 0") for k in range(16)]
    tail = []
    for n in range(31):
        kt, qb = n >> 2, n & 3
        s = V_S + 4*(n % 3) if n < 30 else V_S + 4*(n % 2)
        p = P(0, qb, kt >> 1) + 2*(kt & 1)
        ex = [I(f"v_exp_f32 v{s+r}, v{s+r}") for r in range(4)]
        cv = [I(f"v_cvt_pk_bf16_f32 v{p}, v{s}, v{s+1}"), I(f"v_cvt_pk_bf16_f32 v{p+1}, v{s+2}, v{s+3}")]
        if n + 2 < 32:
            b = blk[n + 2]
            G.pin(b - 1, ex[0]); G.pin(b, ex[1]); G.pin(b + 1, ex[2]); G.pin(b + 1, cv[0]); G.pin(b + 2, ex[3]); G.pin(b + 3, cv[1])
        else:
            tail += ex + cv
    for i in range(8):
        rd = k_reads(i + 1, 0) if i < 7 else k_reads(0, 1) + v_reads(0, 0)
        lo = blk[4*i]
        for k, x in enumerate(rd): G.pin(lo + (k if i == 7 else 2*k), x)
        if i == 6:
            G.pin(blk[4*i + 3] + 3, W(vm=['kv'], lgkm=['fr'])); G.pin(blk[4*i + 3] + 3, I("s_barrier"))
        elif i < 7:
            G.pin(blk[4*i + 3] + 3, W(lgkm=['fr']))
    G.pin(3, kv_dma('K', 0, 0, 'kv')[0]); G.pin(5, I("s_nop 0"))
    out = G.flat() + [I("s_nop 3")] + tail + [W(lgkm=['fr'])]
    print(f"; iter0 est cycles {G.cycles()}", file=sys.stderr)
    return out

V_RL, V_XW, V_XR, V_MISC, V_NT, V_OA = 16, 32, 33, 34, 36, (60, 61, 35)
V_STG = 128
def V_R(p): return [160, 64, 96, 224][p] if p < 4 else (64 if p & 1 else 160)
V_OACC = 192
def V_SP(st): return 176 if st == 7 else (96 + 8*st if st < 4 else 224 + 8*(st - 4))
V_XT, V_MX, V_SEL = 4, 28, 16
S_WO, S_SO = 76, 93
PER = [(0, 0), (1, 0), (0, 1), (1, 1)] + [(c, h) for c in range(2, 8) for h in range(2)]
SLOTS = dict(A=(2, 0, 8192, 'hx'), B=(1, 0, 16384, 'V0'), C=(1, 8192, 16384, 'V1'), D=(0, 0, 16384, 'K0'), E=(0, 8192, 16384, 'K1'))
EARLY4 = bool(OPT.get("e4"))
def oslot(p): return SLOTS[("ADBADBAEDCBAEDCB" if EARLY4 else "ADBADBAECDBAECDB")[p]]

def wo_dma(p, vwob=None):
    vwob = V_WOB if vwob is None else vwob
    ci, half = PER[p]
    win, base, ps, res = oslot(p)
    L = [I(f"s_add_u32 s{S_WO}, s{S_G}, {1 + ci}"), I(f"s_and_b32 s{S_WO}, s{S_WO}, 7"), I(f"s_lshl_b32 s{S_WO}, s{S_WO}, 7")]
    for h in range(2):
        for i in range(4):
            L.append(I(f"s_add_u32 s{S_RS + i}, s{S_WO}, {hx((half*64 + h*32 + 8*i)*1024 - 1024*i)}"))
            if i == 0: L.append(I(f"s_add_u32 m0, s{S_RING if ps == 16384 else S_WO+1}, {hx(win*65536 + base + h*4096)}"))
            off = f" offset:{i*1024}" if i else ""
            L.append(I(f"buffer_load_dwordx4 v{vwob}, {sr(SRD_WO)}, s{S_RS + i} offen{off} lds", tag=f"wo{p}", res_w=[(res, True)]))
    return L

OFREG = [list(range(0, 64, 4)) + list(range(128, 176, 4)) + list(range(240, 256, 4)),
         list(range(64, 128, 4)) + list(range(176, 240, 4))]
def OF(half, j, qb): return OFREG[half][8*qb + j]
def oaf_reads(p):
    win, base, ps, res = oslot(p)
    return [I(f"ds_read_b64_tr_b16 {vr(V_R(p) + 4*j + 2*e, 2)}, v{V_OA[win]} offset:{base + (j>>1)*ps + (j&1)*4096 + e*2048}",
              tag=f"oaf{p}", res_r=[(res, True)]) for j in range(8) for e in range(2)]
def of_reads(half, qb):
    return [I(f"ds_read_b64_tr_b16 {ar(OF(half, j, qb) + 2*e, 2)}, v{V_XR} offset:{(j>>1)*16384 + 8192 + (j&1)*4096 + e*2048}",
              tag=f"of{half}_{qb}", res_r=[('V1' if half else 'K1', True)]) for j in (range(8) if qb & 1 == 0 else range(7, -1, -1)) for e in range(2)]
def swz(dst, row, unit, t):
    return [I(x) for x in (f"v_bfe_u32 v{t}, v{row}, 1, 2", f"v_lshlrev_b32 v{t}, 2, v{t}", f"v_and_or_b32 v{t}, v{row}, 1, v{t}", f"v_xor_b32 v{unit}, v{unit}, v{t}",
                           f"v_lshrrev_b32 v{t}, 2, v{row}", f"v_and_b32 v{t}, 2, v{t}", f"v_xor_b32 v{unit}, v{unit}, v{t}",
                           f"v_lshlrev_b32 v{dst}, 7, v{row}", f"v_lshl_add_u32 v{dst}, v{unit}, 3, v{dst}")]
def sp_load(st):
    L = []
    for half in range(2):
        L.append(I(f"s_add_u32 s{S_YI+half}, s{S_CB}, {hx((2*min(st, 6) + half) * PL)}"))
        L.append(I(f"buffer_load_dwordx4 {vr(V_SP(st) + 4*half)}, v{V_L16}, {sr(SRD_WS)}, s{S_YI+half} offen {OPT.get('spf', 'sc1').replace('+', ' ')}", tag=f"sp{st}"))
    return L
def sp_max(st):
    b = V_SP(st); m = V_MX
    return [I(f"v_max3_u32 v{m}, v{b}, v{b+1}, v{b+2}"), I(f"v_max3_u32 v{m}, v{m}, v{b+3}, v{b+4}"),
            I(f"v_max3_u32 v{m}, v{m}, v{b+5}, v{b+6}"), I(f"v_max_u32 v{m}, v{m}, v{b+7}")]

def finale():
    m = []; blk = []; sg = {}; per = []
    for i in range(8):
        for qb in range(4):
            blk.append(len(m))
            o = ar(A_O + 16*i + 4*qb)
            for ks in (range(4) if (qb & 1 == 0 or OPT.get('nosnake')) else range(3, -1, -1)): m.append(mf(o, vr(P(1, qb, ks)), ar(A_VF + 16*(i&1) + 4*ks), o))
            if (i, qb) == (2, 0):
                tm0 = len(m)
                for q in range(4): m.append(I(f"v_mfma_f32_16x16x4_f32 {vr(V_RL + 4*q)}, v{V_NT+q}, v{V_MISC}, 0"))
            if i == 0:
                for h in range(2):
                    sg[(qb, h)] = len(m); m.append(smf(1, qb, h))
    blk.append(len(m))
    for p, (ci, half) in enumerate(PER):
        lo = len(m)
        for qb in range(4):
            d = vr(V_OACC + 16*(ci & 1) + 4*qb)
            js = list(range(8))
            if qb & 1 and not OPT.get('nosnake'): js.reverse()
            for j in js:
                m.append(mf(d, vr(V_R(p) + 4*j), ar(OF(half, j, qb)), "0" if (j == js[0] and half == 0) else d))
        per.append((lo, len(m) - 1))
    G = Gaps(m)
    for q in range(4): G.cap[tm0 + q] = 6
    cnt_check(G, per[2][1] - 6, 16, 'B', read=False, vreg=V_MISC)
    Xa = blk[4] - 1
    X0 = blk[4*int(OPT.get('x0', 3))] - 1
    Xb = blk[4*int(OPT.get('xb', 5))] - 1
    X1 = blk[28] - 1
    p0, p2 = per[0][0], per[2][0]
    Xc = p0 + int(OPT.get('xc', 29))
    X2 = per[1][0] + int(OPT.get('x2', 17))
    quiet = set()
    def paced(items, lo, step, h=None):
        pos = lo - step
        for x in items:
            if x.kind == 'dma':
                pos = max(pos + step, h[0] if h else 0)
                while pos in quiet or any(y.is_mem() and y.kind != 'dsr' for y in G.seq(pos)) or (h and h[0] == pos and h[1] == 2): pos += 1
                h = G.pin(pos, x)
            else:
                st = max(lo - 3, h[0] if h else 0, 0)
                h = G.place(x, st, st + 2, after=h)
        return h
    w1pos = [X1 - 3 - 4*k for k in range(7, -1, -1)]
    w2pos = [X2 - 4 - int(OPT.get('w2s', 5))*k for k in range(7, -1, -1)]
    for g in w1pos + w2pos: quiet |= {g, g + 1}
    assert w1pos[0] > Xb
    ex, cv = softmax_items(31, 1)
    for r in range(4): G.pin(r, ex[r])
    G.pin(4, cv[0]); G.pin(4, cv[1])
    def ds_stream(rd, lo, hi, per_gap=2):
        g = lo
        for x in rd:
            while g in quiet or sum(y.kind == 'dsr' for y in G.seq(g)) >= per_gap or (x.is_b128r() and any(y.is_b128r() for y in G.seq(g))): g += 1
            assert g <= hi, (x.text, g, hi)
            G.pin(g, x)
        return g
    for i in range(7):
        ds_stream(v_reads(i + 1, 1), blk[4*i] + (1 if i == 0 else 0), blk[4*i + 4] - 4, 1 if i == 0 else 2)
        if blk[4*i + 4] - 1 not in (Xa, X0, Xb, X1): G.pin(blk[4*i + 4] - 1, W(lgkm=['fr']))
    su = [I(f"v_accvgpr_read_b32 v{V_OA[0]}, a{A_ADR}"), I(f"v_add_u32 v{V_OA[2]}, 0x20000, v{V_OA[0]}")]
    for k, x in enumerate(su): G.pin(5, x)
    ds_stream(oaf_reads(0), 6, Xa - 4)
    h = paced(wo_dma(2), 2, int(OPT.get('fs', 3)))
    G.pin(Xa, W(lgkm=['fr', 'oaf0'])); G.pin(Xa, I("s_barrier"))
    h = paced(wo_dma(3), max(h[0], Xa) + 2, int(OPT.get('fs3', 3)), h)
    e0 = sg[(3, 1)] + 5
    su = [I(x) for x in (f"v_cmp_gt_u32 vcc, 0x100, v{V_L16}", f"v_accvgpr_read_b32 v{V_XR}, a{A_ADR+1}", f"v_accvgpr_read_b32 v{V_XW}, a{A_ADR+2}",
           f"v_cndmask_b32 v{V_MISC}, 0, 1.0, vcc", f"v_add_u32 v{V_OA[1]}, 0x10000, v{V_OA[0]}",
           f"s_lshl_b32 s{S_SO+1}, s{S_W}, 10", f"s_add_u32 s{S_SO+1}, s{S_SO+1}, s{S_RB}")]
    G.stream(su, 9, e0 - 1)
    G.stream([I(f"v_bfe_u32 v{V_MISC}, v{V_L16}, 4, 2"), I(f"v_lshlrev_b32 v{V_MISC}, 14, v{V_MISC}")], tm0 + 3, X0 - 1)
    for x in (I("s_cbranch_vccnz L_MARK"), I("L_MARKED:")): G.pin(tm0 - 1, x)
    STUBS.extend([I("L_MARK:"), I(f"v_mov_b32 v16, -1"), I(f"v_mov_b32 v17, s{S_RING}"), I(f"ds_write_b32 v17, v16 offset:8192"), I("s_waitcnt lgkmcnt(0)"), I("s_branch L_MARKED")])
    G.pin(X0, W(vm=['wo2'], lgkm=['fr'])); G.pin(X0, I("s_barrier"))
    G.pin(X0, I(f"ds_read_b32 v{V_MISC}, v{V_MISC} offset:8192", tag='mk', res_r=[('K1', True)]))
    FB = X0 + 6
    G.pin(FB - 2, W(lgkm=['mk'])); G.pin(FB - 2, I(f"v_cmp_eq_u32 vcc, -1, v{V_MISC}"))
    for x in (I("s_cbranch_vccnz L_FALLBACK0"), I("L_NOFB:")): G.pin(FB, x)
    STUBS.extend([I("L_FALLBACK0:"), I(f"s_cmp_lg_u32 s{S_PASS}, 0"), I("s_cbranch_scc1 L_NOFB"), I("s_branch L_FALLBACK")])
    o1 = oaf_reads(1)
    for x in o1: x.res_r = x.res_r + [('K0x', True)]
    ds_stream(o1 + oaf_reads(2), FB, Xb - 3)
    G.pin(Xb, W(lgkm=['fr', 'oaf2'])); G.pin(Xb, I("s_barrier"))
    G.pin(X1, W(vm=['wo3'], lgkm=['fr', 'ow0'])); G.pin(X1, I("s_barrier"))
    for half, g, pf in ((0, X1 + 1, p0), (1, X2 + 1, p2)):
        for qb in range(4):
            G.pin(pf + 8*qb - 1, W(lgkm=[f'of{half}_{qb}']))
            g = ds_stream(of_reads(half, qb), g, pf + 8*qb - 4)
            if (half, qb) != (1, 3): G.pin(g, I(f"v_xor_b32 v{V_XR}, {hx((32, 96, 32, 96 + 0x10000)[qb])}, v{V_XR}"))
            g += 1
        if half == 0: ds_stream(oaf_reads(3), p0, Xc - 3, 3)
    G.pin(Xc, W(vm=['wo4'] if EARLY4 else None, lgkm=['of0_3', 'oaf3'])); G.pin(Xc, I("s_barrier"))
    if EARLY4: ds_stream(oaf_reads(4), per[1][0], X2 - 2, 3)
    G.pin(X2, W(lgkm=['ow1'] + (['oaf4'] if EARLY4 else []))); G.pin(X2, I("s_barrier"))
    skip = set(int(x) for x in OPT.get('skip', '99').split(',') if x)
    for p in range(2, 15):
        lo, hi = per[p]
        q = p + 1
        lg = [f"oaf{q}"] if p > 2 else ['of1_3']
        if EARLY4 and p == 3:
            G.pin(hi, W(vm=['wo5'])); G.pin(hi, I("s_barrier")); continue
        if q < 15 and q not in skip:
            G.pin(hi, W(vm=[f"wo{q+2 if q+1 in skip else q+1}"], lgkm=lg)); G.pin(hi, I("s_barrier"))
        else:
            G.pin(hi, W(lgkm=lg))
        if p > 2:
            for k, x in enumerate(oaf_reads(q)): G.pin(lo + 1 + 3*(k // 2), x)
    h = paced(wo_dma(4) + wo_dma(5), Xb + 1, 4, h)
    h = paced(wo_dma(6) + wo_dma(7), max(h[0] + 4, Xc + 1), int(OPT.get('fs6', 4)), h)
    if EARLY4: h = paced(wo_dma(8), max(h[0] + 3, X2 + 1), int(OPT.get('fs6', 4)), h)
    pace = int(OPT.get('pace', 40)); ENDS = [h[0]]
    for k in range(7 if EARLY4 else 8):
        q = (9 if EARLY4 else 8) + k
        rel = q - 5 if not (EARLY4 and q == 9) else 3
        while rel in skip: rel += 1
        need = q - 1
        while need in skip: need -= 1
        lo = max(per[rel][0], min(per[3][0] + pace*k, per[need][0] - int(OPT.get('fm', 28)) - 32), h[0] + 2)
        step = max(2, min(pace // 8, (per[need][0] - int(OPT.get('fm', 28)) - lo) // 7))
        h = paced(wo_dma(q), lo, step, h); ENDS.append(h[0])
    items = []
    for qb in range(4):
        items += [I(f"v_accvgpr_read_b32 v{V_NT+qb}, a{A_L+4*qb}"), I(f"v_accvgpr_read_b32 v16, a{A_L+4*qb+1}"),
                  I(f"v_add_f32 v{V_NT+qb}, v{V_NT+qb}, v16")]
    items += [I(f"v_add_f32 v16, v{V_NT}, v{V_NT+1}"), I(f"v_add_f32 v17, v{V_NT+2}, v{V_NT+3}"), I(f"v_add_f32 v16, v16, v17"),
              I(f"v_cmp_ngt_f32 vcc, {hx(f2u(2.0**(40 - float(OPT.get('moff', 10)))))}, v16")]
    items += [I(f"v_rcp_f32 v{V_NT+qb}, v{V_NT+qb}") for qb in range(4)]
    G.stream(items, e0, tm0 - 2)
    h = (tm0 + 2, 2)
    def norm(i, qb):
        e = blk[4*i + qb] + 3 + 6
        st = V_STG + 16*((i >> 1) & 1) + 4*qb
        o = A_O + 16*i + 4*qb; T = V_NT
        seq = [I(f"v_accvgpr_read_b32 v{T+r}, a{o+r}") for r in range(4)]
        seq += [I(f"v_mul_f32 v{T+r}, v{T+r}, v{V_RL+4*qb+r}") for r in range(4)]
        seq += [I(f"v_cvt_pk_bf16_f32 v{st+2*(i&1)}, v{T}, v{T+1}"), I(f"v_cvt_pk_bf16_f32 v{st+2*(i&1)+1}, v{T+2}, v{T+3}")]
        return [(x, e) for x in seq]
    for hf, wpos in ((0, w1pos), (1, w2pos)):
        for k in range(8):
            u, qb = 2*hf + (k >> 2), k & 3
            st = V_STG + 16*(u&1) + 4*qb
            G.pin(wpos[k], I(f"ds_write2st64_b64 v{V_XW}, {vr(st, 2)}, {vr(st + 2, 2)} offset0:{16 + 8*(u&1)} offset1:{20 + 8*(u&1)}", tag=f'ow{hf}',
                             res_w=[('V1' if hf else 'K1', True)]))
            if (hf, k) != (1, 7): G.pin(wpos[k] + 1, I(f"v_xor_b32 v{V_XW}, {hx((32, 96)[k & 1] + (0x10000 if k == 7 else 0))}, v{V_XW}"))
    if OPT.get('pkn'):
        last = h[0] + 1; pend = []
        def spill(items, lo, hi, keep):
            g = lo
            while len(items) > keep and g <= hi:
                if G.used(g) < 2: G.pin(g, items.pop(0))
                else: g += 1
            return items
        for hf, wpos in ((0, w1pos), (1, w2pos)):
            lo = last; span = wpos[7] - 2 - lo
            for n_ in range(16):
                k = n_ >> 1; u, qb = 2*hf + (k >> 2), k & 3; i_ = 2*u + (n_ & 1)
                its = norm(i_, qb); e = its[0][1]
                rd = [x for x, _ in its[:4]]; cv_ = [x for x, _ in its[8:]]
                pk = [I(f"v_pk_mul_f32 {vr(V_NT+2*t, 2)}, {vr(V_NT+2*t, 2)}, {vr(V_RL+4*qb+2*t, 2)}") for t in range(2)]
                tgt = min(max(lo + span*(n_ + 1)//16, e, last + 1), wpos[k] - 2 - (1 - (n_ & 1)))
                assert tgt >= max(e, last + 1), (hf, n_, tgt, e, last)
                cand = [g for g in range(max(e, last + 1, tgt - 2), tgt + 1)]
                g = max(cand, key=lambda q: (min(G.used(q), 5), q))
                dl = wpos[k - 1] - 1 if (n_ & 1 == 0 and k > 0) else (w1pos[7] - 1 if (hf == 1 and n_ == 0) else g)
                pend = spill(pend, last + 1, min(g - 1, dl), 0)
                if pend and dl < g:
                    for x in pend: G.pin(max(last, min(dl, last + 1)), x)
                    pend = []
                if not pend:
                    st_ = max([last + 1, e] + [q for q in range(last + 1, g) if any('cvt' in y.text for y in G.g[q][2])])
                    rd = spill(rd, st_, g - 1, max(0, min(4, 5 - G.used(g))))
                for x in pend + rd + pk: G.pin(g, x)
                if hf: assert g >= w1pos[k] + 1
                pend = cv_; last = g
        for x in pend: G.pin(last + 1, x)
        assert last + 1 < w2pos[7]
    else:
        for hf, wpos in ((0, w1pos), (1, w2pos)):
            lo = h[0] + 1; span = wpos[7] - lo
            for k in range(8):
                u, qb = 2*hf + (k >> 2), k & 3
                its = norm(2*u, qb) + norm(2*u + 1, qb)
                if hf: its = [(x, max(e, w1pos[k] + 2)) for x, e in its]
                hi = min(wpos[k] - 1, max(lo + (span * (k + 1)) // 8, its[-1][1] + 4))
                h = G.stream(its, h[0] + 1, max(hi, h[0] + 3))
                assert h[0] < wpos[k]
    G.stream([I(f"v_accvgpr_read_b32 v{V_XT+k}, a{A_XT+k}") for k in range(8)] + [I(f"v_accvgpr_read_b32 v{16 + k}, a{A_Y7+k}") for k in range(12)], X2 - 3, X2 + 22)
    STP = []; EV = []; HELD = {}
    for ev in str(OPT.get('ev') or '').split(';'):
        if ev: EV.append((float(ev.split(':')[0]), ev.split(':')[1].split(',')))
    evs = set(x[:2] for _, l in EV for x in l)
    for ci in range(7):
        so = (24 + 2*(ci & 1), 25 + 2*(ci & 1))
        pl = PER.index((ci, 1))
        a = V_OACC + 16*(ci & 1)
        asap = OPT.get('asap') and ci == 6
        e0 = per[pl][0] + (20 if not asap else 10)
        items = [(I(x), e0) for x in (f"s_add_u32 s{S_SO}, s{S_G}, {1 + ci}", f"s_and_b32 s{S_SO}, s{S_SO}, 7", f"s_lshl_b32 s{S_SO}, s{S_SO}, {GS_S}",
                 f"s_add_u32 s{so[0]}, s{S_SO}, s{S_SO+1}", f"s_add_u32 s{so[1]}, s{so[0]}, {hx(PL)}", f"s_add_u32 s{S_SO+1}, s{S_SO+1}, {hx(2*PL)}")]
        st = V_STG + 8*(ci & 1)
        for half in range(2):
            e = per[pl][0] + 16*half + 15 + 6
            for q2 in range(2):
                eq = e - (5 if (q2 == 0 and asap) else 0) - (1 if asap else 0)
                for k in range(4*half + 2*q2, 4*half + 2*q2 + 2): items.append((I(f"v_cvt_pk_bf16_f32 v{st+k}, v{a+2*k}, v{a+2*k+1}"), eq))
                for k in range(4*half + 2*q2, 4*half + 2*q2 + 2): items.append((I(f"v_min_u32 v{st+k}, -2, v{st+k}"), eq))
            items.append((I(f"buffer_store_dwordx4 {vr(st+4*half)}, v{V_L16}, {sr(SRD_WS)}, s{so[half]} offen {OPT.get('ssf', 'sc1').replace('+', ' ')}", tag='sst'), max(e, per[2][1] + 1)))
        if f"s{ci}" in evs:
            hh = G.stream([it_ for it_ in items if it_[0].kind != 'vst'], e0, per[pl + 1][0] + 12)
            HELD[f"s{ci}"] = ([x for x, _ in items if x.kind == 'vst'], hh[0], per[min(pl + 4, 15)][0] + 14 if ci > 0 else per[5][0] + 14)
            continue
        if OPT.get('stal') and 0 < ci <= int(OPT.get('stmax', 6)):
            sts_ = [x for x, _ in items if x.kind == 'vst']
            hh = G.stream([it_ for it_ in items if it_[0].kind != 'vst'], e0, per[pl + 1][0] + 12)
            cand = [g for g in ENDS if g >= hh[0] - int(OPT['stal'])]
            g = max(cand[0] + 1, hh[0] + 1) if cand and cand[0] < per[pl + 1][0] + 48 else hh[0] + 1
            G.pin(g, sts_[0]); G.pin(g + 2, sts_[1]); STP.append(g + 2)
            continue
        G.stream(items, e0, per[pl + 1][0] + (int(OPT['asap']) if (ci == 6 and OPT.get('asap')) else 18))
    it = y_add(0, None, V_MX) + y_add(1, 16, V_MX) + y_add(0, 20, V_MX) + y_add(1, 24, V_MX)
    for q0 in range(0, 16, 4):
        T = V_NT
        it += [I(f"v_mul_f32 v{T+r}, {hx(f2u(-math.log2(math.e)/CF))}, v{V_YS+q0+r}") for r in range(4)]
        it += [I(f"v_exp_f32 v{T+r}, v{T+r}") for r in range(4)]
        it += [I(f"v_fma_f32 v{T+r}, v{T+r}, s{S_QS}, s{S_QS}" if OPT.get('fold') else f"v_add_f32 v{T+r}, 1.0, v{T+r}") for r in range(4)]
        it += [I(f"v_rcp_f32 v{T+r}, v{T+r}") for r in range(4)]
        it += [I(f"v_mul_f32 v{V_YS+q0+r}, v{V_YS+q0+r}, v{T+r}") for r in range(4)]
        if OPT.get('eps'): it += [I(f"v_mul_f32 v{V_YS+q0+r}, {hx(f2u(1 + float(OPT['eps'])))}, v{V_YS+q0+r}") for r in range(4)]
    V_XF = 144
    for h in range(2): it += [I(f"v_permlane16_swap_b32 v{V_XT+4*h}, v{V_XT+4*h+2}"), I(f"v_permlane16_swap_b32 v{V_XT+4*h+1}, v{V_XT+4*h+3}")]
    for k in range(8): it += [I(f"v_lshlrev_b32 v{V_XF+2*k}, 16, v{V_XT+k}"), I(f"v_and_b32 v{V_XF+2*k+1}, 0xffff0000, v{V_XT+k}")]
    it += xo_voff(3, 2)
    it += [I(x) for x in (f"v_bfe_u32 v0, v{V_L16}, 6, 2", f"v_lshrrev_b32 v1, 8, v{V_L16}", "v_cmp_eq_u32 vcc, v0, v1",
           f"v_and_b32 v0, 16, v{V_L16}", "v_mov_b32 v1, 0x3f80", "v_lshlrev_b32 v0, v0, v1", "v_cndmask_b32 v0, 0, v0, vcc",
           f"v_and_b32 v1, 32, v{V_L16}", "v_cmp_eq_u32 vcc, 0, v1", f"v_mov_b32 v{V_SEL}, 0", f"v_mov_b32 v{V_SEL+1}, 0",
           f"v_cndmask_b32 v{V_SEL+2}, 0, v0, vcc", f"v_mov_b32 v{V_SEL+4}, 0", f"v_sub_u32 v{V_SEL+3}, v0, v{V_SEL+2}", f"v_mov_b32 v{V_SEL+5}, 0")]
    NE_ = int(OPT.get('ne5', 4))
    lds_ = [float(x) for x in OPT.get('lds', '6.6,8.6,10.6,12.6,14.6,14.6').split(',')]
    for t_, lst in EV:
        g = per[0][0] + int(32*t_)
        for nm in lst:
            ops = HELD[nm[:2]][0] if nm[0] == 's' else sp_load(int(nm[1]))
            if len(nm) == 3: ops = ops[:len(ops)//2] if nm[2] == 'a' else ops[len(ops)//2:]
            nm = nm[:2]
            for x in ops:
                if x.kind == 'salu': G.pin(g - 1, x, lane=2); continue
                while any(y.kind in ('dma', 'vld', 'vst') for y in G.seq(g)): g += 1
                if nm[0] == 's': assert HELD[nm][1] < g < HELD[nm][2], (nm, g, HELD[nm][1:])
                G.pin(g, x); g += int(OPT.get('evs', 1))
    h = None
    for st in range(len(lds_)):
        if f"l{st}" in evs: continue
        g = per[0][0] + int(32*lds_[st])
        if OPT.get('ldal') and st + 1 < len(STP) and st < 4: g = STP[st + 1] + 2
        g = max(g, h[0] + 1 if h else 0)
        h = G.stream(sp_load(st), g, g + 5)
    G.stream(it, per[4][0], per[14][1])
    def chk(sts):
        regs = [V_SP(st) + k for st in sts for k in range(8)]
        out = [I(f"v_max_u32 v{V_MX}, v{regs[0]}, v{regs[1]}")]
        for k in range(2, len(regs), 2): out.append(I(f"v_max3_u32 v{V_MX}, v{V_MX}, v{regs[k]}, v{regs[k+1]}"))
        return out + [I(f"v_cmp_eq_u32 vcc, -1, v{V_MX}")]
    c0 = chk(range(NE_))
    G.stream([I(f"s_mov_b32 s{S_SPIN}, 0x40000"), W(vm=[f"sp{NE_-1}"])] + c0, per[15][1] - len(c0)//2 - 4, per[15][1] - 1)
    if OPT['stamps']:
        for x in stamp(9): G.pin(p0 - 1, x, post=True)
    for k in range(16): ministamp(G, per[k][1], 48 + k)
    print(f"; finale est cycles {G.cycles()} (pv part {G.cyc(0, p0-1)}, periods {[G.cyc(a, b) for a, b in per]})", file=sys.stderr)
    L = with_m0_pad(G.flat()); A = lambda t, **k: L.append(I(t, **k))
    if len(lds_) < 7: L += sp_load(6)
    elif OPT.get('dual'): L += sp_load(7)
    L += stamp(10)
    acc = V_OACC + 16; U = 160
    groups = [list(range(NE_))] + [[st] for st in range(NE_, 7)]
    for n_, sts in enumerate(groups):
        A(f"s_cbranch_vccnz L_RETRY{n_}"); A(f"L_GO{n_}:")
        mm = [mf(vr(acc + 4*qb), vr(V_SEL + (0 if qb & 1 else 2)), vr(V_SP(st) + 4*(qb >> 1)), vr(acc + 4*qb)) for qb in range(4) for st in sts]
        nx = [W(vm=[f"sp{groups[n_+1][0]}"])] + chk(groups[n_ + 1]) + [I("s_nop 1")] if n_ + 1 < len(groups) else [I("s_nop 7")]
        if OPT.get('pp') and n_ == int(OPT['pp']): mm = mm + sp_load(7)
        L += mm + nx
        STUBS.append(I(f"L_RETRY{n_}:"))
        if sts == [6] and OPT.get('pp'):
            L.insert(len(L) - 1, I("L_DONE6:"))
            m7 = [mf(vr(acc + 4*qb), vr(V_SEL + (0 if qb & 1 else 2)), vr(V_SP(7) + 4*(qb >> 1)), vr(acc + 4*qb)) for qb in range(4)]
            STUBS.extend(sp_load(6) + [I("s_waitcnt vmcnt(2)")] + chk([7]) + [I(f"s_sub_u32 s{S_SPIN}, s{S_SPIN}, 1"), I(f"s_cmp_le_i32 s{S_SPIN}, 0"), I("s_cbranch_scc1 L_RN7"),
                         I("s_cbranch_vccz L_RN7")] + sp_load(7) + [I("s_waitcnt vmcnt(2)")] + chk([6]) + [I("s_nop 3"), I(f"s_cbranch_vccnz L_RETRY{n_}"), I(f"s_branch L_GO{n_}"),
                         I("L_RN7:")] + m7 + [I("s_branch L_DONE6")])
            continue
        if sts == [6] and OPT.get('dual'):
            L.insert(len(L) - 1, I("L_DONE6:"))
            m7 = [mf(vr(acc + 4*qb), vr(V_SEL + (0 if qb & 1 else 2)), vr(V_SP(7) + 4*(qb >> 1)), vr(acc + 4*qb)) for qb in range(4)]
            STUBS.extend([I("s_waitcnt vmcnt(0)")] + chk([7]) + [I(f"s_sub_u32 s{S_SPIN}, s{S_SPIN}, 1"), I(f"s_cmp_le_i32 s{S_SPIN}, 0"), I("s_cbranch_scc1 L_RN7"),
                         I("s_cbranch_vccz L_RN7")] + sp_load(7) + [I(f"s_branch L_RETRY{n_}"), I("L_RN7:")] + m7 + [I("s_branch L_DONE6")])
            continue
        for st in sts:
            if len(sts) > 1: STUBS.extend(chk([st]) + [I("s_nop 3"), I(f"s_cbranch_vccz L_RN{st}")])
            STUBS.extend([I(f"L_RL{st}:")] + sp_load(st) + [I(f"s_sub_u32 s{S_SPIN}, s{S_SPIN}, 1"), I("s_waitcnt vmcnt(0)")] + chk([st]) +
                         [I(f"s_cmp_le_i32 s{S_SPIN}, 0"), I(f"s_cbranch_scc1 L_RN{st}"), I("s_nop 1"), I(f"s_cbranch_vccnz L_RL{st}"), I(f"L_RN{st}:")])
        STUBS.append(I(f"s_branch L_GO{n_}"))
    for k in range(8): A(f"v_pk_fma_f32 {vr(acc+2*k,2)}, {vr(acc+2*k,2)}, {vr(V_YS+2*k,2)}, {vr(V_XF+2*k,2)}")
    for k in range(8): A(f"v_cvt_pk_bf16_f32 v{U+k}, v{acc+2*k}, v{acc+2*k+1}")
    for h in range(2):
        A(f"v_permlane16_swap_b32 v{U+4*h}, v{U+4*h+2}"); A(f"v_permlane16_swap_b32 v{U+4*h+1}, v{U+4*h+3}")
    for h in range(2): A(f"buffer_store_dwordx4 {vr(U+4*h)}, v3, {sr(SRD_OUT)}, s{S_XO+h} offen {OPT.get('outf', '').replace('+', ' ')}", tag='out')
    return L

def fallback():
    L = []; A = lambda t, **k: L.append(I(t, **k))
    A("L_FALLBACK:")
    A("s_waitcnt vmcnt(0) lgkmcnt(0)"); A("s_nop 7")
    A(f"s_mov_b32 s{S_PASS}, 1")
    A(f"s_mov_b32 s{SRD_WS2+2}, 0")
    A(f"s_lshl_b32 s{S_KO}, s{S_W}, 13"); A(f"s_add_u32 s{S_KO+1}, s{S_KO}, 4096")
    for qb in range(4): A(f"v_mov_b32 v{V_NEGM+4*qb}, 0xff800000")
    A(f"s_mov_b32 s{S_CNT}, 17")
    A("L_FB_LOOP:")
    A("s_waitcnt vmcnt(0) lgkmcnt(0)"); A("s_barrier")
    A(f"s_cmp_lg_u32 s{S_CNT}, 1"); A("s_cbranch_scc1 L_FB_NR")
    A(f"s_lshl_b32 s{S_KO}, s{S_W}, 13"); A(f"s_add_u32 s{S_KO+1}, s{S_KO}, 4096")
    A("L_FB_NR:")
    L += with_m0_pad(kv_dma('K', 0, 0, 'kv') + kv_dma('K', 1, 0, 'kv'))
    A("s_waitcnt vmcnt(0)"); A("s_barrier")
    for kt in range(8):
        L += k_reads(kt, 0); A("s_waitcnt lgkmcnt(0)")
        for qb in range(4):
            d = vr(V_P + 4*qb)
            for kk in range(4): L.append(mf(d, ar(A_KF + 16*(kt&1) + 4*kk), vr(V_Q + 16*qb + 4*kk), d if kk else "0"))
        A("s_nop 7")
        for qb in range(4):
            b = V_NEGM + 4*qb; d = V_P + 4*qb
            A(f"v_max3_f32 v{b}, v{b}, v{d}, v{d+1}"); A(f"v_max3_f32 v{b}, v{b}, v{d+2}, v{d+3}")
    A(f"s_add_u32 s{S_KO}, s{S_KO}, 0x8000"); A(f"s_add_u32 s{S_KO+1}, s{S_KO+1}, 0x8000")
    A(f"s_sub_u32 s{S_CNT}, s{S_CNT}, 1"); A(f"s_cmp_lg_u32 s{S_CNT}, 0"); A("s_cbranch_scc1 L_FB_LOOP")
    L += rowmax_finish()
    A(f"s_lshl_b32 s{S_VO}, s{S_W}, 13"); A(f"s_add_u32 s{S_VO+1}, s{S_VO}, 4096")
    L += with_m0_pad(kv_dma('K', 0, 1, 'kv') + kv_dma('K', 1, 1, 'kv') + kv_dma('V', 0, 0, 'kv') + kv_dma('V', 1, 0, 'kv'))
    L += k_reads(0, 0); A("s_waitcnt lgkmcnt(0)")
    for k in range(4): A(f"s_add_u32 s{S_KO+k}, s{S_KO+k}, 0x8000")
    L += attn_setup()['pre']
    L += attn_iter0()
    A("s_branch L_IT1")
    return L

def build():
    d = OPT['dump']
    p0 = phase0(); p1 = phase1()
    su = stamp(4) + (stamp(5) if not OPT.get('fine') else []) + stamp(6)
    it0 = []
    g1 = attn_iter(1, first_pv=True); ge, go = attn_iter(0, vmtags=('kv', 'yst')), attn_iter(1, vmtags=('kv', 'fill'))
    go.pin(len(go) - 5, I(f"s_sub_u32 s{S_CNT}, s{S_CNT}, 1")); go.pin(len(go) - 4, I(f"s_cmp_lg_u32 s{S_CNT}, 0"))
    if not OPT.get('nobr'):
        w_ = go.g[len(go) - 1][0].pop(); assert w_.kind == 'wait'; go.pin(len(go) - 2, w_)
    it1_extras(g1); loop_extras(ge, go)
    if OPT.get('trip'):
        for G_, base in ((ge, 32), (go, 48)):
            for x in (I(f"s_memtime s[{S_STAMP}:{S_STAMP+1}]"), I(f"s_add_u32 s98, s{S_CNT}, {base}"), I("s_waitcnt lgkmcnt(0)"), I(f"v_mov_b32 v{V_YT}, s{S_STAMP}"), I(f"v_lshrrev_b32 v{V_CNT if G_ is go else V_YT}, 0, v{V_YT}")): pass
            for x in (I(f"s_memtime s[{S_STAMP}:{S_STAMP+1}]"), I(f"s_mov_b32 s101, m0"), I(f"s_add_u32 m0, s{S_CNT}, {base}"), I("s_waitcnt lgkmcnt(0)"), I(f"v_writelane_b32 v63, s{S_STAMP}, m0"), I("s_nop 1"), I("s_mov_b32 m0, s101")): G_.pin(G_.sg[6], x, post=True)
    print(f"; attn iter est cycles {ge.cycles()} {go.cycles()} (it1 {g1.cycles()})", file=sys.stderr)
    if OPT.get('idle'): su = su + [I("s_nop 15")] * (int(OPT['idle']) // 64)
    if OPT.get('idlel'):
        for k in range(int(OPT['idlel'])): ge.pin(ge.sg[k], I("s_nop 15"), post=True); go.pin(go.sg[k], I("s_nop 15"), post=True)
    it1 = [I("L_IT1:")] + with_m0_pad(g1.flat()) + [I(f"s_mov_b32 s{S_CNT}, 7")] + stamp(7)
    loop = [I(".p2align 6"), I("L_LOOP:")] + ge.flat() + go.flat() + [I("s_cbranch_scc1 L_LOOP")]
    last = [I("L_FIN:")] + stamp(8) + finale()
    if OPT['stamps']: last += [I(f"v_writelane_b32 v63, s{S_SPIN}, 15")]
    last += stamp(11 if not OPT.get('fine') else 14, True)
    op = []
    fb = fallback()
    end = [I("L_END:"), I("s_endpgm")]
    if d == 'q': body = p0 + p1 + dump_regs([vr(V_Q + 4*i) for i in range(16)] + [ar(144 + 4*i) for i in range(28)]) + end; trace = body
    else:
        C = lambda t: [I("; ==== " + t)]
        body = (C("set-up, x load, LayerNorm, exchange") + p0 + C("w1 / wq / w2 GEMMs, row-max seed, first QK pass") + p1 + su + it0 +
                C("attention iteration 1") + it1 + C("attention iterations 2..15 (two per trip)") + loop +
                C("last PV pass, normalisation, O projection, reduce-scatter tail") + last + end + C("out-of-line waits and once-per-launch work") + STUBS +
                C("exact-max fallback") + fb)
        trace = p0 + p1 + su + it0 + it1 + loop*3 + last
        k = [i for i, x in enumerate(last) if x.text == "s_cbranch_vccnz L_FALLBACK0"][0]
        trace2 = p0 + p1 + su + it0 + it1 + loop*2 + last[:k+1] + fb + it0 + it1 + loop + last
        resolve_waits(trace2)
    resolve_waits(trace)
    e = check(trace, verbose=False)
    if d is None: e += check(trace2, verbose=False)
    seen = set()
    e = [x for x in e if 's_memtime' not in x]
    for x in e[:6]: print("CHECK:", x, file=sys.stderr)
    if e: print("FAILED CHECK", len(e), file=sys.stderr); sys.exit(1)
    def in_gemm(x): return id(x) in gset
    gset = set(id(x) for x in p1)
    if OPT.get('halfdma'): body = [x for x in body if not (in_gemm(x) and x.kind == 'dma' and x.tag.startswith('st') and ('offset:1024' in x.text or 'offset:3072' in x.text))]
    if OPT.get('drop'): body = [x for x in body if not (id(x) in set(id(y) for y in loop) and x.tag in OPT['drop'].split(','))]
    if OPT.get('dropf'): body = [x for x in body if not (id(x) in set(id(y) for y in last) and ((x.tag and any(x.tag.startswith(t) for t in OPT['dropf'].split(','))) or 'L_RETRY' in x.text or ('bar' in OPT['dropf'] and x.kind == 'barrier')))]
    if OPT.get('dropp'): body = [x for x in body if not (id(x) in set(id(y) for y in p1 + it1) and ((x.tag and any(x.tag.startswith(t) for t in OPT['dropp'].split(','))) or ('bar' in OPT['dropp'] and x.kind == 'barrier')))]
    if OPT.get('nosst'): body = [x for x in body if x.tag not in ('sst', 'fill')]
    if OPT.get('noy'): body = [x for x in body if x.tag not in ('y0', 'y1')]
    if OPT.get('nodma'): body = [x for x in body if not (in_gemm(x) and x.kind == 'dma')]
    if OPT.get('novalu'): body = [x for x in body if not (in_gemm(x) and x.kind in ('valu', 'trans', 'perm') and any(k in x.text for k in ('f32', 'accvgpr', 'permlane')))]
    if OPT.get('nomfma'): body = [x for x in body if not (in_gemm(x) and x.kind == 'mfma')]
    if OPT.get('nods'): body = [x for x in body if not (in_gemm(x) and x.kind == 'dsr' and 'b32' not in x.text)]
    return body

def kdesc(name, vg, acc):
    return f""".amdhsa_kernel {name}
  .amdhsa_next_free_vgpr {vg}
  .amdhsa_next_free_sgpr 102
  .amdhsa_accum_offset {acc}
  .amdhsa_group_segment_fixed_size 0
  .amdhsa_kernarg_size 104
  .amdhsa_user_sgpr_count 2
  .amdhsa_user_sgpr_kernarg_segment_ptr 1
  .amdhsa_system_sgpr_workgroup_id_x 1
  .amdhsa_float_denorm_mode_32 3
.end_amdhsa_kernel"""


HEADER = """; Fused  out = x + Attn(LN(x)) * silu(MLP(LN(x)))  for gfx950, one launch, 256 workgroups x 4 waves (1 wave/SIMD, 512 regs).
; Generated by my own script (hand-designed schedule: every non-matrix instruction is placed in the issue gaps of a
; v_mfma_f32_16x16x32_bf16 backbone; waits and hazards are derived and checked by the script).
;
; Workgroup = (kv group g, 64 rows r); wave w = query head 4g+w.
;     c = log2(e)/sqrt(128); the gelu / silu constants divide it out again.
;  2. h = gelu_tanh(xn w1[:,224g..224g+224) + b1), Q = xn wq[:,512g..), y_partial = h w2[224g..,:]; weights stream
;     L2 -> LDS by DMA and are read transposed.
;  3. Attention over 16 tiles of 128 keys: S = K Q^T - shift (shift enters as the MFMA C operand), P = exp2(S) in bf16,
;     O += P V, row sums l of the same bf16 P by a sparse MFMA.
;     shift = (true max of the row over the first 16 keys) + 10, so l >= 2^-10 and terms down to 2^-116 of the row
;     keys (L_FALLBACK) and redoes the attention with it.
;  4. O/l is exchanged through LDS, s_partial = O wo[512g..,:] chunk by chunk; chunk d goes to workgroup (d, r).
;  5. Workgroup (g, r) sums the 8 y and 8 s partials of output columns 64g..64g+64 and writes out.
; Hand-offs between workgroups use d_ws with write-through (sc1) stores and sc1 loads only:
;  - y: published before the first add to the row block's counter in d_debug, read after the counter is seen >= 8;
;  - s: every receiver first overwrites its 7 slots with all-ones words (second add, senders wait for counter == 16),
;    senders never store an all-ones word, receivers re-read a slot until no all-ones word is left.
; Nothing depends on XCD placement except speed (id -> (g, r) mapping, cache / TLB / I-cache warm-up; the values that
; warm-up loads return are never used). All waits on other workgroups are bounded.
"""

def render(body):
    K1 = NAME + "_kernel"
    out = [HEADER + f"; @launch grid=(256,1,1) block=(256,1,1) lds=163840",
           '.amdgcn_target "amdgcn-amd-amdhsa--gfx950"', ".text"]
    out += [f".globl {K1}", ".p2align 12", ".p2align 8", f".type {K1},@function", f"{K1}:"] + [x.emit() for x in body]
    out += ['.section .rodata,"a"', ".p2align 6", kdesc(K1, 512, 256)]
    return "\n".join(out).replace("CODE_LEFT", "L_END-L_PC2") + "\n"

def addresses(body):
    import subprocess, tempfile, os
    d = tempfile.mkdtemp()
    marked = []
    for n, x in enumerate(body):
        if x.kind == 'mfma' or x.text == "L_END:": marked.append(I(f"ZZ{n}:"))
        marked.append(x)
    txt = re.sub(r'(s_c?branch\w*) L_PAD\w+', r'\1 L_END', render(marked))
    open(d + "/a.s", "w").write(txt)
    subprocess.check_call(["clang", "-x", "assembler", "-target", "amdgcn-amd-amdhsa", "-mcpu=gfx950", "-c", d + "/a.s", "-o", d + "/a.o"])
    o = subprocess.check_output(["llvm-objdump", "-t", d + "/a.o"], text=True)
    return {int(m.group(2)): int(m.group(1), 16) for m in re.finditer(r'^([0-9a-f]+) .*ZZ(\d+)$', o, re.M)}

body = build()
if OPT.get('hop'):
    PRE = 0x300
    offs = [int(x) for x in str(OPT['hop']).split(',')] if OPT['hop'] is not True else [0]
    k = 0; b = 0x2000 - PRE + 0x1000 * int(OPT.get('hop0', 0))
    while True:
        stop = False
        for off in offs:
            ad = addresses(body)
            endi = [n for n, x in enumerate(body) if x.text == "L_END:"][0]
            cand = [n for n in sorted(ad) if n < endi and ad[n] + 8 >= b + off]
            if not cand: stop = True; break
            n = cand[0]
            body[n+1:n+1] = [I(f"L_PAD{k}:"), I(f"s_cbranch_execz L_PADN{k}")]
            k += 1
        if stop: break
        b += 0x1000
    if OPT.get('rpad'):
        labs = [i for i, x in enumerate(body) if re.match(r'L_RETRY\d+:', x.text)]
        for n in sorted(labs[-int(OPT['rpad']):], reverse=True):
            body[n+1:n+1] = [I(f"L_PAD{k}:"), I(f"s_cbranch_execz L_PADN{k}")]; k += 1
    for x in body:
        m_ = re.match(r's_cbranch_execz L_PADN(\d+)', x.text)
        if m_:
            t = int(m_.group(1)) + 4
            x.text = f"s_cbranch_execz L_PAD{t}" if t < k else "s_cbranch_execz L_PADX"
    print(f"; {k} pads", file=sys.stderr)
print(render(body))
```
